```python
import torch

def _softmax(x, axis=-1):
    return torch.softmax(x, dim=axis)
def _gelu(x):
    return torch.nn.functional.gelu(x, approximate="tanh")
def _silu(x):
    return torch.nn.functional.silu(x)
def _sigmoid(x):
    return torch.sigmoid(x)
def _layernorm(x, axis=-1, eps=1e-5):
    m = x.mean(dim=axis, keepdim=True)
    v = x.var(dim=axis, keepdim=True, unbiased=False)
    return (x - m) / torch.sqrt(v + eps)
def _scatter_add(tgt, idx, src, axis=0):
    return tgt.clone().index_add_(axis, idx, src)
def _segment_sum(src, seg, n):
    out = torch.zeros((n,) + src.shape[1:], dtype=src.dtype)
    return out.index_add_(0, seg, src)
def _pad(x, pw):
    flat = tuple(v for pair in reversed(pw) for v in pair)
    return torch.nn.functional.pad(x, flat)

kernel_name = 'gated_mix__linear_kernel_hedgehog__dense_activation_relu__prompt'

def setup_inputs():

    _w = (lambda a: (lambda t: t.to(torch.bfloat16) if t.is_floating_point() else t)(torch.as_tensor(a)))
    def _A_setup():
        B, S, D, H = 1, 2048, 512, 32
        Dh = D // H
        return {
            "x": _w((lambda *s: torch.randn(*s, dtype=torch.bfloat16) * 0.05)(B, S, D)),
            "wqkv": _w((lambda *s: torch.randn(*s, dtype=torch.bfloat16) * 1.6)(D, 3 * D)),
            "w_phi": _w((lambda *s: torch.randn(*s, dtype=torch.bfloat16) * 1.6)(H, Dh, Dh) * (Dh ** -0.5)),
            "wo": _w((lambda *s: torch.randn(*s, dtype=torch.bfloat16) * 0.1)(D, D)),
        }
    _A_in = _A_setup()

    def _B_setup():
        B, S, D, Dff = 1, 2048, 512, 1376
        return {
            "x": _w((lambda *s: torch.randn(*s, dtype=torch.bfloat16) * 0.05)(B, S, D)),
            "w1": _w((lambda *s: torch.randn(*s, dtype=torch.bfloat16) * 0.05)(D, Dff)),
            "w2": _w((lambda *s: torch.randn(*s, dtype=torch.bfloat16) * 0.05)(Dff, D)),
        }
    _B_in = _B_setup()

    return {
        "A_x": _A_in["x"],
        "A_wqkv": _A_in["wqkv"],
        "A_w_phi": _A_in["w_phi"],
        "A_wo": _A_in["wo"],
        "B_x": _B_in["x"],
        "B_w1": _B_in["w1"],
        "B_w2": _B_in["w2"],
        "gate_w": _w((lambda *s: torch.randn(*s, dtype=torch.bfloat16) * 0.05)(512) * 16.0),
    }

def reference(A_x, A_wqkv, A_w_phi, A_wo, B_x, B_w1, B_w2, gate_w):
    def _A_ref(x, wqkv, w_phi, wo):
        B, S, D = x.shape
        H = 32; Dh = D // H
        qkv = (lambda x, *d: x.permute(*d))((x @ wqkv).reshape(B, S, 3, H, Dh), 2, 0, 3, 1, 4)
        q, k, v = qkv[0], qkv[1], qkv[2]
        pq = torch.einsum("bhsd,hdf->bhsf", q, w_phi)
        pk = torch.einsum("bhsd,hdf->bhsf", k, w_phi)
        phi_q = torch.concatenate([_softmax(pq, axis=-1), _softmax(-pq, axis=-1)], axis=-1)
        phi_k = torch.concatenate([_softmax(pk, axis=-1), _softmax(-pk, axis=-1)], axis=-1)
        kv = torch.einsum("bhsf,bhsd->bhfd", phi_k, v)
        z  = torch.einsum("bhsf->bhf", phi_k)
        num = torch.einsum("bhqf,bhfd->bhqd", phi_q, kv)
        den = torch.einsum("bhqf,bhf->bhq", phi_q, z)[..., None] + 1e-6
        o = num / den
        return (lambda x, *d: x.permute(*d))(o, 0, 2, 1, 3).reshape(B, S, D) @ wo

    def _B_ref(x, w1, w2):
        h = torch.einsum("bsd,df->bsf", x, w1)
        zero = torch.zeros_like(h)
        h = torch.maximum(h, zero)
        return torch.einsum("bsf,fd->bsd", h, w2)

    x = A_x
    g = _sigmoid((x * gate_w).sum(-1, keepdims=True))
    a = _A_ref(x, A_wqkv, A_w_phi, A_wo)
    b = _B_ref(x, B_w1, B_w2)
    return g * a + (1 - g) * b
```

```python
import re

def regs_of(op):
    op = op.strip()
    neg = op.startswith('-')
    if neg: op = op[1:]
    if op.startswith('abs(') or op.startswith('|'):
        op = op.strip('|').replace('abs(', '').rstrip(')')
    m = re.fullmatch(r'([vas])\[(\d+):(\d+)\]', op)
    if m: return {f"{m.group(1)}{i}" for i in range(int(m.group(2)), int(m.group(3)) + 1)}
    m = re.fullmatch(r'([vas])(\d+)', op)
    if m: return {op}
    if op in ('vcc', 'vcc_lo', 'vcc_hi'): return {'vcc'}
    if op in ('exec', 'exec_lo', 'exec_hi'): return {'exec'}
    if op == 'm0': return {'m0'}
    return set()

TRANS = ('v_exp_f32', 'v_log_f32', 'v_rcp_f32', 'v_rsq_f32', 'v_sqrt_f32', 'v_sin_f32', 'v_cos_f32')

class Ins:
    def __init__(self, text):
        self.text = text
        t = text.split(';')[0].strip()
        self.label = t[:-1] if t.endswith(':') else None
        self.kind = None; self.w = set(); self.r = set(); self.states = 1
        self.srcc = set(); self.ab = set(); self.passes = 0; self.stdata = set(); self.target = None
        if self.label is not None or not t or t.startswith('.'):
            self.kind = 'meta'; self.states = 0; return
        parts = t.split(None, 1)
        mn = parts[0]; self.mn = mn
        rest = parts[1] if len(parts) > 1 else ''
        rest = re.sub(r'(op_sel|op_sel_hi|neg_lo|neg_hi|quad_perm):\[[^\]]*\]', lambda m: m.group(0).replace(',', '|'), rest)
        ops = [o.strip() for o in rest.split(',')] if rest else []
        if ops:
            last = ops[-1].split()
            mods = last[1:]; ops[-1] = last[0] if last else ''
        else: mods = []
        self.mods = mods
        R = lambda i: regs_of(ops[i]) if i < len(ops) else set()
        if mn.startswith('v_mfma'):
            self.kind = 'mfma'; self.w = R(0); self.ab = R(1) | R(2); self.srcc = R(3); self.r = self.ab | self.srcc
            self.passes = 8 if '32x32x16' in mn else 4
            self.dst_txt = ops[0]; self.c_txt = ops[3]
        elif mn.startswith('v_'):
            self.kind = 'valu'
            if mn.startswith('v_permlane') and 'swap' in mn:
                self.w = R(0) | R(1); self.r = R(0) | R(1)
            elif mn.startswith('v_cmp'):
                self.w = R(0); self.r = set().union(*[R(i) for i in range(1, len(ops))])
            else:
                self.w = R(0); self.r = set().union(*[R(i) for i in range(1, len(ops))]) if len(ops) > 1 else set()
                if mn.startswith(('v_add_co', 'v_sub_co', 'v_addc_co', 'v_subb_co')):
                    self.w = R(0) | R(1); self.r = set().union(*[R(i) for i in range(2, len(ops))])
                if mn.startswith(('v_fmac', 'v_writelane', 'v_dot2c')): self.r |= R(0)
                if mn.startswith('v_cndmask') and len(ops) == 3: self.r |= {'vcc'}
            self.trans = mn.replace('_e32', '').replace('_e64', '') in TRANS
            self.dpp = any(m.startswith(('row_', 'quad_perm', 'wave_')) for m in mods) or mn.endswith('_dpp')
        elif mn.startswith('ds_'):
            self.kind = 'ds'
            if mn.startswith('ds_read'): self.w = R(0); self.r = R(1)
            else: self.r = set().union(*[R(i) for i in range(len(ops))])
        elif mn.startswith(('buffer_', 'global_')):
            self.kind = 'vmem'
            lds = 'lds' in mods
            if mn.startswith('buffer_load') and lds:
                self.r = R(0) | R(1) | R(2) | {'m0'}; self.dma = True
            elif mn.startswith('buffer_load'):
                self.w = R(0); self.r = R(1) | R(2) | R(3)
            elif mn.startswith('global_load'):
                self.w = R(0); self.r = R(1) | R(2)
            elif mn.startswith(('buffer_store', 'buffer_atomic')):
                self.r = R(0) | R(1) | R(2) | R(3)
                if 'x4' in mn or 'x3' in mn: self.stdata = R(0)
            else:
                self.r = set().union(*[R(i) for i in range(len(ops))]) if ops else set()
        elif mn.startswith('s_'):
            self.kind = 'salu'
            if mn == 's_nop': self.states = int(ops[0], 0) + 1
            elif mn.startswith(('s_cbranch', 's_branch')): self.target = ops[0]
            elif mn.startswith(('s_waitcnt', 's_barrier', 's_endpgm', 's_sleep', 's_setprio', 's_cmp', 's_bitcmp')):
                self.r = set().union(*[R(i) for i in range(len(ops))]) if ops else set()
            else:
                self.w = R(0); self.r = set().union(*[R(i) for i in range(1, len(ops))]) if len(ops) > 1 else set()
                if 'saveexec' in mn: self.w |= {'exec'}
                if mn.startswith('s_cmov'): self.r |= R(0)
        else:
            raise ValueError("unknown instr: " + text)

def need(p, c):
    n = 0
    isv = lambda s: {x for x in s if x[0] in 'va' and x != 'vcc'}
    iss = lambda s: {x for x in s if x[0] == 's' or x == 'vcc'}
    if p.kind == 'valu':
        pv = isv(p.w); ps = iss(p.w)
        if c.kind == 'mfma' and pv & c.r: n = max(n, 2)
        if c.kind == 'valu':
            if p.trans and not c.trans and pv & c.r: n = max(n, 1)
            if c.mn.startswith('v_permlane') and pv & c.r: n = max(n, 2)
            if c.dpp and pv & c.r: n = max(n, 2)
            if c.mn.startswith(('v_readlane', 'v_readfirstlane')) and pv & c.r: n = max(n, 1)
            if ps & c.r: n = max(n, 4 if c.mn.startswith(('v_readlane', 'v_writelane')) else 2)
        if p.trans and c.kind in ('ds', 'vmem', 'mfma') and pv & c.r: n = max(n, 2 if c.kind == 'mfma' else 1)
        if c.kind == 'vmem' and ps & c.r: n = max(n, 5)
        if c.kind == 'salu' and ps & c.r: n = max(n, 1)
    if p.kind == 'mfma':
        big = {8: 12, 4: 8}[p.passes]; ov = {8: 10, 4: 6}[p.passes]; war = {8: 7, 4: 3}[p.passes]
        if c.kind == 'mfma':
            if p.w & c.ab: n = max(n, big)
            if p.w & c.srcc and not (p.dst_txt == c.c_txt and p.passes == c.passes): n = max(n, ov)
            if p.w & c.w and not (p.dst_txt == c.c_txt and p.passes == c.passes) and not (p.w & c.srcc): n = max(n, ov)
        elif c.kind in ('valu', 'ds', 'vmem'):
            if p.w & (c.r | c.w): n = max(n, big)
            if c.kind == 'valu' and p.srcc & c.w: n = max(n, war)
    if p.kind == 'vmem' and p.stdata and (p.stdata & c.w):
        n = max(n, 2 if c.kind in ('valu', 'mfma') else 1)
    if p.kind == 'salu' and 'm0' in p.w and c.kind == 'vmem' and getattr(c, 'dma', False): n = max(n, 1)
    return n

def pad_hazards(lines, verbose=False):
    out = []
    win = []
    saved = {}
    seen = set()
    nins = 0
    for text in lines:
        ins = Ins(text)
        if ins.kind == 'meta':
            if ins.label:
                seen.add(ins.label)
                for wv in saved.pop(ins.label, []):
                    win = win + [list(x) for x in wv]
            out.append(text); continue
        req = 0
        for p, d in win:
            n = need(p, ins)
            if n - d > req: req = n - d
        while req > 0:
            k = min(req, 16)
            out.append(f"s_nop {k-1}"); nins += 1
            for e in win: e[1] += k
            req -= k
        out.append(text)
        for e in win: e[1] += ins.states
        win = [e for e in win if e[1] < 20]
        win.append([ins, 0])
        if ins.target is not None:
            if ins.target not in seen:
                saved.setdefault(ins.target, []).append([list(x) for x in win])
            if ins.mn == 's_branch' and not ins.target.startswith('L_ret'): win = []
        if ins.kind == 'salu' and ins.mn == 's_endpgm': win = []
    if verbose: print("hazard nops inserted:", nins)
    return out

class Cnt:
    def __init__(self, name, maxv): self.name = name; self.q = []; self.maxv = maxv
    def issue(self, tag): self.q.append(tag); assert len(self.q) <= self.maxv + 0 or True
    def need(self, tag):
        idx = max((i for i, t in enumerate(self.q) if t == tag), default=-1)
        if idx < 0: return None
        n = len(self.q) - 1 - idx
        self.q = self.q[idx+1:]
        return min(n, self.maxv)
    def copy(self):
        c = Cnt(self.name, self.maxv); c.q = list(self.q); return c

class Asm:
    def __init__(self):
        self.L = []; self.vm = Cnt('vmcnt', 63); self.lg = Cnt('lgkmcnt', 15); self.uid = 0
    def __call__(self, s):
        for l in s.split('\n'):
            l = l.strip()
            if l: self.L.append(l)
    def vmem(self, s, tag):
        self(s); self.vm.issue(tag)
        assert len(self.vm.q) <= 63, ("vmcnt overflow", self.vm.q)
    def ds(self, s, tag):
        self(s); self.lg.issue(tag)
        assert len(self.lg.q) <= 15, ("lgkmcnt overflow", self.lg.q)
    def wait(self, vm=None, lg=None):
        parts = []
        if vm is not None:
            n = self.vm.need(vm)
            if n is not None: parts.append(f"vmcnt({n})")
        if lg is not None:
            n = self.lg.need(lg)
            if n is not None: parts.append(f"lgkmcnt({n})")
        if parts: self("s_waitcnt " + " ".join(parts))
    def wait_all(self, vm=False, lg=False):
        parts = []
        if vm: parts.append("vmcnt(0)"); self.vm.q = []
        if lg: parts.append("lgkmcnt(0)"); self.lg.q = []
        self("s_waitcnt " + " ".join(parts))
    def label(self, base):
        self.uid += 1; return f"L_{base}_{self.uid}"
```

```python
import sys, json
from asmlib import *

NAME = "gated_mix__linear_kernel_hedgehog__dense_activation_relu__prompt"
H_OFF = 0; H_SIZE = 86*65536
G_OFF = 0x5A0000; O_OFF = 0x600000; P_OFF = 0x800000; PZ_OFF = 0x900000
F_OFF = 0x920000; FZ_OFF = 0x930000; FH_OFF = 0x940000; FO_OFF = 0x942000; ACK_OFF = 0x948000
E_OFF = 0x950000; ST_OFF = 0xA00000; WS_SIZE = 0x1000000
OOB = 0x7ffffff0
XS = lambda s: s*16384
WSL = lambda s: 49152 + s*16384
R = 98304
RING = lambda d: ((d + 3) % 5)*16384
KVT = 81920
SPIN = 40000
SX, SWA, SWB, SW2, SWO, SWS, SH, SOUT, STMP, SDBG = [f"s[{28+4*i}:{31+4*i}]" for i in range(10)]
sC, sRB, sJ, sHG, sW, sTG, sBB, sC0, sTAG, sMODE, sStrA64, sStrA4, sStrB64, sType, sW1k, sW2k, sL2E, sU0, sU1, sE = [f"s{68+i}" for i in range(20)]
T0, T1, T2, T3, T4, T5 = [f"s{88+i}" for i in range(6)]
sSPIN = "s94"; sXCC = "s95"; sSV = "s[96:97]"; sM = "s[98:99]"
vL = "v0"
vX0, vX1, vWA, vWB, vXR0, vXR1, vXR2, vXR3, vAR0, vAR1, vBR = [f"v{1+i}" for i in range(11)]
vW2, vPR0, vPR1, vPM0, vPM1, vPO0, vPO1, vHL, vHS, vFL, vG = [f"v{12+i}" for i in range(11)]
V0, V1, V2, V3, V4, V5, V6, V7 = [f"v{24+i}" for i in range(8)]
ACC0, ACC1, ACCB, FR, WP0, WP1, PHI = 32, 48, 64, 80, 104, 108, 112
ACCF, ACCA, FR2 = 32, 64, 96
vr = lambda b, n: f"v[{b}:{b+n-1}]"
ar = lambda b, n: f"a[{b}:{b+n-1}]"

class Gen:
    def __init__(self, opt):
        self.o = opt; self.a = Asm(); self.nst = 0
    def stamp(self, i):
        if not self.o.get('stamps'): return
        a = self.a
        a("s_memtime s[26:27]"); a("s_waitcnt lgkmcnt(0)"); a.lg.q = []
        a(f"v_writelane_b32 v23, s26, {i}")
    def csel(self, dst, x, y):
        self.a(f"s_mov_b32 {dst}, {y}"); self.a(f"s_cmov_b32 {dst}, {x}")
    def srd(self, s, base, size):
        a = self.a; b = int(s[2:s.index(':')])
        a(f"s_mov_b32 s{b}, s{base}"); a(f"s_mov_b32 s{b+1}, s{base+1}")
        a(f"s_mov_b32 s{b+2}, {size}"); a(f"s_mov_b32 s{b+3}, 0x20000")
    def dma(self, voff, srd, soff, m0expr, tag):
        a = self.a
        a(m0expr); a.vmem(f"buffer_load_dwordx4 {voff}, {srd}, {soff} offen lds", tag)
    def dmaA(self, c):
        a = self.a; s = c % 3
        a(f"s_add_u32 {T0}, {sC0}, {c}"); a(f"s_and_b32 {T0}, {T0}, 7")
        a(f"s_lshl_b32 {T1}, {T0}, 7"); a(f"s_mul_i32 {T2}, {T0}, {sStrA64}"); a(f"s_add_u32 {T3}, {T2}, {sStrA4}")
        self.dma(vX0, SX, T1, f"s_add_u32 m0, {sW2k}, {XS(s)}", f"c{c}")
        self.dma(vWA, SWA, T2, f"s_add_u32 m0, {sW2k}, {WSL(s)}", f"c{c}")
        self.dma(vX1, SX, T1, f"s_add_u32 m0, {sW2k}, {XS(s)+1024}", f"c{c}")
        self.dma(vWA, SWA, T3, f"s_add_u32 m0, {sW2k}, {WSL(s)+1024}", f"c{c}")
    def dmaB(self, ci):
        a = self.a
        a(f"s_add_u32 {T0}, {sC0}, {ci}"); a(f"s_and_b32 {T0}, {T0}, 7"); a(f"s_mul_i32 {T2}, {T0}, {sStrB64}")
        self.dma(vWB, SWB, T2, f"s_add_u32 m0, {sW1k}, {R + ci*8192}", "B")
    def unit_of(self, d, dst):
        a = self.a
        if d < 8:
            a(f"s_add_u32 {dst}, {sU0}, {d}"); a(f"s_and_b32 {dst}, {dst}, 7"); a(f"s_lshl_b32 {dst}, {dst}, 1")
        else:
            a(f"s_add_u32 {dst}, {sU1}, {d-8}"); a(f"s_cmp_ge_u32 {dst}, 3"); a(f"s_cselect_b32 {T5}, 3, 0")
            a(f"s_sub_u32 {dst}, {dst}, {T5}"); a(f"s_lshl_b32 {dst}, {dst}, 1"); a(f"s_add_u32 {dst}, {dst}, 16")
    def dmaW2(self, d):
        a = self.a
        self.unit_of(d, T0); a(f"s_lshl_b32 {T0}, {T0}, 16"); a(f"s_add_u32 {T1}, {T0}, 0x10000")
        self.dma(vW2, SW2, T0, f"s_add_u32 m0, {sW1k}, {RING(d)}", f"w2_{d}")
        self.dma(vW2, SW2, T1, f"s_add_u32 m0, {sW1k}, {RING(d)+8192}", f"w2_{d}")
    def dmaWO(self):
        a = self.a
        for i in range(8):
            a(f"s_mov_b32 {T0}, {i*65536}")
            self.dma(vW2, SWO, T0, f"s_add_u32 m0, {sW1k}, {R + i*8192}", "wo")
    def ldH(self, d):
        a = self.a
        self.unit_of(d, T0); a(f"s_lshl_b32 {T0}, {T0}, 18"); a(f"s_add_u32 {T1}, {T0}, 0x40000")
        a.vmem(f"buffer_load_dwordx4 {ar(8*d,4)}, {vHL}, {SH}, {T0} offen sc1", f"h{d}")
        a.vmem(f"buffer_load_dwordx4 {ar(8*d+4,4)}, {vHL}, {SH}, {T1} offen sc1", f"h{d}")
    def poll_flags(self, mask, pre_issued=None):
        a = self.a; L = a.label("pf"); Ld = a.label("pfd")
        if pre_issued is None:
            a.vmem(f"buffer_load_dword {V0}, {vFL}, {SWS}, 0 offen sc1", "pf"); pre_issued = "pf"
        a.wait(vm=pre_issued)
        a(f"s_mov_b32 {sSPIN}, {SPIN}")
        a(f"{L}:")
        a(f"v_cmp_ne_u32 vcc, {sTAG}, {V0}"); a("s_nop 1")
        a(f"s_and_b32 {T0}, vcc_lo, {mask:#x}"); a(f"s_cbranch_scc0 {Ld}")
        a(f"s_sub_u32 {sSPIN}, {sSPIN}, 1"); a(f"s_cbranch_scc1 {Ld}")
        a(f"buffer_load_dword {V0}, {vFL}, {SWS}, 0 offen sc1"); a("s_waitcnt vmcnt(0)")
        a(f"s_branch {L}")
        a(f"{Ld}:")
    def get_mode_issue(self):
        a = self.a
        a(f"s_lshl_b32 {T0}, {sC}, 5")
        a.vmem(f"buffer_load_dword {V7}, off, {SDBG}, {T0} sc1", "mode")
    def get_mode_wait(self):
        a = self.a; L = a.label("gm"); Ld = a.label("gmd")
        a.wait(vm="mode")
        a(f"s_mov_b32 {sSPIN}, {SPIN}")
        a(f"{L}:")
        a(f"v_readfirstlane_b32 {T1}, {V7}"); a("s_nop 1")
        a(f"s_and_b32 {T2}, {T1}, 0xff"); a(f"s_cmp_eq_u32 {T2}, 32"); a(f"s_cbranch_scc1 {Ld}")
        a(f"s_sub_u32 {sSPIN}, {sSPIN}, 1"); a(f"s_cbranch_scc1 {Ld}")
        a(f"s_lshl_b32 {T0}, {sC}, 5")
        a(f"buffer_load_dword {V7}, off, {SDBG}, {T0} sc1"); a("s_waitcnt vmcnt(0)")
        a(f"s_branch {L}")
        a(f"{Ld}:")
        a(f"s_mul_i32 {T2}, {sXCC}, {sXCC}"); a(f"s_lshl_b32 {T2}, {T2}, 16"); a(f"s_lshl_b32 {T3}, {sXCC}, 8")
        a(f"s_add_u32 {T2}, {T2}, {T3}"); a(f"s_add_u32 {T2}, {T2}, 1"); a(f"s_lshl_b32 {T2}, {T2}, 5")
        a(f"s_cmp_eq_u32 {T1}, {T2}"); a(f"s_cselect_b32 {sMODE}, 1, 0")
        if self.o.get('force_slow'): a(f"s_mov_b32 {sMODE}, 0")
    def store_mode(self, fn, tag, n):
        a = self.a; Ls = a.label("sl"); Ld = a.label("sd")
        a(f"s_cmp_eq_u32 {sMODE}, 1"); a(f"s_cbranch_scc0 {Ls}")
        fn(""); a(f"s_branch {Ld}")
        a(f"{Ls}:"); fn(" sc1"); a(f"{Ld}:")
        for _ in range(n): a.vm.issue(tag)
    def flag_store(self, base, idx):
        a = self.a
        a(f"s_lshl_b32 {T0}, {sRB}, 2"); a(f"s_add_u32 {T0}, {T0}, {sTG}"); a(f"s_lshl_b32 {T0}, {T0}, 1"); a(f"s_add_u32 {T0}, {T0}, {sBB}")
        a(f"s_lshl_b32 {T0}, {T0}, 6"); a(f"s_lshl_b32 {T1}, {idx}, 2"); a(f"s_add_u32 {T0}, {T0}, {T1}"); a(f"s_add_u32 {T0}, {T0}, {base}")
        a(f"v_mov_b32 {V1}, {sTAG}")
        a(f"s_mov_b64 exec, 1")
        self.store_mode(lambda f: a(f"buffer_store_dword {V1}, off, {SWS}, {T0}{f}"), "flag", 1)
        a(f"s_mov_b64 exec, -1")
    def ack_store(self):
        a = self.a
        a(f"s_lshl_b32 {T0}, s2, 2"); a(f"s_add_u32 {T0}, {T0}, {ACK_OFF}")
        a(f"s_cmp_eq_u32 {sW}, 0"); a(f"s_cselect_b32 {T0}, {T0}, {OOB}")
        a(f"v_mov_b32 {V1}, {sTAG}")
        a(f"s_mov_b64 exec, 1")
        a.vmem(f"buffer_store_dword {V1}, off, {SWS}, {T0} sc1", "ack")
        a(f"s_mov_b64 exec, -1")
    def prologue(self):
        a = self.a; o = self.o
        a("s_cmp_ge_u32 s2, 256"); a("s_cbranch_scc1 L_end")
        a("s_load_dwordx16 s[4:19], s[0:1], 0"); a("s_load_dwordx4 s[20:23], s[0:1], 64"); a("s_load_dwordx2 s[24:25], s[0:1], 80")
        if o.get('stamps'):
            a("s_memtime s[26:27]")
        a(f"v_lshrrev_b32 {V0}, 6, v0"); a(f"v_and_b32 {vL}, 63, v0"); a(f"v_readfirstlane_b32 {sW}, {V0}")
        a(f"s_and_b32 {sC}, s2, 7"); a(f"s_lshr_b32 {T0}, s2, 3"); a(f"s_and_b32 {T1}, {T0}, 1"); a(f"s_lshr_b32 {sJ}, {T0}, 1")
        a(f"s_lshl_b32 {sRB}, {sC}, 1"); a(f"s_or_b32 {sRB}, {sRB}, {T1}")
        a(f"s_and_b32 {sType}, {sJ}, 1"); a(f"s_lshr_b32 {sHG}, {sJ}, 1")
        a(f"s_lshl_b32 {T2}, {T1}, 2"); a(f"s_add_u32 {sC0}, {sJ}, {T2}")
        if o.get('rotc', 0): a(f"s_add_u32 {sC0}, {sC0}, {sC}")
        a(f"s_and_b32 {sC0}, {sC0}, 7")
        a(f"s_and_b32 {sTG}, {sW}, 3"); a(f"s_lshr_b32 {sBB}, {sW}, 2"); a(f"s_lshl_b32 {sW1k}, {sW}, 10"); a(f"s_lshl_b32 {sW2k}, {sW}, 11")
        a(f"s_cmp_eq_u32 {sType}, 0")
        self.csel(T3, 3072, 2752); self.csel(T5, 1024, 128); a(f"s_cselect_b32 {T2}, 7, 8")
        a(f"s_cselect_b32 {T1}, 1024, 0"); a(f"s_lshl_b32 {T4}, {sHG}, {T2}"); a(f"s_add_u32 {T4}, {T4}, {T1}")
        a(f"s_lshl_b32 {sStrA64}, {T3}, 6"); a(f"s_lshl_b32 {sStrA4}, {T3}, 2")
        a(f"s_lshl_b32 {T0}, {sRB}, 7"); a(f"s_lshl_b32 {T1}, {sW}, 4"); a(f"s_add_u32 {T0}, {T0}, {T1}"); a(f"s_lshl_b32 {T0}, {T0}, 10")
        a(f"v_lshrrev_b32 {V0}, 3, {vL}"); a(f"v_lshrrev_b32 {V1}, 4, {vL}"); a(f"v_and_b32 {V2}, 7, {vL}")
        a(f"v_xor_b32 {V3}, {V2}, {V1}"); a(f"v_lshlrev_b32 {V3}, 4, {V3}"); a(f"v_lshl_add_u32 {vX0}, {V0}, 10, {V3}"); a(f"v_add_u32 {vX0}, {T0}, {vX0}")
        a(f"v_xor_b32 {vX1}, 64, {vX0}"); a(f"v_add_u32 {vX1}, 0x2000, {vX1}")
        a(f"s_lshl_b32 {T1}, {sW}, 3")
        a(f"v_add_u32 {V3}, {T1}, {V1}"); a(f"v_mul_lo_u32 {vWA}, {V3}, {T3}")
        a(f"v_and_b32 {V3}, 15, {vL}"); a(f"v_lshlrev_b32 {V4}, 2, {V1}"); a(f"v_xor_b32 {V3}, {V3}, {V4}")
        a(f"v_lshrrev_b32 {V4}, 3, {V3}"); a(f"v_mul_lo_u32 {V4}, {V4}, {T5}"); a(f"v_and_b32 {V3}, 7, {V3}")
        a(f"v_lshl_add_u32 {V4}, {V3}, 4, {V4}"); a(f"v_add3_u32 {vWA}, {vWA}, {V4}, {T4}")
        a("s_waitcnt lgkmcnt(0)")
        if o.get('stamps'): a("v_writelane_b32 v23, s26, 0")
        self.srd(SX, 4, 0x200000)
        a(f"s_cmp_eq_u32 {sType}, 0")
        a("s_cselect_b32 s32, s6, s14"); a("s_cselect_b32 s33, s7, s15"); self.csel("s34", 512*3072, 512*2752); a("s_mov_b32 s35, 0x20000")
        self.dmaA(0); self.dmaA(1); self.dmaA(2)
        self.stamp(1)
        a(f"s_cmp_eq_u32 {sType}, 0")
        a("s_cselect_b32 s36, s14, s6"); a("s_cselect_b32 s37, s15, s7"); self.csel("s38", 512*2752, 512*3072); a("s_mov_b32 s39, 0x20000")
        self.csel(T3, 2752, 3072); a(f"s_cselect_b32 {T4}, 16, 0")
        a(f"s_lshl_b32 {sStrB64}, {T3}, 6"); a(f"s_add_u32 {T4}, {T4}, {sHG}"); a(f"s_lshl_b32 {T4}, {T4}, 7")
        a(f"s_cmp_ge_u32 {T4}, 2752"); a(f"s_cselect_b32 {T4}, 0x40000000, {T4}")
        self.srd(SW2, 16, 1376*1024); self.srd(SWO, 10, 512*1024); self.srd(SWS, 24, WS_SIZE); self.srd(SH, 24, H_SIZE)
        self.srd(SOUT, 20, 0x200000); self.srd(SDBG, 22, 256); self.srd(STMP, 8, 16384)
        a(f"v_and_b32 {V3}, 1, {V1}"); a(f"v_lshlrev_b32 {V3}, 2, {V3}"); a(f"v_xor_b32 {V3}, {V3}, {V2}"); a(f"v_lshlrev_b32 {V3}, 4, {V3}")
        a(f"s_lshl_b32 {T1}, {sW}, 3"); a(f"v_add_u32 {V4}, {T1}, {V0}")
        a(f"v_mul_lo_u32 {vWB}, {V4}, {T3}"); a(f"v_add3_u32 {vWB}, {vWB}, {V3}, {T4}")
        a(f"s_lshl_b32 {T1}, {sHG}, 7"); a(f"v_lshl_add_u32 {vW2}, {V4}, 10, {V3}"); a(f"v_add_u32 {vW2}, {T1}, {vW2}")
        a(f"s_lshl_b32 {T0}, {sHG}, 11"); a(f"s_lshl_b32 {T1}, {sBB}, 10"); a(f"s_add_u32 {T0}, {T0}, {T1}")
        a(f"s_cmp_eq_u32 {sTG}, 0"); a(f"s_cselect_b32 {T0}, {T0}, 0x10000")
        a(f"v_lshlrev_b32 {V5}, 4, {vL}")
        self.dma(V5, STMP, T0, f"s_add_u32 m0, {sW1k}, {R}", "misc")
        a(f"s_mov_b32 {T0}, {E_OFF}")
        a.vmem(f"buffer_load_dword {V6}, off, {SWS}, {T0} sc1", "misc")
        a(f"s_lshl_b32 {T0}, {sRB}, 2"); a(f"s_lshl_b32 {T1}, {sType}, 1"); a(f"s_add_u32 {T0}, {T0}, {T1}"); a(f"s_and_b32 {T1}, {sW}, 1"); a(f"s_add_u32 {T0}, {T0}, {T1}")
        a(f"s_lshr_b32 {T1}, {sW}, 1")
        a(f"s_lshl_b32 {T2}, {T0}, 10"); a(f"s_lshl_b32 {T3}, {T1}, 16"); a(f"s_add_u32 {T2}, {T2}, {T3}"); a(f"v_add_u32 {vHL}, {T2}, {V5}")
        a(f"s_lshl_b32 {T2}, {T0}, 7"); a(f"s_add_u32 {T2}, {T2}, {G_OFF}")
        a(f"v_and_b32 {V3}, 31, {vL}"); a(f"v_lshlrev_b32 {V3}, 2, {V3}"); a(f"v_add_u32 {vG}, {T2}, {V3}")
        a(f"s_lshl_b32 {T0}, {T0}, 1"); a(f"s_lshr_b32 {T1}, {T1}, 1"); a(f"s_add_u32 {T0}, {T0}, {T1}"); a(f"s_lshl_b32 {T0}, {T0}, 6"); a(f"s_add_u32 {T0}, {T0}, {FH_OFF}")
        a(f"v_and_b32 {V3}, 15, {vL}"); a(f"v_lshlrev_b32 {V3}, 2, {V3}"); a(f"v_and_b32 {V4}, 1, {V1}"); a(f"v_lshl_add_u32 {V3}, {V4}, 13, {V3}"); a(f"v_add_u32 {vFL}, {T0}, {V3}")
        a.vmem(f"buffer_load_dword {V7}, {vFL}, {SWS}, 0 offen sc1", "misc")
        a(f"s_lshl_b32 {T0}, {sRB}, 2"); a(f"s_add_u32 {T0}, {T0}, {sTG}"); a(f"s_lshl_b32 {T0}, {T0}, 10"); a(f"s_lshl_b32 {T1}, {sBB}, 17"); a(f"s_add_u32 {T0}, {T0}, {T1}")
        a(f"v_add_u32 {vHS}, {T0}, {V5}")
        a(f"s_cmp_eq_u32 {sType}, 0"); self.csel(T1, 16*262144, O_OFF); a(f"s_lshl_b32 {T2}, {sHG}, 18"); a(f"s_add_u32 {T1}, {T1}, {T2}"); a(f"s_add_u32 {T0}, {T0}, {T1}")
        a(f"v_and_b32 {V3}, 31, {vL}"); a(f"v_lshlrev_b32 {V3}, 5, {V3}"); a(f"v_lshrrev_b32 {V4}, 5, {vL}"); a(f"v_lshl_add_u32 {V3}, {V4}, 16, {V3}")
        a.vmem(f"buffer_load_dword {V7}, {V3}, {SWS}, {T0} offen", "misc")
        a("s_getpc_b64 s[90:91]"); a("L_pc:")
        a(f"s_lshr_b32 {T0}, s2, 3"); a(f"s_lshl_b32 {T0}, {T0}, 3"); a(f"s_add_u32 {T0}, {T0}, {sW}"); a(f"s_lshl_b32 {T0}, {T0}, 7")
        a(f"s_min_u32 {T0}, {T0}, L_end-L_pc-4"); a(f"v_mov_b32 {V3}, {T0}")
        a.vmem(f"global_load_dword {V7}, {V3}, s[90:91]", "misc")
        a(f"s_getreg_b32 {sXCC}, hwreg(HW_REG_XCC_ID, 0, 4)")
        a(f"s_mul_i32 {T2}, {sXCC}, {sXCC}"); a(f"s_lshl_b32 {T2}, {T2}, 16"); a(f"s_lshl_b32 {T3}, {sXCC}, 8"); a(f"s_add_u32 {T2}, {T2}, {T3}"); a(f"s_add_u32 {T2}, {T2}, 1")
        a(f"s_lshl_b32 {T0}, {sC}, 5"); a(f"s_cmp_eq_u32 {sW}, 0"); a(f"s_cselect_b32 {T0}, {T0}, 0x1000")
        a(f"v_mov_b32 {V4}, {T2}")
        a("s_mov_b64 exec, 1")
        a.vmem(f"buffer_atomic_add {V4}, off, {SDBG}, {T0}", "misc")
        a("s_mov_b64 exec, -1")
        a(f"v_lshrrev_b32 {V0}, 5, {vL}"); a(f"v_bfe_u32 {V2}, {vL}, 2, 2")
        a(f"v_and_b32 {V3}, 1, {vL}"); a(f"v_bfe_u32 {V4}, {vL}, 1, 1"); a(f"v_lshl_add_u32 {V3}, {V3}, 1, {V4}"); a(f"v_lshlrev_b32 {V3}, 3, {V3}")
        a(f"v_and_b32 {V4}, 1, {V1}"); a(f"v_lshl_add_u32 {V3}, {V4}, 5, {V3}")
        a(f"v_lshl_add_u32 {V4}, {V0}, 3, {V2}")
        a(f"v_xor_b32 {V5}, {sBB}, {V2}"); a(f"v_lshlrev_b32 {V5}, 6, {V5}"); a(f"v_lshl_add_u32 {V5}, {V4}, 8, {V5}"); a(f"v_add_u32 {V5}, {V5}, {V3}")
        a(f"v_add_u32 {vAR0}, {WSL(0)}, {V5}"); a(f"v_xor_b32 {vAR1}, 128, {vAR0}")
        a(f"v_lshrrev_b32 {V5}, 1, {V2}"); a(f"v_lshlrev_b32 {V5}, 6, {V5}"); a(f"v_lshl_add_u32 {V5}, {V4}, 7, {V5}"); a(f"v_add_u32 {V5}, {V5}, {V3}")
        a(f"s_lshl_b32 {T0}, {sBB}, 6"); a(f"v_xor_b32 {vBR}, {T0}, {V5}"); a(f"v_add_u32 {vBR}, {R}, {vBR}")
        a(f"s_lshr_b32 {T0}, {sW}, 1"); a(f"s_lshl_b32 {T0}, {T0}, 11"); a(f"v_add_u32 {vPR0}, {T0}, {V5}"); a(f"v_xor_b32 {vPR1}, 64, {vPR0}")
        a(f"v_add_u32 {vPM0}, 0x10000, {vPR0}"); a(f"v_add_u32 {vPM1}, 0x10000, {vPR1}"); a(f"v_add_u32 {vPO0}, {R}, {vPR0}"); a(f"v_add_u32 {vPO1}, {R}, {vPR1}")
        a(f"v_and_b32 {V5}, 31, {vL}"); a(f"v_bfe_u32 {V2}, {vL}, 1, 3"); a(f"v_xor_b32 {V2}, {V2}, {V0}"); a(f"v_lshlrev_b32 {V2}, 4, {V2}")
        a(f"s_lshl_b32 {T0}, {sTG}, 12"); a(f"v_lshl_add_u32 {vXR0}, {V5}, 7, {V2}"); a(f"v_add_u32 {vXR0}, {T0}, {vXR0}")
        a(f"v_xor_b32 {vXR1}, 32, {vXR0}"); a(f"v_xor_b32 {vXR2}, 64, {vXR0}"); a(f"v_xor_b32 {vXR3}, 0x60, {vXR0}")
        a(f"v_and_b32 {V5}, 1, {V1}"); a(f"v_mul_u32_u24 {V5}, {512-32}, {V5}"); a(f"v_add_u32 {V5}, {V5}, {V3}"); a(f"v_lshl_add_u32 {V5}, {V4}, 5, {V5}")
        a(f"s_lshl_b32 {T0}, {sBB}, 12"); a(f"s_add_u32 {T0}, {T0}, {R}"); a(f"v_add_u32 {V5}, {T0}, {V5}")
        a(f"s_lshr_b32 {T0}, s2, 3"); a(f"s_and_b32 {T0}, {T0}, 3")
        a(f"s_lshl_b32 {T1}, {T0}, 1"); a(f"s_add_u32 {sU0}, {sHG}, {T1}"); a(f"s_and_b32 {sU0}, {sU0}, 7")
        a(f"s_add_u32 {T1}, {sHG}, {T0}"); a(f"s_mul_i32 {T2}, {T1}, 86"); a(f"s_lshr_b32 {T2}, {T2}, 8"); a(f"s_mul_i32 {T2}, {T2}, 3"); a(f"s_sub_u32 {sU1}, {T1}, {T2}")
        a(f"s_mov_b32 {sL2E}, 0x3fb8aa3b")
    def passA(self):
        a = self.a
        xr = [vXR0, vXR1, vXR2, vXR3]
        for c in range(8):
            s = c % 3
            a.wait(vm=f"c{c}")
            a("s_barrier")
            if c == 0: self.stamp(2)
            def reads(st):
                b = FR + 8*(st % 3)
                a.ds(f"ds_read_b128 {ar(16*c+4*st,4)}, {xr[st]} offset:{XS(s)}", f"r{st}")
                for u, v in ((0, vAR0), (1, vAR1)):
                    for e in range(2):
                        a.ds(f"ds_read_b64_tr_b16 {vr(b+4*u+2*e,2)}, {v} offset:{s*16384 + st*4096 + e*1024}", f"r{st}")
            reads(0); reads(1)
            if 1 <= c <= 5: self.dmaA(c + 2)
            if c == 6:
                for ci in range(4): self.dmaB(ci)
            if c == 7:
                for ci in range(4, 8): self.dmaB(ci)
            for st in range(4):
                if st + 2 < 4: reads(st + 2)
                a.wait(lg=f"r{st}")
                b = FR + 8*(st % 3)
                for u, acc in ((0, ACC0), (1, ACC1)):
                    cc = "0" if (c == 0 and st == 0) else vr(acc, 16)
                    a(f"v_mfma_f32_32x32x16_bf16 {vr(acc,16)}, {vr(b+4*u,4)}, {ar(16*c+4*st,4)}, {cc}")
            if c == 4:
                a.ds(f"ds_read_b64_tr_b16 {vr(WP0,2)}, {V5}", "wp"); a.ds(f"ds_read_b64_tr_b16 {vr(WP0+2,2)}, {V5} offset:128", "wp")
                a(f"v_readfirstlane_b32 {sE}, {V6}")
                a(f"v_and_b32 {V0}, 16, {vL}"); a(f"v_cmp_eq_u32 vcc, 0, {V0}")
                a(f"s_add_u32 {sE}, {sE}, 1"); a(f"s_mul_i32 {sTAG}, {sE}, 0x9E3779B1"); a(f"s_add_u32 {sTAG}, {sTAG}, 0x7F4A7C15")
                a.wait(lg="wp")
                for i in range(4):
                    a(f"v_cndmask_b32 v{WP1+i}, v{WP0+i}, 0, vcc".replace("v_cndmask_b32", "v_cndmask_b32_e64"))
                    a(f"v_cndmask_b32 v{WP0+i}, 0, v{WP0+i}, vcc")
        self.stamp(3)
        a("s_barrier")
    def passB(self):
        a = self.a
        def reads(st):
            b = FR + 4*(st % 6)
            for e in range(2):
                a.ds(f"ds_read_b64_tr_b16 {vr(b+2*e,2)}, {vBR} offset:{st*2048 + e*512}", f"b{st}")
        D = 5
        for st in range(D): reads(st)
        for st in range(32):
            if st + D < 32: reads(st + D)
            a.wait(lg=f"b{st}")
            cc = "0" if st == 0 else vr(ACCB, 16)
            a(f"v_mfma_f32_32x32x16_bf16 {vr(ACCB,16)}, {vr(FR+4*(st%6),4)}, {ar(4*st,4)}, {cc}")
    def h_pack(self, acc, dst):
        a = self.a
        for i in range(16): a(f"v_max_f32 v{acc+i}, 0, v{acc+i}")
        for i in range(8): a(f"v_cvt_pk_bf16_f32 v{dst+i}, v{acc+2*i}, v{acc+2*i+1}")
    def softmax2(self, acc, pq, e, sink, mid=None):
        a = self.a
        kf = FR
        for i in range(8): a(f"v_cvt_pk_bf16_f32 v{kf+i}, v{acc+2*i}, v{acc+2*i+1}")
        a(f"v_mfma_f32_32x32x16_bf16 {vr(pq,16)}, {vr(WP0,4)}, {vr(kf,4)}, 0")
        a(f"v_mfma_f32_32x32x16_bf16 {vr(pq,16)}, {vr(WP1,4)}, {vr(kf+4,4)}, {vr(pq,16)}")
        if mid: mid(-1)
        for hd in range(2):
            p = pq + 8*hd
            a(f"v_max3_f32 {V0}, v{p}, v{p+1}, v{p+2}"); a(f"v_max3_f32 {V1}, -v{p}, -v{p+1}, -v{p+2}")
            a(f"v_max3_f32 {V0}, {V0}, v{p+3}, v{p+4}"); a(f"v_max3_f32 {V1}, {V1}, -v{p+3}, -v{p+4}")
            a(f"v_max3_f32 {V0}, {V0}, v{p+5}, v{p+6}"); a(f"v_max3_f32 {V1}, {V1}, -v{p+5}, -v{p+6}")
            a(f"v_max_f32 {V0}, {V0}, v{p+7}"); a(f"v_max_f32_e64 {V1}, {V1}, -v{p+7}")
            a(f"v_permlane32_swap_b32 {V0}, {V1}")
            a(f"v_max_f32 {V0}, {V0}, {V1}"); a(f"v_mul_f32 {V0}, {sL2E}, {V0}"); a(f"v_mov_b32 {V1}, {V0}")
            a(f"v_permlane32_swap_b32 {V0}, {V1}")
            for i in range(8):
                a(f"v_fma_f32 v{e+i}, v{p+i}, {sL2E}, -{V0}"); a(f"v_fma_f32 v{e+8+i}, -v{p+i}, {sL2E}, -{V1}")
            for i in range(16): a(f"v_exp_f32 v{e+i}, v{e+i}")
            a(f"v_add_f32 {V0}, v{e}, v{e+1}"); a(f"v_add_f32 {V1}, v{e+8}, v{e+9}")
            a(f"v_add_f32 {V2}, v{e+2}, v{e+3}"); a(f"v_add_f32 {V3}, v{e+10}, v{e+11}")
            for i in (4, 6):
                a(f"v_add_f32 {V0}, {V0}, v{e+i}"); a(f"v_add_f32 {V1}, {V1}, v{e+8+i}")
                a(f"v_add_f32 {V2}, {V2}, v{e+i+1}"); a(f"v_add_f32 {V3}, {V3}, v{e+9+i}")
            a(f"v_add_f32 {V0}, {V0}, {V2}"); a(f"v_add_f32 {V1}, {V1}, {V3}")
            a(f"v_permlane32_swap_b32 {V0}, {V1}")
            a(f"v_add_f32 {V0}, {V0}, {V1}"); a(f"v_rcp_f32 {V0}, {V0}"); a(f"v_mov_b32 {V1}, {V0}")
            a(f"v_permlane32_swap_b32 {V0}, {V1}")
            for sg in range(2):
                for i in range(8): a(f"v_mul_f32 v{e+8*sg+i}, {V0 if sg == 0 else V1}, v{e+8*sg+i}")
                sink(hd, sg, e + 8*sg)
            if mid: mid(hd)
    def kv_epilogue(self):
        a = self.a
        self.dmaW2(0); self.dmaW2(1)
        a(f"v_and_b32 {V4}, 31, {vL}"); a(f"v_lshrrev_b32 {V5}, 5, {vL}"); a(f"v_lshlrev_b32 {V5}, 4, {V5}"); a(f"v_lshl_add_u32 {V4}, {V4}, 5, {V5}")
        a(f"s_lshl_b32 {T0}, {sTG}, 10"); a(f"s_lshl_b32 {T1}, {sBB}, 13"); a(f"s_add_u32 {T2}, {T0}, {T1}"); a(f"s_add_u32 {T3}, {T2}, {T1}")
        a(f"v_add_u32 {V5}, {T2}, {V4}"); a(f"v_add_u32 {V4}, {T3}, {V4}")
        vf = FR + 8
        for i in range(8): a(f"v_cvt_pk_bf16_f32 v{vf+i}, v{ACC1+2*i}, v{ACC1+2*i+1}")
        for hd in range(2): a.ds(f"ds_write_b128 {V5}, {vr(vf+4*hd,4)} offset:{32768 + hd*4096}", "kw")
        pk = FR + 16
        def sink(hd, sg, b):
            d = pk + 4*sg
            for i in range(4): a(f"v_cvt_pk_bf16_f32 v{d+i}, v{b+2*i}, v{b+2*i+1}")
            a.ds(f"ds_write_b128 {V4}, {vr(d,4)} offset:{(2*hd+sg)*4096}", "kw")
            if hd == 0 and sg == 1: a.wait(lg="kw")
        self.softmax2(ACC0, ACC0, ACC1, sink)
        a.wait(lg="kw")
        a("s_barrier")
        self.stamp(4)
        a(f"s_lshl_b32 {T0}, {sW}, 12"); a(f"s_lshr_b32 {T1}, {sW}, 1"); a(f"s_lshl_b32 {T1}, {T1}, 12"); a(f"s_add_u32 {T1}, {T1}, 32768")
        a(f"v_lshlrev_b32 {V0}, 3, {vL}"); a(f"v_add_u32 {V1}, {T1}, {V0}"); a(f"v_add_u32 {V0}, {T0}, {V0}")
        A, B, ONE, DK, DZ = ACC0, ACC1, FR, FR+4, FR+8
        for st in range(4):
            for e in range(2): a.ds(f"ds_read_b64_tr_b16 {vr(A+4*st+2*e,2)}, {V0} offset:{st*1024+e*512}", f"k{st}")
            if st == 3: a.wait(lg="k0")
            for e in range(2): a.ds(f"ds_read_b64_tr_b16 {vr(B+4*st+2*e,2)}, {V1} offset:{st*1024+e*512}", f"k{st}")
        for i in range(4): a(f"v_mov_b32 v{ONE+i}, 0x3f803f80")
        for st in range(4):
            a.wait(lg=f"k{st}")
            a(f"v_mfma_f32_16x16x32_bf16 {vr(DK,4)}, {vr(A+4*st,4)}, {vr(B+4*st,4)}, {'0' if st == 0 else vr(DK,4)}")
            a(f"v_mfma_f32_16x16x32_bf16 {vr(DZ,4)}, {vr(A+4*st,4)}, {vr(ONE,4)}, {'0' if st == 0 else vr(DZ,4)}")
        a(f"s_lshl_b32 {T0}, {sHG}, 4"); a(f"s_add_u32 {T0}, {T0}, {sRB}"); a(f"s_lshl_b32 {T0}, {T0}, 3"); a(f"s_add_u32 {T0}, {T0}, {sW}")
        a(f"s_lshl_b32 {T1}, {T0}, 10"); a(f"s_add_u32 {T1}, {T1}, {P_OFF}"); a(f"s_lshl_b32 {T2}, {T0}, 6"); a(f"s_add_u32 {T2}, {T2}, {PZ_OFF}")
        a(f"v_lshlrev_b32 {V0}, 4, {vL}"); a(f"v_and_b32 {V1}, 15, {vL}"); a(f"v_cmp_eq_u32 vcc, 0, {V1}"); a(f"v_mov_b32 {V2}, {OOB}")
        a(f"v_cndmask_b32 {V1}, {V2}, {vL}, vcc")
        a(f"s_mov_b32 {T3}, 0x07060501"); a(f"s_mov_b32 {T4}, 0x07060502"); a(f"s_mov_b32 {T5}, 0x07060503")
        for D in (DK, DZ):
            a(f"v_perm_b32 v{D}, v{D}, v{D+3}, {T3}"); a(f"v_perm_b32 v{D+1}, v{D+1}, v{D+3}, {T4}"); a(f"v_perm_b32 v{D+2}, v{D+2}, v{D+3}, {T5}")
            a(f"v_mov_b32 v{D+3}, {sTAG}")
        a.vmem(f"buffer_store_dwordx4 {vr(DK,4)}, {V0}, {SWS}, {T1} offen sc1", "part")
        a.vmem(f"buffer_store_dwordx4 {vr(DZ,4)}, {V1}, {SWS}, {T2} offen sc1", "part")
        self.ack_store()
        self.get_mode_issue()
        self.stamp(5)
    def reducer(self):
        a = self.a
        a(f"s_lshl_b32 {T0}, {sRB}, 1"); a(f"s_add_u32 {T0}, {T0}, {sHG}"); a(f"s_sub_u32 {T0}, {T0}, 6")
        a(f"s_lshr_b32 {T1}, {T0}, 2"); a(f"s_and_b32 {T0}, {T0}, 3"); a(f"s_lshl_b32 {T0}, {T0}, 1"); a(f"s_add_u32 {T0}, {T0}, {sBB}")
        a(f"s_lshl_b32 {T2}, {T1}, 7"); a(f"s_add_u32 {T2}, {T2}, {T0}")
        a(f"s_lshl_b32 {T3}, {T2}, 10"); a(f"s_lshl_b32 {T4}, {sTG}, 8"); a(f"s_add_u32 {T3}, {T3}, {T4}"); a(f"s_add_u32 {T3}, {T3}, {P_OFF}")
        a(f"v_lshrrev_b32 {V0}, 3, {vL}"); a(f"v_and_b32 {V1}, 7, {vL}"); a(f"v_lshlrev_b32 {V1}, 4, {V1}"); a(f"v_lshl_add_u32 {V2}, {V0}, 13, {V1}"); a(f"v_add_u32 {V2}, {T3}, {V2}")
        a(f"s_lshl_b32 {T3}, {T2}, 6"); a(f"s_add_u32 {T3}, {T3}, {PZ_OFF}")
        a(f"v_lshrrev_b32 {V0}, 2, {vL}"); a(f"v_and_b32 {V3}, 3, {vL}"); a(f"v_lshlrev_b32 {V3}, 4, {V3}"); a(f"v_lshl_add_u32 {V3}, {V0}, 9, {V3}"); a(f"v_add_u32 {V3}, {T3}, {V3}")
        a(f"s_lshl_b32 {T2}, {T1}, 3"); a(f"s_add_u32 {T2}, {T2}, {T0}")
        a(f"s_lshl_b32 {T3}, {T2}, 10"); a(f"s_add_u32 {T3}, {T3}, {T4}"); a(f"s_add_u32 {T3}, {T3}, {F_OFF}")
        a(f"v_mov_b32 {V0}, {OOB}"); a(f"v_cmp_gt_u32 vcc, 8, {vL}"); a(f"v_add_u32 {V4}, {T3}, {V1}"); a(f"v_cndmask_b32 {V4}, {V0}, {V4}, vcc")
        a(f"s_lshl_b32 {T3}, {T2}, 6"); a(f"s_add_u32 {T3}, {T3}, {FZ_OFF}"); a(f"s_cmp_eq_u32 {sTG}, 0"); a(f"s_cselect_b32 {T3}, {T3}, {OOB - 0x100}")
        a(f"v_cmp_gt_u32 vcc, 4, {vL}"); a(f"v_add_u32 {V5}, {T3}, {V1}"); a(f"v_cndmask_b32 {V5}, {V0}, {V5}, vcc")
        B = ACC0
        def loads(track):
            for i in range(4):
                s = f"buffer_load_dwordx4 {vr(B+4*i,4)}, {V2}, {SWS}, {'0' if i < 2 else T0} offen offset:{(i&1)*128} sc1"
                a.vmem(s, "h1") if track else a(s)
            s = f"buffer_load_dwordx4 {vr(B+16,4)}, {V3}, {SWS}, 0 offen sc1"
            a.vmem(s, "h1") if track else a(s)
        a(f"s_mov_b32 {T0}, 0x10000")
        L = a.label("h1"); Ld = a.label("h1d")
        loads(True)
        a.wait(vm="h1")
        a(f"s_mov_b32 {sSPIN}, {SPIN}")
        a(f"{L}:")
        a(f"v_cmp_ne_u32 vcc, {sTAG}, v{B+3}")
        for i in range(1, 5):
            a(f"v_cmp_ne_u32 {sM}, {sTAG}, v{B+4*i+3}"); a("s_nop 1"); a(f"s_or_b64 vcc, vcc, {sM}")
        a(f"s_cbranch_vccz {Ld}")
        a(f"s_sub_u32 {sSPIN}, {sSPIN}, 1"); a(f"s_cbranch_scc1 {Ld}")
        loads(False); a("s_waitcnt vmcnt(0)"); a(f"s_branch {L}")
        a(f"{Ld}:")
        self.stamp(7)
        a(f"s_mov_b32 {T1}, 0x04000c0c"); a(f"s_mov_b32 {T2}, 0x0706000c")
        for i in range(5):
            b = B + 4*i
            a(f"v_perm_b32 v{b+3}, v{b+2}, v{b+1}, {T1}"); a(f"v_perm_b32 v{b+3}, v{b+3}, v{b}, {T2}")
        for i in range(8): a(f"v_add_f32 v{B+i}, v{B+i}, v{B+8+i}")
        Z = B + 16; Tm = ACC1 + 8
        for i in range(4): a(f"v_add_f32_dpp v{Z+i}, v{Z+i}, v{Z+i} row_ror:4 row_mask:0xf bank_mask:0xf")
        vals = list(range(B, B+8)) + list(range(Z, Z+4))
        for v in vals: a(f"v_add_f32_dpp v{v}, v{v}, v{v} row_ror:8 row_mask:0xf bank_mask:0xf")
        for op in ("v_permlane16_swap_b32", "v_permlane32_swap_b32"):
            for k, v in enumerate(vals): a(f"v_mov_b32 v{Tm+k}, v{v}")
            for k, v in enumerate(vals): a(f"{op} v{v}, v{Tm+k}")
            for k, v in enumerate(vals): a(f"v_add_f32 v{v}, v{v}, v{Tm+k}")
        for k, b in enumerate((B, B+4, Z)):
            d = Tm + 4*k
            a(f"v_cvt_pk_bf16_f32 v{d}, v{b}, v{b+1}"); a(f"v_cvt_pk_bf16_f32 v{d+1}, v{b+2}, v{b+3}")
            a(f"v_mov_b32 v{d+2}, {sTAG}"); a(f"v_mov_b32 v{d+3}, {sTAG}")
        return lambda: (a.vmem(f"buffer_store_dwordx4 {vr(Tm,4)}, {V4}, {SWS}, 0 offen sc1", "fin"),
                        a.vmem(f"buffer_store_dwordx4 {vr(Tm+4,4)}, {V4}, {SWS}, 0 offen offset:128 sc1", "fin"),
                        a.vmem(f"buffer_store_dwordx4 {vr(Tm+8,4)}, {V5}, {SWS}, 0 offen sc1", "fin"))
    def o_stage_fetch(self):
        a = self.a
        a(f"s_lshl_b32 {T0}, {sHG}, 3"); a(f"s_add_u32 {T0}, {T0}, {sW}")
        a(f"s_lshl_b32 {T1}, {T0}, 10"); a(f"s_add_u32 {T1}, {T1}, {F_OFF}"); a(f"s_lshl_b32 {T2}, {T0}, 6"); a(f"s_add_u32 {T2}, {T2}, {FZ_OFF}")
        a(f"v_lshlrev_b32 {V2}, 4, {vL}"); a(f"v_and_b32 {V3}, 0x30, {V2}")
        B = ACCA
        def loads(track):
            for s in (f"buffer_load_dwordx4 {vr(B,4)}, {V2}, {SWS}, {T1} offen sc1", f"buffer_load_dwordx4 {vr(B+4,4)}, {V3}, {SWS}, {T2} offen sc1"):
                a.vmem(s, "h2") if track else a(s)
        L = a.label("h2"); Ld = a.label("h2d")
        loads(True)
        a.wait(vm="h2")
        a(f"s_mov_b32 {sSPIN}, {SPIN}")
        a(f"{L}:")
        a(f"v_cmp_ne_u32 vcc, {sTAG}, v{B+2}"); a(f"v_cmp_ne_u32 {sM}, {sTAG}, v{B+6}"); a("s_nop 1"); a(f"s_or_b64 vcc, vcc, {sM}")
        a(f"s_cbranch_vccz {Ld}")
        a(f"s_sub_u32 {sSPIN}, {sSPIN}, 1"); a(f"s_cbranch_scc1 {Ld}")
        loads(False); a("s_waitcnt vmcnt(0)"); a(f"s_branch {L}")
        a(f"{Ld}:")
        self.stamp(9)
        a(f"s_add_u32 {T0}, {sW1k}, {KVT}")
        a(f"v_and_b32 {V2}, 15, {vL}"); a(f"v_lshrrev_b32 {V3}, 4, {vL}"); a(f"v_lshlrev_b32 {V3}, 3, {V3}"); a(f"v_lshl_add_u32 {V2}, {V2}, 5, {V3}"); a(f"v_add_u32 {V2}, {T0}, {V2}")
        a(f"v_lshlrev_b32 {V3}, 3, {vL}"); a(f"v_add_u32 {V3}, {T0}, {V3}")
        a.ds(f"ds_write_b64 {V2}, {vr(B,2)}", "kt")
        a("s_mov_b64 exec, 15")
        a.ds(f"ds_write_b64 {V3}, {vr(B+4,2)} offset:512", "kt")
        a("s_mov_b64 exec, -1")
        a.wait(lg="kt")
    def o_stage_compute(self):
        a = self.a
        a(f"v_and_b32 {V0}, 3, {vL}"); a(f"v_bfe_u32 {V1}, {vL}, 2, 1"); a(f"v_bfe_u32 {V2}, {vL}, 3, 1")
        a(f"v_lshl_add_u32 {V0}, {V1}, 3, {V0}"); a(f"v_lshl_add_u32 {V0}, {V2}, 2, {V0}")
        a(f"v_and_b32 {V1}, 16, {vL}"); a(f"v_cmp_eq_u32 vcc, 0, {V1}"); a(f"v_lshrrev_b32 {V2}, 5, {vL}"); a(f"v_lshlrev_b32 {V2}, 4, {V2}")
        a(f"v_cndmask_b32 {V0}, {V1}, {V0}, vcc"); a(f"v_lshl_add_u32 {V0}, {V0}, 5, {V2}")
        a(f"s_lshl_b32 {T0}, {sBB}, 12"); a(f"s_add_u32 {T0}, {T0}, {KVT}"); a(f"v_add_u32 {V0}, {T0}, {V0}")
        A, D, PK = ACCA, ACCA+16, FR2
        for i in range(4): a.ds(f"ds_read_b128 {vr(A+4*i,4)}, {V0} offset:{i*1024}", f"o{i>>1}")
        a(f"s_lshl_b32 {T0}, {sHG}, 18"); a(f"s_add_u32 {T0}, {T0}, {O_OFF}"); a(f"s_add_u32 {T1}, {T0}, 0x10000")
        for hd in range(2):
            a.wait(lg=f"o{hd}")
            a(f"v_mfma_f32_32x32x16_bf16 {vr(D,16)}, {vr(A+8*hd,4)}, {vr(PHI+8*hd,4)}, 0")
            a(f"v_mfma_f32_32x32x16_bf16 {vr(D,16)}, {vr(A+8*hd+4,4)}, {vr(PHI+8*hd+4,4)}, {vr(D,16)}")
            a(f"v_add_f32 {V1}, 0x358637bd, v{D+8}"); a(f"v_rcp_f32 {V1}, {V1}")
            for i in range(8): a(f"v_mul_f32 v{D+i}, {V1}, v{D+i}")
            for i in range(4): a(f"v_cvt_pk_bf16_f32 v{PK+4*hd+i}, v{D+2*i}, v{D+2*i+1}")
        self.store_mode(lambda f: (a(f"buffer_store_dwordx4 {vr(PK,4)}, {vHS}, {SWS}, {T0} offen{f}"),
                                   a(f"buffer_store_dwordx4 {vr(PK+4,4)}, {vHS}, {SWS}, {T1} offen{f}")), "ost", 2)
    def ffn(self, hooks, first_w):
        a = self.a
        for d in range(11):
            a.wait(vm=f"w2_{d}")
            a.wait(vm=f"h{d}")
            a("s_barrier")
            base = RING(d)
            p0, p1, off = (vPR0, vPR1, base) if base < 65536 else (vPM0, vPM1, base - 65536)
            for u in range(2):
                for cb, v in ((0, p0), (1, p1)):
                    for e in range(2):
                        a.ds(f"ds_read_b64_tr_b16 {vr(FR2+8*u+4*cb+2*e,2)}, {v} offset:{off + u*8192 + e*512}", f"f{u}")
            if d >= 1 and d + 4 <= 10 and d + 4 >= first_w: self.dmaW2(d + 4)
            for u in range(2):
                a.wait(lg=f"f{u}")
                for cb in range(2):
                    acc = ACCF + 16*cb
                    a(f"v_mfma_f32_32x32x16_bf16 {vr(acc,16)}, {vr(FR2+8*u+4*cb,4)}, {ar(8*d+4*u,4)}, {'0' if d == 0 and u == 0 else vr(acc,16)}")
            if d in hooks: hooks[d]()
    def group2(self):
        a = self.a
        self.poll_flags(0x1555)
        for d in range(8, 11): self.ldH(d)
        a.vmem(f"buffer_load_dword {V6}, {vG}, {SWS}, 0 offen sc1", "g")
    def tail(self, bump=False):
        a = self.a
        a("s_barrier")
        self.stamp(10)
        self.poll_flags(0xff0000)
        self.stamp(11)
        for i in range(8):
            a(f"s_mov_b32 {T0}, {O_OFF + i*262144}")
            a.vmem(f"buffer_load_dwordx4 {ar(88+4*i,4)}, {vHL}, {SWS}, {T0} offen sc1", f"o{i}")
        if bump:
            Lx = a.label("nb"); L = a.label("bp"); Ld = a.label("bpd")
            a("s_cmp_eq_u32 s2, 224"); a(f"s_cbranch_scc0 {Lx}"); a(f"s_cmp_eq_u32 {sW}, 0"); a(f"s_cbranch_scc0 {Lx}")
            a(f"v_lshlrev_b32 {V0}, 4, {vL}"); a(f"s_mov_b32 {T0}, {ACK_OFF}"); a(f"s_mov_b32 {sSPIN}, {SPIN}")
            a(f"{L}:")
            a(f"buffer_load_dwordx4 {vr(FR2,4)}, {V0}, {SWS}, {T0} offen sc1"); a("s_waitcnt vmcnt(0)")
            a(f"v_cmp_ne_u32 vcc, {sTAG}, v{FR2}")
            for i in range(1, 4):
                a(f"v_cmp_ne_u32 {sM}, {sTAG}, v{FR2+i}"); a("s_nop 1"); a(f"s_or_b64 vcc, vcc, {sM}")
            a(f"s_cbranch_vccz {Ld}")
            a(f"s_sub_u32 {sSPIN}, {sSPIN}, 1"); a(f"s_cbranch_scc0 {L}")
            a(f"{Ld}:")
            a(f"v_mov_b32 {V0}, {sE}"); a(f"s_mov_b32 {T0}, {E_OFF}"); a("s_mov_b64 exec, 1")
            a(f"buffer_store_dword {V0}, off, {SWS}, {T0} sc1"); a("s_mov_b64 exec, -1"); a("s_waitcnt vmcnt(0)")
            a(f"{Lx}:")
        a.wait(vm="g")
        a(f"v_sub_f32 {V5}, 1.0, {V6}")
        for i in range(32): a(f"v_mul_f32 v{ACCF+i}, {V5}, v{ACCF+i}")
        def rd(i):
            b = FR2 + 8*(i % 2)
            for cb, v in ((0, vPO0), (1, vPO1)):
                for e in range(2): a.ds(f"ds_read_b64_tr_b16 {vr(b+4*cb+2*e,2)}, {v} offset:{i*8192 + e*512}", f"a{i}")
        rd(0)
        for i in range(8):
            if i + 1 < 8: rd(i + 1)
            a.wait(vm=f"o{i}", lg=f"a{i}")
            for cb in range(2):
                acc = ACCA + 16*cb
                a(f"v_mfma_f32_32x32x16_bf16 {vr(acc,16)}, {vr(FR2+8*(i%2)+4*cb,4)}, {ar(88+4*i,4)}, {'0' if i == 0 else vr(acc,16)}")
        self.stamp(12)
        a(f"v_and_b32 {V0}, 31, {vL}"); a(f"v_lshrrev_b32 {V1}, 5, {vL}"); a(f"v_lshlrev_b32 {V1}, 1, {V1}"); a(f"v_and_b32 {V2}, 7, {vL}")
        a(f"v_xor_b32 {V1}, {V1}, {V2}"); a(f"v_lshlrev_b32 {V1}, 4, {V1}"); a(f"v_lshl_add_u32 {V0}, {V0}, 8, {V1}")
        a(f"s_and_b32 {T0}, {sW}, 1"); a(f"s_lshl_b32 {T0}, {T0}, 15"); a(f"s_lshr_b32 {T1}, {sW}, 1"); a(f"s_lshl_b32 {T2}, {T1}, 13"); a(f"s_add_u32 {T2}, {T2}, {T0}")
        a(f"v_add_u32 {V0}, {T2}, {V0}"); a(f"v_xor_b32 {V1}, 16, {V0}"); a(f"v_xor_b32 {V3}, 64, {V0}"); a(f"v_xor_b32 {V4}, 0x50, {V0}")
        wa = {(0, 0): V0, (0, 1): V1, (1, 0): V3, (1, 1): V4}
        for cb in range(2):
            for gp in range(2):
                for e in range(2):
                    b = 16*cb + 8*gp + 4*e
                    for i in range(4): a(f"v_fmac_f32 v{ACCF+b+i}, {V6}, v{ACCA+b+i}")
                    a.ds(f"ds_write_b128 {wa[(gp,e)]}, {vr(ACCF+b,4)} offset:{cb*128}", "rw")
        a(f"v_lshrrev_b32 {V5}, 3, {vL}"); a(f"v_lshlrev_b32 {V7}, 1, {V2}"); a(f"v_xor_b32 {V7}, {V7}, {V5}"); a(f"v_lshlrev_b32 {V7}, 4, {V7}")
        a(f"v_lshl_add_u32 {V7}, {V5}, 8, {V7}"); a(f"s_lshl_b32 {T2}, {T1}, 11"); a(f"s_add_u32 {T2}, {T2}, {T0}"); a(f"v_add_u32 {V7}, {T2}, {V7}"); a(f"v_xor_b32 {V6}, 16, {V7}")
        a(f"s_lshl_b32 {T2}, {sRB}, 7"); a(f"s_lshl_b32 {T3}, {sType}, 6"); a(f"s_add_u32 {T2}, {T2}, {T3}"); a(f"s_lshr_b32 {T3}, {T0}, 10"); a(f"s_add_u32 {T2}, {T2}, {T3}")
        a(f"s_lshl_b32 {T3}, {T1}, 3"); a(f"s_add_u32 {T2}, {T2}, {T3}"); a(f"s_lshl_b32 {T2}, {T2}, 10"); a(f"s_lshl_b32 {T3}, {sHG}, 7"); a(f"s_add_u32 {T2}, {T2}, {T3}")
        a(f"v_lshlrev_b32 {V2}, 4, {V2}"); a(f"v_lshl_add_u32 {V5}, {V5}, 10, {V2}")
        a.wait(lg="rw")
        a("s_barrier")
        B = ACCA
        for k in range(4):
            a.ds(f"ds_read_b128 {vr(B+8*k,4)}, {V7} offset:{k*8192}", f"s{k}"); a.ds(f"ds_read_b128 {vr(B+8*k+4,4)}, {V6} offset:{k*8192}", f"s{k}")
        a.wait(lg="s1")
        for i in range(8): a(f"v_add_f32 v{B+i}, v{B+i}, v{B+8+i}")
        a.wait(lg="s3")
        for i in range(8): a(f"v_add_f32 v{B+16+i}, v{B+16+i}, v{B+24+i}")
        for i in range(8): a(f"v_add_f32 v{B+i}, v{B+i}, v{B+16+i}")
        for i in range(4): a(f"v_cvt_pk_bf16_f32 v{B+8+i}, v{B+2*i}, v{B+2*i+1}")
        a.vmem(f"buffer_store_dwordx4 {vr(B+8,4)}, {V5}, {SOUT}, {T2} offen", "out")
        if self.o.get('stamps'):
            self.stamp(13)
            a("s_waitcnt vmcnt(0)"); self.stamp(14)
            a("s_memrealtime s[26:27]"); a("s_waitcnt lgkmcnt(0)"); a("v_writelane_b32 v23, s26, 15")
            a(f"s_lshl_b32 {T0}, s2, 3"); a(f"s_add_u32 {T0}, {T0}, {sW}"); a(f"s_lshl_b32 {T0}, {T0}, 6"); a(f"s_add_u32 {T0}, {T0}, {ST_OFF}")
            a(f"v_lshlrev_b32 {V0}, 2, {vL}"); a("s_mov_b64 exec, 0xffff")
            a(f"buffer_store_dword v23, {V0}, {SWS}, {T0} offen")
        a("s_endpgm")
    def group1(self, pre=None):
        self.poll_flags(0xAAAA, pre)
        self.stamp(8)
        for d in range(8): self.ldH(d)
    def path_q(self):
        a = self.a; o = self.o
        P0, P1 = FR, FR + 8
        a(f"s_lshl_b32 {T0}, {sHG}, 19")
        for u, (acc, pk) in enumerate(((ACC0, P0), (ACC1, P1))):
            self.h_pack(acc, pk)
            for kk in range(2):
                a(f"s_add_u32 {T1}, {T0}, {u*262144 + kk*65536}")
                a.vmem(f"buffer_store_dwordx4 {vr(pk+4*kk,4)}, {vHS}, {SH}, {T1} offen sc1", "hst")
        self.ack_store()
        self.get_mode_issue()
        self.stamp(4)
        for d in range(5): self.dmaW2(d)
        a.wait(vm="B"); a("s_barrier")
        self.passB()
        self.stamp(5)
        a("s_barrier")
        self.dmaWO()
        def sink(hd, sg, b):
            for i in range(4): a(f"v_cvt_pk_bf16_f32 v{PHI+8*hd+4*sg+i}, v{b+2*i}, v{b+2*i+1}")
        fl = o.get('qflag', 0)
        def mid(hd):
            if hd == fl:
                self.get_mode_wait(); self.flag_store(FH_OFF, sJ)
        self.softmax2(ACCB, ACC0, ACC1, sink, mid)
        self.stamp(6)
        self.group1()
        s2 = o.get('s2', 10)
        hooks = {}
        g2 = o.get('g2', 4)
        hooks[g2] = self.group2
        if s2 < 10:
            def comb(*fs):
                return lambda: [f() for f in fs]
            def addh(d, f): hooks[d] = comb(hooks[d], f) if d in hooks else f
            addh(s2, self.o_stage_fetch); addh(s2 + 1, self.o_stage_compute)
            fo = lambda: (a.wait(vm="ost"), self.flag_store(FO_OFF, sHG))
            if s2 + 2 <= 10: addh(s2 + 2, fo)
            self.ffn(hooks, 5)
            if s2 + 2 > 10: fo()
        else:
            self.ffn(hooks, 5)
            self.o_stage_fetch(); a("s_barrier"); self.o_stage_compute()
            a.wait(vm="ost"); self.flag_store(FO_OFF, sHG)
        self.tail()
    def path_kv(self):
        a = self.a; o = self.o
        self.kv_epilogue()
        a(f"s_cmp_ge_u32 {sHG}, 6"); a("s_cbranch_scc1 L_pathR")
        sv = (a.vm.copy(), a.lg.copy())
        a.wait(vm="B"); a("s_barrier")
        for d in range(2, 5): self.dmaW2(d)
        self.passB()
        self.stamp(6)
        self.get_mode_wait()
        self.h_pack(ACCB, FR)
        a(f"s_add_u32 {T0}, {sHG}, 16"); a(f"s_lshl_b32 {T0}, {T0}, 18"); a(f"s_add_u32 {T1}, {T0}, 0x10000")
        self.store_mode(lambda f: (a(f"buffer_store_dwordx4 {vr(FR,4)}, {vHS}, {SH}, {T0} offen{f}"),
                                   a(f"buffer_store_dwordx4 {vr(FR+4,4)}, {vHS}, {SH}, {T1} offen{f}")), "hst", 2)
        a("s_barrier")
        self.dmaWO()
        a.wait(vm="hst"); self.flag_store(FH_OFF, sJ)
        self.stamp(7)
        self.group1()
        self.ffn({o.get('g2', 4): self.group2}, 5)
        self.tail()
        a.vm, a.lg = sv
        a("L_pathR:")
        a.wait(vm="B"); a("s_barrier")
        for d in range(2, 5): self.dmaW2(d)
        Lng = a.label("ng")
        a(f"s_cmp_eq_u32 {sHG}, 6"); a(f"s_cbranch_scc0 {Lng}")
        self.srd(STMP, 18, 1024)
        a(f"v_lshrrev_b32 {V0}, 3, {vL}"); a(f"v_add_u32 {V0}, {sC0}, {V0}"); a(f"v_and_b32 {V0}, 7, {V0}"); a(f"v_and_b32 {V1}, 7, {vL}"); a(f"v_lshlrev_b32 {V1}, 4, {V1}")
        a(f"v_lshl_add_u32 {V0}, {V0}, 7, {V1}")
        a(f"s_add_u32 m0, {sW1k}, {R}"); a("s_nop 0")
        a(f"buffer_load_dwordx4 {V0}, {STMP}, 0 offen lds"); a("s_waitcnt vmcnt(0)")
        sv2 = (a.vm.copy(), a.lg.copy())
        a.vm.q = []
        self.gateA = True
        self.gate_wave()
        a.vm, a.lg = sv2
        a(f"{Lng}:")
        a("s_barrier")
        self.dmaWO()
        fin = self.reducer()
        self.group1()
        fin()
        self.ffn({o.get('g2', 4): self.group2}, 5)
        self.get_mode_wait() if False else None
        self.tail(bump=True)
    def gate_wave(self):
        a = self.a
        a(f"v_lshrrev_b32 {V0}, 5, {vL}"); a(f"v_lshlrev_b32 {V0}, 4, {V0}"); a(f"s_add_u32 {T0}, {sW1k}, {R}"); a(f"v_add_u32 {V0}, {T0}, {V0}")
        D = 5
        def rd(st): a.ds(f"ds_read_b128 {vr(FR+4*(st%6),4)}, {V0} offset:{st*32}", f"g{st}")
        for st in range(D): rd(st)
        for st in range(32):
            if st + D < 32: rd(st + D)
            a.wait(lg=f"g{st}")
            a(f"v_mfma_f32_32x32x16_bf16 {vr(ACCB,16)}, {vr(FR+4*(st%6),4)}, {ar(4*st,4)}, {'0' if st == 0 else vr(ACCB,16)}")
        self.get_mode_wait()
        a(f"s_lshl_b32 {T2}, {sRB}, 2"); a(f"s_add_u32 {T2}, {T2}, {sTG}"); a(f"s_lshl_b32 {T2}, {T2}, 7"); a(f"s_add_u32 {T2}, {T2}, {G_OFF}")
        a(f"v_and_b32 {V1}, 31, {vL}"); a(f"v_lshlrev_b32 {V1}, 2, {V1}")
        a(f"v_mul_f32 {V2}, {sL2E}, v{ACCB}"); a(f"v_exp_f32_e64 {V2}, -{V2}"); a(f"v_add_f32 {V2}, 1.0, {V2}"); a(f"v_rcp_f32 {V2}, {V2}")
        self.store_mode(lambda f: a(f"buffer_store_dword {V2}, {V1}, {SWS}, {T2} offen{f}"), "gst", 1)
        a("s_waitcnt vmcnt(0)"); a.vm.q = []
        self.flag_store(FH_OFF, sJ)
        a("s_waitcnt vmcnt(0)"); a.vm.q = []
    def build(self):
        a = self.a
        self.prologue(); self.passA()
        a(f"s_cmp_eq_u32 {sType}, 0"); a("s_cbranch_scc1 L_pathKV")
        sv = (a.vm.copy(), a.lg.copy())
        self.path_q()
        a.vm, a.lg = sv
        a("L_pathKV:")
        self.path_kv()
        a("L_end:"); a("s_endpgm")
        body = pad_hazards(a.L, verbose=True)
        head = open('cdna_kernels/' + NAME + '.s.ref').read().split('; Override')[0]
        txt = head + "; @launch grid=(256,1,1) block=(512,1,1) lds=163840\n"
        txt += f".amdgcn_target \"amdgcn-amd-amdhsa--gfx950\"\n.text\n.globl {NAME}_kernel\n.p2align 8\n.type {NAME}_kernel,@function\n{NAME}_kernel:\n"
        txt += "\n".join(("" if l.endswith(':') else "    ") + l for l in body) + "\n"
        txt += f""".section .rodata,"a"
.p2align 6
.amdhsa_kernel {NAME}_kernel
  .amdhsa_next_free_vgpr 256
  .amdhsa_next_free_sgpr 102
  .amdhsa_accum_offset 128
  .amdhsa_group_segment_fixed_size 0
  .amdhsa_kernarg_size 88
  .amdhsa_user_sgpr_count 2
  .amdhsa_user_sgpr_kernarg_segment_ptr 1
  .amdhsa_system_sgpr_workgroup_id_x 1
.end_amdhsa_kernel
"""
        return txt

if __name__ == '__main__':
    out = sys.argv[1]
    opt = json.loads(sys.argv[2]) if len(sys.argv) > 2 else {}
    open(out, 'w').write(Gen(opt).build())
```

```python
import sys, json
from asmlib import *

NAME = "gated_mix__linear_kernel_hedgehog__dense_activation_relu__prompt"
STEP = 131072; UNIT = 4*STEP
H_OFF = 0; H_SIZE = 86*STEP
O_OFF = 0xC00000; P_OFF = 0x1000000; PZ_OFF = 0x1100000; G_OFF = 0x1110000
F_OFF = 0x1120000; FZ_OFF = 0x1130000; FH_OFF = 0x1140000; FO_OFF = 0x1142000; ACK_OFF = 0x1148000
E_OFF = 0x1150000; ST_OFF = 0x1200000; WS_SIZE = 0x2000000
OOB = 0x7ffffff0
XS = lambda s: s*16384
WSL = lambda s: 49152 + s*16384
R = 98304
RING = lambda d: ((d + 3) % 5)*16384
KVT = 65536
SPIN = 40000
SX, SWA, SWB, SW2, SWO, SWS, SH, SOUT, STMP, SDBG = [f"s[{28+4*i}:{31+4*i}]" for i in range(10)]
sC, sRB, sJ, sHG, sW, sTG, sBB, sC0, sTAG, sMODE, sStrA64, sStrA4, sStrB64, sType, sW1k, sW2k, sL2E, sU0, sU1, sE = [f"s{68+i}" for i in range(20)]
T0, T1, T2, T3, T4, T5 = [f"s{88+i}" for i in range(6)]
sSPIN = "s94"; sXCC = "s95"; sA0 = "s96"; sA1 = "s97"; sM = "s[98:99]"; sA2 = "s100"; sL2P = "s[0:1]"; sC32 = "s101"; sST = "s12"; sHP = "s13"; sN = "s3"
vL = "v0"
vX0, vX1, vWA, vWB, vXR0, vXR1, vXR2, vXR3, vAR0, vAR1, vBR = [f"v{1+i}" for i in range(11)]
vW2, vPR0, vPR1, vPM0, vPM1, vPO0, vPO1, vHL, vHS, vFL, vG = [f"v{12+i}" for i in range(11)]
V0, V1, V2, V3, V4, V5, V6, V7 = [f"v{24+i}" for i in range(8)]
ACC0, ACC1, ACCB, FR, WP0, WP1, PHI = 32, 48, 64, 80, 104, 108, 112
ACCF, ACCA, FR2 = 32, 64, 96
M16, MTO, MAT, MWP, ME, MJ = [f"v{64+i}" for i in range(6)]
vr = lambda b, n: f"v[{b}:{b+n-1}]"
ar = lambda b, n: f"a[{b}:{b+n-1}]"

class Gen:
    def __init__(self, opt):
        self.o = opt; self.a = Asm(); self.nst = 0; self.pend = []; self.nring = 6; self.names = ['0']
    def ring(self, d):
        return (81920, 49152, 65536)[d % 3] if d < 8 else (d - 8)*16384
    def push(self, *fs): self.pend += list(fs)
    def slot(self, n=1):
        for _ in range(n):
            if self.pend: self.pend.pop(0)()
    def flush(self): self.slot(len(self.pend))
    def stamp(self, name):
        if not self.o.get('stamps'): return
        a = self.a
        name = str(name)
        if self.o['stamps'] == 1 and not name.isdigit(): return
        if name not in self.names: self.names.append(name)
        i = self.names.index(name); assert i < 63
        a("s_mov_b32 s27, m0"); a(f"s_mov_b32 m0, {sST}"); a("s_nop 0"); a("v_writelane_b32 v23, s26, m0"); a("s_mov_b32 m0, s27")
        a(f"s_mov_b32 {sST}, {i}")
        a("s_memtime s[26:27]")
    def csel(self, dst, x, y):
        self.a(f"s_mov_b32 {dst}, {y}"); self.a(f"s_cmov_b32 {dst}, {x}")
    def srd(self, s, base, size):
        a = self.a; b = int(s[2:s.index(':')])
        a(f"s_mov_b32 s{b}, s{base}"); a(f"s_mov_b32 s{b+1}, s{base+1}")
        a(f"s_mov_b32 s{b+2}, {size}"); a(f"s_mov_b32 s{b+3}, 0x20000")
    def dma(self, voff, srd, soff, m0expr, tag):
        a = self.a
        if 'offen' not in soff: soff += " offen"
        a(m0expr); a.vmem(f"buffer_load_dwordx4 {voff}, {srd}, {soff} lds", tag)
    def dmaA(self, c):
        a = self.a; s = c % 3
        def first():
            a(f"s_add_u32 {sA0}, {sC0}, {c}"); a(f"s_and_b32 {sA0}, {sA0}, 7")
            a(f"s_mul_i32 {sA1}, {sA0}, {sStrA64}"); a(f"s_lshl_b32 {sA0}, {sA0}, 7")
            self.dma(vX0, SX, sA0 + " offen " + self.o.get('xfl', ''), f"s_add_u32 m0, {sW2k}, {XS(s)}", f"c{c}")
        def fourth():
            a(f"s_add_u32 {sA1}, {sA1}, {sStrA4}")
            self.dma(vWA, SWA, sA1, f"s_add_u32 m0, {sW2k}, {WSL(s)+1024}", f"c{c}")
        return [first,
                lambda: self.dma(vWA, SWA, sA1, f"s_add_u32 m0, {sW2k}, {WSL(s)}", f"c{c}"),
                lambda: self.dma(vX1, SX, sA0 + " offen " + self.o.get('xfl', ''), f"s_add_u32 m0, {sW2k}, {XS(s)+1024}", f"c{c}"),
                fourth]
    def dmaB(self, ci):
        a = self.a
        def f():
            a(f"s_add_u32 {sA2}, {sC0}, {ci}"); a(f"s_and_b32 {sA2}, {sA2}, 7"); a(f"s_mul_i32 {sA2}, {sA2}, {sStrB64}")
            self.dma(vWB, SWB, sA2, f"s_add_u32 m0, {sW1k}, {R + ci*8192}", f"B{ci>>2}")
        return [f]
    def unit_of(self, d, dst):
        a = self.a
        if d < 8:
            a(f"s_add_u32 {dst}, {sU0}, {d}"); a(f"s_and_b32 {dst}, {dst}, 7"); a(f"s_lshl_b32 {dst}, {dst}, 1")
        else:
            a(f"s_add_u32 {dst}, {sU1}, {d-8}"); a(f"s_cmp_ge_u32 {dst}, 3"); a(f"s_cselect_b32 {sA2}, 3, 0")
            a(f"s_sub_u32 {dst}, {dst}, {sA2}"); a(f"s_lshl_b32 {dst}, {dst}, 1"); a(f"s_add_u32 {dst}, {dst}, 16")
    def dmaW2(self, d):
        a = self.a
        def f0():
            self.unit_of(d, sA0); a(f"s_lshl_b32 {sA0}, {sA0}, 16")
            self.dma(vW2, SW2, sA0, f"s_add_u32 m0, {sW1k}, {self.ring(d)}", f"w2_{d}")
        def f1():
            a(f"s_add_u32 {sA0}, {sA0}, 0x10000")
            self.dma(vW2, SW2, sA0, f"s_add_u32 m0, {sW1k}, {self.ring(d)+8192}", f"w2_{d}")
        return [f0, f1]
    def dmaWO(self, lo=0, hi=8):
        a = self.a
        def mk(i):
            def f():
                a(f"s_mov_b32 {sA2}, {i*65536}")
                self.dma(vW2, SWO, sA2, f"s_add_u32 m0, {sW1k}, {R + i*8192}", "wo")
            return f
        return [mk(i) for i in range(lo, hi)]
    def ldH(self, d):
        a = self.a
        def f0():
            self.unit_of(d, sA1); a(f"s_lshl_b32 {sA1}, {sA1}, 19")
            a.vmem(f"buffer_load_dwordx4 {ar(8*d,4)}, {vHL}, {SH}, {sA1} offen sc1", f"h{d}")
        def f1():
            a(f"s_add_u32 {sA1}, {sA1}, {UNIT}")
            a.vmem(f"buffer_load_dwordx4 {ar(8*d+4,4)}, {vHL}, {SH}, {sA1} offen sc1", f"h{d}")
        return [f0, f1]
    def poll_flags(self, mask, pre_issued=None):
        a = self.a; L = a.label("pf"); Ld = a.label("pfd")
        if pre_issued is None:
            a.vmem(f"buffer_load_dword {V0}, {vFL}, {SWS}, 0 offen sc1", "pf"); pre_issued = "pf"
        a.wait(vm=pre_issued)
        a(f"s_mov_b32 {sSPIN}, {SPIN}")
        a(f"{L}:")
        a(f"v_cmp_ne_u32 vcc, {sTAG}, {V0}"); a("s_nop 1")
        a(f"s_and_b32 {T0}, vcc_lo, {mask:#x}"); a(f"s_cbranch_scc0 {Ld}")
        a(f"s_sub_u32 {sSPIN}, {sSPIN}, 1"); a(f"s_cbranch_scc1 {Ld}")
        a(f"buffer_load_dword {V0}, {vFL}, {SWS}, 0 offen sc1"); a("s_waitcnt vmcnt(0)")
        a(f"s_branch {L}")
        a(f"{Ld}:")
    def get_mode_issue(self):
        a = self.a
        a(f"s_lshl_b32 {T0}, {sC}, 5")
        a.vmem(f"buffer_load_dword {V7}, off, {SDBG}, {T0} sc1", "mode")
    def get_mode_wait(self):
        a = self.a; L = a.label("gm"); Ld = a.label("gmd")
        a.wait(vm="mode")
        a(f"s_mov_b32 {sSPIN}, {0 if 'a' in self.o.get('skip', '') else SPIN}")
        a(f"{L}:")
        a(f"v_readfirstlane_b32 {T1}, {V7}"); a("s_nop 1")
        a(f"s_and_b32 {T2}, {T1}, 31"); a(f"s_cselect_b32 {T2}, 0, {T1}"); a(f"s_cmp_lg_u32 {T2}, 0"); a(f"s_cbranch_scc1 {Ld}")
        a(f"s_sub_u32 {sSPIN}, {sSPIN}, 1"); a(f"s_cbranch_scc1 {Ld}")
        a(f"s_lshl_b32 {T0}, {sC}, 5")
        a(f"buffer_load_dword {V7}, off, {SDBG}, {T0} sc1"); a("s_waitcnt vmcnt(0)")
        a(f"s_branch {L}")
        a(f"{Ld}:")
        a(f"s_mul_i32 {T2}, {sXCC}, {sXCC}"); a(f"s_lshl_b32 {T2}, {T2}, 16"); a(f"s_lshl_b32 {T3}, {sXCC}, 8")
        a(f"s_add_u32 {T2}, {T2}, {T3}"); a(f"s_add_u32 {T2}, {T2}, 1"); a(f"s_lshl_b32 {T2}, {T2}, 5")
        a(f"s_cmp_eq_u32 {T1}, {T2}"); a(f"s_cselect_b32 {sMODE}, 1, 0")
        if self.o.get('force_slow'): a(f"s_mov_b32 {sMODE}, 0")
        if 'a' in self.o.get('skip', ''): a(f"s_mov_b32 {sMODE}, 1")
    def store_mode(self, fn, tag, n):
        a = self.a; Ls = a.label("sl"); Ld = a.label("sd")
        a(f"s_cmp_eq_u32 {sMODE}, 1"); a(f"s_cbranch_scc0 {Ls}")
        fn(""); a(f"s_branch {Ld}")
        a(f"{Ls}:"); fn(" sc1"); a(f"{Ld}:")
        for _ in range(n): a.vm.issue(tag)
    def flag_store(self, base, idx):
        a = self.a
        a(f"s_lshl_b32 {T0}, {sRB}, 2"); a(f"s_add_u32 {T0}, {T0}, {sTG}"); a(f"s_lshl_b32 {T0}, {T0}, 1"); a(f"s_add_u32 {T0}, {T0}, {sBB}")
        a(f"s_lshl_b32 {T0}, {T0}, 6"); a(f"s_lshl_b32 {T1}, {idx}, 2"); a(f"s_add_u32 {T0}, {T0}, {T1}"); a(f"s_add_u32 {T0}, {T0}, {base}")
        a(f"v_mov_b32 {V1}, {sTAG}")
        a(f"s_mov_b64 exec, 1")
        self.store_mode(lambda f: a(f"buffer_store_dword {V1}, off, {SWS}, {T0}{f}"), "flag", 1)
        a(f"s_mov_b64 exec, -1")
    def touch(self, base, idx, junk):
        a = self.a
        if 't' in self.o.get('skip', ''): return
        a(f"v_bfe_u32 {junk}, {vL}, 2, 1"); a(f"v_lshl_add_u32 {junk}, {junk}, 17, {vHS}")
        a(f"s_lshl_b32 {T2}, {idx}, 19"); a(f"s_add_u32 {T2}, {T2}, {base}")
        a.vmem(f"buffer_load_dword {junk}, {junk}, {SWS}, {T2} offen", "touch")
    def ack_store(self):
        a = self.a
        a(f"s_lshl_b32 {T0}, s2, 2"); a(f"s_add_u32 {T0}, {T0}, {ACK_OFF}")
        a(f"s_cmp_eq_u32 {sW}, 0"); a(f"s_cselect_b32 {T0}, {T0}, {OOB}")
        a(f"v_mov_b32 {V1}, {sTAG}")
        a(f"s_mov_b64 exec, 1")
        a.vmem(f"buffer_store_dword {V1}, off, {SWS}, {T0} sc1", "ack")
        a(f"s_mov_b64 exec, -1")
    def prologue(self):
        a = self.a; o = self.o
        a("s_cmp_ge_u32 s2, 256"); a("s_cbranch_scc1 L_end")
        a("s_load_dwordx16 s[4:19], s[0:1], 0"); a("s_load_dwordx4 s[20:23], s[0:1], 64"); a("s_load_dwordx2 s[24:25], s[0:1], 80")
        if o.get('stamps'):
            a("s_memtime s[26:27]")
        a(f"v_lshrrev_b32 {V0}, 6, v0"); a(f"v_and_b32 {vL}, 63, v0"); a(f"v_readfirstlane_b32 {sW}, {V0}")
        a(f"s_and_b32 {sC}, s2, 7"); a(f"s_lshr_b32 {T0}, s2, 3"); a(f"s_and_b32 {T1}, {T0}, 1"); a(f"s_lshr_b32 {sJ}, {T0}, 1")
        a(f"s_lshl_b32 {sRB}, {sC}, 1"); a(f"s_or_b32 {sRB}, {sRB}, {T1}")
        a(f"s_and_b32 {sType}, {sJ}, 1"); a(f"s_lshr_b32 {sHG}, {sJ}, 1")
        a(f"s_lshl_b32 {sA2}, {sHG}, 2"); a(f"s_lshr_b32 {sA2}, 0x37654210, {sA2}"); a(f"s_and_b32 {sA2}, {sA2}, 7")
        a(f"s_add_u32 {sN}, {sHG}, 5"); a(f"s_and_b32 {sN}, {sN}, 7")
        a(f"s_mul_i32 {T2}, {T1}, {o.get('rotr', 4)}"); a(f"s_mul_i32 {sC0}, {sJ}, {o.get('rotj', 1)}"); a(f"s_add_u32 {sC0}, {sC0}, {T2}")
        if o.get('rotc', 0): a(f"s_mul_i32 {T2}, {sC}, {o.get('rotc')}"); a(f"s_add_u32 {sC0}, {sC0}, {T2}")
        a(f"s_and_b32 {sC0}, {sC0}, 7")
        a(f"s_and_b32 {sTG}, {sW}, 3"); a(f"s_lshr_b32 {sBB}, {sW}, 2"); a(f"s_lshl_b32 {sW1k}, {sW}, 10"); a(f"s_lshl_b32 {sW2k}, {sW}, 11")
        a(f"s_cmp_eq_u32 {sType}, 0")
        self.csel(T3, 3072, 2752); self.csel(T5, 1024, 128); a(f"s_cselect_b32 {T2}, 7, 8")
        a(f"s_cselect_b32 {T1}, 1024, 0"); a(f"s_cselect_b32 {T4}, {sA2}, {sHG}"); a(f"s_lshl_b32 {T4}, {T4}, {T2}"); a(f"s_add_u32 {T4}, {T4}, {T1}")
        a(f"s_lshl_b32 {sStrA64}, {T3}, 6"); a(f"s_lshl_b32 {sStrA4}, {T3}, 2")
        a(f"s_lshl_b32 {T0}, {sRB}, 7"); a(f"s_lshl_b32 {T1}, {sW}, 4"); a(f"s_add_u32 {T0}, {T0}, {T1}"); a(f"s_lshl_b32 {T0}, {T0}, 10")
        a(f"v_lshrrev_b32 {V0}, 3, {vL}"); a(f"v_lshrrev_b32 {V1}, 4, {vL}"); a(f"v_and_b32 {V2}, 7, {vL}")
        a(f"v_xor_b32 {V3}, {V2}, {V1}"); a(f"v_lshlrev_b32 {V3}, 4, {V3}"); a(f"v_lshl_add_u32 {vX0}, {V0}, 10, {V3}"); a(f"v_add_u32 {vX0}, {T0}, {vX0}")
        a(f"v_xor_b32 {vX1}, 64, {vX0}"); a(f"v_add_u32 {vX1}, 0x2000, {vX1}")
        a(f"s_lshl_b32 {T1}, {sW}, 3")
        a(f"v_add_u32 {V3}, {T1}, {V1}"); a(f"v_mul_lo_u32 {vWA}, {V3}, {T3}")
        a(f"v_and_b32 {V3}, 15, {vL}"); a(f"v_lshlrev_b32 {V4}, 2, {V1}"); a(f"v_xor_b32 {V3}, {V3}, {V4}")
        a(f"v_lshrrev_b32 {V4}, 3, {V3}"); a(f"v_mul_lo_u32 {V4}, {V4}, {T5}"); a(f"v_and_b32 {V3}, 7, {V3}")
        a(f"v_lshl_add_u32 {V4}, {V3}, 4, {V4}"); a(f"v_add3_u32 {vWA}, {vWA}, {V4}, {T4}")
        a("s_mov_b32 s30, 0x200000"); a("s_mov_b32 s31, 0x20000"); a("s_mov_b32 s35, 0x20000")
        a(f"s_cmp_eq_u32 {sType}, 0"); self.csel("s34", 512*3072, 512*2752)
        a("s_waitcnt lgkmcnt(0)")
        if o.get('stamps'): a("v_mov_b32 v23, 0"); a(f"s_mov_b32 {sST}, 0")
        a("s_mov_b32 s28, s4"); a("s_mov_b32 s29, s5"); a(f"s_mov_b32 {sHP}, {sA2}")
        a("s_cselect_b32 s32, s6, s14"); a("s_cselect_b32 s33, s7, s15")
        for f in self.dmaA(0): f()
        c1 = self.dmaA(1)
        a(f"s_cmp_eq_u32 {sType}, 0")
        a("s_cselect_b32 s36, s14, s6"); a("s_cselect_b32 s37, s15, s7"); self.csel("s38", 512*2752, 512*3072); a("s_mov_b32 s39, 0x20000")
        self.csel(T3, 2752, 3072); a(f"s_cselect_b32 {T4}, 16, 0"); a(f"s_cselect_b32 {T5}, {sHG}, {sHP}")
        a(f"s_lshl_b32 {sStrB64}, {T3}, 6"); a(f"s_add_u32 {T4}, {T4}, {T5}"); a(f"s_lshl_b32 {T4}, {T4}, 7")
        a(f"s_cmp_ge_u32 {T4}, 2752"); a(f"s_cselect_b32 {T4}, 0x40000000, {T4}")
        self.srd(SW2, 16, 1376*1024); self.srd(SWO, 10, 512*1024); self.srd(SWS, 24, WS_SIZE); self.srd(SH, 24, H_SIZE)
        self.srd(SOUT, 20, 0x200000); self.srd(SDBG, 22, 256); self.srd(STMP, 8, 16384)
        a(f"v_and_b32 {V3}, 1, {V1}"); a(f"v_lshlrev_b32 {V3}, 2, {V3}"); a(f"v_xor_b32 {V3}, {V3}, {V2}"); a(f"v_lshlrev_b32 {V3}, 4, {V3}")
        a(f"s_lshl_b32 {T1}, {sW}, 3"); a(f"v_add_u32 {V4}, {T1}, {V0}")
        a(f"v_mul_lo_u32 {vWB}, {V4}, {T3}"); a(f"v_add3_u32 {vWB}, {vWB}, {V3}, {T4}")
        a(f"s_lshl_b32 {T1}, {sN}, 7"); a(f"v_lshl_add_u32 {vW2}, {V4}, 10, {V3}"); a(f"v_add_u32 {vW2}, {T1}, {vW2}")
        a(f"v_lshlrev_b32 {M16}, 4, {vL}")
        Lg = a.label("gsrd")
        a(f"s_cmp_eq_u32 {sJ}, 12"); a(f"s_cbranch_scc0 {Lg}")
        a("s_mov_b32 s36, s18"); a("s_mov_b32 s37, s19"); a("s_mov_b32 s38, 1024"); a(f"s_mov_b32 {sStrB64}, 0")
        a(f"v_add_u32 {V4}, {sC0}, {V0}"); a(f"v_and_b32 {V4}, 7, {V4}"); a(f"v_lshlrev_b32 {V3}, 4, {V2}"); a(f"v_lshl_add_u32 {vWB}, {V4}, 7, {V3}")
        a(f"{Lg}:")
        c1[0]()
        a(f"v_lshrrev_b32 {V0}, 5, {vL}"); a(f"v_bfe_u32 {V2}, {vL}, 2, 2")
        a(f"v_and_b32 {V3}, 1, {vL}"); a(f"v_bfe_u32 {V4}, {vL}, 1, 1"); a(f"v_lshl_add_u32 {V3}, {V3}, 1, {V4}"); a(f"v_lshlrev_b32 {V3}, 3, {V3}")
        a(f"v_and_b32 {V6}, 1, {V1}"); a(f"v_lshl_add_u32 {V3}, {V6}, 5, {V3}")
        a(f"v_lshl_add_u32 {V4}, {V0}, 3, {V2}")
        a(f"v_xor_b32 {V5}, {sBB}, {V2}"); a(f"v_lshlrev_b32 {V5}, 6, {V5}"); a(f"v_lshl_add_u32 {V5}, {V4}, 8, {V5}"); a(f"v_add_u32 {V5}, {V5}, {V3}")
        a(f"v_add_u32 {vAR0}, {WSL(0)}, {V5}"); a(f"v_xor_b32 {vAR1}, 128, {vAR0}")
        a(f"v_and_b32 {V7}, 31, {vL}"); a(f"v_bfe_u32 {V5}, {vL}, 1, 3"); a(f"v_xor_b32 {V5}, {V5}, {V0}"); a(f"v_lshlrev_b32 {V5}, 4, {V5}")
        a(f"s_lshl_b32 {T0}, {sTG}, 12"); a(f"v_lshl_add_u32 {vXR0}, {V7}, 7, {V5}"); a(f"v_add_u32 {vXR0}, {T0}, {vXR0}")
        a(f"v_xor_b32 {vXR1}, 32, {vXR0}"); a(f"v_xor_b32 {vXR2}, 64, {vXR0}"); a(f"v_xor_b32 {vXR3}, 0x60, {vXR0}")
        c1[1]()
        a(f"v_lshrrev_b32 {V5}, 1, {V2}"); a(f"v_lshlrev_b32 {V5}, 6, {V5}"); a(f"v_lshl_add_u32 {V5}, {V4}, 7, {V5}"); a(f"v_add_u32 {V5}, {V5}, {V3}")
        a(f"s_lshl_b32 {T0}, {sBB}, 6"); a(f"v_xor_b32 {vBR}, {T0}, {V5}"); a(f"v_add_u32 {vBR}, {R}, {vBR}")
        a(f"s_lshr_b32 {T0}, {sW}, 1"); a(f"s_lshl_b32 {T0}, {T0}, 11"); a(f"v_add_u32 {vPR0}, {T0}, {V5}"); a(f"v_xor_b32 {vPR1}, 64, {vPR0}")
        a(f"v_add_u32 {vPM0}, 0x10000, {vPR0}"); a(f"v_add_u32 {vPM1}, 0x10000, {vPR1}"); a(f"v_add_u32 {vPO0}, {R}, {vPR0}"); a(f"v_add_u32 {vPO1}, {R}, {vPR1}")
        a(f"v_mul_u32_u24 {V5}, {512-32}, {V6}"); a(f"v_add_u32 {V5}, {V5}, {V3}"); a(f"v_lshl_add_u32 {V5}, {V4}, 5, {V5}")
        a(f"s_lshl_b32 {T0}, {sBB}, 12"); a(f"s_add_u32 {T0}, {T0}, {R + 57344}"); a(f"v_add_u32 {MWP}, {T0}, {V5}")
        a(f"s_lshr_b32 {T0}, s2, 3"); a(f"s_and_b32 {T0}, {T0}, 3")
        ua, ub, uc = o.get('urot', (1, 2, 0))
        a(f"s_mul_i32 {T1}, {T0}, {ub}"); a(f"s_mul_i32 {T2}, {sHG}, {ua}"); a(f"s_add_u32 {T1}, {T1}, {T2}"); a(f"s_mul_i32 {T2}, {sC}, {uc}")
        a(f"s_add_u32 {T1}, {T1}, {T2}"); a(f"s_and_b32 {sU0}, {T1}, 7")
        a(f"s_mul_i32 {T2}, {T1}, 86"); a(f"s_lshr_b32 {T2}, {T2}, 8"); a(f"s_mul_i32 {T2}, {T2}, 3"); a(f"s_sub_u32 {sU1}, {T1}, {T2}")
        a(f"s_lshl_b32 {sC32}, {sC}, 5")
        a(f"s_mov_b32 {sL2E}, 0x3fb8aa3b"); a("s_mov_b32 s0, 0x3fb8aa3b"); a("s_mov_b32 s1, 0x3fb8aa3b")
        c1[2]()
        a(f"s_lshl_b32 {T0}, {sRB}, 2"); a(f"s_lshl_b32 {T1}, {sType}, 1"); a(f"s_add_u32 {T0}, {T0}, {T1}"); a(f"s_and_b32 {T1}, {sW}, 1"); a(f"s_add_u32 {T0}, {T0}, {T1}")
        a(f"s_lshr_b32 {T1}, {sW}, 1")
        a(f"v_lshrrev_b32 {V3}, 3, {vL}"); a(f"v_cmp_eq_u32 vcc, 3, {V3}")
        a(f"s_and_b32 {T2}, {T0}, 3"); a(f"s_add_u32 {T2}, {T2}, 9"); a(f"s_lshl_b32 {T2}, {T2}, 7"); a(f"v_add_u32 {V3}, {T2}, {M16}"); a(f"v_cndmask_b32 {V3}, {M16}, {V3}, vcc")
        a(f"s_lshl_b32 {T2}, {T0}, 11"); a(f"s_lshl_b32 {T3}, {T1}, 17"); a(f"s_add_u32 {T2}, {T2}, {T3}"); a(f"v_add_u32 {vHL}, {T2}, {V3}")
        a(f"s_add_u32 {T2}, {sTG}, 9"); a(f"s_lshl_b32 {T2}, {T2}, 7"); a(f"v_add_u32 {V3}, {T2}, {M16}"); a(f"v_cndmask_b32 {vHS}, {M16}, {V3}, vcc")
        a(f"s_lshl_b32 {T2}, {T0}, 7"); a(f"s_add_u32 {T2}, {T2}, {G_OFF}")
        a(f"v_lshlrev_b32 {V3}, 2, {V7}"); a(f"v_add_u32 {vG}, {T2}, {V3}")
        a(f"s_lshl_b32 {T0}, {T0}, 1"); a(f"s_lshr_b32 {T1}, {T1}, 1"); a(f"s_add_u32 {T0}, {T0}, {T1}"); a(f"s_lshl_b32 {T0}, {T0}, 6"); a(f"s_add_u32 {T0}, {T0}, {FH_OFF}")
        a(f"v_and_b32 {V3}, 15, {vL}"); a(f"v_lshlrev_b32 {V3}, 2, {V3}"); a(f"v_lshl_add_u32 {V3}, {V6}, 13, {V3}"); a(f"v_add_u32 {vFL}, {T0}, {V3}")
        a(f"s_lshl_b32 {T0}, {sRB}, 2"); a(f"s_add_u32 {T0}, {T0}, {sTG}"); a(f"s_lshl_b32 {T0}, {T0}, 11"); a(f"s_lshl_b32 {T1}, {sBB}, 18"); a(f"s_add_u32 {T0}, {T0}, {T1}")
        a(f"v_add_u32 {vHS}, {T0}, {vHS}")
        c1[3]()
        def census():
            a(f"s_getreg_b32 {sXCC}, hwreg(HW_REG_XCC_ID, 0, 4)")
            a(f"s_mul_i32 {T2}, {sXCC}, {sXCC}"); a(f"s_lshl_b32 {T2}, {T2}, 16"); a(f"s_lshl_b32 {T3}, {sXCC}, 8"); a(f"s_add_u32 {T2}, {T2}, {T3}"); a(f"s_add_u32 {T2}, {T2}, 1")
            a(f"s_lshl_b32 {T0}, {sC}, 5"); a(f"s_cmp_eq_u32 {sW}, 0"); a(f"s_cselect_b32 {T0}, {T0}, 0x1000")
            a(f"v_mov_b32 {MAT}, {T2}")
            a("s_mov_b64 exec, 1")
            a.vmem(f"buffer_atomic_add {MAT}, off, {SDBG}, {T0}", "misc")
            a("s_mov_b64 exec, -1")
        def m_wphi():
            L1 = a.label("wp"); L2 = a.label("wpd")
            a(f"s_lshl_b32 {T0}, {sHP}, 11"); a(f"s_lshl_b32 {T1}, {sBB}, 10"); a(f"s_add_u32 {T0}, {T0}, {T1}")
            a(f"s_add_u32 m0, {sW1k}, {R + 57344}")
            a(f"s_cmp_eq_u32 {sTG}, 0"); a(f"s_cbranch_scc0 {L1}")
            a.vmem(f"buffer_load_dwordx4 {M16}, {STMP}, {T0} offen lds", "misc")
            a(f"s_branch {L2}"); a(f"{L1}:")
            a(f"buffer_load_dword {MJ}, off, {STMP}, {T0}")
            a(f"{L2}:")
        def m_e():
            a(f"s_mov_b32 {T0}, {E_OFF}")
            a.vmem(f"buffer_load_dword {ME}, off, {SWS}, {T0} sc1", "misc")
        def m_code():
            a("s_getpc_b64 s[90:91]"); a("L_pc:")
            a(f"s_lshr_b32 {T0}, s2, 3"); a(f"s_lshl_b32 {T0}, {T0}, 3"); a(f"s_add_u32 {T0}, {T0}, {sW}"); a(f"s_lshl_b32 {T0}, {T0}, 7")
            a(f"s_min_u32 {T0}, {T0}, L_end-L_pc-4"); a(f"v_mov_b32 {MAT}, {T0}")
            a.vmem(f"global_load_dword {MJ}, {MAT}, s[90:91]", "misc")
        m_fl = lambda: a.vmem(f"buffer_load_dword {MJ}, {vFL}, {SWS}, 0 offen sc1", "misc")
        sk = o.get('skip', '')
        if 'c' not in sk: m_code()
        if 'a' not in sk: census()
        else: a(f"s_getreg_b32 {sXCC}, hwreg(HW_REG_XCC_ID, 0, 4)")
        self.misc = [m_e, m_wphi] + ([m_fl] if 'f' not in sk else [])
        self.stamp(1)
    def aslot(self):
        self.slot(2 if len(self.pend) > 4 else 1)
    def passA(self):
        a = self.a
        xr = [vXR0, vXR1, vXR2, vXR3]; buf = [FR, FR + 8, FR + 16, PHI]
        def reads(c, st):
            s = c % 3; b = buf[st]
            a.ds(f"ds_read_b128 {ar(16*c+4*st,4)}, {xr[st]} offset:{XS(s)}", f"r{st}")
            for u, v in ((0, vAR0), (1, vAR1)):
                for e in range(2):
                    a.ds(f"ds_read_b64_tr_b16 {vr(b+4*u+2*e,2)}, {v} offset:{s*16384 + st*4096 + e*1024}", f"r{st}")
        def mm(c, st):
            for u, acc in ((0, ACC0), (1, ACC1)):
                cc = "0" if (c == 0 and st == 0) else vr(acc, 16)
                a(f"v_mfma_f32_32x32x16_bf16 {vr(acc,16)}, {vr(buf[st]+4*u,4)}, {ar(16*c+4*st,4)}, {cc}")
        def landed(tag, n):
            assert a.vm.q.count(tag) == n, (tag, a.vm.q)
            a.wait(vm=tag)
        def m1(c, st, u):
            acc = (ACC0, ACC1)[u]
            cc = "0" if (c == 0 and st == 0) else vr(acc, 16)
            a(f"v_mfma_f32_32x32x16_bf16 {vr(acc,16)}, {vr(buf[st]+4*u,4)}, {ar(16*c+4*st,4)}, {cc}")
        def half(c, st, rd, nslot):
            pat = self.o.get('apat', 'MRMRVMVMV')
            mf = [(st, 0), (st, 1), (st+1, 0), (st+1, 1)]; rd = list(rd); left = nslot; nv = pat.count('V')
            for ch in pat:
                if ch == 'M': m1(c, *mf.pop(0))
                elif ch == 'R':
                    if rd: reads(*rd.pop(0))
                else:
                    n = -(-left // nv); self.slot(n); left -= n; nv -= 1
        self.push(*self.dmaA(2)); self.slot(2)
        be = self.o.get('bearly', 0)
        self.push(*(self.misc + (self.dmaB(0) if be else [])))
        landed("c0", 4); a("s_barrier")
        self.stamp(2)
        reads(0, 0); reads(0, 1)
        self.slot(2)
        for c in range(8):
            a.wait(lg="r1")
            half(c, 0, [(c, 2), (c, 3)], len(self.pend))
            if c == 4:
                a.ds(f"ds_read_b64_tr_b16 {vr(WP0,2)}, {MWP}", "r3"); a.ds(f"ds_read_b64_tr_b16 {vr(WP0+2,2)}, {MWP} offset:128", "r3")
                a(f"v_readfirstlane_b32 {sE}, {ME}")
                a(f"v_and_b32 {V0}, 16, {vL}"); a(f"v_cmp_eq_u32 vcc, 0, {V0}")
                a(f"s_add_u32 {sE}, {sE}, 1"); a(f"s_mul_i32 {sTAG}, {sE}, 0x9E3779B1"); a(f"s_add_u32 {sTAG}, {sTAG}, 0x7F4A7C15")
            a.wait(lg="r3")
            if c < 7: landed(f"c{c+1}", 4)
            elif be: a.wait(vm="B0")
            a("s_barrier")
            self.stamp(f"c{c+1}")
            if c + 3 <= 7: self.push(*self.dmaA(c + 3))
            if be:
                if c <= 6: self.push(*self.dmaB(c + 1))
                if c >= 5: self.push(*self.dmaW2(c - 5))
            elif c in (5, 6): self.push(*sum((self.dmaB(ci) for ci in range(4*(c-5), 4*(c-5)+4)), []))
            half(c, 2, [(c + 1, 0), (c + 1, 1)] if c < 7 else [], (len(self.pend) + 1)//2 if c < 7 else len(self.pend))
            if c == 4:
                for i in range(4):
                    a(f"v_cndmask_b32_e64 v{WP1+i}, v{WP0+i}, 0, vcc")
                    a(f"v_cndmask_b32 v{WP0+i}, 0, v{WP0+i}, vcc")
        self.stamp(3)
    def passB(self, half, fill, per, every=3):
        a = self.a
        NB = 4; D = 3
        def reads(st):
            b = FR + 4*(st % NB)
            for e in range(2):
                a.ds(f"ds_read_b64_tr_b16 {vr(b+2*e,2)}, {vBR} offset:{st*2048 + e*512}", f"b{st}")
        def emit(n):
            for _ in range(n):
                if fill:
                    x = fill.pop(0)
                    a(x) if isinstance(x, str) else x()
        lo, hi = 16*half, 16*half + 16
        for st in range(lo, lo + D): reads(st)
        for st in range(lo, hi):
            emit(per)
            a.wait(lg=f"b{st}")
            cc = "0" if st == 0 else vr(ACCB, 16)
            a(f"v_mfma_f32_32x32x16_bf16 {vr(ACCB,16)}, {vr(FR+4*(st%NB),4)}, {ar(4*st,4)}, {cc}")
            if st + D < hi: reads(st + D)
            if st % every == every - 1: self.slot()
        emit(len(fill))
    def h_pack(self, acc, dst):
        L = []
        for i in range(8):
            L += [f"v_max_f32 v{acc+2*i}, 0, v{acc+2*i}", f"v_max_f32 v{acc+2*i+1}, 0, v{acc+2*i+1}", f"v_cvt_pk_bf16_f32 v{dst+i}, v{acc+2*i}, v{acc+2*i+1}"]
        return L
    def softmax(self, acc, pq, E, kf, sink, packed, mid=None):
        L = []; a = L.append
        for i in range(8): a(f"v_cvt_pk_bf16_f32 v{kf+i}, v{acc+2*i}, v{acc+2*i+1}")
        a(f"v_mfma_f32_32x32x16_bf16 {vr(pq,16)}, {vr(WP0,4)}, {vr(kf,4)}, 0")
        a(f"v_mfma_f32_32x32x16_bf16 {vr(pq,16)}, {vr(WP1,4)}, {vr(kf+4,4)}, {vr(pq,16)}")
        hook = lambda k: a(lambda: (self.stamp(f"sm{k}"), mid(k) if mid else None))
        hook(0)
        S = ((kf, kf+2), (kf+4, kf+6))
        for k in range(4):
            for hd in range(2):
                p = pq + 8*hd; mp, mn = S[hd]
                if k == 0: a(f"v_max3_f32 v{mp}, v{p}, v{p+1}, v{p+2}"); a(f"v_max3_f32 v{mn}, -v{p}, -v{p+1}, -v{p+2}")
                elif k < 3: a(f"v_max3_f32 v{mp}, v{mp}, v{p+1+2*k}, v{p+2+2*k}"); a(f"v_max3_f32 v{mn}, v{mn}, -v{p+1+2*k}, -v{p+2+2*k}")
                else: a(f"v_max_f32 v{mp}, v{mp}, v{p+7}"); a(f"v_max_f32_e64 v{mn}, v{mn}, -v{p+7}")
        def both(f):
            for hd in range(2): f(*S[hd])
        both(lambda x, y: a(f"v_permlane32_swap_b32 v{x}, v{y}"))
        both(lambda x, y: a(f"v_max_f32 v{x}, v{x}, v{y}"))
        both(lambda x, y: a(f"v_mul_f32 v{x}, {sL2E}, v{x}"))
        both(lambda x, y: a(f"v_mov_b32 v{y}, v{x}"))
        both(lambda x, y: a(f"v_permlane32_swap_b32 v{x}, v{y}"))
        for hd in range(2):
            p = pq + 8*hd; e = E[hd]; mp, mn = S[hd]
            if packed:
                for i in range(0, 8, 2):
                    a(f"v_pk_fma_f32 {vr(e+i,2)}, {vr(p+i,2)}, {sL2P}, {vr(mp,2)} op_sel_hi:[1,1,0] neg_lo:[0,0,1] neg_hi:[0,0,1]")
                    a(f"v_pk_fma_f32 {vr(e+8+i,2)}, {vr(p+i,2)}, {sL2P}, {vr(mn,2)} op_sel_hi:[1,1,0] neg_lo:[1,0,1] neg_hi:[1,0,1]")
            else:
                for i in range(8):
                    a(f"v_fma_f32 v{e+i}, v{p+i}, {sL2E}, -v{mp}"); a(f"v_fma_f32 v{e+8+i}, -v{p+i}, {sL2E}, -v{mn}")
        a(self.slot)
        for hd in range(2):
            for i in range(16): a(f"v_exp_f32 v{E[hd]+i}, v{E[hd]+i}")
            a(self.slot)
        hook(1)
        for k in range(3):
            for hd in range(2):
                for sg in range(2):
                    b = E[hd] + 8*sg; s = S[hd][sg]
                    x = b if k == 0 else s
                    if packed: a(f"v_pk_add_f32 {vr(s,2)}, {vr(x,2)}, {vr(b+2+2*k,2)}")
                    else: a(f"v_add_f32 v{s}, v{x}, v{b+2+2*k}"); a(f"v_add_f32 v{s+1}, v{x+1}, v{b+3+2*k}")
        both(lambda x, y: (a(f"v_add_f32 v{x}, v{x}, v{x+1}"), a(f"v_add_f32 v{y}, v{y}, v{y+1}")))
        both(lambda x, y: a(f"v_permlane32_swap_b32 v{x}, v{y}"))
        both(lambda x, y: a(f"v_add_f32 v{x}, v{x}, v{y}"))
        both(lambda x, y: a(f"v_rcp_f32 v{x}, v{x}"))
        both(lambda x, y: a(f"v_mov_b32 v{y}, v{x}"))
        both(lambda x, y: a(f"v_permlane32_swap_b32 v{x}, v{y}"))
        a(self.slot)
        for hd in range(2):
            for sg in range(2):
                b = E[hd] + 8*sg
                if packed:
                    for i in range(0, 8, 2): a(f"v_pk_mul_f32 {vr(b+i,2)}, {vr(b+i,2)}, {vr(S[hd][sg],2)} op_sel_hi:[1,0]")
                else:
                    for i in range(8): a(f"v_mul_f32 v{b+i}, v{S[hd][sg]}, v{b+i}")
                L += sink(hd, sg, b)
                a(self.slot)
        hook(2)
        return L
    def run(self, L):
        for x in L: self.a(x) if isinstance(x, str) else x()
    def kv_epilogue(self):
        a = self.a; o = self.o
        a(f"v_and_b32 {V4}, 31, {vL}"); a(f"v_lshrrev_b32 {V5}, 5, {vL}"); a(f"v_lshlrev_b32 {V5}, 4, {V5}"); a(f"v_lshl_add_u32 {V4}, {V4}, 5, {V5}")
        a(f"s_lshl_b32 {T0}, {sTG}, 10"); a(f"s_lshl_b32 {T1}, {sBB}, 13"); a(f"s_add_u32 {T2}, {T0}, {T1}"); a(f"s_add_u32 {T3}, {T2}, {T1}")
        a(f"v_add_u32 {V5}, {T2}, {V4}"); a(f"v_add_u32 {V4}, {T3}, {V4}")
        def sink(hd, sg, b):
            d = WP0 + 4*sg
            return [f"v_cvt_pk_bf16_f32 v{d+i}, v{b+2*i}, v{b+2*i+1}" for i in range(4)] + \
                   [lambda: a.ds(f"ds_write_b128 {V4}, {vr(d,4)} offset:{(2*hd+sg)*4096}", "kw")]
        be = o.get('bearly', 0)
        L = self.softmax(ACC0, ACC0, (ACC1, PHI), FR + 16, sink, 0 if be else 1)
        vf = PHI
        Vv = [f"v_cvt_pk_bf16_f32 v{vf+i}, v{ACC1+2*i}, v{ACC1+2*i+1}" for i in range(8)]
        Vv += [(lambda hd=hd: a.ds(f"ds_write_b128 {V5}, {vr(vf+4*hd,4)} offset:{32768 + hd*4096}", "kw")) for hd in range(2)]
        L = L[:10] + Vv + L[10:]
        self.push(lambda: self.touch(16*UNIT, sHG, V6))
        if be: self.passB(0, L, o.get('kper', 12), 100)
        else:
            self.push(*(self.dmaW2(0) + self.dmaW2(1) + self.dmaW2(2))[:o.get('kdma', 6)])
            self.run(L)
        self.flush()
        a.wait(lg="kw"); a.wait(vm="B1" if be else "B0")
        a("s_barrier")
        self.stamp(4)
        a(f"s_lshl_b32 {T0}, {sW}, 12"); a(f"s_lshr_b32 {T1}, {sW}, 1"); a(f"s_lshl_b32 {T1}, {T1}, 12"); a(f"s_add_u32 {T1}, {T1}, 32768")
        a(f"v_lshlrev_b32 {V0}, 3, {vL}"); a(f"v_add_u32 {V1}, {T1}, {V0}"); a(f"v_add_u32 {V0}, {T0}, {V0}")
        A, B, ONE, DK, DZ = ACC0, ACC1, PHI, PHI+4, PHI+8
        for st in range(4):
            for e in range(2): a.ds(f"ds_read_b64_tr_b16 {vr(A+4*st+2*e,2)}, {V0} offset:{st*1024+e*512}", f"k{st}")
            if st == 3: a.wait(lg="k0")
            for e in range(2): a.ds(f"ds_read_b64_tr_b16 {vr(B+4*st+2*e,2)}, {V1} offset:{st*1024+e*512}", f"k{st}")
        for i in range(4): a(f"v_mov_b32 v{ONE+i}, 0x3f803f80")
        a(f"s_lshl_b32 {T0}, {sHP}, 4"); a(f"s_add_u32 {T0}, {T0}, {sRB}"); a(f"s_lshl_b32 {T0}, {T0}, 3"); a(f"s_add_u32 {T0}, {T0}, {sW}")
        a(f"s_lshl_b32 {T1}, {T0}, 10"); a(f"s_add_u32 {T1}, {T1}, {P_OFF}"); a(f"s_lshl_b32 {T2}, {T0}, 6"); a(f"s_add_u32 {T2}, {T2}, {PZ_OFF}")
        a(f"v_lshlrev_b32 {V2}, 4, {vL}"); a(f"v_and_b32 {V3}, 15, {vL}"); a(f"v_cmp_eq_u32 vcc, 0, {V3}"); a(f"v_mov_b32 {V3}, {OOB}")
        a(f"v_cndmask_b32 {V3}, {V3}, {vL}, vcc")
        a(f"s_mov_b32 {T3}, 0x07060501"); a(f"s_mov_b32 {T4}, 0x07060502"); a(f"s_mov_b32 {T5}, 0x07060503")
        for st in range(4):
            a.wait(lg=f"k{st}")
            a(f"v_mfma_f32_16x16x32_bf16 {vr(DK,4)}, {vr(A+4*st,4)}, {vr(B+4*st,4)}, {'0' if st == 0 else vr(DK,4)}")
            a(f"v_mfma_f32_16x16x32_bf16 {vr(DZ,4)}, {vr(A+4*st,4)}, {vr(ONE,4)}, {'0' if st == 0 else vr(DZ,4)}")
        for D in (DK, DZ):
            a(f"v_perm_b32 v{D}, v{D}, v{D+3}, {T3}"); a(f"v_perm_b32 v{D+1}, v{D+1}, v{D+3}, {T4}"); a(f"v_perm_b32 v{D+2}, v{D+2}, v{D+3}, {T5}")
            a(f"v_mov_b32 v{D+3}, {sTAG}")
        a.vmem(f"buffer_load_dword {V7}, off, {SDBG}, {sC32} sc1", "mode")
        a.vmem(f"buffer_store_dwordx4 {vr(DK,4)}, {V2}, {SWS}, {T1} offen sc1", "part")
        a.vmem(f"buffer_store_dwordx4 {vr(DZ,4)}, {V3}, {SWS}, {T2} offen sc1", "part")
        self.ack_store()
        self.stamp(5)
    def reducer(self, after_first):
        a = self.a
        a(f"s_lshl_b32 {T0}, {sRB}, 1"); a(f"s_add_u32 {T0}, {T0}, {sHG}"); a(f"s_sub_u32 {T0}, {T0}, 6")
        a(f"s_lshr_b32 {T1}, {T0}, 2"); a(f"s_and_b32 {T0}, {T0}, 3"); a(f"s_lshl_b32 {T0}, {T0}, 1"); a(f"s_add_u32 {T0}, {T0}, {sBB}")
        a(f"s_lshl_b32 {T2}, {T1}, 7"); a(f"s_add_u32 {T2}, {T2}, {T0}")
        a(f"s_lshl_b32 {T3}, {T2}, 10"); a(f"s_lshl_b32 {T4}, {sTG}, 8"); a(f"s_add_u32 {T3}, {T3}, {T4}"); a(f"s_add_u32 {T3}, {T3}, {P_OFF}")
        a(f"v_lshrrev_b32 {V0}, 3, {vL}"); a(f"v_and_b32 {V1}, 7, {vL}"); a(f"v_lshlrev_b32 {V1}, 4, {V1}"); a(f"v_lshl_add_u32 {V2}, {V0}, 13, {V1}"); a(f"v_add_u32 {V2}, {T3}, {V2}")
        a(f"s_lshl_b32 {T3}, {T2}, 6"); a(f"s_add_u32 {T3}, {T3}, {PZ_OFF}")
        a(f"v_lshrrev_b32 {V0}, 2, {vL}"); a(f"v_and_b32 {V3}, 3, {vL}"); a(f"v_lshlrev_b32 {V3}, 4, {V3}"); a(f"v_lshl_add_u32 {V3}, {V0}, 9, {V3}"); a(f"v_add_u32 {V3}, {T3}, {V3}")
        a(f"s_lshl_b32 {T2}, {T1}, 3"); a(f"s_add_u32 {T2}, {T2}, {T0}")
        a(f"s_lshl_b32 {T3}, {T2}, 10"); a(f"s_add_u32 {T3}, {T3}, {T4}"); a(f"s_add_u32 {T3}, {T3}, {F_OFF}")
        a(f"v_mov_b32 {V0}, {OOB}"); a(f"v_cmp_gt_u32 vcc, 8, {vL}"); a(f"v_add_u32 {V4}, {T3}, {V1}"); a(f"v_cndmask_b32 {V4}, {V0}, {V4}, vcc")
        a(f"s_lshl_b32 {T3}, {T2}, 6"); a(f"s_add_u32 {T3}, {T3}, {FZ_OFF}"); a(f"s_cmp_eq_u32 {sTG}, 0"); a(f"s_cselect_b32 {T3}, {T3}, {OOB - 0x100}")
        a(f"v_cmp_gt_u32 vcc, 4, {vL}"); a(f"v_add_u32 {V5}, {T3}, {V1}"); a(f"v_cndmask_b32 {V5}, {V0}, {V5}, vcc")
        B = ACC0
        def loads(track):
            for i in range(4):
                s = f"buffer_load_dwordx4 {vr(B+4*i,4)}, {V2}, {SWS}, {'0' if i < 2 else T0} offen offset:{(i&1)*128} sc1"
                a.vmem(s, "h1") if track else a(s)
            s = f"buffer_load_dwordx4 {vr(B+16,4)}, {V3}, {SWS}, 0 offen sc1"
            a.vmem(s, "h1") if track else a(s)
        a(f"s_mov_b32 {T0}, 0x10000")
        L = a.label("h1"); Ld = a.label("h1d")
        loads(True)
        a.wait(vm="h1")
        after_first()
        a(f"s_mov_b32 {sSPIN}, {SPIN}")
        a(f"{L}:")
        a(f"v_cmp_ne_u32 vcc, {sTAG}, v{B+3}")
        for i in range(1, 5):
            a(f"v_cmp_ne_u32 {sM}, {sTAG}, v{B+4*i+3}"); a("s_nop 1"); a(f"s_or_b64 vcc, vcc, {sM}")
        a(f"s_cbranch_vccz {Ld}")
        a(f"s_sub_u32 {sSPIN}, {sSPIN}, 1"); a(f"s_cbranch_scc1 {Ld}")
        loads(False); a("s_waitcnt vmcnt(0)"); a(f"s_branch {L}")
        a(f"{Ld}:")
        self.stamp(7)
        a(f"s_mov_b32 {T1}, 0x04000c0c"); a(f"s_mov_b32 {T2}, 0x0706000c")
        for i in range(5):
            b = B + 4*i
            a(f"v_perm_b32 v{b+3}, v{b+2}, v{b+1}, {T1}"); a(f"v_perm_b32 v{b+3}, v{b+3}, v{b}, {T2}")
        for i in range(8): a(f"v_add_f32 v{B+i}, v{B+i}, v{B+8+i}")
        Z = B + 16; Tm = ACC1 + 8
        for i in range(4): a(f"v_add_f32_dpp v{Z+i}, v{Z+i}, v{Z+i} row_ror:4 row_mask:0xf bank_mask:0xf")
        vals = list(range(B, B+8)) + list(range(Z, Z+4))
        for v in vals: a(f"v_add_f32_dpp v{v}, v{v}, v{v} row_ror:8 row_mask:0xf bank_mask:0xf")
        for op in ("v_permlane16_swap_b32", "v_permlane32_swap_b32"):
            for k, v in enumerate(vals): a(f"v_mov_b32 v{Tm+k}, v{v}")
            for k, v in enumerate(vals): a(f"{op} v{v}, v{Tm+k}")
            for k, v in enumerate(vals): a(f"v_add_f32 v{v}, v{v}, v{Tm+k}")
        for k, b in enumerate((B, B+4, Z)):
            d = Tm + 4*k
            a(f"v_cvt_pk_bf16_f32 v{d}, v{b}, v{b+1}"); a(f"v_cvt_pk_bf16_f32 v{d+1}, v{b+2}, v{b+3}")
            a(f"v_mov_b32 v{d+2}, {sTAG}"); a(f"v_mov_b32 v{d+3}, {sTAG}")
        return lambda: (a.vmem(f"buffer_store_dwordx4 {vr(Tm,4)}, {V4}, {SWS}, 0 offen sc1", "fin"),
                        a.vmem(f"buffer_store_dwordx4 {vr(Tm+4,4)}, {V4}, {SWS}, 0 offen offset:128 sc1", "fin"),
                        a.vmem(f"buffer_store_dwordx4 {vr(Tm+8,4)}, {V5}, {SWS}, 0 offen sc1", "fin"))
    def o_stage_fetch(self, part=3):
        a = self.a
        B = ACCA
        def loads(track):
            for s in (f"buffer_load_dwordx4 {vr(B,4)}, {V2}, {SWS}, 0 offen sc1", f"buffer_load_dwordx4 {vr(B+4,4)}, {V3}, {SWS}, 0 offen sc1"):
                a.vmem(s, "h2") if track else a(s)
        if part & 1:
            a(f"s_lshl_b32 {T0}, {sHP}, 3"); a(f"s_add_u32 {T0}, {T0}, {sW}")
            a(f"s_lshl_b32 {T1}, {T0}, 10"); a(f"s_add_u32 {T1}, {T1}, {F_OFF}"); a(f"s_lshl_b32 {T2}, {T0}, 6"); a(f"s_add_u32 {T2}, {T2}, {FZ_OFF}")
            a(f"v_lshlrev_b32 {V2}, 4, {vL}"); a(f"v_and_b32 {V3}, 0x30, {V2}"); a(f"v_add_u32 {V2}, {T1}, {V2}"); a(f"v_add_u32 {V3}, {T2}, {V3}")
            loads(True)
        if not part & 2: return
        L = a.label("h2"); Ld = a.label("h2d")
        a.wait(vm="h2")
        a(f"s_mov_b32 {sSPIN}, {SPIN}")
        a(f"{L}:")
        a(f"v_cmp_ne_u32 vcc, {sTAG}, v{B+2}"); a(f"v_cmp_ne_u32 {sM}, {sTAG}, v{B+6}"); a("s_nop 1"); a(f"s_or_b64 vcc, vcc, {sM}")
        a(f"s_cbranch_vccz {Ld}")
        a(f"s_sub_u32 {sSPIN}, {sSPIN}, 1"); a(f"s_cbranch_scc1 {Ld}")
        loads(False); a("s_waitcnt vmcnt(0)"); a(f"s_branch {L}")
        a(f"{Ld}:")
        self.stamp(9)
        a(f"s_add_u32 {T0}, {sW1k}, {KVT}")
        a(f"v_and_b32 {V2}, 15, {vL}"); a(f"v_lshrrev_b32 {V3}, 4, {vL}"); a(f"v_lshlrev_b32 {V3}, 3, {V3}"); a(f"v_lshl_add_u32 {V2}, {V2}, 5, {V3}"); a(f"v_add_u32 {V2}, {T0}, {V2}")
        a(f"v_lshlrev_b32 {V3}, 3, {vL}"); a(f"v_add_u32 {V3}, {T0}, {V3}")
        a.ds(f"ds_write_b64 {V2}, {vr(B,2)}", "kt")
        a("s_mov_b64 exec, 15")
        a.ds(f"ds_write_b64 {V3}, {vr(B+4,2)} offset:512", "kt")
        a("s_mov_b64 exec, -1")
        a.wait(lg="kt")
    def o_stage_compute(self):
        a = self.a
        a(f"v_and_b32 {V0}, 3, {vL}"); a(f"v_bfe_u32 {V1}, {vL}, 2, 1"); a(f"v_bfe_u32 {V2}, {vL}, 3, 1")
        a(f"v_lshl_add_u32 {V0}, {V1}, 3, {V0}"); a(f"v_lshl_add_u32 {V0}, {V2}, 2, {V0}")
        a(f"v_and_b32 {V1}, 16, {vL}"); a(f"v_cmp_eq_u32 vcc, 0, {V1}"); a(f"v_lshrrev_b32 {V2}, 5, {vL}"); a(f"v_lshlrev_b32 {V2}, 4, {V2}")
        a(f"v_cndmask_b32 {V0}, {V1}, {V0}, vcc"); a(f"v_lshl_add_u32 {V0}, {V0}, 5, {V2}")
        a(f"s_lshl_b32 {T0}, {sBB}, 12"); a(f"s_add_u32 {T0}, {T0}, {KVT}"); a(f"v_add_u32 {V0}, {T0}, {V0}")
        A, D, PK = ACCA, ACCA+16, FR2
        for i in range(4): a.ds(f"ds_read_b128 {vr(A+4*i,4)}, {V0} offset:{i*1024}", f"o{i>>1}")
        a(f"s_lshl_b32 {T0}, {sHP}, 19"); a(f"s_add_u32 {T0}, {T0}, {O_OFF}"); a(f"s_add_u32 {T1}, {T0}, {STEP}")
        for hd in range(2):
            a.wait(lg=f"o{hd}")
            a(f"v_mfma_f32_32x32x16_bf16 {vr(D,16)}, {vr(A+8*hd,4)}, {vr(PHI+8*hd,4)}, 0")
            a(f"v_mfma_f32_32x32x16_bf16 {vr(D,16)}, {vr(A+8*hd+4,4)}, {vr(PHI+8*hd+4,4)}, {vr(D,16)}")
            a(f"v_add_f32 {V1}, 0x358637bd, v{D+8}"); a(f"v_rcp_f32 {V1}, {V1}")
            for i in range(8): a(f"v_mul_f32 v{D+i}, {V1}, v{D+i}")
            for i in range(4): a(f"v_cvt_pk_bf16_f32 v{PK+4*hd+i}, v{D+2*i}, v{D+2*i+1}")
        self.store_mode(lambda f: (a(f"buffer_store_dwordx4 {vr(PK,4)}, {vHS}, {SWS}, {T0} offen{f}"),
                                   a(f"buffer_store_dwordx4 {vr(PK+4,4)}, {vHS}, {SWS}, {T1} offen{f}")), "ost", 2)
    def ffn(self, hooks, la, extra=[]):
        a = self.a; nr = self.nring; o = self.o
        g2i, g2c = o.get('g2i', 3), o.get('g2c', 5)
        for d in range(11):
            a.wait(vm=f"w2_{d}")
            a.wait(vm=f"h{d}")
            a("s_barrier")
            self.stamp(f"f{d}")
            if d == g2i: a.vmem(f"buffer_load_dword {V0}, {vFL}, {SWS}, 0 offen sc1", "pf")
            if d >= 1 and d + 2 <= 7: self.push(*self.dmaW2(d + 2))
            self.slot()
            base = self.ring(d)
            p0, p1, off = (vPR0, vPR1, base) if base < 65536 else (vPM0, vPM1, base - 65536)
            for u in range(2):
                for cb, v in ((0, p0), (1, p1)):
                    for e in range(2):
                        a.ds(f"ds_read_b64_tr_b16 {vr(FR2+8*u+4*cb+2*e,2)}, {v} offset:{off + u*8192 + e*512}", f"f{u}")
            if d + la <= 7: self.push(*self.ldH(d + la))
            if d == g2c:
                self.poll_flags(0x1555, "pf")
                self.push(lambda: a.vmem(f"buffer_load_dword {V6}, {vG}, {SWS}, 0 offen sc1", "g"))
            if g2c <= d < g2c + 3: self.push(*self.ldH(8 + d - g2c))
            n = -(-len(extra) // max(1, 7 - d)); n += n & 1
            self.push(*extra[:n]); extra = extra[n:]
            self.slot()
            for u in range(2):
                a.wait(lg=f"f{u}")
                for cb in range(2):
                    acc = ACCF + 16*cb
                    a(f"v_mfma_f32_32x32x16_bf16 {vr(acc,16)}, {vr(FR2+8*u+4*cb,4)}, {ar(8*d+4*u,4)}, {'0' if d == 0 and u == 0 else vr(acc,16)}")
                self.slot()
            self.flush()
            if d in hooks: hooks[d]()
    def tail(self, bump=False):
        a = self.a
        a("s_barrier")
        self.stamp(10)
        a.vmem(f"buffer_load_dword {V0}, {vFL}, {SWS}, 0 offen sc1", "pf")
        W0, W1, W2_, W3, R0, R1, OA = vX0, vX1, vWA, vWB, vXR0, vXR1, vXR2
        a(f"v_and_b32 {W0}, 31, {vL}"); a(f"v_lshrrev_b32 {V1}, 5, {vL}"); a(f"v_lshlrev_b32 {V1}, 1, {V1}"); a(f"v_and_b32 {V2}, 7, {vL}")
        a(f"v_xor_b32 {V1}, {V1}, {V2}"); a(f"v_lshlrev_b32 {V1}, 4, {V1}"); a(f"v_lshl_add_u32 {W0}, {W0}, 8, {V1}")
        a(f"s_and_b32 {T4}, {sW}, 1"); a(f"s_lshl_b32 {T4}, {T4}, 15"); a(f"s_lshr_b32 {T1}, {sW}, 1"); a(f"s_lshl_b32 {T2}, {T1}, 13"); a(f"s_add_u32 {T2}, {T2}, {T4}")
        a(f"v_add_u32 {W0}, {T2}, {W0}"); a(f"v_xor_b32 {W1}, 16, {W0}"); a(f"v_xor_b32 {W2_}, 64, {W0}"); a(f"v_xor_b32 {W3}, 0x50, {W0}")
        a(f"v_lshrrev_b32 {V5}, 3, {vL}"); a(f"v_lshlrev_b32 {R0}, 1, {V2}"); a(f"v_xor_b32 {R0}, {R0}, {V5}"); a(f"v_lshlrev_b32 {R0}, 4, {R0}")
        a(f"v_lshl_add_u32 {R0}, {V5}, 8, {R0}"); a(f"s_lshl_b32 {T2}, {T1}, 11"); a(f"s_add_u32 {T2}, {T2}, {T4}"); a(f"v_add_u32 {R0}, {T2}, {R0}"); a(f"v_xor_b32 {R1}, 16, {R0}")
        a(f"s_lshl_b32 {T2}, {sRB}, 7"); a(f"s_lshl_b32 {T3}, {sType}, 6"); a(f"s_add_u32 {T2}, {T2}, {T3}"); a(f"s_lshr_b32 {T3}, {T4}, 10"); a(f"s_add_u32 {T2}, {T2}, {T3}")
        a(f"s_lshl_b32 {T3}, {T1}, 3"); a(f"s_add_u32 {T2}, {T2}, {T3}"); a(f"s_lshl_b32 {T2}, {T2}, 10"); a(f"s_lshl_b32 {T3}, {sN}, 7"); a(f"s_add_u32 {T2}, {T2}, {T3}")
        a(f"v_lshlrev_b32 {V2}, 4, {V2}"); a(f"v_lshl_add_u32 {OA}, {V5}, 10, {V2}"); a(f"v_add_u32 {OA}, {T2}, {OA}")
        a.wait(vm="g")
        a(f"v_sub_f32 {V5}, 1.0, {V6}")
        for i in range(32): a(f"v_mul_f32 v{ACCF+i}, {V5}, v{ACCF+i}")
        def rd(i):
            b = FR2 + 8*(i % 2)
            for cb, v in ((0, vPO0), (1, vPO1)):
                for e in range(2): a.ds(f"ds_read_b64_tr_b16 {vr(b+4*cb+2*e,2)}, {v} offset:{i*8192 + e*512}", f"a{i}")
        rd(0)
        self.poll_flags(0xff0000, "pf")
        self.stamp(11)
        def ld(i):
            a(f"s_mov_b32 {T0}, {O_OFF + i*UNIT}")
            a.vmem(f"buffer_load_dwordx4 {ar(88+4*i,4)}, {vHL}, {SWS}, {T0} offen sc1", f"o{i}")
        LA = 4
        for i in range(LA): ld(i)
        for i in range(8):
            if i + 1 < 8: rd(i + 1)
            if i + LA < 8: ld(i + LA)
            a.wait(vm=f"o{i}", lg=f"a{i}")
            for cb in range(2):
                acc = ACCA + 16*cb
                a(f"v_mfma_f32_32x32x16_bf16 {vr(acc,16)}, {vr(FR2+8*(i%2)+4*cb,4)}, {ar(88+4*i,4)}, {'0' if i == 0 else vr(acc,16)}")
        self.stamp(12)
        wa = {(0, 0): W0, (0, 1): W1, (1, 0): W2_, (1, 1): W3}
        for cb in range(2):
            for gp in range(2):
                for e in range(2):
                    b = 16*cb + 8*gp + 4*e
                    for i in range(4): a(f"v_fmac_f32 v{ACCF+b+i}, {V6}, v{ACCA+b+i}")
                    a.ds(f"ds_write_b128 {wa[(gp,e)]}, {vr(ACCF+b,4)} offset:{cb*128}", "rw")
        a.wait(lg="rw")
        self.stamp("rw")
        a("s_barrier")
        B = ACCA
        for k in range(4):
            a.ds(f"ds_read_b128 {vr(B+8*k,4)}, {R0} offset:{k*8192}", f"s{k}"); a.ds(f"ds_read_b128 {vr(B+8*k+4,4)}, {R1} offset:{k*8192}", f"s{k}")
        a.wait(lg="s1")
        for i in range(8): a(f"v_add_f32 v{B+i}, v{B+i}, v{B+8+i}")
        a.wait(lg="s3")
        for i in range(8): a(f"v_add_f32 v{B+16+i}, v{B+16+i}, v{B+24+i}")
        for i in range(8): a(f"v_add_f32 v{B+i}, v{B+i}, v{B+16+i}")
        for i in range(4): a(f"v_cvt_pk_bf16_f32 v{B+8+i}, v{B+2*i}, v{B+2*i+1}")
        a.vmem(f"buffer_store_dwordx4 {vr(B+8,4)}, {OA}, {SOUT}, 0 offen", "out")
        if self.o.get('stamps'):
            self.stamp(13)
            a("s_waitcnt vmcnt(0)"); self.stamp(14); a("s_waitcnt lgkmcnt(0)"); self.stamp(15)
            a("s_waitcnt lgkmcnt(0)"); a("s_memrealtime s[26:27]"); a("s_waitcnt lgkmcnt(0)"); a("v_writelane_b32 v23, s26, 63")
            a(f"s_lshl_b32 {T0}, s2, 3"); a(f"s_add_u32 {T0}, {T0}, {sW}"); a(f"s_lshl_b32 {T0}, {T0}, 8"); a(f"s_add_u32 {T0}, {T0}, {ST_OFF}")
            a(f"v_lshlrev_b32 {V0}, 2, {vL}")
            a(f"buffer_store_dword v23, {V0}, {SWS}, {T0} offen")
        a("s_endpgm")
    def bump(self):
        a = self.a
        Lx = a.label("nb"); L = a.label("bp"); Ld = a.label("bpd")
        a("s_cmp_eq_u32 s2, 224"); a(f"s_cbranch_scc0 {Lx}"); a(f"s_cmp_eq_u32 {sW}, 0"); a(f"s_cbranch_scc0 {Lx}")
        a(f"v_lshlrev_b32 {V0}, 4, {vL}"); a(f"s_mov_b32 {T0}, {ACK_OFF}"); a(f"s_mov_b32 {sSPIN}, {SPIN}")
        a(f"{L}:")
        a(f"buffer_load_dwordx4 {vr(ACCA,4)}, {V0}, {SWS}, {T0} offen sc1"); a("s_waitcnt vmcnt(0)")
        a(f"v_cmp_ne_u32 vcc, {sTAG}, v{ACCA}")
        for i in range(1, 4):
            a(f"v_cmp_ne_u32 {sM}, {sTAG}, v{ACCA+i}"); a("s_nop 1"); a(f"s_or_b64 vcc, vcc, {sM}")
        a(f"s_cbranch_vccz {Ld}")
        a(f"s_sub_u32 {sSPIN}, {sSPIN}, 1"); a(f"s_cbranch_scc0 {L}")
        a(f"{Ld}:")
        a(f"v_mov_b32 {V0}, {sE}"); a(f"s_mov_b32 {T0}, {E_OFF}"); a("s_mov_b64 exec, 1")
        a(f"buffer_store_dword {V0}, off, {SWS}, {T0}"); a("s_mov_b64 exec, -1"); a("s_waitcnt vmcnt(0)")
        a(f"{Lx}:")
    def group1(self, la, pre=None):
        self.poll_flags(0xAAAA, pre)
        self.stamp(8)
        for d in range(min(la, 8)):
            for f in self.ldH(d): f()
    def path_q(self):
        a = self.a; o = self.o
        a(f"s_lshl_b32 {T0}, {sHG}, 20")
        L = []
        for u, acc in enumerate((ACC0, ACC1)):
            pk = PHI + 8*u
            hp = self.h_pack(acc, pk)
            for kk in range(2):
                L += hp[12*kk:12*kk+12]
                L += [f"s_add_u32 {T1}, {T0}, {u*UNIT + kk*STEP}",
                      lambda pk=pk, kk=kk: a.vmem(f"buffer_store_dwordx4 {vr(pk+4*kk,4)}, {vHS}, {SH}, {T1} offen sc1", "hst")]
        L += [self.ack_store, self.get_mode_issue, lambda: self.touch(O_OFF, sHP, V6), lambda: self.stamp(4), lambda: None]
        self.flush()
        be = o.get('bearly', 0)
        rest = ([] if be else self.dmaW2(0) + self.dmaW2(1) + self.dmaW2(2)) + self.dmaW2(8) + self.dmaW2(9) + self.dmaW2(10)
        q1, q2 = o.get('qd1', 0), o.get('qd2', 4)
        if not be:
            self.run(L); L = []
            a.wait(vm="B0"); a("s_barrier")
            self.stamp("B0")
            self.push(*rest[:q1])
        else: L.append(lambda: self.push(*rest[:q1]))
        self.passB(0, L, o.get('qper', 8), 2)
        self.flush()
        a.wait(vm="B1"); a("s_barrier")
        self.stamp("B1")
        rest = rest[q1:] + self.dmaWO(0, 4)
        self.push(*rest[:q2])
        self.passB(1, [], 0, 3)
        self.flush()
        self.stamp(5)
        a("s_barrier")
        rest = rest[q2:] + self.dmaWO(4, 8); q3 = o.get('qd3', 99)
        self.push(*rest[:q3]); rest = rest[q3:]
        sink = lambda hd, sg, b: [f"v_cvt_pk_bf16_f32 v{PHI+8*hd+4*sg+i}, v{b+2*i}, v{b+2*i+1}" for i in range(4)]
        fl = o.get('qflag', 0)
        def mid(k):
            if k == fl:
                self.get_mode_wait(); self.flag_store(FH_OFF, sJ)
        self.run(self.softmax(ACCB, ACC0, (ACC1, ACCB), FR, sink, 1, mid))
        self.flush()
        self.stamp(6)
        la = o.get('la', 3)
        self.group1(la)
        s2 = o.get('s2', 10)
        hooks = {}
        if s2 < 10:
            assert s2 >= 6
            hooks[s2 - 1] = lambda: self.o_stage_fetch(1); hooks[s2] = lambda: self.o_stage_fetch(2); hooks[s2 + 1] = self.o_stage_compute
            fo = lambda: (a.wait(vm="ost"), self.flag_store(FO_OFF, sHP))
            if s2 + 2 <= 10: hooks[s2 + 2] = fo
            self.ffn(hooks, la, rest)
            if s2 + 2 > 10: fo()
        else:
            self.ffn(hooks, la, rest)
            self.o_stage_fetch(); a("s_barrier"); self.o_stage_compute()
            a.wait(vm="ost"); self.flag_store(FO_OFF, sHP)
        self.tail()
    def path_kv(self):
        a = self.a; o = self.o
        self.kv_epilogue()
        a(f"s_cmp_ge_u32 {sHG}, 6"); a("s_cbranch_scc1 L_pathR")
        sv = (a.vm.copy(), a.lg.copy()); pend = list(self.pend)
        if not o.get('bearly', 0):
            self.push(*(self.dmaW2(0) + self.dmaW2(1) + self.dmaW2(2))[o.get('kdma', 6):])
            self.passB(0, [], 0, 3)
            self.flush()
            a.wait(vm="B1"); a("s_barrier")
            self.stamp("B1")
        rest = self.dmaW2(8) + self.dmaW2(9) + self.dmaW2(10) + self.dmaWO(0, 4); k2 = o.get('kd2', 8)
        if o.get('bearly', 0): rest = self.dmaWO(0, 4) + rest[:6]; k2 = min(k2, 4)
        self.push(*rest[:k2]); rest = rest[k2:]
        self.passB(1, [], 0, 3)
        self.flush()
        self.stamp(6)
        self.get_mode_wait()
        self.run(self.h_pack(ACCB, FR))
        a(f"s_add_u32 {T0}, {sHG}, 16"); a(f"s_lshl_b32 {T0}, {T0}, 19"); a(f"s_add_u32 {T1}, {T0}, {STEP}")
        self.store_mode(lambda f: (a(f"buffer_store_dwordx4 {vr(FR,4)}, {vHS}, {SH}, {T0} offen{f}"),
                                   a(f"buffer_store_dwordx4 {vr(FR+4,4)}, {vHS}, {SH}, {T1} offen{f}")), "hst", 2)
        a.vmem(f"buffer_load_dword {V0}, {vFL}, {SWS}, 0 offen sc1", "pf")
        a("s_barrier")
        rest = rest + self.dmaWO(4, 8)
        k3 = o.get('kd3', 99)
        for f in rest[:k3]: f()
        self.stamp(7)
        la = o.get('la', 3)
        self.group1(la, "pf")
        self.ffn({0: lambda: (a.wait(vm="hst"), self.flag_store(FH_OFF, sJ))}, la, rest[k3:])
        self.tail()
        a.vm, a.lg = sv; self.pend = pend
        a("L_pathR:")
        if not o.get('bearly', 0): self.push(*(self.dmaW2(0) + self.dmaW2(1) + self.dmaW2(2))[o.get('kdma', 6):])
        self.flush()
        a.wait(vm="B1"); a("s_barrier")
        Lng = a.label("ng")
        a(f"s_cmp_eq_u32 {sHG}, 6"); a(f"s_cbranch_scc0 {Lng}")
        self.gate_wave()
        a(f"{Lng}:")
        a("s_barrier")
        rest = self.dmaW2(8) + self.dmaW2(9) + self.dmaW2(10) + self.dmaWO(0, 8)
        r1 = o.get('rd1', 0); r2 = o.get('rd2', 0)
        for f in rest[:r1]: f()
        def gflag():
            Lx = a.label("ng")
            a(f"s_cmp_eq_u32 {sHG}, 6"); a(f"s_cbranch_scc0 {Lx}")
            sv2 = a.vm.copy()
            self.get_mode_wait(); self.flag_store(FH_OFF, sJ)
            a.vm = sv2
            a(f"{Lx}:")
            a(f"s_mov_b32 {T0}, 0x10000")
        fin = self.reducer(gflag)
        a.vmem(f"buffer_load_dword {V0}, {vFL}, {SWS}, 0 offen sc1", "pf")
        fin()
        for f in rest[r1:r1+r2]: f()
        self.group1(8, "pf")
        self.ffn({6: self.bump}, 8, rest[r1+r2:])
        self.tail()
    def gate_wave(self):
        a = self.a
        a(f"v_lshrrev_b32 {V0}, 5, {vL}"); a(f"v_lshlrev_b32 {V0}, 4, {V0}"); a(f"s_add_u32 {T0}, {sW1k}, {R + 57344}"); a(f"v_add_u32 {V0}, {T0}, {V0}")
        D = 5
        def rd(st): a.ds(f"ds_read_b128 {vr(FR+4*(st%6),4)}, {V0} offset:{st*32}", f"g{st}")
        for st in range(D): rd(st)
        for st in range(32):
            if st + D < 32: rd(st + D)
            a.wait(lg=f"g{st}")
            a(f"v_mfma_f32_32x32x16_bf16 {vr(ACCB,16)}, {vr(FR+4*(st%6),4)}, {ar(4*st,4)}, {'0' if st == 0 else vr(ACCB,16)}")
            if st % 3 == 2: self.slot()
        a(f"s_lshl_b32 {T2}, {sRB}, 2"); a(f"s_add_u32 {T2}, {T2}, {sTG}"); a(f"s_lshl_b32 {T2}, {T2}, 7"); a(f"s_add_u32 {T2}, {T2}, {G_OFF}")
        a(f"v_and_b32 {V1}, 31, {vL}"); a(f"v_lshlrev_b32 {V1}, 2, {V1}")
        a(f"v_mul_f32 {V2}, {sL2E}, v{ACCB}"); a(f"v_exp_f32_e64 {V2}, -{V2}"); a(f"v_add_f32 {V2}, 1.0, {V2}"); a(f"v_rcp_f32 {V2}, {V2}")
        a(f"buffer_store_dword {V2}, {V1}, {SWS}, {T2} offen sc1")
    def build(self):
        a = self.a
        self.prologue(); self.passA()
        a(f"s_cmp_eq_u32 {sType}, 0"); a("s_cbranch_scc1 L_pathKV")
        sv = (a.vm.copy(), a.lg.copy()); pend = list(self.pend)
        self.path_q()
        a.vm, a.lg = sv; self.pend = pend
        a("L_pathKV:")
        self.path_kv()
        a("L_end:"); a("s_endpgm")
        body = pad_hazards(a.L, verbose=True)
        head = open('cdna_kernels/' + NAME + '.s.ref').read().split('; Override')[0]
        txt = head + "; stamps: " + ",".join(self.names) + "\n" + "; @launch grid=(256,1,1) block=(512,1,1) lds=163840\n"
        txt += f".amdgcn_target \"amdgcn-amd-amdhsa--gfx950\"\n.text\n.globl {NAME}_kernel\n.p2align 8\n.type {NAME}_kernel,@function\n{NAME}_kernel:\n"
        txt += "\n".join(("" if l.endswith(':') else "    ") + l for l in body) + "\n"
        txt += f""".section .rodata,"a"
.p2align 6
.amdhsa_kernel {NAME}_kernel
  .amdhsa_next_free_vgpr 256
  .amdhsa_next_free_sgpr 102
  .amdhsa_accum_offset 128
  .amdhsa_group_segment_fixed_size 0
  .amdhsa_kernarg_size 88
  .amdhsa_user_sgpr_count 2
  .amdhsa_user_sgpr_kernarg_segment_ptr 1
  .amdhsa_system_sgpr_workgroup_id_x 1
.end_amdhsa_kernel
"""
        return txt

if __name__ == '__main__':
    out = sys.argv[1]
    opt = json.loads(sys.argv[2]) if len(sys.argv) > 2 else {}
    open(out, 'w').write(Gen(opt).build())
```

```python
import sys, json
from asmlib import *

NAME = "gated_mix__linear_kernel_hedgehog__dense_activation_relu__prompt"
STEP = 131072; UNIT = 4*STEP
H_OFF = 0; H_SIZE = 86*STEP
O_OFF = 0xC00000; P_OFF = 0x1000000; PZ_OFF = 0x1100000; G_OFF = 0x1110000
F_OFF = 0x1120000; FZ_OFF = 0x1130000; FH_OFF = 0x1140000; FO_OFF = 0x1142000; ACK_OFF = 0x1148000
E_OFF = 0x1150000; ST_OFF = 0x1200000; WS_SIZE = 0x2000000
OOB = 0x7ffffff0
XS = lambda s: s*16384
WSL = lambda s: 49152 + s*16384
R = 98304
RING = lambda d: ((d + 3) % 5)*16384
KVT = 65536
SPIN = 40000
SX, SWA, SWB, SW2, SWO, SWS, SH, SOUT, STMP, SDBG = [f"s[{28+4*i}:{31+4*i}]" for i in range(10)]
sC, sRB, sJ, sHG, sW, sTG, sBB, sC0, sTAG, sMODE, sStrA64, sStrA4, sStrB64, sType, sW1k, sW2k, sL2E, sU0, sU1, sE = [f"s{68+i}" for i in range(20)]
T0, T1, T2, T3, T4, T5 = [f"s{88+i}" for i in range(6)]
sSPIN = "s94"; sXCC = "s95"; sA0 = "s96"; sA1 = "s97"; sM = "s[98:99]"; sA2 = "s100"; sL2P = "s[0:1]"; sC32 = "s101"; sST = "s12"; sHP = "s13"; sN = "s3"
vL = "v0"
vX0, vX1, vWA, vWB, vXR0, vXR1, vXR2, vXR3, vAR0, vAR1, vBR = [f"v{1+i}" for i in range(11)]
vW2, vPR0, vPR1, vPM0, vPM1, vPO0, vPO1, vHL, vHS, vFL, vG = [f"v{12+i}" for i in range(11)]
V0, V1, V2, V3, V4, V5, V6, V7 = [f"v{24+i}" for i in range(8)]
ACC0, ACC1, ACCB, FR, WP0, WP1, PHI = 32, 48, 64, 80, 104, 108, 112
ACCF, ACCA, FR2 = 32, 64, 96
M16, MTO, MAT, MWP, ME, MJ = [f"v{64+i}" for i in range(6)]
vr = lambda b, n: f"v[{b}:{b+n-1}]"
ar = lambda b, n: f"a[{b}:{b+n-1}]"

class Gen:
    def __init__(self, opt):
        self.o = opt; self.a = Asm(); self.nst = 0; self.pend = []; self.nring = 6; self.names = ['0']
    def ring(self, d):
        return (81920, 49152, 65536)[d % 3] if d < 8 else (d - 8)*16384
    def push(self, *fs): self.pend += list(fs)
    def slot(self, n=1):
        for _ in range(n):
            if self.pend: self.pend.pop(0)()
    def flush(self): self.slot(len(self.pend))
    def stamp(self, name):
        if not self.o.get('stamps'): return
        a = self.a
        name = str(name)
        if self.o['stamps'] == 1 and not name.isdigit(): return
        if name not in self.names: self.names.append(name)
        i = self.names.index(name); assert i < 63
        a("s_mov_b32 s27, m0"); a(f"s_mov_b32 m0, {sST}"); a("s_nop 0"); a("v_writelane_b32 v23, s26, m0"); a("s_mov_b32 m0, s27")
        a(f"s_mov_b32 {sST}, {i}")
        a("s_memtime s[26:27]")
    def csel(self, dst, x, y):
        self.a(f"s_mov_b32 {dst}, {y}"); self.a(f"s_cmov_b32 {dst}, {x}")
    def srd(self, s, base, size):
        a = self.a; b = int(s[2:s.index(':')])
        a(f"s_mov_b32 s{b}, s{base}"); a(f"s_mov_b32 s{b+1}, s{base+1}")
        a(f"s_mov_b32 s{b+2}, {size}"); a(f"s_mov_b32 s{b+3}, 0x20000")
    def dma(self, voff, srd, soff, m0expr, tag):
        a = self.a
        if 'offen' not in soff: soff += " offen"
        a(m0expr); a.vmem(f"buffer_load_dwordx4 {voff}, {srd}, {soff} lds", tag)
    def dmaA(self, c):
        a = self.a; s = c % 3
        def first():
            a(f"s_add_u32 {sA0}, {sC0}, {c}"); a(f"s_and_b32 {sA0}, {sA0}, 7")
            a(f"s_mul_i32 {sA1}, {sA0}, {sStrA64}"); a(f"s_lshl_b32 {sA0}, {sA0}, 7")
            self.dma(vX0, SX, sA0 + " offen " + self.o.get('xfl', ''), f"s_add_u32 m0, {sW2k}, {XS(s)}", f"c{c}")
        def fourth():
            a(f"s_add_u32 {sA1}, {sA1}, {sStrA4}")
            self.dma(vWA, SWA, sA1, f"s_add_u32 m0, {sW2k}, {WSL(s)+1024}", f"c{c}")
        return [first,
                lambda: self.dma(vWA, SWA, sA1, f"s_add_u32 m0, {sW2k}, {WSL(s)}", f"c{c}"),
                lambda: self.dma(vX1, SX, sA0 + " offen " + self.o.get('xfl', ''), f"s_add_u32 m0, {sW2k}, {XS(s)+1024}", f"c{c}"),
                fourth]
    def dmaB(self, ci):
        a = self.a
        def f():
            a(f"s_add_u32 {sA2}, {sC0}, {ci}"); a(f"s_and_b32 {sA2}, {sA2}, 7"); a(f"s_mul_i32 {sA2}, {sA2}, {sStrB64}")
            self.dma(vWB, SWB, sA2, f"s_add_u32 m0, {sW1k}, {R + ci*8192}", f"B{ci>>2}")
        return [f]
    def unit_of(self, d, dst):
        a = self.a
        if d < 8:
            a(f"s_add_u32 {dst}, {sU0}, {d}"); a(f"s_and_b32 {dst}, {dst}, 7"); a(f"s_lshl_b32 {dst}, {dst}, 1")
        else:
            a(f"s_add_u32 {dst}, {sU1}, {d-8}"); a(f"s_cmp_ge_u32 {dst}, 3"); a(f"s_cselect_b32 {sA2}, 3, 0")
            a(f"s_sub_u32 {dst}, {dst}, {sA2}"); a(f"s_lshl_b32 {dst}, {dst}, 1"); a(f"s_add_u32 {dst}, {dst}, 16")
    def dmaW2(self, d):
        a = self.a
        def f0():
            self.unit_of(d, sA0); a(f"s_lshl_b32 {sA0}, {sA0}, 16")
            self.dma(vW2, SW2, sA0, f"s_add_u32 m0, {sW1k}, {self.ring(d)}", f"w2_{d}")
        def f1():
            a(f"s_add_u32 {sA0}, {sA0}, 0x10000")
            self.dma(vW2, SW2, sA0, f"s_add_u32 m0, {sW1k}, {self.ring(d)+8192}", f"w2_{d}")
        return [f0, f1]
    def dmaWO(self, lo=0, hi=8):
        a = self.a
        def mk(i):
            def f():
                a(f"s_mov_b32 {sA2}, {i*65536}")
                self.dma(vW2, SWO, sA2, f"s_add_u32 m0, {sW1k}, {R + i*8192}", "wo")
            return f
        return [mk(i) for i in range(lo, hi)]
    def ldH(self, d):
        a = self.a
        def f0():
            self.unit_of(d, sA1); a(f"s_lshl_b32 {sA1}, {sA1}, 19")
            a.vmem(f"buffer_load_dwordx4 {ar(8*d,4)}, {vHL}, {SH}, {sA1} offen sc1", f"h{d}")
        def f1():
            a(f"s_add_u32 {sA1}, {sA1}, {UNIT}")
            a.vmem(f"buffer_load_dwordx4 {ar(8*d+4,4)}, {vHL}, {SH}, {sA1} offen sc1", f"h{d}")
        return [f0, f1]
    def poll_flags(self, mask, pre_issued=None):
        a = self.a; L = a.label("pf"); Ld = a.label("pfd")
        if pre_issued is None:
            a.vmem(f"buffer_load_dword {V0}, {vFL}, {SWS}, 0 offen sc1", "pf"); pre_issued = "pf"
        a.wait(vm=pre_issued)
        a(f"s_mov_b32 {sSPIN}, {SPIN}")
        a(f"{L}:")
        a(f"v_cmp_ne_u32 vcc, {sTAG}, {V0}"); a("s_nop 1")
        a(f"s_and_b32 {T0}, vcc_lo, {mask:#x}"); a(f"s_cbranch_scc0 {Ld}")
        a(f"s_sub_u32 {sSPIN}, {sSPIN}, 1"); a(f"s_cbranch_scc1 {Ld}")
        a(f"buffer_load_dword {V0}, {vFL}, {SWS}, 0 offen sc1"); a("s_waitcnt vmcnt(0)")
        a(f"s_branch {L}")
        a(f"{Ld}:")
    def get_mode_issue(self):
        a = self.a
        a(f"s_lshl_b32 {T0}, {sC}, 5")
        a.vmem(f"buffer_load_dword {V7}, off, {SDBG}, {T0} sc1", "mode")
    def get_mode_wait(self):
        a = self.a; L = a.label("gm"); Ld = a.label("gmd")
        a.wait(vm="mode")
        a(f"s_mov_b32 {sSPIN}, {0 if 'a' in self.o.get('skip', '') else SPIN}")
        a(f"{L}:")
        a(f"v_readfirstlane_b32 {T1}, {V7}"); a("s_nop 1")
        a(f"s_and_b32 {T2}, {T1}, 31"); a(f"s_cselect_b32 {T2}, 0, {T1}"); a(f"s_cmp_lg_u32 {T2}, 0"); a(f"s_cbranch_scc1 {Ld}")
        a(f"s_sub_u32 {sSPIN}, {sSPIN}, 1"); a(f"s_cbranch_scc1 {Ld}")
        a(f"s_lshl_b32 {T0}, {sC}, 5")
        a(f"buffer_load_dword {V7}, off, {SDBG}, {T0} sc1"); a("s_waitcnt vmcnt(0)")
        a(f"s_branch {L}")
        a(f"{Ld}:")
        a(f"s_mul_i32 {T2}, {sXCC}, {sXCC}"); a(f"s_lshl_b32 {T2}, {T2}, 16"); a(f"s_lshl_b32 {T3}, {sXCC}, 8")
        a(f"s_add_u32 {T2}, {T2}, {T3}"); a(f"s_add_u32 {T2}, {T2}, 1"); a(f"s_lshl_b32 {T2}, {T2}, 5")
        a(f"s_cmp_eq_u32 {T1}, {T2}"); a(f"s_cselect_b32 {sMODE}, 1, 0")
        if self.o.get('force_slow'): a(f"s_mov_b32 {sMODE}, 0")
        if 'a' in self.o.get('skip', ''): a(f"s_mov_b32 {sMODE}, 1")
    def store_mode(self, fn, tag, n):
        a = self.a; Ls = a.label("sl"); Ld = a.label("sd")
        a(f"s_cmp_eq_u32 {sMODE}, 1"); a(f"s_cbranch_scc0 {Ls}")
        fn(""); a(f"s_branch {Ld}")
        a(f"{Ls}:"); fn(" sc1"); a(f"{Ld}:")
        for _ in range(n): a.vm.issue(tag)
    def flag_store(self, base, idx):
        a = self.a
        a(f"s_lshl_b32 {T0}, {sRB}, 2"); a(f"s_add_u32 {T0}, {T0}, {sTG}"); a(f"s_lshl_b32 {T0}, {T0}, 1"); a(f"s_add_u32 {T0}, {T0}, {sBB}")
        a(f"s_lshl_b32 {T0}, {T0}, 6"); a(f"s_lshl_b32 {T1}, {idx}, 2"); a(f"s_add_u32 {T0}, {T0}, {T1}"); a(f"s_add_u32 {T0}, {T0}, {base}")
        a(f"v_mov_b32 {V1}, {sTAG}")
        a(f"s_mov_b64 exec, 1")
        self.store_mode(lambda f: a(f"buffer_store_dword {V1}, off, {SWS}, {T0}{f}"), "flag", 1)
        a(f"s_mov_b64 exec, -1")
    def touch(self, base, idx, junk):
        a = self.a
        if 't' in self.o.get('skip', ''): return
        a(f"v_bfe_u32 {junk}, {vL}, 2, 1"); a(f"v_lshl_add_u32 {junk}, {junk}, 17, {vHS}")
        a(f"s_lshl_b32 {T2}, {idx}, 19"); a(f"s_add_u32 {T2}, {T2}, {base}")
        a.vmem(f"buffer_load_dword {junk}, {junk}, {SWS}, {T2} offen", "touch")
    def ack_store(self):
        a = self.a
        a(f"s_lshl_b32 {T0}, s2, 2"); a(f"s_add_u32 {T0}, {T0}, {ACK_OFF}")
        a(f"s_cmp_eq_u32 {sW}, 0"); a(f"s_cselect_b32 {T0}, {T0}, {OOB}")
        a(f"v_mov_b32 {V1}, {sTAG}")
        a(f"s_mov_b64 exec, 1")
        a.vmem(f"buffer_store_dword {V1}, off, {SWS}, {T0} sc1", "ack")
        a(f"s_mov_b64 exec, -1")
    def prologue(self):
        a = self.a; o = self.o
        a("s_cmp_ge_u32 s2, 256"); a("s_cbranch_scc1 L_end")
        a("s_load_dwordx16 s[4:19], s[0:1], 0"); a("s_load_dwordx4 s[20:23], s[0:1], 64"); a("s_load_dwordx2 s[24:25], s[0:1], 80")
        if o.get('stamps'):
            a("s_memtime s[26:27]")
        if o.get('dbgtime'): a("s_memrealtime s[26:27]")
        a(f"v_lshrrev_b32 {V0}, 6, v0"); a(f"v_and_b32 {vL}, 63, v0"); a(f"v_readfirstlane_b32 {sW}, {V0}")
        a(f"s_and_b32 {sC}, s2, 7"); a(f"s_lshr_b32 {T0}, s2, 3"); a(f"s_and_b32 {T1}, {T0}, 1"); a(f"s_lshr_b32 {sJ}, {T0}, 1")
        a(f"s_lshl_b32 {sRB}, {sC}, 1"); a(f"s_or_b32 {sRB}, {sRB}, {T1}")
        a(f"s_and_b32 {sType}, {sJ}, 1"); a(f"s_lshr_b32 {sHG}, {sJ}, 1")
        a(f"s_lshl_b32 {sA2}, {sHG}, 2"); a(f"s_lshr_b32 {sA2}, 0x37654210, {sA2}"); a(f"s_and_b32 {sA2}, {sA2}, 7")
        a(f"s_add_u32 {sN}, {sHG}, 5"); a(f"s_and_b32 {sN}, {sN}, 7")
        a(f"s_mul_i32 {T2}, {T1}, {o.get('rotr', 4)}"); a(f"s_mul_i32 {sC0}, {sJ}, {o.get('rotj', 1)}"); a(f"s_add_u32 {sC0}, {sC0}, {T2}")
        if o.get('rotc', 0): a(f"s_mul_i32 {T2}, {sC}, {o.get('rotc')}"); a(f"s_add_u32 {sC0}, {sC0}, {T2}")
        a(f"s_and_b32 {sC0}, {sC0}, 7")
        a(f"s_and_b32 {sTG}, {sW}, 3"); a(f"s_lshr_b32 {sBB}, {sW}, 2"); a(f"s_lshl_b32 {sW1k}, {sW}, 10"); a(f"s_lshl_b32 {sW2k}, {sW}, 11")
        a(f"s_cmp_eq_u32 {sType}, 0")
        self.csel(T3, 3072, 2752); self.csel(T5, 1024, 128); a(f"s_cselect_b32 {T2}, 7, 8")
        a(f"s_cselect_b32 {T1}, 1024, 0"); a(f"s_cselect_b32 {T4}, {sA2}, {sHG}"); a(f"s_lshl_b32 {T4}, {T4}, {T2}"); a(f"s_add_u32 {T4}, {T4}, {T1}")
        a(f"s_lshl_b32 {sStrA64}, {T3}, 6"); a(f"s_lshl_b32 {sStrA4}, {T3}, 2")
        a(f"s_lshl_b32 {T0}, {sRB}, 7"); a(f"s_lshl_b32 {T1}, {sW}, 4"); a(f"s_add_u32 {T0}, {T0}, {T1}"); a(f"s_lshl_b32 {T0}, {T0}, 10")
        a(f"v_lshrrev_b32 {V0}, 3, {vL}"); a(f"v_lshrrev_b32 {V1}, 4, {vL}"); a(f"v_and_b32 {V2}, 7, {vL}")
        a(f"v_xor_b32 {V3}, {V2}, {V1}"); a(f"v_lshlrev_b32 {V3}, 4, {V3}"); a(f"v_lshl_add_u32 {vX0}, {V0}, 10, {V3}"); a(f"v_add_u32 {vX0}, {T0}, {vX0}")
        a(f"v_xor_b32 {vX1}, 64, {vX0}"); a(f"v_add_u32 {vX1}, 0x2000, {vX1}")
        a(f"s_lshl_b32 {T1}, {sW}, 3")
        a(f"v_add_u32 {V3}, {T1}, {V1}"); a(f"v_mul_lo_u32 {vWA}, {V3}, {T3}")
        a(f"v_and_b32 {V3}, 15, {vL}"); a(f"v_lshlrev_b32 {V4}, 2, {V1}"); a(f"v_xor_b32 {V3}, {V3}, {V4}")
        a(f"v_lshrrev_b32 {V4}, 3, {V3}"); a(f"v_mul_lo_u32 {V4}, {V4}, {T5}"); a(f"v_and_b32 {V3}, 7, {V3}")
        a(f"v_lshl_add_u32 {V4}, {V3}, 4, {V4}"); a(f"v_add3_u32 {vWA}, {vWA}, {V4}, {T4}")
        a("s_mov_b32 s30, 0x200000"); a("s_mov_b32 s31, 0x20000"); a("s_mov_b32 s35, 0x20000")
        a(f"s_cmp_eq_u32 {sType}, 0"); self.csel("s34", 512*3072, 512*2752)
        a("s_waitcnt lgkmcnt(0)")
        if o.get('stamps'): a("v_mov_b32 v23, 0"); a(f"s_mov_b32 {sST}, 0")
        a("s_mov_b32 s28, s4"); a("s_mov_b32 s29, s5"); a(f"s_mov_b32 {sHP}, {sA2}")
        a("s_cselect_b32 s32, s6, s14"); a("s_cselect_b32 s33, s7, s15")
        for f in self.dmaA(0): f()
        c1 = self.dmaA(1)
        a(f"s_cmp_eq_u32 {sType}, 0")
        a("s_cselect_b32 s36, s14, s6"); a("s_cselect_b32 s37, s15, s7"); self.csel("s38", 512*2752, 512*3072); a("s_mov_b32 s39, 0x20000")
        self.csel(T3, 2752, 3072); a(f"s_cselect_b32 {T4}, 16, 0"); a(f"s_cselect_b32 {T5}, {sHG}, {sHP}")
        a(f"s_lshl_b32 {sStrB64}, {T3}, 6"); a(f"s_add_u32 {T4}, {T4}, {T5}"); a(f"s_lshl_b32 {T4}, {T4}, 7")
        a(f"s_cmp_ge_u32 {T4}, 2752"); a(f"s_cselect_b32 {T4}, 0x40000000, {T4}")
        self.srd(SW2, 16, 1376*1024); self.srd(SWO, 10, 512*1024); self.srd(SWS, 24, WS_SIZE); self.srd(SH, 24, H_SIZE)
        self.srd(SOUT, 20, 0x200000); self.srd(SDBG, 22, 256); self.srd(STMP, 8, 16384)
        a(f"v_and_b32 {V3}, 1, {V1}"); a(f"v_lshlrev_b32 {V3}, 2, {V3}"); a(f"v_xor_b32 {V3}, {V3}, {V2}"); a(f"v_lshlrev_b32 {V3}, 4, {V3}")
        a(f"s_lshl_b32 {T1}, {sW}, 3"); a(f"v_add_u32 {V4}, {T1}, {V0}")
        a(f"v_mul_lo_u32 {vWB}, {V4}, {T3}"); a(f"v_add3_u32 {vWB}, {vWB}, {V3}, {T4}")
        a(f"s_lshl_b32 {T1}, {sN}, 7"); a(f"v_lshl_add_u32 {vW2}, {V4}, 10, {V3}"); a(f"v_add_u32 {vW2}, {T1}, {vW2}")
        a(f"v_lshlrev_b32 {M16}, 4, {vL}")
        Lg = a.label("gsrd")
        a(f"s_cmp_eq_u32 {sJ}, 12"); a(f"s_cbranch_scc0 {Lg}")
        a("s_mov_b32 s36, s18"); a("s_mov_b32 s37, s19"); a("s_mov_b32 s38, 1024"); a(f"s_mov_b32 {sStrB64}, 0")
        a(f"v_add_u32 {V4}, {sC0}, {V0}"); a(f"v_and_b32 {V4}, 7, {V4}"); a(f"v_lshlrev_b32 {V3}, 4, {V2}"); a(f"v_lshl_add_u32 {vWB}, {V4}, 7, {V3}")
        a(f"{Lg}:")
        c1[0]()
        a(f"v_lshrrev_b32 {V0}, 5, {vL}"); a(f"v_bfe_u32 {V2}, {vL}, 2, 2")
        a(f"v_and_b32 {V3}, 1, {vL}"); a(f"v_bfe_u32 {V4}, {vL}, 1, 1"); a(f"v_lshl_add_u32 {V3}, {V3}, 1, {V4}"); a(f"v_lshlrev_b32 {V3}, 3, {V3}")
        a(f"v_and_b32 {V6}, 1, {V1}"); a(f"v_lshl_add_u32 {V3}, {V6}, 5, {V3}")
        a(f"v_lshl_add_u32 {V4}, {V0}, 3, {V2}")
        a(f"v_xor_b32 {V5}, {sBB}, {V2}"); a(f"v_lshlrev_b32 {V5}, 6, {V5}"); a(f"v_lshl_add_u32 {V5}, {V4}, 8, {V5}"); a(f"v_add_u32 {V5}, {V5}, {V3}")
        a(f"v_add_u32 {vAR0}, {WSL(0)}, {V5}"); a(f"v_xor_b32 {vAR1}, 128, {vAR0}")
        a(f"v_and_b32 {V7}, 31, {vL}"); a(f"v_bfe_u32 {V5}, {vL}, 1, 3"); a(f"v_xor_b32 {V5}, {V5}, {V0}"); a(f"v_lshlrev_b32 {V5}, 4, {V5}")
        a(f"s_lshl_b32 {T0}, {sTG}, 12"); a(f"v_lshl_add_u32 {vXR0}, {V7}, 7, {V5}"); a(f"v_add_u32 {vXR0}, {T0}, {vXR0}")
        a(f"v_xor_b32 {vXR1}, 32, {vXR0}"); a(f"v_xor_b32 {vXR2}, 64, {vXR0}"); a(f"v_xor_b32 {vXR3}, 0x60, {vXR0}")
        c1[1]()
        a(f"v_lshrrev_b32 {V5}, 1, {V2}"); a(f"v_lshlrev_b32 {V5}, 6, {V5}"); a(f"v_lshl_add_u32 {V5}, {V4}, 7, {V5}"); a(f"v_add_u32 {V5}, {V5}, {V3}")
        a(f"s_lshl_b32 {T0}, {sBB}, 6"); a(f"v_xor_b32 {vBR}, {T0}, {V5}"); a(f"v_add_u32 {vBR}, {R}, {vBR}")
        a(f"s_lshr_b32 {T0}, {sW}, 1"); a(f"s_lshl_b32 {T0}, {T0}, 11"); a(f"v_add_u32 {vPR0}, {T0}, {V5}"); a(f"v_xor_b32 {vPR1}, 64, {vPR0}")
        a(f"v_add_u32 {vPM0}, 0x10000, {vPR0}"); a(f"v_add_u32 {vPM1}, 0x10000, {vPR1}"); a(f"v_add_u32 {vPO0}, {R}, {vPR0}"); a(f"v_add_u32 {vPO1}, {R}, {vPR1}")
        a(f"v_mul_u32_u24 {V5}, {512-32}, {V6}"); a(f"v_add_u32 {V5}, {V5}, {V3}"); a(f"v_lshl_add_u32 {V5}, {V4}, 5, {V5}")
        a(f"s_lshl_b32 {T0}, {sBB}, 12"); a(f"s_add_u32 {T0}, {T0}, {R + 57344}"); a(f"v_add_u32 {MWP}, {T0}, {V5}")
        a(f"s_lshr_b32 {T0}, s2, 3"); a(f"s_and_b32 {T0}, {T0}, 3")
        ua, ub, uc = o.get('urot', (1, 2, 0))
        a(f"s_mul_i32 {T1}, {T0}, {ub}"); a(f"s_mul_i32 {T2}, {sHG}, {ua}"); a(f"s_add_u32 {T1}, {T1}, {T2}"); a(f"s_mul_i32 {T2}, {sC}, {uc}")
        a(f"s_add_u32 {T1}, {T1}, {T2}"); a(f"s_and_b32 {sU0}, {T1}, 7")
        a(f"s_mul_i32 {T2}, {T1}, 86"); a(f"s_lshr_b32 {T2}, {T2}, 8"); a(f"s_mul_i32 {T2}, {T2}, 3"); a(f"s_sub_u32 {sU1}, {T1}, {T2}")
        a(f"s_lshl_b32 {sC32}, {sC}, 5")
        a(f"s_mov_b32 {sL2E}, 0x3fb8aa3b"); a("s_mov_b32 s0, 0x3fb8aa3b"); a("s_mov_b32 s1, 0x3fb8aa3b")
        c1[2]()
        a(f"s_lshl_b32 {T0}, {sRB}, 2"); a(f"s_lshl_b32 {T1}, {sType}, 1"); a(f"s_add_u32 {T0}, {T0}, {T1}"); a(f"s_and_b32 {T1}, {sW}, 1"); a(f"s_add_u32 {T0}, {T0}, {T1}")
        a(f"s_lshr_b32 {T1}, {sW}, 1")
        a(f"v_lshrrev_b32 {V3}, 3, {vL}"); a(f"v_cmp_eq_u32 vcc, 3, {V3}")
        a(f"s_and_b32 {T2}, {T0}, 3"); a(f"s_add_u32 {T2}, {T2}, 9"); a(f"s_lshl_b32 {T2}, {T2}, 7"); a(f"v_add_u32 {V3}, {T2}, {M16}"); a(f"v_cndmask_b32 {V3}, {M16}, {V3}, vcc")
        a(f"s_lshl_b32 {T2}, {T0}, 11"); a(f"s_lshl_b32 {T3}, {T1}, 17"); a(f"s_add_u32 {T2}, {T2}, {T3}"); a(f"v_add_u32 {vHL}, {T2}, {V3}")
        a(f"s_add_u32 {T2}, {sTG}, 9"); a(f"s_lshl_b32 {T2}, {T2}, 7"); a(f"v_add_u32 {V3}, {T2}, {M16}"); a(f"v_cndmask_b32 {vHS}, {M16}, {V3}, vcc")
        a(f"s_lshl_b32 {T2}, {T0}, 7"); a(f"s_add_u32 {T2}, {T2}, {G_OFF}")
        a(f"v_lshlrev_b32 {V3}, 2, {V7}"); a(f"v_add_u32 {vG}, {T2}, {V3}")
        a(f"s_lshl_b32 {T0}, {T0}, 1"); a(f"s_lshr_b32 {T1}, {T1}, 1"); a(f"s_add_u32 {T0}, {T0}, {T1}"); a(f"s_lshl_b32 {T0}, {T0}, 6"); a(f"s_add_u32 {T0}, {T0}, {FH_OFF}")
        a(f"v_and_b32 {V3}, 15, {vL}"); a(f"v_lshlrev_b32 {V3}, 2, {V3}"); a(f"v_lshl_add_u32 {V3}, {V6}, 13, {V3}"); a(f"v_add_u32 {vFL}, {T0}, {V3}")
        a(f"s_lshl_b32 {T0}, {sRB}, 2"); a(f"s_add_u32 {T0}, {T0}, {sTG}"); a(f"s_lshl_b32 {T0}, {T0}, 11"); a(f"s_lshl_b32 {T1}, {sBB}, 18"); a(f"s_add_u32 {T0}, {T0}, {T1}")
        a(f"v_add_u32 {vHS}, {T0}, {vHS}")
        c1[3]()
        def census():
            a(f"s_getreg_b32 {sXCC}, hwreg(HW_REG_XCC_ID, 0, 4)")
            a(f"s_mul_i32 {T2}, {sXCC}, {sXCC}"); a(f"s_lshl_b32 {T2}, {T2}, 16"); a(f"s_lshl_b32 {T3}, {sXCC}, 8"); a(f"s_add_u32 {T2}, {T2}, {T3}"); a(f"s_add_u32 {T2}, {T2}, 1")
            a(f"s_lshl_b32 {T0}, {sC}, 5"); a(f"s_cmp_eq_u32 {sW}, 0"); a(f"s_cselect_b32 {T0}, {T0}, 0x1000")
            a(f"v_mov_b32 {MAT}, {T2}")
            a("s_mov_b64 exec, 1")
            a.vmem(f"buffer_atomic_add {MAT}, off, {SDBG}, {T0}", "misc")
            a("s_mov_b64 exec, -1")
        def m_wphi():
            L1 = a.label("wp"); L2 = a.label("wpd")
            a(f"s_lshl_b32 {T0}, {sHP}, 11"); a(f"s_lshl_b32 {T1}, {sBB}, 10"); a(f"s_add_u32 {T0}, {T0}, {T1}")
            a(f"s_add_u32 m0, {sW1k}, {R + 57344}")
            a(f"s_cmp_eq_u32 {sTG}, 0"); a(f"s_cbranch_scc0 {L1}")
            a.vmem(f"buffer_load_dwordx4 {M16}, {STMP}, {T0} offen lds", "misc")
            a(f"s_branch {L2}"); a(f"{L1}:")
            a(f"buffer_load_dword {MJ}, off, {STMP}, {T0}")
            a(f"{L2}:")
        def m_e():
            a(f"s_mov_b32 {T0}, {E_OFF}")
            a.vmem(f"buffer_load_dword {ME}, off, {SWS}, {T0} sc1", "misc")
        def m_code():
            a("s_getpc_b64 s[90:91]"); a("L_pc:")
            a(f"s_lshr_b32 {T0}, s2, 3"); a(f"s_lshl_b32 {T0}, {T0}, 3"); a(f"s_add_u32 {T0}, {T0}, {sW}"); a(f"s_lshl_b32 {T0}, {T0}, 7")
            a(f"s_min_u32 {T0}, {T0}, L_end-L_pc-4"); a(f"v_mov_b32 {MAT}, {T0}")
            a.vmem(f"global_load_dword {MJ}, {MAT}, s[90:91]", "misc")
        m_fl = lambda: a.vmem(f"buffer_load_dword {MJ}, {vFL}, {SWS}, 0 offen sc1", "misc")
        sk = o.get('skip', '')
        if 'c' not in sk: m_code()
        if 'a' not in sk: census()
        else: a(f"s_getreg_b32 {sXCC}, hwreg(HW_REG_XCC_ID, 0, 4)")
        self.misc = [m_e, m_wphi] + ([m_fl] if 'f' not in sk else [])
        self.stamp(1)
    def aslot(self):
        self.slot(2 if len(self.pend) > 4 else 1)
    def passA(self):
        a = self.a
        xr = [vXR0, vXR1, vXR2, vXR3]; buf = [FR, FR + 8, FR + 16, PHI]
        def reads(c, st):
            s = c % 3; b = buf[st]
            a.ds(f"ds_read_b128 {ar(16*c+4*st,4)}, {xr[st]} offset:{XS(s)}", f"r{st}")
            for u, v in ((0, vAR0), (1, vAR1)):
                for e in range(2):
                    a.ds(f"ds_read_b64_tr_b16 {vr(b+4*u+2*e,2)}, {v} offset:{s*16384 + st*4096 + e*1024}", f"r{st}")
        def mm(c, st):
            for u, acc in ((0, ACC0), (1, ACC1)):
                cc = "0" if (c == 0 and st == 0) else vr(acc, 16)
                a(f"v_mfma_f32_32x32x16_bf16 {vr(acc,16)}, {vr(buf[st]+4*u,4)}, {ar(16*c+4*st,4)}, {cc}")
        def landed(tag, n):
            assert a.vm.q.count(tag) == n, (tag, a.vm.q)
            a.wait(vm=tag)
        def m1(c, st, u):
            acc = (ACC0, ACC1)[u]
            cc = "0" if (c == 0 and st == 0) else vr(acc, 16)
            a(f"v_mfma_f32_32x32x16_bf16 {vr(acc,16)}, {vr(buf[st]+4*u,4)}, {ar(16*c+4*st,4)}, {cc}")
        def half(c, st, rd, nslot):
            pat = self.o.get('apat', 'MRMRVMVMV')
            mf = [(st, 0), (st, 1), (st+1, 0), (st+1, 1)]; rd = list(rd); left = nslot; nv = pat.count('V')
            for ch in pat:
                if ch == 'M': m1(c, *mf.pop(0))
                elif ch == 'R':
                    if rd: reads(*rd.pop(0))
                else:
                    n = -(-left // nv); self.slot(n); left -= n; nv -= 1
        self.push(*self.dmaA(2)); self.slot(2)
        be = self.o.get('bearly', 0)
        self.push(*(self.misc + (self.dmaB(0) if be else [])))
        landed("c0", 4); a("s_barrier")
        self.stamp(2)
        reads(0, 0); reads(0, 1)
        self.slot(2)
        for c in range(8):
            a.wait(lg="r1")
            half(c, 0, [(c, 2), (c, 3)], len(self.pend))
            if c == 4:
                a.ds(f"ds_read_b64_tr_b16 {vr(WP0,2)}, {MWP}", "r3"); a.ds(f"ds_read_b64_tr_b16 {vr(WP0+2,2)}, {MWP} offset:128", "r3")
                a(f"v_readfirstlane_b32 {sE}, {ME}")
                a(f"v_and_b32 {V0}, 16, {vL}"); a(f"v_cmp_eq_u32 vcc, 0, {V0}")
                a(f"s_add_u32 {sE}, {sE}, 1"); a(f"s_mul_i32 {sTAG}, {sE}, 0x9E3779B1"); a(f"s_add_u32 {sTAG}, {sTAG}, 0x7F4A7C15")
            a.wait(lg="r3")
            if c < 7: landed(f"c{c+1}", 4)
            elif be: a.wait(vm="B0")
            a("s_barrier")
            self.stamp(f"c{c+1}")
            if c + 3 <= 7: self.push(*self.dmaA(c + 3))
            if be:
                if c <= 6: self.push(*self.dmaB(c + 1))
                if c >= 5: self.push(*self.dmaW2(c - 5))
            elif c in (5, 6): self.push(*sum((self.dmaB(ci) for ci in range(4*(c-5), 4*(c-5)+4)), []))
            half(c, 2, [(c + 1, 0), (c + 1, 1)] if c < 7 else [], (len(self.pend) + 1)//2 if c < 7 else len(self.pend))
            if c == 4:
                for i in range(4):
                    a(f"v_cndmask_b32_e64 v{WP1+i}, v{WP0+i}, 0, vcc")
                    a(f"v_cndmask_b32 v{WP0+i}, 0, v{WP0+i}, vcc")
        self.stamp(3)
    def passB(self, half, fill, per, every=3):
        a = self.a
        NB = 4; D = 3
        def reads(st):
            b = FR + 4*(st % NB)
            for e in range(2):
                a.ds(f"ds_read_b64_tr_b16 {vr(b+2*e,2)}, {vBR} offset:{st*2048 + e*512}", f"b{st}")
        def emit(n):
            for _ in range(n):
                if fill:
                    x = fill.pop(0)
                    a(x) if isinstance(x, str) else x()
        lo, hi = 16*half, 16*half + 16
        for st in range(lo, lo + D): reads(st)
        for st in range(lo, hi):
            emit(per)
            a.wait(lg=f"b{st}")
            cc = "0" if st == 0 else vr(ACCB, 16)
            a(f"v_mfma_f32_32x32x16_bf16 {vr(ACCB,16)}, {vr(FR+4*(st%NB),4)}, {ar(4*st,4)}, {cc}")
            if st + D < hi: reads(st + D)
            if st % every == every - 1: self.slot()
        emit(len(fill))
    def h_pack(self, acc, dst):
        L = []
        for i in range(8):
            L += [f"v_max_f32 v{acc+2*i}, 0, v{acc+2*i}", f"v_max_f32 v{acc+2*i+1}, 0, v{acc+2*i+1}", f"v_cvt_pk_bf16_f32 v{dst+i}, v{acc+2*i}, v{acc+2*i+1}"]
        return L
    def softmax(self, acc, pq, E, kf, sink, packed, mid=None):
        L = []; a = L.append
        for i in range(8): a(f"v_cvt_pk_bf16_f32 v{kf+i}, v{acc+2*i}, v{acc+2*i+1}")
        a(f"v_mfma_f32_32x32x16_bf16 {vr(pq,16)}, {vr(WP0,4)}, {vr(kf,4)}, 0")
        a(f"v_mfma_f32_32x32x16_bf16 {vr(pq,16)}, {vr(WP1,4)}, {vr(kf+4,4)}, {vr(pq,16)}")
        hook = lambda k: a(lambda: (self.stamp(f"sm{k}"), mid(k) if mid else None))
        hook(0)
        S = ((kf, kf+2), (kf+4, kf+6))
        for k in range(4):
            for hd in range(2):
                p = pq + 8*hd; mp, mn = S[hd]
                if k == 0: a(f"v_max3_f32 v{mp}, v{p}, v{p+1}, v{p+2}"); a(f"v_max3_f32 v{mn}, -v{p}, -v{p+1}, -v{p+2}")
                elif k < 3: a(f"v_max3_f32 v{mp}, v{mp}, v{p+1+2*k}, v{p+2+2*k}"); a(f"v_max3_f32 v{mn}, v{mn}, -v{p+1+2*k}, -v{p+2+2*k}")
                else: a(f"v_max_f32 v{mp}, v{mp}, v{p+7}"); a(f"v_max_f32_e64 v{mn}, v{mn}, -v{p+7}")
        def both(f):
            for hd in range(2): f(*S[hd])
        both(lambda x, y: a(f"v_permlane32_swap_b32 v{x}, v{y}"))
        both(lambda x, y: a(f"v_max_f32 v{x}, v{x}, v{y}"))
        both(lambda x, y: a(f"v_mul_f32 v{x}, {sL2E}, v{x}"))
        both(lambda x, y: a(f"v_mov_b32 v{y}, v{x}"))
        both(lambda x, y: a(f"v_permlane32_swap_b32 v{x}, v{y}"))
        for hd in range(2):
            p = pq + 8*hd; e = E[hd]; mp, mn = S[hd]
            if packed:
                for i in range(0, 8, 2):
                    a(f"v_pk_fma_f32 {vr(e+i,2)}, {vr(p+i,2)}, {sL2P}, {vr(mp,2)} op_sel_hi:[1,1,0] neg_lo:[0,0,1] neg_hi:[0,0,1]")
                    a(f"v_pk_fma_f32 {vr(e+8+i,2)}, {vr(p+i,2)}, {sL2P}, {vr(mn,2)} op_sel_hi:[1,1,0] neg_lo:[1,0,1] neg_hi:[1,0,1]")
            else:
                for i in range(8):
                    a(f"v_fma_f32 v{e+i}, v{p+i}, {sL2E}, -v{mp}"); a(f"v_fma_f32 v{e+8+i}, -v{p+i}, {sL2E}, -v{mn}")
        a(self.slot)
        for hd in range(2):
            for i in range(16): a(f"v_exp_f32 v{E[hd]+i}, v{E[hd]+i}")
            a(self.slot)
        hook(1)
        for k in range(3):
            for hd in range(2):
                for sg in range(2):
                    b = E[hd] + 8*sg; s = S[hd][sg]
                    x = b if k == 0 else s
                    if packed: a(f"v_pk_add_f32 {vr(s,2)}, {vr(x,2)}, {vr(b+2+2*k,2)}")
                    else: a(f"v_add_f32 v{s}, v{x}, v{b+2+2*k}"); a(f"v_add_f32 v{s+1}, v{x+1}, v{b+3+2*k}")
        both(lambda x, y: (a(f"v_add_f32 v{x}, v{x}, v{x+1}"), a(f"v_add_f32 v{y}, v{y}, v{y+1}")))
        both(lambda x, y: a(f"v_permlane32_swap_b32 v{x}, v{y}"))
        both(lambda x, y: a(f"v_add_f32 v{x}, v{x}, v{y}"))
        both(lambda x, y: a(f"v_rcp_f32 v{x}, v{x}"))
        both(lambda x, y: a(f"v_mov_b32 v{y}, v{x}"))
        both(lambda x, y: a(f"v_permlane32_swap_b32 v{x}, v{y}"))
        a(self.slot)
        for hd in range(2):
            for sg in range(2):
                b = E[hd] + 8*sg
                if packed:
                    for i in range(0, 8, 2): a(f"v_pk_mul_f32 {vr(b+i,2)}, {vr(b+i,2)}, {vr(S[hd][sg],2)} op_sel_hi:[1,0]")
                else:
                    for i in range(8): a(f"v_mul_f32 v{b+i}, v{S[hd][sg]}, v{b+i}")
                L += sink(hd, sg, b)
                a(self.slot)
        hook(2)
        return L
    def run(self, L):
        for x in L: self.a(x) if isinstance(x, str) else x()
    def kv_epilogue(self):
        a = self.a; o = self.o
        a(f"v_and_b32 {V4}, 31, {vL}"); a(f"v_lshrrev_b32 {V5}, 5, {vL}"); a(f"v_lshlrev_b32 {V5}, 4, {V5}"); a(f"v_lshl_add_u32 {V4}, {V4}, 5, {V5}")
        a(f"s_lshl_b32 {T0}, {sTG}, 10"); a(f"s_lshl_b32 {T1}, {sBB}, 13"); a(f"s_add_u32 {T2}, {T0}, {T1}"); a(f"s_add_u32 {T3}, {T2}, {T1}")
        a(f"v_add_u32 {V5}, {T2}, {V4}"); a(f"v_add_u32 {V4}, {T3}, {V4}")
        def sink(hd, sg, b):
            d = WP0 + 4*sg
            return [f"v_cvt_pk_bf16_f32 v{d+i}, v{b+2*i}, v{b+2*i+1}" for i in range(4)] + \
                   [lambda: a.ds(f"ds_write_b128 {V4}, {vr(d,4)} offset:{(2*hd+sg)*4096}", "kw")]
        be = o.get('bearly', 0)
        L = self.softmax(ACC0, ACC0, (ACC1, PHI), FR + 16, sink, 0 if be else 1)
        vf = PHI
        Vv = [f"v_cvt_pk_bf16_f32 v{vf+i}, v{ACC1+2*i}, v{ACC1+2*i+1}" for i in range(8)]
        Vv += [(lambda hd=hd: a.ds(f"ds_write_b128 {V5}, {vr(vf+4*hd,4)} offset:{32768 + hd*4096}", "kw")) for hd in range(2)]
        L = L[:10] + Vv + L[10:]
        self.push(lambda: self.touch(16*UNIT, sHG, V6))
        if be: self.passB(0, L, o.get('kper', 12), 100)
        else:
            self.push(*(self.dmaW2(0) + self.dmaW2(1) + self.dmaW2(2))[:o.get('kdma', 6)])
            self.run(L)
        self.flush()
        a.wait(lg="kw"); a.wait(vm="B1" if be else "B0")
        a("s_barrier")
        self.stamp(4)
        a(f"s_lshl_b32 {T0}, {sW}, 12"); a(f"s_lshr_b32 {T1}, {sW}, 1"); a(f"s_lshl_b32 {T1}, {T1}, 12"); a(f"s_add_u32 {T1}, {T1}, 32768")
        a(f"v_lshlrev_b32 {V0}, 3, {vL}"); a(f"v_add_u32 {V1}, {T1}, {V0}"); a(f"v_add_u32 {V0}, {T0}, {V0}")
        A, B, ONE, DK, DZ = ACC0, ACC1, PHI, PHI+4, PHI+8
        for st in range(4):
            for e in range(2): a.ds(f"ds_read_b64_tr_b16 {vr(A+4*st+2*e,2)}, {V0} offset:{st*1024+e*512}", f"k{st}")
            if st == 3: a.wait(lg="k0")
            for e in range(2): a.ds(f"ds_read_b64_tr_b16 {vr(B+4*st+2*e,2)}, {V1} offset:{st*1024+e*512}", f"k{st}")
        for i in range(4): a(f"v_mov_b32 v{ONE+i}, 0x3f803f80")
        a(f"s_lshl_b32 {T0}, {sHP}, 4"); a(f"s_add_u32 {T0}, {T0}, {sRB}"); a(f"s_lshl_b32 {T0}, {T0}, 3"); a(f"s_add_u32 {T0}, {T0}, {sW}")
        a(f"s_lshl_b32 {T1}, {T0}, 10"); a(f"s_add_u32 {T1}, {T1}, {P_OFF}"); a(f"s_lshl_b32 {T2}, {T0}, 6"); a(f"s_add_u32 {T2}, {T2}, {PZ_OFF}")
        a(f"v_lshlrev_b32 {V2}, 4, {vL}"); a(f"v_and_b32 {V3}, 15, {vL}"); a(f"v_cmp_eq_u32 vcc, 0, {V3}"); a(f"v_mov_b32 {V3}, {OOB}")
        a(f"v_cndmask_b32 {V3}, {V3}, {vL}, vcc")
        a(f"s_mov_b32 {T3}, 0x07060501"); a(f"s_mov_b32 {T4}, 0x07060502"); a(f"s_mov_b32 {T5}, 0x07060503")
        for st in range(4):
            a.wait(lg=f"k{st}")
            a(f"v_mfma_f32_16x16x32_bf16 {vr(DK,4)}, {vr(A+4*st,4)}, {vr(B+4*st,4)}, {'0' if st == 0 else vr(DK,4)}")
            a(f"v_mfma_f32_16x16x32_bf16 {vr(DZ,4)}, {vr(A+4*st,4)}, {vr(ONE,4)}, {'0' if st == 0 else vr(DZ,4)}")
        for D in (DK, DZ):
            a(f"v_perm_b32 v{D}, v{D}, v{D+3}, {T3}"); a(f"v_perm_b32 v{D+1}, v{D+1}, v{D+3}, {T4}"); a(f"v_perm_b32 v{D+2}, v{D+2}, v{D+3}, {T5}")
            a(f"v_mov_b32 v{D+3}, {sTAG}")
        a.vmem(f"buffer_load_dword {V7}, off, {SDBG}, {sC32} sc1", "mode")
        a.vmem(f"buffer_store_dwordx4 {vr(DK,4)}, {V2}, {SWS}, {T1} offen sc1", "part")
        a.vmem(f"buffer_store_dwordx4 {vr(DZ,4)}, {V3}, {SWS}, {T2} offen sc1", "part")
        self.ack_store()
        self.stamp(5)
    def reducer(self, after_first):
        a = self.a
        a(f"s_lshl_b32 {T0}, {sRB}, 1"); a(f"s_add_u32 {T0}, {T0}, {sHG}"); a(f"s_sub_u32 {T0}, {T0}, 6")
        a(f"s_lshr_b32 {T1}, {T0}, 2"); a(f"s_and_b32 {T0}, {T0}, 3"); a(f"s_lshl_b32 {T0}, {T0}, 1"); a(f"s_add_u32 {T0}, {T0}, {sBB}")
        a(f"s_lshl_b32 {T2}, {T1}, 7"); a(f"s_add_u32 {T2}, {T2}, {T0}")
        a(f"s_lshl_b32 {T3}, {T2}, 10"); a(f"s_lshl_b32 {T4}, {sTG}, 8"); a(f"s_add_u32 {T3}, {T3}, {T4}"); a(f"s_add_u32 {T3}, {T3}, {P_OFF}")
        a(f"v_lshrrev_b32 {V0}, 3, {vL}"); a(f"v_and_b32 {V1}, 7, {vL}"); a(f"v_lshlrev_b32 {V1}, 4, {V1}"); a(f"v_lshl_add_u32 {V2}, {V0}, 13, {V1}"); a(f"v_add_u32 {V2}, {T3}, {V2}")
        a(f"s_lshl_b32 {T3}, {T2}, 6"); a(f"s_add_u32 {T3}, {T3}, {PZ_OFF}")
        a(f"v_lshrrev_b32 {V0}, 2, {vL}"); a(f"v_and_b32 {V3}, 3, {vL}"); a(f"v_lshlrev_b32 {V3}, 4, {V3}"); a(f"v_lshl_add_u32 {V3}, {V0}, 9, {V3}"); a(f"v_add_u32 {V3}, {T3}, {V3}")
        a(f"s_lshl_b32 {T2}, {T1}, 3"); a(f"s_add_u32 {T2}, {T2}, {T0}")
        a(f"s_lshl_b32 {T3}, {T2}, 10"); a(f"s_add_u32 {T3}, {T3}, {T4}"); a(f"s_add_u32 {T3}, {T3}, {F_OFF}")
        a(f"v_mov_b32 {V0}, {OOB}"); a(f"v_cmp_gt_u32 vcc, 8, {vL}"); a(f"v_add_u32 {V4}, {T3}, {V1}"); a(f"v_cndmask_b32 {V4}, {V0}, {V4}, vcc")
        a(f"s_lshl_b32 {T3}, {T2}, 6"); a(f"s_add_u32 {T3}, {T3}, {FZ_OFF}"); a(f"s_cmp_eq_u32 {sTG}, 0"); a(f"s_cselect_b32 {T3}, {T3}, {OOB - 0x100}")
        a(f"v_cmp_gt_u32 vcc, 4, {vL}"); a(f"v_add_u32 {V5}, {T3}, {V1}"); a(f"v_cndmask_b32 {V5}, {V0}, {V5}, vcc")
        B = ACC0
        def loads(track):
            for i in range(4):
                s = f"buffer_load_dwordx4 {vr(B+4*i,4)}, {V2}, {SWS}, {'0' if i < 2 else T0} offen offset:{(i&1)*128} sc1"
                a.vmem(s, "h1") if track else a(s)
            s = f"buffer_load_dwordx4 {vr(B+16,4)}, {V3}, {SWS}, 0 offen sc1"
            a.vmem(s, "h1") if track else a(s)
        a(f"s_mov_b32 {T0}, 0x10000")
        L = a.label("h1"); Ld = a.label("h1d")
        loads(True)
        a.wait(vm="h1")
        after_first()
        a(f"s_mov_b32 {sSPIN}, {SPIN}")
        a(f"{L}:")
        a(f"v_cmp_ne_u32 vcc, {sTAG}, v{B+3}")
        for i in range(1, 5):
            a(f"v_cmp_ne_u32 {sM}, {sTAG}, v{B+4*i+3}"); a("s_nop 1"); a(f"s_or_b64 vcc, vcc, {sM}")
        a(f"s_cbranch_vccz {Ld}")
        a(f"s_sub_u32 {sSPIN}, {sSPIN}, 1"); a(f"s_cbranch_scc1 {Ld}")
        loads(False); a("s_waitcnt vmcnt(0)"); a(f"s_branch {L}")
        a(f"{Ld}:")
        self.stamp(7)
        a(f"s_mov_b32 {T1}, 0x04000c0c"); a(f"s_mov_b32 {T2}, 0x0706000c")
        for i in range(5):
            b = B + 4*i
            a(f"v_perm_b32 v{b+3}, v{b+2}, v{b+1}, {T1}"); a(f"v_perm_b32 v{b+3}, v{b+3}, v{b}, {T2}")
        for i in range(8): a(f"v_add_f32 v{B+i}, v{B+i}, v{B+8+i}")
        Z = B + 16; Tm = ACC1 + 8
        for i in range(4): a(f"v_add_f32_dpp v{Z+i}, v{Z+i}, v{Z+i} row_ror:4 row_mask:0xf bank_mask:0xf")
        vals = list(range(B, B+8)) + list(range(Z, Z+4))
        for v in vals: a(f"v_add_f32_dpp v{v}, v{v}, v{v} row_ror:8 row_mask:0xf bank_mask:0xf")
        for op in ("v_permlane16_swap_b32", "v_permlane32_swap_b32"):
            for k, v in enumerate(vals): a(f"v_mov_b32 v{Tm+k}, v{v}")
            for k, v in enumerate(vals): a(f"{op} v{v}, v{Tm+k}")
            for k, v in enumerate(vals): a(f"v_add_f32 v{v}, v{v}, v{Tm+k}")
        for k, b in enumerate((B, B+4, Z)):
            d = Tm + 4*k
            a(f"v_cvt_pk_bf16_f32 v{d}, v{b}, v{b+1}"); a(f"v_cvt_pk_bf16_f32 v{d+1}, v{b+2}, v{b+3}")
            a(f"v_mov_b32 v{d+2}, {sTAG}"); a(f"v_mov_b32 v{d+3}, {sTAG}")
        return lambda: (a.vmem(f"buffer_store_dwordx4 {vr(Tm,4)}, {V4}, {SWS}, 0 offen sc1", "fin"),
                        a.vmem(f"buffer_store_dwordx4 {vr(Tm+4,4)}, {V4}, {SWS}, 0 offen offset:128 sc1", "fin"),
                        a.vmem(f"buffer_store_dwordx4 {vr(Tm+8,4)}, {V5}, {SWS}, 0 offen sc1", "fin"))
    def o_stage_fetch(self, part=3):
        a = self.a
        B = ACCA
        def loads(track):
            for s in (f"buffer_load_dwordx4 {vr(B,4)}, {V2}, {SWS}, 0 offen sc1", f"buffer_load_dwordx4 {vr(B+4,4)}, {V3}, {SWS}, 0 offen sc1"):
                a.vmem(s, "h2") if track else a(s)
        if part & 1:
            a(f"s_lshl_b32 {T0}, {sHP}, 3"); a(f"s_add_u32 {T0}, {T0}, {sW}")
            a(f"s_lshl_b32 {T1}, {T0}, 10"); a(f"s_add_u32 {T1}, {T1}, {F_OFF}"); a(f"s_lshl_b32 {T2}, {T0}, 6"); a(f"s_add_u32 {T2}, {T2}, {FZ_OFF}")
            a(f"v_lshlrev_b32 {V2}, 4, {vL}"); a(f"v_and_b32 {V3}, 0x30, {V2}"); a(f"v_add_u32 {V2}, {T1}, {V2}"); a(f"v_add_u32 {V3}, {T2}, {V3}")
            loads(True)
        if not part & 2: return
        L = a.label("h2"); Ld = a.label("h2d")
        a.wait(vm="h2")
        a(f"s_mov_b32 {sSPIN}, {SPIN}")
        a(f"{L}:")
        a(f"v_cmp_ne_u32 vcc, {sTAG}, v{B+2}"); a(f"v_cmp_ne_u32 {sM}, {sTAG}, v{B+6}"); a("s_nop 1"); a(f"s_or_b64 vcc, vcc, {sM}")
        a(f"s_cbranch_vccz {Ld}")
        a(f"s_sub_u32 {sSPIN}, {sSPIN}, 1"); a(f"s_cbranch_scc1 {Ld}")
        loads(False); a("s_waitcnt vmcnt(0)"); a(f"s_branch {L}")
        a(f"{Ld}:")
        self.stamp(9)
        a(f"s_add_u32 {T0}, {sW1k}, {KVT}")
        a(f"v_and_b32 {V2}, 15, {vL}"); a(f"v_lshrrev_b32 {V3}, 4, {vL}"); a(f"v_lshlrev_b32 {V3}, 3, {V3}"); a(f"v_lshl_add_u32 {V2}, {V2}, 5, {V3}"); a(f"v_add_u32 {V2}, {T0}, {V2}")
        a(f"v_lshlrev_b32 {V3}, 3, {vL}"); a(f"v_add_u32 {V3}, {T0}, {V3}")
        a.ds(f"ds_write_b64 {V2}, {vr(B,2)}", "kt")
        a("s_mov_b64 exec, 15")
        a.ds(f"ds_write_b64 {V3}, {vr(B+4,2)} offset:512", "kt")
        a("s_mov_b64 exec, -1")
        a.wait(lg="kt")
    def o_stage_compute(self):
        a = self.a
        a(f"v_and_b32 {V0}, 3, {vL}"); a(f"v_bfe_u32 {V1}, {vL}, 2, 1"); a(f"v_bfe_u32 {V2}, {vL}, 3, 1")
        a(f"v_lshl_add_u32 {V0}, {V1}, 3, {V0}"); a(f"v_lshl_add_u32 {V0}, {V2}, 2, {V0}")
        a(f"v_and_b32 {V1}, 16, {vL}"); a(f"v_cmp_eq_u32 vcc, 0, {V1}"); a(f"v_lshrrev_b32 {V2}, 5, {vL}"); a(f"v_lshlrev_b32 {V2}, 4, {V2}")
        a(f"v_cndmask_b32 {V0}, {V1}, {V0}, vcc"); a(f"v_lshl_add_u32 {V0}, {V0}, 5, {V2}")
        a(f"s_lshl_b32 {T0}, {sBB}, 12"); a(f"s_add_u32 {T0}, {T0}, {KVT}"); a(f"v_add_u32 {V0}, {T0}, {V0}")
        A, D, PK = ACCA, ACCA+16, FR2
        for i in range(4): a.ds(f"ds_read_b128 {vr(A+4*i,4)}, {V0} offset:{i*1024}", f"o{i>>1}")
        a(f"s_lshl_b32 {T0}, {sHP}, 19"); a(f"s_add_u32 {T0}, {T0}, {O_OFF}"); a(f"s_add_u32 {T1}, {T0}, {STEP}")
        for hd in range(2):
            a.wait(lg=f"o{hd}")
            a(f"v_mfma_f32_32x32x16_bf16 {vr(D,16)}, {vr(A+8*hd,4)}, {vr(PHI+8*hd,4)}, 0")
            a(f"v_mfma_f32_32x32x16_bf16 {vr(D,16)}, {vr(A+8*hd+4,4)}, {vr(PHI+8*hd+4,4)}, {vr(D,16)}")
            a(f"v_add_f32 {V1}, 0x358637bd, v{D+8}"); a(f"v_rcp_f32 {V1}, {V1}")
            for i in range(8): a(f"v_mul_f32 v{D+i}, {V1}, v{D+i}")
            for i in range(4): a(f"v_cvt_pk_bf16_f32 v{PK+4*hd+i}, v{D+2*i}, v{D+2*i+1}")
        self.store_mode(lambda f: (a(f"buffer_store_dwordx4 {vr(PK,4)}, {vHS}, {SWS}, {T0} offen{f}"),
                                   a(f"buffer_store_dwordx4 {vr(PK+4,4)}, {vHS}, {SWS}, {T1} offen{f}")), "ost", 2)
    def ffn(self, hooks, la, extra=[]):
        a = self.a; nr = self.nring; o = self.o
        g2i, g2c = o.get('g2i', 3), o.get('g2c', 5)
        for d in range(11):
            a.wait(vm=f"w2_{d}")
            a.wait(vm=f"h{d}")
            a("s_barrier")
            self.stamp(f"f{d}")
            if d == g2i: a.vmem(f"buffer_load_dword {V0}, {vFL}, {SWS}, 0 offen sc1", "pf")
            if d >= 1 and d + 2 <= 7: self.push(*self.dmaW2(d + 2))
            self.slot()
            base = self.ring(d)
            p0, p1, off = (vPR0, vPR1, base) if base < 65536 else (vPM0, vPM1, base - 65536)
            for u in range(2):
                for cb, v in ((0, p0), (1, p1)):
                    for e in range(2):
                        a.ds(f"ds_read_b64_tr_b16 {vr(FR2+8*u+4*cb+2*e,2)}, {v} offset:{off + u*8192 + e*512}", f"f{u}")
            if d + la <= 7: self.push(*self.ldH(d + la))
            if d == g2c:
                self.poll_flags(0x1555, "pf")
                self.push(lambda: a.vmem(f"buffer_load_dword {V6}, {vG}, {SWS}, 0 offen sc1", "g"))
            if g2c <= d < g2c + 3: self.push(*self.ldH(8 + d - g2c))
            n = -(-len(extra) // max(1, 7 - d)); n += n & 1
            self.push(*extra[:n]); extra = extra[n:]
            self.slot()
            for u in range(2):
                a.wait(lg=f"f{u}")
                for cb in range(2):
                    acc = ACCF + 16*cb
                    a(f"v_mfma_f32_32x32x16_bf16 {vr(acc,16)}, {vr(FR2+8*u+4*cb,4)}, {ar(8*d+4*u,4)}, {'0' if d == 0 and u == 0 else vr(acc,16)}")
                self.slot()
            self.flush()
            if d in hooks: hooks[d]()
    def tail(self, bump=False):
        a = self.a
        a("s_barrier")
        self.stamp(10)
        a.vmem(f"buffer_load_dword {V0}, {vFL}, {SWS}, 0 offen sc1", "pf")
        W0, W1, W2_, W3, R0, R1, OA = vX0, vX1, vWA, vWB, vXR0, vXR1, vXR2
        a(f"v_and_b32 {W0}, 31, {vL}"); a(f"v_lshrrev_b32 {V1}, 5, {vL}"); a(f"v_lshlrev_b32 {V1}, 1, {V1}"); a(f"v_and_b32 {V2}, 7, {vL}")
        a(f"v_xor_b32 {V1}, {V1}, {V2}"); a(f"v_lshlrev_b32 {V1}, 4, {V1}"); a(f"v_lshl_add_u32 {W0}, {W0}, 8, {V1}")
        a(f"s_and_b32 {T4}, {sW}, 1"); a(f"s_lshl_b32 {T4}, {T4}, 15"); a(f"s_lshr_b32 {T1}, {sW}, 1"); a(f"s_lshl_b32 {T2}, {T1}, 13"); a(f"s_add_u32 {T2}, {T2}, {T4}")
        a(f"v_add_u32 {W0}, {T2}, {W0}"); a(f"v_xor_b32 {W1}, 16, {W0}"); a(f"v_xor_b32 {W2_}, 64, {W0}"); a(f"v_xor_b32 {W3}, 0x50, {W0}")
        a(f"v_lshrrev_b32 {V5}, 3, {vL}"); a(f"v_lshlrev_b32 {R0}, 1, {V2}"); a(f"v_xor_b32 {R0}, {R0}, {V5}"); a(f"v_lshlrev_b32 {R0}, 4, {R0}")
        a(f"v_lshl_add_u32 {R0}, {V5}, 8, {R0}"); a(f"s_lshl_b32 {T2}, {T1}, 11"); a(f"s_add_u32 {T2}, {T2}, {T4}"); a(f"v_add_u32 {R0}, {T2}, {R0}"); a(f"v_xor_b32 {R1}, 16, {R0}")
        a(f"s_lshl_b32 {T2}, {sRB}, 7"); a(f"s_lshl_b32 {T3}, {sType}, 6"); a(f"s_add_u32 {T2}, {T2}, {T3}"); a(f"s_lshr_b32 {T3}, {T4}, 10"); a(f"s_add_u32 {T2}, {T2}, {T3}")
        a(f"s_lshl_b32 {T3}, {T1}, 3"); a(f"s_add_u32 {T2}, {T2}, {T3}"); a(f"s_lshl_b32 {T2}, {T2}, 10"); a(f"s_lshl_b32 {T3}, {sN}, 7"); a(f"s_add_u32 {T2}, {T2}, {T3}")
        a(f"v_lshlrev_b32 {V2}, 4, {V2}"); a(f"v_lshl_add_u32 {OA}, {V5}, 10, {V2}"); a(f"v_add_u32 {OA}, {T2}, {OA}")
        a.wait(vm="g")
        a(f"v_sub_f32 {V5}, 1.0, {V6}")
        for i in range(32): a(f"v_mul_f32 v{ACCF+i}, {V5}, v{ACCF+i}")
        def rd(i):
            b = FR2 + 8*(i % 2)
            for cb, v in ((0, vPO0), (1, vPO1)):
                for e in range(2): a.ds(f"ds_read_b64_tr_b16 {vr(b+4*cb+2*e,2)}, {v} offset:{i*8192 + e*512}", f"a{i}")
        rd(0)
        self.poll_flags(0xff0000, "pf")
        self.stamp(11)
        def ld(i):
            a(f"s_mov_b32 {T0}, {O_OFF + i*UNIT}")
            a.vmem(f"buffer_load_dwordx4 {ar(88+4*i,4)}, {vHL}, {SWS}, {T0} offen sc1", f"o{i}")
        LA = 4
        for i in range(LA): ld(i)
        for i in range(8):
            if i + 1 < 8: rd(i + 1)
            if i + LA < 8: ld(i + LA)
            a.wait(vm=f"o{i}", lg=f"a{i}")
            for cb in range(2):
                acc = ACCA + 16*cb
                a(f"v_mfma_f32_32x32x16_bf16 {vr(acc,16)}, {vr(FR2+8*(i%2)+4*cb,4)}, {ar(88+4*i,4)}, {'0' if i == 0 else vr(acc,16)}")
        self.stamp(12)
        wa = {(0, 0): W0, (0, 1): W1, (1, 0): W2_, (1, 1): W3}
        for cb in range(2):
            for gp in range(2):
                for e in range(2):
                    b = 16*cb + 8*gp + 4*e
                    for i in range(4): a(f"v_fmac_f32 v{ACCF+b+i}, {V6}, v{ACCA+b+i}")
                    a.ds(f"ds_write_b128 {wa[(gp,e)]}, {vr(ACCF+b,4)} offset:{cb*128}", "rw")
        a.wait(lg="rw")
        self.stamp("rw")
        a("s_barrier")
        B = ACCA
        for k in range(4):
            a.ds(f"ds_read_b128 {vr(B+8*k,4)}, {R0} offset:{k*8192}", f"s{k}"); a.ds(f"ds_read_b128 {vr(B+8*k+4,4)}, {R1} offset:{k*8192}", f"s{k}")
        a.wait(lg="s1")
        for i in range(8): a(f"v_add_f32 v{B+i}, v{B+i}, v{B+8+i}")
        a.wait(lg="s3")
        for i in range(8): a(f"v_add_f32 v{B+16+i}, v{B+16+i}, v{B+24+i}")
        for i in range(8): a(f"v_add_f32 v{B+i}, v{B+i}, v{B+16+i}")
        for i in range(4): a(f"v_cvt_pk_bf16_f32 v{B+8+i}, v{B+2*i}, v{B+2*i+1}")
        a.vmem(f"buffer_store_dwordx4 {vr(B+8,4)}, {OA}, {SOUT}, 0 offen", "out")
        if self.o.get('dbgtime'):
            a("s_waitcnt vmcnt(0)"); a("s_not_b32 s88, s26"); a("s_memrealtime s[26:27]"); a("s_waitcnt lgkmcnt(0)")
            a("v_mov_b32 v24, s88"); a("v_mov_b32 v25, s26"); a("s_mov_b64 exec, 1")
            a(f"buffer_atomic_umax v24, off, {SDBG}, 0 offset:8"); a(f"buffer_atomic_umax v25, off, {SDBG}, 0 offset:12")
            a("s_add_u32 s88, s88, s26"); a("s_add_u32 s88, s88, 1"); a("v_mov_b32 v24, s88"); a(f"buffer_atomic_umax v24, off, {SDBG}, 0 offset:16")
        if self.o.get('stamps'):
            self.stamp(13)
            a("s_waitcnt vmcnt(0)"); self.stamp(14); a("s_waitcnt lgkmcnt(0)"); self.stamp(15)
            a("s_waitcnt lgkmcnt(0)"); a("s_memrealtime s[26:27]"); a("s_waitcnt lgkmcnt(0)"); a("v_writelane_b32 v23, s26, 63")
            a(f"s_lshl_b32 {T0}, s2, 3"); a(f"s_add_u32 {T0}, {T0}, {sW}"); a(f"s_lshl_b32 {T0}, {T0}, 8"); a(f"s_add_u32 {T0}, {T0}, {ST_OFF}")
            a(f"v_lshlrev_b32 {V0}, 2, {vL}")
            a(f"buffer_store_dword v23, {V0}, {SWS}, {T0} offen")
        a("s_endpgm")
    def bump(self):
        a = self.a
        Lx = a.label("nb"); L = a.label("bp"); Ld = a.label("bpd")
        a("s_cmp_eq_u32 s2, 224"); a(f"s_cbranch_scc0 {Lx}"); a(f"s_cmp_eq_u32 {sW}, 0"); a(f"s_cbranch_scc0 {Lx}")
        a(f"v_lshlrev_b32 {V0}, 4, {vL}"); a(f"s_mov_b32 {T0}, {ACK_OFF}"); a(f"s_mov_b32 {sSPIN}, {SPIN}")
        a(f"{L}:")
        a(f"buffer_load_dwordx4 {vr(ACCA,4)}, {V0}, {SWS}, {T0} offen sc1"); a("s_waitcnt vmcnt(0)")
        a(f"v_cmp_ne_u32 vcc, {sTAG}, v{ACCA}")
        for i in range(1, 4):
            a(f"v_cmp_ne_u32 {sM}, {sTAG}, v{ACCA+i}"); a("s_nop 1"); a(f"s_or_b64 vcc, vcc, {sM}")
        a(f"s_cbranch_vccz {Ld}")
        a(f"s_sub_u32 {sSPIN}, {sSPIN}, 1"); a(f"s_cbranch_scc0 {L}")
        a(f"{Ld}:")
        a(f"v_mov_b32 {V0}, {sE}"); a(f"s_mov_b32 {T0}, {E_OFF}"); a("s_mov_b64 exec, 1")
        a(f"buffer_store_dword {V0}, off, {SWS}, {T0}"); a("s_mov_b64 exec, -1"); a("s_waitcnt vmcnt(0)")
        a(f"{Lx}:")
    def group1(self, la, pre=None):
        self.poll_flags(0xAAAA, pre)
        self.stamp(8)
        for d in range(min(la, 8)):
            for f in self.ldH(d): f()
    def path_q(self):
        a = self.a; o = self.o
        a(f"s_lshl_b32 {T0}, {sHG}, 20")
        L = []
        for u, acc in enumerate((ACC0, ACC1)):
            pk = PHI + 8*u
            hp = self.h_pack(acc, pk)
            for kk in range(2):
                L += hp[12*kk:12*kk+12]
                L += [f"s_add_u32 {T1}, {T0}, {u*UNIT + kk*STEP}",
                      lambda pk=pk, kk=kk: a.vmem(f"buffer_store_dwordx4 {vr(pk+4*kk,4)}, {vHS}, {SH}, {T1} offen sc1", "hst")]
        L += [self.ack_store, self.get_mode_issue, lambda: self.touch(O_OFF, sHP, V6), lambda: self.stamp(4), lambda: None]
        self.flush()
        be = o.get('bearly', 0)
        rest = ([] if be else self.dmaW2(0) + self.dmaW2(1) + self.dmaW2(2)) + self.dmaW2(8) + self.dmaW2(9) + self.dmaW2(10)
        q1, q2 = o.get('qd1', 0), o.get('qd2', 4)
        if not be:
            self.run(L); L = []
            a.wait(vm="B0"); a("s_barrier")
            self.stamp("B0")
            self.push(*rest[:q1])
        else: L.append(lambda: self.push(*rest[:q1]))
        self.passB(0, L, o.get('qper', 8), 2)
        self.flush()
        a.wait(vm="B1"); a("s_barrier")
        self.stamp("B1")
        rest = rest[q1:] + self.dmaWO(0, 4)
        self.push(*rest[:q2])
        self.passB(1, [], 0, 3)
        self.flush()
        self.stamp(5)
        a("s_barrier")
        rest = rest[q2:] + self.dmaWO(4, 8); q3 = o.get('qd3', 99)
        self.push(*rest[:q3]); rest = rest[q3:]
        sink = lambda hd, sg, b: [f"v_cvt_pk_bf16_f32 v{PHI+8*hd+4*sg+i}, v{b+2*i}, v{b+2*i+1}" for i in range(4)]
        fl = o.get('qflag', 0)
        def mid(k):
            if k == fl:
                self.get_mode_wait(); self.flag_store(FH_OFF, sJ)
        self.run(self.softmax(ACCB, ACC0, (ACC1, ACCB), FR, sink, 1, mid))
        self.flush()
        self.stamp(6)
        la = o.get('la', 3)
        self.group1(la)
        s2 = o.get('s2', 10)
        hooks = {}
        if s2 < 10:
            assert s2 >= 6
            hooks[s2 - 1] = lambda: self.o_stage_fetch(1); hooks[s2] = lambda: self.o_stage_fetch(2); hooks[s2 + 1] = self.o_stage_compute
            fo = lambda: (a.wait(vm="ost"), self.flag_store(FO_OFF, sHP))
            if s2 + 2 <= 10: hooks[s2 + 2] = fo
            self.ffn(hooks, la, rest)
            if s2 + 2 > 10: fo()
        else:
            self.ffn(hooks, la, rest)
            self.o_stage_fetch(); a("s_barrier"); self.o_stage_compute()
            a.wait(vm="ost"); self.flag_store(FO_OFF, sHP)
        self.tail()
    def path_kv(self):
        a = self.a; o = self.o
        self.kv_epilogue()
        a(f"s_cmp_ge_u32 {sHG}, 6"); a("s_cbranch_scc1 L_pathR")
        sv = (a.vm.copy(), a.lg.copy()); pend = list(self.pend)
        if not o.get('bearly', 0):
            self.push(*(self.dmaW2(0) + self.dmaW2(1) + self.dmaW2(2))[o.get('kdma', 6):])
            self.passB(0, [], 0, 3)
            self.flush()
            a.wait(vm="B1"); a("s_barrier")
            self.stamp("B1")
        rest = self.dmaW2(8) + self.dmaW2(9) + self.dmaW2(10) + self.dmaWO(0, 4); k2 = o.get('kd2', 8)
        if o.get('bearly', 0): rest = self.dmaWO(0, 4) + rest[:6]; k2 = min(k2, 4)
        self.push(*rest[:k2]); rest = rest[k2:]
        self.passB(1, [], 0, 3)
        self.flush()
        self.stamp(6)
        self.get_mode_wait()
        self.run(self.h_pack(ACCB, FR))
        a(f"s_add_u32 {T0}, {sHG}, 16"); a(f"s_lshl_b32 {T0}, {T0}, 19"); a(f"s_add_u32 {T1}, {T0}, {STEP}")
        self.store_mode(lambda f: (a(f"buffer_store_dwordx4 {vr(FR,4)}, {vHS}, {SH}, {T0} offen{f}"),
                                   a(f"buffer_store_dwordx4 {vr(FR+4,4)}, {vHS}, {SH}, {T1} offen{f}")), "hst", 2)
        a.vmem(f"buffer_load_dword {V0}, {vFL}, {SWS}, 0 offen sc1", "pf")
        a("s_barrier")
        rest = rest + self.dmaWO(4, 8)
        k3 = o.get('kd3', 99)
        for f in rest[:k3]: f()
        self.stamp(7)
        la = o.get('la', 3)
        self.group1(la, "pf")
        self.ffn({0: lambda: (a.wait(vm="hst"), self.flag_store(FH_OFF, sJ))}, la, rest[k3:])
        self.tail()
        a.vm, a.lg = sv; self.pend = pend
        a("L_pathR:")
        if not o.get('bearly', 0): self.push(*(self.dmaW2(0) + self.dmaW2(1) + self.dmaW2(2))[o.get('kdma', 6):])
        self.flush()
        a.wait(vm="B1"); a("s_barrier")
        Lng = a.label("ng")
        a(f"s_cmp_eq_u32 {sHG}, 6"); a(f"s_cbranch_scc0 {Lng}")
        self.gate_wave()
        a(f"{Lng}:")
        a("s_barrier")
        rest = self.dmaW2(8) + self.dmaW2(9) + self.dmaW2(10) + self.dmaWO(0, 8)
        r1 = o.get('rd1', 0); r2 = o.get('rd2', 0)
        for f in rest[:r1]: f()
        def gflag():
            Lx = a.label("ng")
            a(f"s_cmp_eq_u32 {sHG}, 6"); a(f"s_cbranch_scc0 {Lx}")
            sv2 = a.vm.copy()
            self.get_mode_wait(); self.flag_store(FH_OFF, sJ)
            a.vm = sv2
            a(f"{Lx}:")
            a(f"s_mov_b32 {T0}, 0x10000")
        fin = self.reducer(gflag)
        a.vmem(f"buffer_load_dword {V0}, {vFL}, {SWS}, 0 offen sc1", "pf")
        fin()
        for f in rest[r1:r1+r2]: f()
        self.group1(8, "pf")
        self.ffn({6: self.bump}, 8, rest[r1+r2:])
        self.tail()
    def gate_wave(self):
        a = self.a
        a(f"v_lshrrev_b32 {V0}, 5, {vL}"); a(f"v_lshlrev_b32 {V0}, 4, {V0}"); a(f"s_add_u32 {T0}, {sW1k}, {R + 57344}"); a(f"v_add_u32 {V0}, {T0}, {V0}")
        D = 5
        def rd(st): a.ds(f"ds_read_b128 {vr(FR+4*(st%6),4)}, {V0} offset:{st*32}", f"g{st}")
        for st in range(D): rd(st)
        for st in range(32):
            if st + D < 32: rd(st + D)
            a.wait(lg=f"g{st}")
            a(f"v_mfma_f32_32x32x16_bf16 {vr(ACCB,16)}, {vr(FR+4*(st%6),4)}, {ar(4*st,4)}, {'0' if st == 0 else vr(ACCB,16)}")
            if st % 3 == 2: self.slot()
        a(f"s_lshl_b32 {T2}, {sRB}, 2"); a(f"s_add_u32 {T2}, {T2}, {sTG}"); a(f"s_lshl_b32 {T2}, {T2}, 7"); a(f"s_add_u32 {T2}, {T2}, {G_OFF}")
        a(f"v_and_b32 {V1}, 31, {vL}"); a(f"v_lshlrev_b32 {V1}, 2, {V1}")
        a(f"v_mul_f32 {V2}, {sL2E}, v{ACCB}"); a(f"v_exp_f32_e64 {V2}, -{V2}"); a(f"v_add_f32 {V2}, 1.0, {V2}"); a(f"v_rcp_f32 {V2}, {V2}")
        a(f"buffer_store_dword {V2}, {V1}, {SWS}, {T2} offen sc1")
    def build(self):
        a = self.a
        self.prologue(); self.passA()
        a(f"s_cmp_eq_u32 {sType}, 0"); a("s_cbranch_scc1 L_pathKV")
        sv = (a.vm.copy(), a.lg.copy()); pend = list(self.pend)
        self.path_q()
        a.vm, a.lg = sv; self.pend = pend
        a("L_pathKV:")
        self.path_kv()
        a("L_end:"); a("s_endpgm")
        body = pad_hazards(a.L, verbose=True)
        head = open('cdna_kernels/' + NAME + '.s.ref').read().split('; Override')[0]
        txt = head + "; stamps: " + ",".join(self.names) + "\n" + "; @launch grid=(256,1,1) block=(512,1,1) lds=163840\n"
        txt += f".amdgcn_target \"amdgcn-amd-amdhsa--gfx950\"\n.text\n.globl {NAME}_kernel\n.p2align 8\n.type {NAME}_kernel,@function\n{NAME}_kernel:\n"
        txt += "\n".join(("" if l.endswith(':') else "    ") + l for l in body) + "\n"
        txt += f""".section .rodata,"a"
.p2align 6
.amdhsa_kernel {NAME}_kernel
  .amdhsa_next_free_vgpr 256
  .amdhsa_next_free_sgpr 102
  .amdhsa_accum_offset 128
  .amdhsa_group_segment_fixed_size 0
  .amdhsa_kernarg_size 88
  .amdhsa_user_sgpr_count 2
  .amdhsa_user_sgpr_kernarg_segment_ptr 1
  .amdhsa_system_sgpr_workgroup_id_x 1
.end_amdhsa_kernel
"""
        return txt

if __name__ == '__main__':
    out = sys.argv[1]
    opt = json.loads(sys.argv[2]) if len(sys.argv) > 2 else {}
    open(out, 'w').write(Gen(opt).build())
```

```python
import sys, json
from asmlib import *

NAME = "gated_mix__linear_kernel_hedgehog__dense_activation_relu__prompt"
STEP = 131072; UNIT = 4*STEP
H_OFF = 0; H_SIZE = 86*STEP
O_OFF = 0xC00000; P_OFF = 0x1000000; PZ_OFF = 0x1100000; G_OFF = 0x1110000
F_OFF = 0x1120000; FZ_OFF = 0x1130000; FH_OFF = 0x1140000; FO_OFF = 0x1142000; ACK_OFF = 0x1148000
E_OFF = 0x1150000; ST_OFF = 0x1200000; WS_SIZE = 0x2000000
OOB = 0x7ffffff0
XS = lambda s: s*16384
WSL = lambda s: 49152 + s*16384
R = 98304
RING = lambda d: ((d + 3) % 5)*16384
KVT = 65536
SPIN = 40000
SX, SWA, SWB, SW2, SWO, SWS, SH, SOUT, STMP, SDBG = [f"s[{28+4*i}:{31+4*i}]" for i in range(10)]
sC, sRB, sJ, sHG, sW, sTG, sBB, sC0, sTAG, sMODE, sStrA64, sStrA4, sStrB64, sType, sW1k, sW2k, sL2E, sU0, sU1, sE = [f"s{68+i}" for i in range(20)]
T0, T1, T2, T3, T4, T5 = [f"s{88+i}" for i in range(6)]
sSPIN = "s94"; sXCC = "s95"; sA0 = "s96"; sA1 = "s97"; sM = "s[98:99]"; sA2 = "s100"; sL2P = "s[0:1]"; sC32 = "s101"; sST = "s12"; sHP = "s13"; sN = "s3"
vL = "v0"
vX0, vX1, vWA, vWB, vXR0, vXR1, vXR2, vXR3, vAR0, vAR1, vBR = [f"v{1+i}" for i in range(11)]
vW2, vPR0, vPR1, vPM0, vPM1, vPO0, vPO1, vHL, vHS, vFL, vG = [f"v{12+i}" for i in range(11)]
V0, V1, V2, V3, V4, V5, V6, V7 = [f"v{24+i}" for i in range(8)]
ACC0, ACC1, ACCB, FR, WP0, WP1, PHI = 32, 48, 64, 80, 104, 108, 112
ACCF, ACCA, FR2 = 32, 64, 96
M16, MTO, MAT, MWP, ME, MJ = [f"v{64+i}" for i in range(6)]
vr = lambda b, n: f"v[{b}:{b+n-1}]"
ar = lambda b, n: f"a[{b}:{b+n-1}]"

class Gen:
    def __init__(self, opt):
        self.o = opt; self.a = Asm(); self.nst = 0; self.pend = []; self.nring = 6; self.names = ['0']
    def ring(self, d):
        return (81920, 49152, 65536)[d % 3] if d < 8 else (d - 8)*16384
    def push(self, *fs): self.pend += list(fs)
    def slot(self, n=1):
        for _ in range(n):
            if self.pend: self.pend.pop(0)()
    def flush(self): self.slot(len(self.pend))
    def stamp(self, name):
        if not self.o.get('stamps'): return
        a = self.a
        name = str(name)
        if self.o['stamps'] == 1 and not name.isdigit(): return
        if name not in self.names: self.names.append(name)
        i = self.names.index(name); assert i < 63
        a("s_mov_b32 s27, m0"); a(f"s_mov_b32 m0, {sST}"); a("s_nop 0"); a("v_writelane_b32 v23, s26, m0"); a("s_mov_b32 m0, s27")
        a(f"s_mov_b32 {sST}, {i}")
        a("s_memtime s[26:27]")
    def csel(self, dst, x, y):
        self.a(f"s_mov_b32 {dst}, {y}"); self.a(f"s_cmov_b32 {dst}, {x}")
    def srd(self, s, base, size):
        a = self.a; b = int(s[2:s.index(':')])
        a(f"s_mov_b32 s{b}, s{base}"); a(f"s_mov_b32 s{b+1}, s{base+1}")
        a(f"s_mov_b32 s{b+2}, {size}"); a(f"s_mov_b32 s{b+3}, 0x20000")
    def dma(self, voff, srd, soff, m0expr, tag):
        a = self.a
        if 'offen' not in soff: soff += " offen"
        a(m0expr); a.vmem(f"buffer_load_dwordx4 {voff}, {srd}, {soff} lds", tag)
    def dmaA(self, c):
        a = self.a; s = c % 3
        def first():
            a(f"s_add_u32 {sA0}, {sC0}, {c}"); a(f"s_and_b32 {sA0}, {sA0}, 7")
            a(f"s_mul_i32 {sA1}, {sA0}, {sStrA64}"); a(f"s_lshl_b32 {sA0}, {sA0}, 7")
            self.dma(vX0, SX, sA0 + " offen " + self.o.get('xfl', ''), f"s_add_u32 m0, {sW2k}, {XS(s)}", f"c{c}")
        def fourth():
            a(f"s_add_u32 {sA1}, {sA1}, {sStrA4}")
            self.dma(vWA, SWA, sA1, f"s_add_u32 m0, {sW2k}, {WSL(s)+1024}", f"c{c}")
        return [first,
                lambda: self.dma(vWA, SWA, sA1, f"s_add_u32 m0, {sW2k}, {WSL(s)}", f"c{c}"),
                lambda: self.dma(vX1, SX, sA0 + " offen " + self.o.get('xfl', ''), f"s_add_u32 m0, {sW2k}, {XS(s)+1024}", f"c{c}"),
                fourth]
    def dmaB(self, ci):
        a = self.a
        def f():
            a(f"s_add_u32 {sA2}, {sC0}, {ci}"); a(f"s_and_b32 {sA2}, {sA2}, 7"); a(f"s_mul_i32 {sA2}, {sA2}, {sStrB64}")
            self.dma(vWB, SWB, sA2, f"s_add_u32 m0, {sW1k}, {R + ci*8192}", f"B{ci>>2}")
        return [f]
    def unit_of(self, d, dst):
        a = self.a
        if d < 8:
            a(f"s_add_u32 {dst}, {sU0}, {d}"); a(f"s_and_b32 {dst}, {dst}, 7"); a(f"s_lshl_b32 {dst}, {dst}, 1")
        else:
            a(f"s_add_u32 {dst}, {sU1}, {d-8}"); a(f"s_cmp_ge_u32 {dst}, 3"); a(f"s_cselect_b32 {sA2}, 3, 0")
            a(f"s_sub_u32 {dst}, {dst}, {sA2}"); a(f"s_lshl_b32 {dst}, {dst}, 1"); a(f"s_add_u32 {dst}, {dst}, 16")
    def dmaW2(self, d):
        a = self.a
        def f0():
            self.unit_of(d, sA0); a(f"s_lshl_b32 {sA0}, {sA0}, 16")
            self.dma(vW2, SW2, sA0, f"s_add_u32 m0, {sW1k}, {self.ring(d)}", f"w2_{d}")
        def f1():
            a(f"s_add_u32 {sA0}, {sA0}, 0x10000")
            self.dma(vW2, SW2, sA0, f"s_add_u32 m0, {sW1k}, {self.ring(d)+8192}", f"w2_{d}")
        return [f0, f1]
    def dmaWO(self, lo=0, hi=8):
        a = self.a
        def mk(i):
            def f():
                a(f"s_mov_b32 {sA2}, {i*65536}")
                self.dma(vW2, SWO, sA2, f"s_add_u32 m0, {sW1k}, {R + i*8192}", "wo")
            return f
        return [mk(i) for i in range(lo, hi)]
    def ldH(self, d):
        a = self.a
        def f0():
            self.unit_of(d, sA1); a(f"s_lshl_b32 {sA1}, {sA1}, 19")
            a.vmem(f"buffer_load_dwordx4 {ar(8*d,4)}, {vHL}, {SH}, {sA1} offen sc1", f"h{d}")
        def f1():
            a(f"s_add_u32 {sA1}, {sA1}, {UNIT}")
            a.vmem(f"buffer_load_dwordx4 {ar(8*d+4,4)}, {vHL}, {SH}, {sA1} offen sc1", f"h{d}")
        return [f0, f1]
    def poll_flags(self, mask, pre_issued=None):
        a = self.a; L = a.label("pf"); Ld = a.label("pfd")
        if pre_issued is None:
            a.vmem(f"buffer_load_dword {V0}, {vFL}, {SWS}, 0 offen sc1", "pf"); pre_issued = "pf"
        a.wait(vm=pre_issued)
        a(f"s_mov_b32 {sSPIN}, {SPIN}")
        a(f"{L}:")
        a(f"v_cmp_ne_u32 vcc, {sTAG}, {V0}"); a("s_nop 1")
        a(f"s_and_b32 {T0}, vcc_lo, {mask:#x}"); a(f"s_cbranch_scc0 {Ld}")
        a(f"s_sub_u32 {sSPIN}, {sSPIN}, 1"); a(f"s_cbranch_scc1 {Ld}")
        a(f"buffer_load_dword {V0}, {vFL}, {SWS}, 0 offen sc1"); a("s_waitcnt vmcnt(0)")
        a(f"s_branch {L}")
        a(f"{Ld}:")
    def get_mode_issue(self):
        a = self.a
        a(f"s_lshl_b32 {T0}, {sC}, 5")
        a.vmem(f"buffer_load_dword {V7}, off, {SDBG}, {T0} sc1", "mode")
    def get_mode_wait(self):
        a = self.a; L = a.label("gm"); Ld = a.label("gmd")
        a.wait(vm="mode")
        a(f"s_mov_b32 {sSPIN}, {0 if 'a' in self.o.get('skip', '') else SPIN}")
        a(f"{L}:")
        a(f"v_readfirstlane_b32 {T1}, {V7}"); a("s_nop 1")
        a(f"s_and_b32 {T2}, {T1}, 31"); a(f"s_cselect_b32 {T2}, 0, {T1}"); a(f"s_cmp_lg_u32 {T2}, 0"); a(f"s_cbranch_scc1 {Ld}")
        a(f"s_sub_u32 {sSPIN}, {sSPIN}, 1"); a(f"s_cbranch_scc1 {Ld}")
        a(f"s_lshl_b32 {T0}, {sC}, 5")
        a(f"buffer_load_dword {V7}, off, {SDBG}, {T0} sc1"); a("s_waitcnt vmcnt(0)")
        a(f"s_branch {L}")
        a(f"{Ld}:")
        a(f"s_mul_i32 {T2}, {sXCC}, {sXCC}"); a(f"s_lshl_b32 {T2}, {T2}, 16"); a(f"s_lshl_b32 {T3}, {sXCC}, 8")
        a(f"s_add_u32 {T2}, {T2}, {T3}"); a(f"s_add_u32 {T2}, {T2}, 1"); a(f"s_lshl_b32 {T2}, {T2}, 5")
        a(f"s_cmp_eq_u32 {T1}, {T2}"); a(f"s_cselect_b32 {sMODE}, 1, 0")
        if self.o.get('force_slow'): a(f"s_mov_b32 {sMODE}, 0")
        if 'a' in self.o.get('skip', ''): a(f"s_mov_b32 {sMODE}, 1")
    def store_mode(self, fn, tag, n):
        a = self.a; Ls = a.label("sl"); Ld = a.label("sd")
        a(f"s_cmp_eq_u32 {sMODE}, 1"); a(f"s_cbranch_scc0 {Ls}")
        fn(""); a(f"s_branch {Ld}")
        a(f"{Ls}:"); fn(" sc1"); a(f"{Ld}:")
        for _ in range(n): a.vm.issue(tag)
    def flag_store(self, base, idx):
        a = self.a
        a(f"s_lshl_b32 {T0}, {sRB}, 2"); a(f"s_add_u32 {T0}, {T0}, {sTG}"); a(f"s_lshl_b32 {T0}, {T0}, 1"); a(f"s_add_u32 {T0}, {T0}, {sBB}")
        a(f"s_lshl_b32 {T0}, {T0}, 6"); a(f"s_lshl_b32 {T1}, {idx}, 2"); a(f"s_add_u32 {T0}, {T0}, {T1}"); a(f"s_add_u32 {T0}, {T0}, {base}")
        a(f"v_mov_b32 {V1}, {sTAG}")
        a(f"s_mov_b64 exec, 1")
        self.store_mode(lambda f: a(f"buffer_store_dword {V1}, off, {SWS}, {T0}{f}"), "flag", 1)
        a(f"s_mov_b64 exec, -1")
    def touch(self, base, idx, junk):
        a = self.a
        if 't' in self.o.get('skip', ''): return
        a(f"v_bfe_u32 {junk}, {vL}, 2, 1"); a(f"v_lshl_add_u32 {junk}, {junk}, 17, {vHS}")
        a(f"s_lshl_b32 {T2}, {idx}, 19"); a(f"s_add_u32 {T2}, {T2}, {base}")
        a.vmem(f"buffer_load_dword {junk}, {junk}, {SWS}, {T2} offen", "touch")
    def ack_store(self):
        a = self.a
        a(f"s_lshl_b32 {T0}, s2, 2"); a(f"s_add_u32 {T0}, {T0}, {ACK_OFF}")
        a(f"s_cmp_eq_u32 {sW}, 0"); a(f"s_cselect_b32 {T0}, {T0}, {OOB}")
        a(f"v_mov_b32 {V1}, {sTAG}")
        a(f"s_mov_b64 exec, 1")
        a.vmem(f"buffer_store_dword {V1}, off, {SWS}, {T0} sc1", "ack")
        a(f"s_mov_b64 exec, -1")
    def prologue(self):
        a = self.a; o = self.o
        a("s_cmp_ge_u32 s2, 256"); a("s_cbranch_scc1 L_end")
        a("s_load_dwordx16 s[4:19], s[0:1], 0"); a("s_load_dwordx4 s[20:23], s[0:1], 64"); a("s_load_dwordx2 s[24:25], s[0:1], 80")
        if o.get('stamps'):
            a("s_memtime s[26:27]")
        if o.get('dbgtime'): a("s_memrealtime s[26:27]")
        a(f"v_lshrrev_b32 {V0}, 6, v0"); a(f"v_and_b32 {vL}, 63, v0"); a(f"v_readfirstlane_b32 {sW}, {V0}")
        a(f"s_and_b32 {sC}, s2, 7"); a(f"s_lshr_b32 {T0}, s2, 3"); a(f"s_and_b32 {T1}, {T0}, 1"); a(f"s_lshr_b32 {sJ}, {T0}, 1")
        a(f"s_lshl_b32 {sRB}, {sC}, 1"); a(f"s_or_b32 {sRB}, {sRB}, {T1}")
        a(f"s_and_b32 {sType}, {sJ}, 1"); a(f"s_lshr_b32 {sHG}, {sJ}, 1")
        a(f"s_lshl_b32 {sA2}, {sHG}, 2"); a(f"s_lshr_b32 {sA2}, 0x37654210, {sA2}"); a(f"s_and_b32 {sA2}, {sA2}, 7")
        a(f"s_add_u32 {sN}, {sHG}, 5"); a(f"s_and_b32 {sN}, {sN}, 7")
        a(f"s_mul_i32 {T2}, {T1}, {o.get('rotr', 4)}"); a(f"s_mul_i32 {sC0}, {sJ}, {o.get('rotj', 1)}"); a(f"s_add_u32 {sC0}, {sC0}, {T2}")
        if o.get('rotc', 0): a(f"s_mul_i32 {T2}, {sC}, {o.get('rotc')}"); a(f"s_add_u32 {sC0}, {sC0}, {T2}")
        a(f"s_and_b32 {sC0}, {sC0}, 7")
        a(f"s_and_b32 {sTG}, {sW}, 3"); a(f"s_lshr_b32 {sBB}, {sW}, 2"); a(f"s_lshl_b32 {sW1k}, {sW}, 10"); a(f"s_lshl_b32 {sW2k}, {sW}, 11")
        a(f"s_cmp_eq_u32 {sType}, 0")
        self.csel(T3, 3072, 2752); self.csel(T5, 1024, 128); a(f"s_cselect_b32 {T2}, 7, 8")
        a(f"s_cselect_b32 {T1}, 1024, 0"); a(f"s_cselect_b32 {T4}, {sA2}, {sHG}"); a(f"s_lshl_b32 {T4}, {T4}, {T2}"); a(f"s_add_u32 {T4}, {T4}, {T1}")
        a(f"s_lshl_b32 {sStrA64}, {T3}, 6"); a(f"s_lshl_b32 {sStrA4}, {T3}, 2")
        a(f"s_lshl_b32 {T0}, {sRB}, 7"); a(f"s_lshl_b32 {T1}, {sW}, 4"); a(f"s_add_u32 {T0}, {T0}, {T1}"); a(f"s_lshl_b32 {T0}, {T0}, 10")
        a(f"v_lshrrev_b32 {V0}, 3, {vL}"); a(f"v_lshrrev_b32 {V1}, 4, {vL}"); a(f"v_and_b32 {V2}, 7, {vL}")
        a(f"v_xor_b32 {V3}, {V2}, {V1}"); a(f"v_lshlrev_b32 {V3}, 4, {V3}"); a(f"v_lshl_add_u32 {vX0}, {V0}, 10, {V3}"); a(f"v_add_u32 {vX0}, {T0}, {vX0}")
        a(f"v_xor_b32 {vX1}, 64, {vX0}"); a(f"v_add_u32 {vX1}, 0x2000, {vX1}")
        a(f"s_lshl_b32 {T1}, {sW}, 3")
        a(f"v_add_u32 {V3}, {T1}, {V1}"); a(f"v_mul_lo_u32 {vWA}, {V3}, {T3}")
        a(f"v_and_b32 {V3}, 15, {vL}"); a(f"v_lshlrev_b32 {V4}, 2, {V1}"); a(f"v_xor_b32 {V3}, {V3}, {V4}")
        a(f"v_lshrrev_b32 {V4}, 3, {V3}"); a(f"v_mul_lo_u32 {V4}, {V4}, {T5}"); a(f"v_and_b32 {V3}, 7, {V3}")
        a(f"v_lshl_add_u32 {V4}, {V3}, 4, {V4}"); a(f"v_add3_u32 {vWA}, {vWA}, {V4}, {T4}")
        a("s_mov_b32 s30, 0x200000"); a("s_mov_b32 s31, 0x20000"); a("s_mov_b32 s35, 0x20000")
        a(f"s_cmp_eq_u32 {sType}, 0"); self.csel("s34", 512*3072, 512*2752)
        a("s_waitcnt lgkmcnt(0)")
        if o.get('stamps'): a("v_mov_b32 v23, 0"); a(f"s_mov_b32 {sST}, 0")
        a("s_mov_b32 s28, s4"); a("s_mov_b32 s29, s5"); a(f"s_mov_b32 {sHP}, {sA2}")
        a("s_cselect_b32 s32, s6, s14"); a("s_cselect_b32 s33, s7, s15")
        for f in self.dmaA(0): f()
        c1 = self.dmaA(1)
        a(f"s_cmp_eq_u32 {sType}, 0")
        a("s_cselect_b32 s36, s14, s6"); a("s_cselect_b32 s37, s15, s7"); self.csel("s38", 512*2752, 512*3072); a("s_mov_b32 s39, 0x20000")
        self.csel(T3, 2752, 3072); a(f"s_cselect_b32 {T4}, 16, 0"); a(f"s_cselect_b32 {T5}, {sHG}, {sHP}")
        a(f"s_lshl_b32 {sStrB64}, {T3}, 6"); a(f"s_add_u32 {T4}, {T4}, {T5}"); a(f"s_lshl_b32 {T4}, {T4}, 7")
        a(f"s_cmp_ge_u32 {T4}, 2752"); a(f"s_cselect_b32 {T4}, 0x40000000, {T4}")
        self.srd(SW2, 16, 1376*1024); self.srd(SWO, 10, 512*1024); self.srd(SWS, 24, WS_SIZE); self.srd(SH, 24, H_SIZE)
        self.srd(SOUT, 20, 0x200000); self.srd(SDBG, 22, 256); self.srd(STMP, 8, 16384)
        a(f"v_and_b32 {V3}, 1, {V1}"); a(f"v_lshlrev_b32 {V3}, 2, {V3}"); a(f"v_xor_b32 {V3}, {V3}, {V2}"); a(f"v_lshlrev_b32 {V3}, 4, {V3}")
        a(f"s_lshl_b32 {T1}, {sW}, 3"); a(f"v_add_u32 {V4}, {T1}, {V0}")
        a(f"v_mul_lo_u32 {vWB}, {V4}, {T3}"); a(f"v_add3_u32 {vWB}, {vWB}, {V3}, {T4}")
        a(f"s_lshl_b32 {T1}, {sN}, 7"); a(f"v_lshl_add_u32 {vW2}, {V4}, 10, {V3}"); a(f"v_add_u32 {vW2}, {T1}, {vW2}")
        a(f"v_lshlrev_b32 {M16}, 4, {vL}")
        Lg = a.label("gsrd")
        a(f"s_cmp_eq_u32 {sJ}, 12"); a(f"s_cbranch_scc0 {Lg}")
        a("s_mov_b32 s36, s18"); a("s_mov_b32 s37, s19"); a("s_mov_b32 s38, 1024"); a(f"s_mov_b32 {sStrB64}, 0")
        a(f"v_add_u32 {V4}, {sC0}, {V0}"); a(f"v_and_b32 {V4}, 7, {V4}"); a(f"v_lshlrev_b32 {V3}, 4, {V2}"); a(f"v_lshl_add_u32 {vWB}, {V4}, 7, {V3}")
        a(f"{Lg}:")
        c1[0]()
        a(f"v_lshrrev_b32 {V0}, 5, {vL}"); a(f"v_bfe_u32 {V2}, {vL}, 2, 2")
        a(f"v_and_b32 {V3}, 1, {vL}"); a(f"v_bfe_u32 {V4}, {vL}, 1, 1"); a(f"v_lshl_add_u32 {V3}, {V3}, 1, {V4}"); a(f"v_lshlrev_b32 {V3}, 3, {V3}")
        a(f"v_and_b32 {V6}, 1, {V1}"); a(f"v_lshl_add_u32 {V3}, {V6}, 5, {V3}")
        a(f"v_lshl_add_u32 {V4}, {V0}, 3, {V2}")
        a(f"v_xor_b32 {V5}, {sBB}, {V2}"); a(f"v_lshlrev_b32 {V5}, 6, {V5}"); a(f"v_lshl_add_u32 {V5}, {V4}, 8, {V5}"); a(f"v_add_u32 {V5}, {V5}, {V3}")
        a(f"v_add_u32 {vAR0}, {WSL(0)}, {V5}"); a(f"v_xor_b32 {vAR1}, 128, {vAR0}")
        a(f"v_and_b32 {V7}, 31, {vL}"); a(f"v_bfe_u32 {V5}, {vL}, 1, 3"); a(f"v_xor_b32 {V5}, {V5}, {V0}"); a(f"v_lshlrev_b32 {V5}, 4, {V5}")
        a(f"s_lshl_b32 {T0}, {sTG}, 12"); a(f"v_lshl_add_u32 {vXR0}, {V7}, 7, {V5}"); a(f"v_add_u32 {vXR0}, {T0}, {vXR0}")
        a(f"v_xor_b32 {vXR1}, 32, {vXR0}"); a(f"v_xor_b32 {vXR2}, 64, {vXR0}"); a(f"v_xor_b32 {vXR3}, 0x60, {vXR0}")
        c1[1]()
        a(f"v_lshrrev_b32 {V5}, 1, {V2}"); a(f"v_lshlrev_b32 {V5}, 6, {V5}"); a(f"v_lshl_add_u32 {V5}, {V4}, 7, {V5}"); a(f"v_add_u32 {V5}, {V5}, {V3}")
        a(f"s_lshl_b32 {T0}, {sBB}, 6"); a(f"v_xor_b32 {vBR}, {T0}, {V5}"); a(f"v_add_u32 {vBR}, {R}, {vBR}")
        a(f"s_lshr_b32 {T0}, {sW}, 1"); a(f"s_lshl_b32 {T0}, {T0}, 11"); a(f"v_add_u32 {vPR0}, {T0}, {V5}"); a(f"v_xor_b32 {vPR1}, 64, {vPR0}")
        a(f"v_add_u32 {vPM0}, 0x10000, {vPR0}"); a(f"v_add_u32 {vPM1}, 0x10000, {vPR1}"); a(f"v_add_u32 {vPO0}, {R}, {vPR0}"); a(f"v_add_u32 {vPO1}, {R}, {vPR1}")
        a(f"v_mul_u32_u24 {V5}, {512-32}, {V6}"); a(f"v_add_u32 {V5}, {V5}, {V3}"); a(f"v_lshl_add_u32 {V5}, {V4}, 5, {V5}")
        a(f"s_lshl_b32 {T0}, {sBB}, 12"); a(f"s_add_u32 {T0}, {T0}, {R + 57344}"); a(f"v_add_u32 {MWP}, {T0}, {V5}")
        a(f"s_lshr_b32 {T0}, s2, 3"); a(f"s_and_b32 {T0}, {T0}, 3")
        ua, ub, uc = o.get('urot', (1, 2, 0))
        a(f"s_mul_i32 {T1}, {T0}, {ub}"); a(f"s_mul_i32 {T2}, {sHG}, {ua}"); a(f"s_add_u32 {T1}, {T1}, {T2}"); a(f"s_mul_i32 {T2}, {sC}, {uc}")
        a(f"s_add_u32 {T1}, {T1}, {T2}"); a(f"s_and_b32 {sU0}, {T1}, 7")
        a(f"s_mul_i32 {T2}, {T1}, 86"); a(f"s_lshr_b32 {T2}, {T2}, 8"); a(f"s_mul_i32 {T2}, {T2}, 3"); a(f"s_sub_u32 {sU1}, {T1}, {T2}")
        a(f"s_lshl_b32 {sC32}, {sC}, 5")
        a(f"s_mov_b32 {sL2E}, 0x3fb8aa3b"); a("s_mov_b32 s0, 0x3fb8aa3b"); a("s_mov_b32 s1, 0x3fb8aa3b")
        c1[2]()
        a(f"s_lshl_b32 {T0}, {sRB}, 2"); a(f"s_lshl_b32 {T1}, {sType}, 1"); a(f"s_add_u32 {T0}, {T0}, {T1}"); a(f"s_and_b32 {T1}, {sW}, 1"); a(f"s_add_u32 {T0}, {T0}, {T1}")
        a(f"s_lshr_b32 {T1}, {sW}, 1")
        a(f"v_lshrrev_b32 {V3}, 3, {vL}"); a(f"v_cmp_eq_u32 vcc, 3, {V3}")
        a(f"s_and_b32 {T2}, {T0}, 3"); a(f"s_add_u32 {T2}, {T2}, 9"); a(f"s_lshl_b32 {T2}, {T2}, 7"); a(f"v_add_u32 {V3}, {T2}, {M16}"); a(f"v_cndmask_b32 {V3}, {M16}, {V3}, vcc")
        a(f"s_lshl_b32 {T2}, {T0}, 11"); a(f"s_lshl_b32 {T3}, {T1}, 17"); a(f"s_add_u32 {T2}, {T2}, {T3}"); a(f"v_add_u32 {vHL}, {T2}, {V3}")
        a(f"s_add_u32 {T2}, {sTG}, 9"); a(f"s_lshl_b32 {T2}, {T2}, 7"); a(f"v_add_u32 {V3}, {T2}, {M16}"); a(f"v_cndmask_b32 {vHS}, {M16}, {V3}, vcc")
        a(f"s_lshl_b32 {T2}, {T0}, 7"); a(f"s_add_u32 {T2}, {T2}, {G_OFF}")
        a(f"v_lshlrev_b32 {V3}, 2, {V7}"); a(f"v_add_u32 {vG}, {T2}, {V3}")
        a(f"s_lshl_b32 {T0}, {T0}, 1"); a(f"s_lshr_b32 {T1}, {T1}, 1"); a(f"s_add_u32 {T0}, {T0}, {T1}"); a(f"s_lshl_b32 {T0}, {T0}, 6"); a(f"s_add_u32 {T0}, {T0}, {FH_OFF}")
        a(f"v_and_b32 {V3}, 15, {vL}"); a(f"v_lshlrev_b32 {V3}, 2, {V3}"); a(f"v_lshl_add_u32 {V3}, {V6}, 13, {V3}"); a(f"v_add_u32 {vFL}, {T0}, {V3}")
        a(f"s_lshl_b32 {T0}, {sRB}, 2"); a(f"s_add_u32 {T0}, {T0}, {sTG}"); a(f"s_lshl_b32 {T0}, {T0}, 11"); a(f"s_lshl_b32 {T1}, {sBB}, 18"); a(f"s_add_u32 {T0}, {T0}, {T1}")
        a(f"v_add_u32 {vHS}, {T0}, {vHS}")
        c1[3]()
        def census():
            a(f"s_getreg_b32 {sXCC}, hwreg(HW_REG_XCC_ID, 0, 4)")
            a(f"s_mul_i32 {T2}, {sXCC}, {sXCC}"); a(f"s_lshl_b32 {T2}, {T2}, 16"); a(f"s_lshl_b32 {T3}, {sXCC}, 8"); a(f"s_add_u32 {T2}, {T2}, {T3}"); a(f"s_add_u32 {T2}, {T2}, 1")
            a(f"s_lshl_b32 {T0}, {sC}, 5"); a(f"s_cmp_eq_u32 {sW}, 0"); a(f"s_cselect_b32 {T0}, {T0}, 0x1000")
            a(f"v_mov_b32 {MAT}, {T2}")
            a("s_mov_b64 exec, 1")
            a.vmem(f"buffer_atomic_add {MAT}, off, {SDBG}, {T0}", "misc")
            a("s_mov_b64 exec, -1")
        def m_wphi():
            L1 = a.label("wp"); L2 = a.label("wpd")
            a(f"s_lshl_b32 {T0}, {sHP}, 11"); a(f"s_lshl_b32 {T1}, {sBB}, 10"); a(f"s_add_u32 {T0}, {T0}, {T1}")
            a(f"s_add_u32 m0, {sW1k}, {R + 57344}")
            a(f"s_cmp_eq_u32 {sTG}, 0"); a(f"s_cbranch_scc0 {L1}")
            a.vmem(f"buffer_load_dwordx4 {M16}, {STMP}, {T0} offen lds", "misc")
            a(f"s_branch {L2}"); a(f"{L1}:")
            a(f"buffer_load_dword {MJ}, off, {STMP}, {T0}")
            a(f"{L2}:")
        def m_e():
            a(f"s_mov_b32 {T0}, {E_OFF}")
            a.vmem(f"buffer_load_dword {ME}, off, {SWS}, {T0} sc1", "misc")
        def m_code():
            a("s_getpc_b64 s[90:91]"); a("L_pc:")
            a(f"s_lshr_b32 {T0}, s2, 3"); a(f"s_lshl_b32 {T0}, {T0}, 3"); a(f"s_add_u32 {T0}, {T0}, {sW}"); a(f"s_lshl_b32 {T0}, {T0}, 7")
            a(f"s_min_u32 {T0}, {T0}, L_end-L_pc-4"); a(f"v_mov_b32 {MAT}, {T0}")
            a.vmem(f"global_load_dword {MJ}, {MAT}, s[90:91]", "misc")
        m_fl = lambda: a.vmem(f"buffer_load_dword {MJ}, {vFL}, {SWS}, 0 offen sc1", "misc")
        sk = o.get('skip', '')
        if 'c' not in sk: m_code()
        if 'a' not in sk: census()
        else: a(f"s_getreg_b32 {sXCC}, hwreg(HW_REG_XCC_ID, 0, 4)")
        self.misc = [m_e, m_wphi] + ([m_fl] if 'f' not in sk else [])
        self.stamp(1)
    def aslot(self):
        self.slot(2 if len(self.pend) > 4 else 1)
    def passA(self):
        a = self.a
        xr = [vXR0, vXR1, vXR2, vXR3]; buf = [FR, FR + 8, FR + 16, PHI]
        def reads(c, st):
            s = c % 3; b = buf[st]
            a.ds(f"ds_read_b128 {ar(16*c+4*st,4)}, {xr[st]} offset:{XS(s)}", f"r{st}")
            for u, v in ((0, vAR0), (1, vAR1)):
                for e in range(2):
                    a.ds(f"ds_read_b64_tr_b16 {vr(b+4*u+2*e,2)}, {v} offset:{s*16384 + st*4096 + e*1024}", f"r{st}")
        def mm(c, st):
            for u, acc in ((0, ACC0), (1, ACC1)):
                cc = "0" if (c == 0 and st == 0) else vr(acc, 16)
                a(f"v_mfma_f32_32x32x16_bf16 {vr(acc,16)}, {vr(buf[st]+4*u,4)}, {ar(16*c+4*st,4)}, {cc}")
        def landed(tag, n):
            assert a.vm.q.count(tag) == n, (tag, a.vm.q)
            a.wait(vm=tag)
        def m1(c, st, u):
            acc = (ACC0, ACC1)[u]
            cc = "0" if (c == 0 and st == 0) else vr(acc, 16)
            a(f"v_mfma_f32_32x32x16_bf16 {vr(acc,16)}, {vr(buf[st]+4*u,4)}, {ar(16*c+4*st,4)}, {cc}")
        def half(c, st, rd, nslot):
            pat = self.o.get('apat', 'MRMRVMVMV')
            mf = [(st, 0), (st, 1), (st+1, 0), (st+1, 1)]; rd = list(rd); left = nslot; nv = pat.count('V')
            for ch in pat:
                if ch == 'M': m1(c, *mf.pop(0))
                elif ch == 'R':
                    if rd: reads(*rd.pop(0))
                else:
                    n = -(-left // nv); self.slot(n); left -= n; nv -= 1
        self.push(*self.dmaA(2)); self.slot(2)
        be = self.o.get('bearly', 0)
        self.push(*(self.misc + (self.dmaB(0) if be else [])))
        landed("c0", 4); a("s_barrier")
        self.stamp(2)
        reads(0, 0); reads(0, 1)
        self.slot(2)
        for c in range(8):
            a.wait(lg="r1")
            half(c, 0, [(c, 2), (c, 3)], len(self.pend))
            if c == 4:
                a.ds(f"ds_read_b64_tr_b16 {vr(WP0,2)}, {MWP}", "r3"); a.ds(f"ds_read_b64_tr_b16 {vr(WP0+2,2)}, {MWP} offset:128", "r3")
                a(f"v_readfirstlane_b32 {sE}, {ME}")
                a(f"v_and_b32 {V0}, 16, {vL}"); a(f"v_cmp_eq_u32 vcc, 0, {V0}")
                a(f"s_add_u32 {sE}, {sE}, 1"); a(f"s_mul_i32 {sTAG}, {sE}, 0x9E3779B1"); a(f"s_add_u32 {sTAG}, {sTAG}, 0x7F4A7C15")
            a.wait(lg="r3")
            if c < 7: landed(f"c{c+1}", 4)
            elif be: a.wait(vm="B0")
            a("s_barrier")
            self.stamp(f"c{c+1}")
            if c + 3 <= 7: self.push(*self.dmaA(c + 3))
            if be:
                if c <= 6: self.push(*self.dmaB(c + 1))
                if c >= 5: self.push(*self.dmaW2(c - 5))
            elif c in (5, 6): self.push(*sum((self.dmaB(ci) for ci in range(4*(c-5), 4*(c-5)+4)), []))
            half(c, 2, [(c + 1, 0), (c + 1, 1)] if c < 7 else [], (len(self.pend) + 1)//2 if c < 7 else len(self.pend))
            if c == 4:
                for i in range(4):
                    a(f"v_cndmask_b32_e64 v{WP1+i}, v{WP0+i}, 0, vcc")
                    a(f"v_cndmask_b32 v{WP0+i}, 0, v{WP0+i}, vcc")
        self.stamp(3)
    def passB(self, half, fill, per, every=3):
        a = self.a
        NB = 4; D = 3
        def reads(st):
            b = FR + 4*(st % NB)
            for e in range(2):
                a.ds(f"ds_read_b64_tr_b16 {vr(b+2*e,2)}, {vBR} offset:{st*2048 + e*512}", f"b{st}")
        def emit(n):
            for _ in range(n):
                if fill:
                    x = fill.pop(0)
                    a(x) if isinstance(x, str) else x()
        lo, hi = 16*half, 16*half + 16
        for st in range(lo, lo + D): reads(st)
        for st in range(lo, hi):
            emit(per)
            a.wait(lg=f"b{st}")
            cc = "0" if st == 0 else vr(ACCB, 16)
            a(f"v_mfma_f32_32x32x16_bf16 {vr(ACCB,16)}, {vr(FR+4*(st%NB),4)}, {ar(4*st,4)}, {cc}")
            if st + D < hi: reads(st + D)
            if st % every == every - 1: self.slot()
        emit(len(fill))
    def h_pack(self, acc, dst):
        L = []
        for i in range(8):
            L += [f"v_max_f32 v{acc+2*i}, 0, v{acc+2*i}", f"v_max_f32 v{acc+2*i+1}, 0, v{acc+2*i+1}", f"v_cvt_pk_bf16_f32 v{dst+i}, v{acc+2*i}, v{acc+2*i+1}"]
        return L
    def softmax(self, acc, pq, E, kf, sink, packed, mid=None):
        L = []; a = L.append
        for i in range(8): a(f"v_cvt_pk_bf16_f32 v{kf+i}, v{acc+2*i}, v{acc+2*i+1}")
        a(f"v_mfma_f32_32x32x16_bf16 {vr(pq,16)}, {vr(WP0,4)}, {vr(kf,4)}, 0")
        a(f"v_mfma_f32_32x32x16_bf16 {vr(pq,16)}, {vr(WP1,4)}, {vr(kf+4,4)}, {vr(pq,16)}")
        hook = lambda k: a(lambda: (self.stamp(f"sm{k}"), mid(k) if mid else None))
        hook(0)
        S = ((kf, kf+2), (kf+4, kf+6))
        for k in range(4):
            for hd in range(2):
                p = pq + 8*hd; mp, mn = S[hd]
                if k == 0: a(f"v_max3_f32 v{mp}, v{p}, v{p+1}, v{p+2}"); a(f"v_max3_f32 v{mn}, -v{p}, -v{p+1}, -v{p+2}")
                elif k < 3: a(f"v_max3_f32 v{mp}, v{mp}, v{p+1+2*k}, v{p+2+2*k}"); a(f"v_max3_f32 v{mn}, v{mn}, -v{p+1+2*k}, -v{p+2+2*k}")
                else: a(f"v_max_f32 v{mp}, v{mp}, v{p+7}"); a(f"v_max_f32_e64 v{mn}, v{mn}, -v{p+7}")
        def both(f):
            for hd in range(2): f(*S[hd])
        both(lambda x, y: a(f"v_permlane32_swap_b32 v{x}, v{y}"))
        both(lambda x, y: a(f"v_max_f32 v{x}, v{x}, v{y}"))
        both(lambda x, y: a(f"v_mul_f32 v{x}, {sL2E}, v{x}"))
        both(lambda x, y: a(f"v_mov_b32 v{y}, v{x}"))
        both(lambda x, y: a(f"v_permlane32_swap_b32 v{x}, v{y}"))
        for hd in range(2):
            p = pq + 8*hd; e = E[hd]; mp, mn = S[hd]
            if packed:
                for i in range(0, 8, 2):
                    a(f"v_pk_fma_f32 {vr(e+i,2)}, {vr(p+i,2)}, {sL2P}, {vr(mp,2)} op_sel_hi:[1,1,0] neg_lo:[0,0,1] neg_hi:[0,0,1]")
                    a(f"v_pk_fma_f32 {vr(e+8+i,2)}, {vr(p+i,2)}, {sL2P}, {vr(mn,2)} op_sel_hi:[1,1,0] neg_lo:[1,0,1] neg_hi:[1,0,1]")
            else:
                for i in range(8):
                    a(f"v_fma_f32 v{e+i}, v{p+i}, {sL2E}, -v{mp}"); a(f"v_fma_f32 v{e+8+i}, -v{p+i}, {sL2E}, -v{mn}")
        a(self.slot)
        for hd in range(2):
            for i in range(16): a(f"v_exp_f32 v{E[hd]+i}, v{E[hd]+i}")
            a(self.slot)
        hook(1)
        for k in range(3):
            for hd in range(2):
                for sg in range(2):
                    b = E[hd] + 8*sg; s = S[hd][sg]
                    x = b if k == 0 else s
                    if packed: a(f"v_pk_add_f32 {vr(s,2)}, {vr(x,2)}, {vr(b+2+2*k,2)}")
                    else: a(f"v_add_f32 v{s}, v{x}, v{b+2+2*k}"); a(f"v_add_f32 v{s+1}, v{x+1}, v{b+3+2*k}")
        both(lambda x, y: (a(f"v_add_f32 v{x}, v{x}, v{x+1}"), a(f"v_add_f32 v{y}, v{y}, v{y+1}")))
        both(lambda x, y: a(f"v_permlane32_swap_b32 v{x}, v{y}"))
        both(lambda x, y: a(f"v_add_f32 v{x}, v{x}, v{y}"))
        both(lambda x, y: a(f"v_rcp_f32 v{x}, v{x}"))
        both(lambda x, y: a(f"v_mov_b32 v{y}, v{x}"))
        both(lambda x, y: a(f"v_permlane32_swap_b32 v{x}, v{y}"))
        a(self.slot)
        for hd in range(2):
            for sg in range(2):
                b = E[hd] + 8*sg
                if packed:
                    for i in range(0, 8, 2): a(f"v_pk_mul_f32 {vr(b+i,2)}, {vr(b+i,2)}, {vr(S[hd][sg],2)} op_sel_hi:[1,0]")
                else:
                    for i in range(8): a(f"v_mul_f32 v{b+i}, v{S[hd][sg]}, v{b+i}")
                L += sink(hd, sg, b)
                a(self.slot)
        hook(2)
        return L
    def run(self, L):
        for x in L: self.a(x) if isinstance(x, str) else x()
    def kv_epilogue(self):
        a = self.a; o = self.o
        a(f"v_and_b32 {V4}, 31, {vL}"); a(f"v_lshrrev_b32 {V5}, 5, {vL}"); a(f"v_lshlrev_b32 {V5}, 4, {V5}"); a(f"v_lshl_add_u32 {V4}, {V4}, 5, {V5}")
        a(f"s_lshl_b32 {T0}, {sTG}, 10"); a(f"s_lshl_b32 {T1}, {sBB}, 13"); a(f"s_add_u32 {T2}, {T0}, {T1}"); a(f"s_add_u32 {T3}, {T2}, {T1}")
        a(f"v_add_u32 {V5}, {T2}, {V4}"); a(f"v_add_u32 {V4}, {T3}, {V4}")
        def sink(hd, sg, b):
            d = WP0 + 4*sg
            return [f"v_cvt_pk_bf16_f32 v{d+i}, v{b+2*i}, v{b+2*i+1}" for i in range(4)] + \
                   [lambda: a.ds(f"ds_write_b128 {V4}, {vr(d,4)} offset:{(2*hd+sg)*4096}", "kw")]
        be = o.get('bearly', 0)
        L = self.softmax(ACC0, ACC0, (ACC1, PHI), FR + 16, sink, 0 if be else 1)
        vf = PHI
        Vv = [f"v_cvt_pk_bf16_f32 v{vf+i}, v{ACC1+2*i}, v{ACC1+2*i+1}" for i in range(8)]
        Vv += [(lambda hd=hd: a.ds(f"ds_write_b128 {V5}, {vr(vf+4*hd,4)} offset:{32768 + hd*4096}", "kw")) for hd in range(2)]
        L = L[:10] + Vv + L[10:]
        self.push(lambda: self.touch(16*UNIT, sHG, V6))
        if be: self.passB(0, L, o.get('kper', 12), 100)
        else:
            self.push(*(self.dmaW2(0) + self.dmaW2(1) + self.dmaW2(2))[:o.get('kdma', 6)])
            self.run(L)
        self.flush()
        a.wait(lg="kw"); a.wait(vm="B1" if be else "B0")
        a("s_barrier")
        self.stamp(4)
        a(f"s_lshl_b32 {T0}, {sW}, 12"); a(f"s_lshr_b32 {T1}, {sW}, 1"); a(f"s_lshl_b32 {T1}, {T1}, 12"); a(f"s_add_u32 {T1}, {T1}, 32768")
        a(f"v_lshlrev_b32 {V0}, 3, {vL}"); a(f"v_add_u32 {V1}, {T1}, {V0}"); a(f"v_add_u32 {V0}, {T0}, {V0}")
        A, B, ONE, DK, DZ = ACC0, ACC1, PHI, PHI+4, PHI+8
        for st in range(4):
            for e in range(2): a.ds(f"ds_read_b64_tr_b16 {vr(A+4*st+2*e,2)}, {V0} offset:{st*1024+e*512}", f"k{st}")
            if st == 3: a.wait(lg="k0")
            for e in range(2): a.ds(f"ds_read_b64_tr_b16 {vr(B+4*st+2*e,2)}, {V1} offset:{st*1024+e*512}", f"k{st}")
        for i in range(4): a(f"v_mov_b32 v{ONE+i}, 0x3f803f80")
        a(f"s_lshl_b32 {T0}, {sHP}, 4"); a(f"s_add_u32 {T0}, {T0}, {sRB}"); a(f"s_lshl_b32 {T0}, {T0}, 3"); a(f"s_add_u32 {T0}, {T0}, {sW}")
        a(f"s_lshl_b32 {T1}, {T0}, 10"); a(f"s_add_u32 {T1}, {T1}, {P_OFF}"); a(f"s_lshl_b32 {T2}, {T0}, 6"); a(f"s_add_u32 {T2}, {T2}, {PZ_OFF}")
        a(f"v_lshlrev_b32 {V2}, 4, {vL}"); a(f"v_and_b32 {V3}, 15, {vL}"); a(f"v_cmp_eq_u32 vcc, 0, {V3}"); a(f"v_mov_b32 {V3}, {OOB}")
        a(f"v_cndmask_b32 {V3}, {V3}, {vL}, vcc")
        a(f"s_mov_b32 {T3}, 0x07060501"); a(f"s_mov_b32 {T4}, 0x07060502"); a(f"s_mov_b32 {T5}, 0x07060503")
        for st in range(4):
            a.wait(lg=f"k{st}")
            a(f"v_mfma_f32_16x16x32_bf16 {vr(DK,4)}, {vr(A+4*st,4)}, {vr(B+4*st,4)}, {'0' if st == 0 else vr(DK,4)}")
            a(f"v_mfma_f32_16x16x32_bf16 {vr(DZ,4)}, {vr(A+4*st,4)}, {vr(ONE,4)}, {'0' if st == 0 else vr(DZ,4)}")
        for D in (DK, DZ):
            a(f"v_perm_b32 v{D}, v{D}, v{D+3}, {T3}"); a(f"v_perm_b32 v{D+1}, v{D+1}, v{D+3}, {T4}"); a(f"v_perm_b32 v{D+2}, v{D+2}, v{D+3}, {T5}")
            a(f"v_mov_b32 v{D+3}, {sTAG}")
        a.vmem(f"buffer_load_dword {V7}, off, {SDBG}, {sC32} sc1", "mode")
        a.vmem(f"buffer_store_dwordx4 {vr(DK,4)}, {V2}, {SWS}, {T1} offen sc1", "part")
        a.vmem(f"buffer_store_dwordx4 {vr(DZ,4)}, {V3}, {SWS}, {T2} offen sc1", "part")
        self.ack_store()
        self.stamp(5)
    def reducer(self, after_first, tm=None):
        a = self.a
        a(f"s_lshl_b32 {T0}, {sRB}, 1"); a(f"s_add_u32 {T0}, {T0}, {sHG}"); a(f"s_sub_u32 {T0}, {T0}, 6")
        a(f"s_lshr_b32 {T1}, {T0}, 2"); a(f"s_and_b32 {T0}, {T0}, 3"); a(f"s_lshl_b32 {T0}, {T0}, 1"); a(f"s_add_u32 {T0}, {T0}, {sBB}")
        a(f"s_lshl_b32 {T2}, {T1}, 7"); a(f"s_add_u32 {T2}, {T2}, {T0}")
        a(f"s_lshl_b32 {T3}, {T2}, 10"); a(f"s_lshl_b32 {T4}, {sTG}, 8"); a(f"s_add_u32 {T3}, {T3}, {T4}"); a(f"s_add_u32 {T3}, {T3}, {P_OFF}")
        a(f"v_lshrrev_b32 {V0}, 3, {vL}"); a(f"v_and_b32 {V1}, 7, {vL}"); a(f"v_lshlrev_b32 {V1}, 4, {V1}"); a(f"v_lshl_add_u32 {V2}, {V0}, 13, {V1}"); a(f"v_add_u32 {V2}, {T3}, {V2}")
        a(f"s_lshl_b32 {T3}, {T2}, 6"); a(f"s_add_u32 {T3}, {T3}, {PZ_OFF}")
        a(f"v_lshrrev_b32 {V0}, 2, {vL}"); a(f"v_and_b32 {V3}, 3, {vL}"); a(f"v_lshlrev_b32 {V3}, 4, {V3}"); a(f"v_lshl_add_u32 {V3}, {V0}, 9, {V3}"); a(f"v_add_u32 {V3}, {T3}, {V3}")
        a(f"s_lshl_b32 {T2}, {T1}, 3"); a(f"s_add_u32 {T2}, {T2}, {T0}")
        a(f"s_lshl_b32 {T3}, {T2}, 10"); a(f"s_add_u32 {T3}, {T3}, {T4}"); a(f"s_add_u32 {T3}, {T3}, {F_OFF}")
        a(f"v_mov_b32 {V0}, {OOB}"); a(f"v_cmp_gt_u32 vcc, 8, {vL}"); a(f"v_add_u32 {V4}, {T3}, {V1}"); a(f"v_cndmask_b32 {V4}, {V0}, {V4}, vcc")
        a(f"s_lshl_b32 {T3}, {T2}, 6"); a(f"s_add_u32 {T3}, {T3}, {FZ_OFF}"); a(f"s_cmp_eq_u32 {sTG}, 0"); a(f"s_cselect_b32 {T3}, {T3}, {OOB - 0x100}")
        a(f"v_cmp_gt_u32 vcc, 4, {vL}"); a(f"v_add_u32 {V5}, {T3}, {V1}"); a(f"v_cndmask_b32 {V5}, {V0}, {V5}, vcc")
        B = ACC0
        def loads(track):
            for i in range(4):
                s = f"buffer_load_dwordx4 {vr(B+4*i,4)}, {V2}, {SWS}, {'0' if i < 2 else T0} offen offset:{(i&1)*128} sc1"
                a.vmem(s, "h1") if track else a(s)
            s = f"buffer_load_dwordx4 {vr(B+16,4)}, {V3}, {SWS}, 0 offen sc1"
            a.vmem(s, "h1") if track else a(s)
        a(f"s_mov_b32 {T0}, 0x10000")
        L = a.label("h1"); Ld = a.label("h1d")
        loads(True)
        a.wait(vm="h1")
        after_first()
        a(f"s_mov_b32 {sSPIN}, {SPIN}")
        a(f"{L}:")
        a(f"v_cmp_ne_u32 vcc, {sTAG}, v{B+3}")
        for i in range(1, 5):
            a(f"v_cmp_ne_u32 {sM}, {sTAG}, v{B+4*i+3}"); a("s_nop 1"); a(f"s_or_b64 vcc, vcc, {sM}")
        a(f"s_cbranch_vccz {Ld}")
        a(f"s_sub_u32 {sSPIN}, {sSPIN}, 1"); a(f"s_cbranch_scc1 {Ld}")
        loads(False); a("s_waitcnt vmcnt(0)"); a(f"s_branch {L}")
        a(f"{Ld}:")
        self.stamp(7)
        a(f"s_mov_b32 {T1}, 0x04000c0c"); a(f"s_mov_b32 {T2}, 0x0706000c")
        for i in range(5):
            b = B + 4*i
            a(f"v_perm_b32 v{b+3}, v{b+2}, v{b+1}, {T1}"); a(f"v_perm_b32 v{b+3}, v{b+3}, v{b}, {T2}")
        for i in range(8): a(f"v_add_f32 v{B+i}, v{B+i}, v{B+8+i}")
        Z = B + 16; Tm = ACC1 + 8 if tm is None else tm
        for i in range(4): a(f"v_add_f32_dpp v{Z+i}, v{Z+i}, v{Z+i} row_ror:4 row_mask:0xf bank_mask:0xf")
        vals = list(range(B, B+8)) + list(range(Z, Z+4))
        for v in vals: a(f"v_add_f32_dpp v{v}, v{v}, v{v} row_ror:8 row_mask:0xf bank_mask:0xf")
        for op in ("v_permlane16_swap_b32", "v_permlane32_swap_b32"):
            for k, v in enumerate(vals): a(f"v_mov_b32 v{Tm+k}, v{v}")
            for k, v in enumerate(vals): a(f"{op} v{v}, v{Tm+k}")
            for k, v in enumerate(vals): a(f"v_add_f32 v{v}, v{v}, v{Tm+k}")
        for k, b in enumerate((B, B+4, Z)):
            d = Tm + 4*k
            a(f"v_cvt_pk_bf16_f32 v{d}, v{b}, v{b+1}"); a(f"v_cvt_pk_bf16_f32 v{d+1}, v{b+2}, v{b+3}")
            a(f"v_mov_b32 v{d+2}, {sTAG}"); a(f"v_mov_b32 v{d+3}, {sTAG}")
        return lambda: (a.vmem(f"buffer_store_dwordx4 {vr(Tm,4)}, {V4}, {SWS}, 0 offen sc1", "fin"),
                        a.vmem(f"buffer_store_dwordx4 {vr(Tm+4,4)}, {V4}, {SWS}, 0 offen offset:128 sc1", "fin"),
                        a.vmem(f"buffer_store_dwordx4 {vr(Tm+8,4)}, {V5}, {SWS}, 0 offen sc1", "fin"))
    def o_stage_fetch(self, part=3):
        a = self.a
        B = ACCA
        def loads(track):
            for s in (f"buffer_load_dwordx4 {vr(B,4)}, {V2}, {SWS}, 0 offen sc1", f"buffer_load_dwordx4 {vr(B+4,4)}, {V3}, {SWS}, 0 offen sc1"):
                a.vmem(s, "h2") if track else a(s)
        if part & 1:
            a(f"s_lshl_b32 {T0}, {sHP}, 3"); a(f"s_add_u32 {T0}, {T0}, {sW}")
            a(f"s_lshl_b32 {T1}, {T0}, 10"); a(f"s_add_u32 {T1}, {T1}, {F_OFF}"); a(f"s_lshl_b32 {T2}, {T0}, 6"); a(f"s_add_u32 {T2}, {T2}, {FZ_OFF}")
            a(f"v_lshlrev_b32 {V2}, 4, {vL}"); a(f"v_and_b32 {V3}, 0x30, {V2}"); a(f"v_add_u32 {V2}, {T1}, {V2}"); a(f"v_add_u32 {V3}, {T2}, {V3}")
            loads(True)
        if not part & 2: return
        L = a.label("h2"); Ld = a.label("h2d")
        a.wait(vm="h2")
        a(f"s_mov_b32 {sSPIN}, {SPIN}")
        a(f"{L}:")
        a(f"v_cmp_ne_u32 vcc, {sTAG}, v{B+2}"); a(f"v_cmp_ne_u32 {sM}, {sTAG}, v{B+6}"); a("s_nop 1"); a(f"s_or_b64 vcc, vcc, {sM}")
        a(f"s_cbranch_vccz {Ld}")
        a(f"s_sub_u32 {sSPIN}, {sSPIN}, 1"); a(f"s_cbranch_scc1 {Ld}")
        loads(False); a("s_waitcnt vmcnt(0)"); a(f"s_branch {L}")
        a(f"{Ld}:")
        self.stamp(9)
        a(f"s_add_u32 {T0}, {sW1k}, {KVT}")
        a(f"v_and_b32 {V2}, 15, {vL}"); a(f"v_lshrrev_b32 {V3}, 4, {vL}"); a(f"v_lshlrev_b32 {V3}, 3, {V3}"); a(f"v_lshl_add_u32 {V2}, {V2}, 5, {V3}"); a(f"v_add_u32 {V2}, {T0}, {V2}")
        a(f"v_lshlrev_b32 {V3}, 3, {vL}"); a(f"v_add_u32 {V3}, {T0}, {V3}")
        a.ds(f"ds_write_b64 {V2}, {vr(B,2)}", "kt")
        a("s_mov_b64 exec, 15")
        a.ds(f"ds_write_b64 {V3}, {vr(B+4,2)} offset:512", "kt")
        a("s_mov_b64 exec, -1")
        a.wait(lg="kt")
    def o_stage_compute(self):
        a = self.a
        a(f"v_and_b32 {V0}, 3, {vL}"); a(f"v_bfe_u32 {V1}, {vL}, 2, 1"); a(f"v_bfe_u32 {V2}, {vL}, 3, 1")
        a(f"v_lshl_add_u32 {V0}, {V1}, 3, {V0}"); a(f"v_lshl_add_u32 {V0}, {V2}, 2, {V0}")
        a(f"v_and_b32 {V1}, 16, {vL}"); a(f"v_cmp_eq_u32 vcc, 0, {V1}"); a(f"v_lshrrev_b32 {V2}, 5, {vL}"); a(f"v_lshlrev_b32 {V2}, 4, {V2}")
        a(f"v_cndmask_b32 {V0}, {V1}, {V0}, vcc"); a(f"v_lshl_add_u32 {V0}, {V0}, 5, {V2}")
        a(f"s_lshl_b32 {T0}, {sBB}, 12"); a(f"s_add_u32 {T0}, {T0}, {KVT}"); a(f"v_add_u32 {V0}, {T0}, {V0}")
        A, D, PK = ACCA, ACCA+16, FR2
        for i in range(4): a.ds(f"ds_read_b128 {vr(A+4*i,4)}, {V0} offset:{i*1024}", f"o{i>>1}")
        a(f"s_lshl_b32 {T0}, {sHP}, 19"); a(f"s_add_u32 {T0}, {T0}, {O_OFF}"); a(f"s_add_u32 {T1}, {T0}, {STEP}")
        for hd in range(2):
            a.wait(lg=f"o{hd}")
            a(f"v_mfma_f32_32x32x16_bf16 {vr(D,16)}, {vr(A+8*hd,4)}, {vr(PHI+8*hd,4)}, 0")
            a(f"v_mfma_f32_32x32x16_bf16 {vr(D,16)}, {vr(A+8*hd+4,4)}, {vr(PHI+8*hd+4,4)}, {vr(D,16)}")
            a(f"v_add_f32 {V1}, 0x358637bd, v{D+8}"); a(f"v_rcp_f32 {V1}, {V1}")
            for i in range(8): a(f"v_mul_f32 v{D+i}, {V1}, v{D+i}")
            for i in range(4): a(f"v_cvt_pk_bf16_f32 v{PK+4*hd+i}, v{D+2*i}, v{D+2*i+1}")
        self.store_mode(lambda f: (a(f"buffer_store_dwordx4 {vr(PK,4)}, {vHS}, {SWS}, {T0} offen{f}"),
                                   a(f"buffer_store_dwordx4 {vr(PK+4,4)}, {vHS}, {SWS}, {T1} offen{f}")), "ost", 2)
    def ffn(self, hooks, la, extra=[]):
        a = self.a; nr = self.nring; o = self.o
        g2i, g2c = o.get('g2i', 3), o.get('g2c', 5)
        for d in range(11):
            a.wait(vm=f"w2_{d}")
            a.wait(vm=f"h{d}")
            a("s_barrier")
            self.stamp(f"f{d}")
            if d == g2i: a.vmem(f"buffer_load_dword {V0}, {vFL}, {SWS}, 0 offen sc1", "pf")
            if d >= 1 and d + 2 <= 7: self.push(*self.dmaW2(d + 2))
            self.slot()
            base = self.ring(d)
            p0, p1, off = (vPR0, vPR1, base) if base < 65536 else (vPM0, vPM1, base - 65536)
            for u in range(2):
                for cb, v in ((0, p0), (1, p1)):
                    for e in range(2):
                        a.ds(f"ds_read_b64_tr_b16 {vr(FR2+8*u+4*cb+2*e,2)}, {v} offset:{off + u*8192 + e*512}", f"f{u}")
            if d + la <= 7: self.push(*self.ldH(d + la))
            if d == g2c:
                self.poll_flags(0x1555, "pf")
                self.push(lambda: a.vmem(f"buffer_load_dword {V6}, {vG}, {SWS}, 0 offen sc1", "g"))
            if g2c <= d < g2c + 3: self.push(*self.ldH(8 + d - g2c))
            n = -(-len(extra) // max(1, 7 - d)); n += n & 1
            self.push(*extra[:n]); extra = extra[n:]
            self.slot()
            for u in range(2):
                a.wait(lg=f"f{u}")
                for cb in range(2):
                    acc = ACCF + 16*cb
                    a(f"v_mfma_f32_32x32x16_bf16 {vr(acc,16)}, {vr(FR2+8*u+4*cb,4)}, {ar(8*d+4*u,4)}, {'0' if d == 0 and u == 0 else vr(acc,16)}")
                self.slot()
            self.flush()
            if d in hooks: hooks[d]()
    def tail(self, bump=False):
        a = self.a
        a("s_barrier")
        self.stamp(10)
        a.vmem(f"buffer_load_dword {V0}, {vFL}, {SWS}, 0 offen sc1", "pf")
        W0, W1, W2_, W3, R0, R1, OA = vX0, vX1, vWA, vWB, vXR0, vXR1, vXR2
        a(f"v_and_b32 {W0}, 31, {vL}"); a(f"v_lshrrev_b32 {V1}, 5, {vL}"); a(f"v_lshlrev_b32 {V1}, 1, {V1}"); a(f"v_and_b32 {V2}, 7, {vL}")
        a(f"v_xor_b32 {V1}, {V1}, {V2}"); a(f"v_lshlrev_b32 {V1}, 4, {V1}"); a(f"v_lshl_add_u32 {W0}, {W0}, 8, {V1}")
        a(f"s_and_b32 {T4}, {sW}, 1"); a(f"s_lshl_b32 {T4}, {T4}, 15"); a(f"s_lshr_b32 {T1}, {sW}, 1"); a(f"s_lshl_b32 {T2}, {T1}, 13"); a(f"s_add_u32 {T2}, {T2}, {T4}")
        a(f"v_add_u32 {W0}, {T2}, {W0}"); a(f"v_xor_b32 {W1}, 16, {W0}"); a(f"v_xor_b32 {W2_}, 64, {W0}"); a(f"v_xor_b32 {W3}, 0x50, {W0}")
        a(f"v_lshrrev_b32 {V5}, 3, {vL}"); a(f"v_lshlrev_b32 {R0}, 1, {V2}"); a(f"v_xor_b32 {R0}, {R0}, {V5}"); a(f"v_lshlrev_b32 {R0}, 4, {R0}")
        a(f"v_lshl_add_u32 {R0}, {V5}, 8, {R0}"); a(f"s_lshl_b32 {T2}, {T1}, 11"); a(f"s_add_u32 {T2}, {T2}, {T4}"); a(f"v_add_u32 {R0}, {T2}, {R0}"); a(f"v_xor_b32 {R1}, 16, {R0}")
        a(f"s_lshl_b32 {T2}, {sRB}, 7"); a(f"s_lshl_b32 {T3}, {sType}, 6"); a(f"s_add_u32 {T2}, {T2}, {T3}"); a(f"s_lshr_b32 {T3}, {T4}, 10"); a(f"s_add_u32 {T2}, {T2}, {T3}")
        a(f"s_lshl_b32 {T3}, {T1}, 3"); a(f"s_add_u32 {T2}, {T2}, {T3}"); a(f"s_lshl_b32 {T2}, {T2}, 10"); a(f"s_lshl_b32 {T3}, {sN}, 7"); a(f"s_add_u32 {T2}, {T2}, {T3}")
        a(f"v_lshlrev_b32 {V2}, 4, {V2}"); a(f"v_lshl_add_u32 {OA}, {V5}, 10, {V2}"); a(f"v_add_u32 {OA}, {T2}, {OA}")
        a.wait(vm="g")
        a(f"v_sub_f32 {V5}, 1.0, {V6}")
        for i in range(32): a(f"v_mul_f32 v{ACCF+i}, {V5}, v{ACCF+i}")
        def rd(i):
            b = FR2 + 8*(i % 2)
            for cb, v in ((0, vPO0), (1, vPO1)):
                for e in range(2): a.ds(f"ds_read_b64_tr_b16 {vr(b+4*cb+2*e,2)}, {v} offset:{i*8192 + e*512}", f"a{i}")
        rd(0)
        self.poll_flags(0xff0000, "pf")
        self.stamp(11)
        def ld(i):
            a(f"s_mov_b32 {T0}, {O_OFF + i*UNIT}")
            a.vmem(f"buffer_load_dwordx4 {ar(88+4*i,4)}, {vHL}, {SWS}, {T0} offen sc1", f"o{i}")
        LA = 4
        for i in range(LA): ld(i)
        for i in range(8):
            if i + 1 < 8: rd(i + 1)
            if i + LA < 8: ld(i + LA)
            a.wait(vm=f"o{i}", lg=f"a{i}")
            for cb in range(2):
                acc = ACCA + 16*cb
                a(f"v_mfma_f32_32x32x16_bf16 {vr(acc,16)}, {vr(FR2+8*(i%2)+4*cb,4)}, {ar(88+4*i,4)}, {'0' if i == 0 else vr(acc,16)}")
        self.stamp(12)
        wa = {(0, 0): W0, (0, 1): W1, (1, 0): W2_, (1, 1): W3}
        for cb in range(2):
            for gp in range(2):
                for e in range(2):
                    b = 16*cb + 8*gp + 4*e
                    for i in range(4): a(f"v_fmac_f32 v{ACCF+b+i}, {V6}, v{ACCA+b+i}")
                    a.ds(f"ds_write_b128 {wa[(gp,e)]}, {vr(ACCF+b,4)} offset:{cb*128}", "rw")
        a.wait(lg="rw")
        self.stamp("rw")
        a("s_barrier")
        B = ACCA
        for k in range(4):
            a.ds(f"ds_read_b128 {vr(B+8*k,4)}, {R0} offset:{k*8192}", f"s{k}"); a.ds(f"ds_read_b128 {vr(B+8*k+4,4)}, {R1} offset:{k*8192}", f"s{k}")
        a.wait(lg="s1")
        for i in range(8): a(f"v_add_f32 v{B+i}, v{B+i}, v{B+8+i}")
        a.wait(lg="s3")
        for i in range(8): a(f"v_add_f32 v{B+16+i}, v{B+16+i}, v{B+24+i}")
        for i in range(8): a(f"v_add_f32 v{B+i}, v{B+i}, v{B+16+i}")
        for i in range(4): a(f"v_cvt_pk_bf16_f32 v{B+8+i}, v{B+2*i}, v{B+2*i+1}")
        a.vmem(f"buffer_store_dwordx4 {vr(B+8,4)}, {OA}, {SOUT}, 0 offen", "out")
        if self.o.get('dbgtime'):
            a("s_waitcnt vmcnt(0)"); a("s_not_b32 s88, s26"); a("s_memrealtime s[26:27]"); a("s_waitcnt lgkmcnt(0)")
            a("v_mov_b32 v24, s88"); a("v_mov_b32 v25, s26"); a("s_mov_b64 exec, 1")
            a(f"buffer_atomic_umax v24, off, {SDBG}, 0 offset:8"); a(f"buffer_atomic_umax v25, off, {SDBG}, 0 offset:12")
            a("s_add_u32 s88, s88, s26"); a("s_add_u32 s88, s88, 1"); a("v_mov_b32 v24, s88"); a(f"buffer_atomic_umax v24, off, {SDBG}, 0 offset:16")
        if self.o.get('stamps'):
            self.stamp(13)
            a("s_waitcnt vmcnt(0)"); self.stamp(14); a("s_waitcnt lgkmcnt(0)"); self.stamp(15)
            a("s_waitcnt lgkmcnt(0)"); a("s_memrealtime s[26:27]"); a("s_waitcnt lgkmcnt(0)"); a("v_writelane_b32 v23, s26, 63")
            a(f"s_lshl_b32 {T0}, s2, 3"); a(f"s_add_u32 {T0}, {T0}, {sW}"); a(f"s_lshl_b32 {T0}, {T0}, 8"); a(f"s_add_u32 {T0}, {T0}, {ST_OFF}")
            a(f"v_lshlrev_b32 {V0}, 2, {vL}")
            a(f"buffer_store_dword v23, {V0}, {SWS}, {T0} offen")
        a("s_endpgm")
    def bump(self):
        a = self.a
        Lx = a.label("nb"); L = a.label("bp"); Ld = a.label("bpd")
        a("s_cmp_eq_u32 s2, 224"); a(f"s_cbranch_scc0 {Lx}"); a(f"s_cmp_eq_u32 {sW}, 0"); a(f"s_cbranch_scc0 {Lx}")
        a(f"v_lshlrev_b32 {V0}, 4, {vL}"); a(f"s_mov_b32 {T0}, {ACK_OFF}"); a(f"s_mov_b32 {sSPIN}, {SPIN}")
        a(f"{L}:")
        a(f"buffer_load_dwordx4 {vr(ACCA,4)}, {V0}, {SWS}, {T0} offen sc1"); a("s_waitcnt vmcnt(0)")
        a(f"v_cmp_ne_u32 vcc, {sTAG}, v{ACCA}")
        for i in range(1, 4):
            a(f"v_cmp_ne_u32 {sM}, {sTAG}, v{ACCA+i}"); a("s_nop 1"); a(f"s_or_b64 vcc, vcc, {sM}")
        a(f"s_cbranch_vccz {Ld}")
        a(f"s_sub_u32 {sSPIN}, {sSPIN}, 1"); a(f"s_cbranch_scc0 {L}")
        a(f"{Ld}:")
        a(f"v_mov_b32 {V0}, {sE}"); a(f"s_mov_b32 {T0}, {E_OFF}"); a("s_mov_b64 exec, 1")
        a(f"buffer_store_dword {V0}, off, {SWS}, {T0}"); a("s_mov_b64 exec, -1"); a("s_waitcnt vmcnt(0)")
        a(f"{Lx}:")
    def group1(self, la, pre=None):
        self.poll_flags(0xAAAA, pre)
        self.stamp(8)
        for d in range(min(la, 8)):
            for f in self.ldH(d): f()
    def path_q(self):
        a = self.a; o = self.o
        a(f"s_lshl_b32 {T0}, {sHG}, 20")
        L = []
        for u, acc in enumerate((ACC0, ACC1)):
            pk = PHI + 8*u
            hp = self.h_pack(acc, pk)
            for kk in range(2):
                L += hp[12*kk:12*kk+12]
                L += [f"s_add_u32 {T1}, {T0}, {u*UNIT + kk*STEP}",
                      lambda pk=pk, kk=kk: a.vmem(f"buffer_store_dwordx4 {vr(pk+4*kk,4)}, {vHS}, {SH}, {T1} offen sc1", "hst")]
        L += [self.ack_store, self.get_mode_issue, lambda: self.touch(O_OFF, sHP, V6), lambda: self.stamp(4), lambda: None]
        self.flush()
        be = o.get('bearly', 0)
        rest = ([] if be else self.dmaW2(0) + self.dmaW2(1) + self.dmaW2(2)) + self.dmaW2(8) + self.dmaW2(9) + self.dmaW2(10)
        q1, q2 = o.get('qd1', 0), o.get('qd2', 4)
        if not be:
            self.run(L); L = []
            a.wait(vm="B0"); a("s_barrier")
            self.stamp("B0")
            self.push(*rest[:q1])
        else: L.append(lambda: self.push(*rest[:q1]))
        self.passB(0, L, o.get('qper', 8), 2)
        self.flush()
        a.wait(vm="B1"); a("s_barrier")
        self.stamp("B1")
        rest = rest[q1:] + self.dmaWO(0, 4)
        self.push(*rest[:q2])
        self.passB(1, [], 0, 3)
        self.flush()
        self.stamp(5)
        a("s_barrier")
        rest = rest[q2:] + self.dmaWO(4, 8); q3 = o.get('qd3', 99)
        self.push(*rest[:q3]); rest = rest[q3:]
        sink = lambda hd, sg, b: [f"v_cvt_pk_bf16_f32 v{PHI+8*hd+4*sg+i}, v{b+2*i}, v{b+2*i+1}" for i in range(4)]
        fl = o.get('qflag', 0)
        def mid(k):
            if k == fl:
                self.get_mode_wait(); self.flag_store(FH_OFF, sJ)
        self.run(self.softmax(ACCB, ACC0, (ACC1, ACCB), FR, sink, 1, mid))
        self.flush()
        self.stamp(6)
        la = o.get('la', 3)
        self.group1(la)
        s2 = o.get('s2', 10)
        hooks = {}
        if s2 < 10:
            assert s2 >= 6
            hooks[s2 - 1] = lambda: self.o_stage_fetch(1); hooks[s2] = lambda: self.o_stage_fetch(2); hooks[s2 + 1] = self.o_stage_compute
            fo = lambda: (a.wait(vm="ost"), self.flag_store(FO_OFF, sHP))
            if s2 + 2 <= 10: hooks[s2 + 2] = fo
            self.ffn(hooks, la, rest)
            if s2 + 2 > 10: fo()
        else:
            self.ffn(hooks, la, rest)
            self.o_stage_fetch(); a("s_barrier"); self.o_stage_compute()
            a.wait(vm="ost"); self.flag_store(FO_OFF, sHP)
        self.tail()
    def path_kv(self):
        a = self.a; o = self.o
        self.kv_epilogue()
        a(f"s_cmp_ge_u32 {sHG}, 6"); a("s_cbranch_scc1 L_pathR")
        sv = (a.vm.copy(), a.lg.copy()); pend = list(self.pend)
        if not o.get('bearly', 0):
            self.push(*(self.dmaW2(0) + self.dmaW2(1) + self.dmaW2(2))[o.get('kdma', 6):])
            self.passB(0, [], 0, 3)
            self.flush()
            a.wait(vm="B1"); a("s_barrier")
            self.stamp("B1")
        rest = self.dmaW2(8) + self.dmaW2(9) + self.dmaW2(10) + self.dmaWO(0, 4); k2 = o.get('kd2', 8)
        if o.get('bearly', 0): rest = self.dmaWO(0, 4) + rest[:6]; k2 = min(k2, 4)
        self.push(*rest[:k2]); rest = rest[k2:]
        self.passB(1, [], 0, 3)
        self.flush()
        self.stamp(6)
        self.get_mode_wait()
        self.run(self.h_pack(ACCB, FR))
        a(f"s_add_u32 {T0}, {sHG}, 16"); a(f"s_lshl_b32 {T0}, {T0}, 19"); a(f"s_add_u32 {T1}, {T0}, {STEP}")
        self.store_mode(lambda f: (a(f"buffer_store_dwordx4 {vr(FR,4)}, {vHS}, {SH}, {T0} offen{f}"),
                                   a(f"buffer_store_dwordx4 {vr(FR+4,4)}, {vHS}, {SH}, {T1} offen{f}")), "hst", 2)
        a.vmem(f"buffer_load_dword {V0}, {vFL}, {SWS}, 0 offen sc1", "pf")
        a("s_barrier")
        rest = rest + self.dmaWO(4, 8)
        k3 = o.get('kd3', 99)
        for f in rest[:k3]: f()
        self.stamp(7)
        la = o.get('la', 3)
        self.group1(la, "pf")
        self.ffn({0: lambda: (a.wait(vm="hst"), self.flag_store(FH_OFF, sJ))}, la, rest[k3:])
        self.tail()
        a.vm, a.lg = sv; self.pend = pend
        a("L_pathR:")
        if not o.get('bearly', 0): self.push(*(self.dmaW2(0) + self.dmaW2(1) + self.dmaW2(2))[o.get('kdma', 6):])
        self.flush()
        a.wait(vm="B1"); a("s_barrier")
        Lng = a.label("ng")
        a(f"s_cmp_eq_u32 {sHG}, 6"); a(f"s_cbranch_scc0 {Lng}")
        self.gate_wave()
        a(f"{Lng}:")
        a("s_barrier")
        rest = self.dmaW2(8) + self.dmaW2(9) + self.dmaW2(10) + self.dmaWO(0, 8)
        r1 = o.get('rd1', 0); r2 = o.get('rd2', 0)
        for f in rest[:r1]: f()
        def gflag():
            Lx = a.label("ng")
            a(f"s_cmp_eq_u32 {sHG}, 6"); a(f"s_cbranch_scc0 {Lx}")
            sv2 = a.vm.copy()
            self.get_mode_wait(); self.flag_store(FH_OFF, sJ)
            a.vm = sv2
            a(f"{Lx}:")
            a(f"s_mov_b32 {T0}, 0x10000")
        fin = self.reducer(gflag)
        a.vmem(f"buffer_load_dword {V0}, {vFL}, {SWS}, 0 offen sc1", "pf")
        fin()
        for f in rest[r1:r1+r2]: f()
        self.group1(8, "pf")
        self.ffn({6: self.bump}, 8, rest[r1+r2:])
        self.tail()
    def gate_wave(self):
        a = self.a
        a(f"v_lshrrev_b32 {V0}, 5, {vL}"); a(f"v_lshlrev_b32 {V0}, 4, {V0}"); a(f"s_add_u32 {T0}, {sW1k}, {R + 57344}"); a(f"v_add_u32 {V0}, {T0}, {V0}")
        D = 5
        def rd(st): a.ds(f"ds_read_b128 {vr(FR+4*(st%6),4)}, {V0} offset:{st*32}", f"g{st}")
        for st in range(D): rd(st)
        for st in range(32):
            if st + D < 32: rd(st + D)
            a.wait(lg=f"g{st}")
            a(f"v_mfma_f32_32x32x16_bf16 {vr(ACCB,16)}, {vr(FR+4*(st%6),4)}, {ar(4*st,4)}, {'0' if st == 0 else vr(ACCB,16)}")
            if st % 3 == 2: self.slot()
        a(f"s_lshl_b32 {T2}, {sRB}, 2"); a(f"s_add_u32 {T2}, {T2}, {sTG}"); a(f"s_lshl_b32 {T2}, {T2}, 7"); a(f"s_add_u32 {T2}, {T2}, {G_OFF}")
        a(f"v_and_b32 {V1}, 31, {vL}"); a(f"v_lshlrev_b32 {V1}, 2, {V1}")
        a(f"v_mul_f32 {V2}, {sL2E}, v{ACCB}"); a(f"v_exp_f32_e64 {V2}, -{V2}"); a(f"v_add_f32 {V2}, 1.0, {V2}"); a(f"v_rcp_f32 {V2}, {V2}")
        a(f"buffer_store_dword {V2}, {V1}, {SWS}, {T2} offen sc1")
    def body(self):
        a = self.a
        self.prologue(); self.passA()
        a(f"s_cmp_eq_u32 {sType}, 0"); a("s_cbranch_scc1 L_pathKV")
        sv = (a.vm.copy(), a.lg.copy()); pend = list(self.pend)
        self.path_q()
        a.vm, a.lg = sv; self.pend = pend
        a("L_pathKV:")
        self.path_kv()
    def build(self):
        a = self.a
        self.body()
        a("L_end:"); a("s_endpgm")
        body = pad_hazards(a.L, verbose=True)
        head = open('cdna_kernels/' + NAME + '.s.ref').read().split('; Override')[0]
        txt = head + "; stamps: " + ",".join(self.names) + "\n" + "; @launch grid=(256,1,1) block=(512,1,1) lds=163840\n"
        txt += f".amdgcn_target \"amdgcn-amd-amdhsa--gfx950\"\n.text\n.globl {NAME}_kernel\n.p2align 8\n.type {NAME}_kernel,@function\n{NAME}_kernel:\n"
        txt += "\n".join(("" if l.endswith(':') else "    ") + l for l in body) + "\n"
        txt += f""".section .rodata,"a"
.p2align 6
.amdhsa_kernel {NAME}_kernel
  .amdhsa_next_free_vgpr 256
  .amdhsa_next_free_sgpr 102
  .amdhsa_accum_offset 128
  .amdhsa_group_segment_fixed_size 0
  .amdhsa_kernarg_size 88
  .amdhsa_user_sgpr_count 2
  .amdhsa_user_sgpr_kernarg_segment_ptr 1
  .amdhsa_system_sgpr_workgroup_id_x 1
.end_amdhsa_kernel
"""
        return txt

if __name__ == '__main__':
    out = sys.argv[1]
    opt = json.loads(sys.argv[2]) if len(sys.argv) > 2 else {}
    open(out, 'w').write(Gen(opt).build())
```

```python
import sys, json
from asmlib import *
import gen as B
from gen import *

FH_OFF = 0x1140000
FO_OFF = 0x1144000
STEP = 2048; UNIT = 8192; O_OFF = 88*STEP
X_OFF = 0x1400000
W2B = 8192
KVT = 0
sOWN, sUA, sUB, sPI, sMM, sSIDE = sHG, sU0, sU1, "s14", "s15", "s16"
sTB = sType
sR1, sR2, sH1, sH2, sW2O = "s4", "s5", "s6", "s7", "s8"
vL16 = vG
ACCP = ACCA
WP0V = V3
def nib(vals):
    v = 0
    for i, x in enumerate(vals): v |= x << (4*i)
    return v
T_A   = nib([0, 0, 0, 0, 1, 1, 1, 1, 1, 0, 0, 0, 0, 1, 1, 1])
T_B   = nib([1, 1, 1, 1, 1, 1, 1, 1, 0, 0, 0, 2, 2, 0, 0, 0])
T_OWN = nib([1, 1, 1, 1, 1, 1, 1, 1, 1, 0, 0, 0, 0, 0, 0, 0])
T_K   = nib([0, 1, 2, 3, 4, 5, 6, 7, 0, 0, 1, 2, 3, 0, 0, 0])
T_UA  = nib([0, 0, 0, 0, 0, 2, 4, 6, 8, 0, 0, 0, 0, 0, 2, 4])
T_UB  = nib([0, 0, 0, 0, 0, 0, 0, 0,10, 9,10, 0, 0, 6, 7, 8])
T_N   = nib([0, 1, 2, 4, 5, 6, 7, 3, 0, 5, 6, 7, 3, 1, 2, 4])
T_C0  = nib([0, 1, 2, 3, 4, 5, 6, 7, 0, 0, 1, 2, 3, 4, 5, 6])
T_PI  = nib([0, 0, 0, 0, 0, 1, 2, 3, 4, 4, 5, 0, 0, 0, 1, 2])
M_EARLY = 0x0007001F; M_MID = 0x07001000; M_LATE = 0x30000000

class Gen2(Gen):
    def table(self, dst, tab):
        a = self.a
        a(f"s_mov_b32 s92, {tab & 0xffffffff:#x}"); a(f"s_mov_b32 s93, {tab >> 32:#x}"); a(f"s_lshr_b64 s[92:93], s[92:93], {T0}"); a(f"s_and_b32 {dst}, s92, 15")
    def dmaW2(self, grp, k):
        a = self.a; n, lo = ((6, 5), (5, 0))[grp]
        def f():
            a(f"s_add_u32 {sA0}, {sMM}, {k}")
            if grp == 0: a(f"s_add_u32 {sA0}, {sA0}, {sMM}")
            for _ in range(2 if grp == 0 else 1):
                a(f"s_cmp_ge_u32 {sA0}, {n}"); a(f"s_cselect_b32 {sA1}, {n}, 0"); a(f"s_sub_u32 {sA0}, {sA0}, {sA1}")
            a(f"s_lshl_b32 {sA1}, {sA0}, 13"); a(f"s_add_u32 {sA1}, {sA1}, {sW1k}")
            a(f"s_lshl_b32 {sA0}, {sA0}, 16"); a(f"s_add_u32 {sA0}, {sA0}, {sW2O}")
            if lo: a(f"s_add_u32 {sA0}, {sA0}, {lo*65536}")
            self.dma(vW2, SW2, sA0, f"s_add_u32 m0, {sA1}, {W2B + lo*8192}", "w2")
        return f
    def w2x(self): return [self.dmaW2(0, k) for k in range(6)]
    def w2y(self): return [self.dmaW2(1, k) for k in range(5)]
    def dmaWO(self):
        a = self.a
        def mk(i):
            def f():
                a(f"s_lshl_b32 {sA0}, {sMM}, 1"); a(f"s_add_u32 {sA0}, {sA0}, {i}"); a(f"s_and_b32 {sA0}, {sA0}, 7")
                a(f"s_lshl_b32 {sA1}, {sA0}, 13"); a(f"s_add_u32 {sA1}, {sA1}, {sW1k}"); a(f"s_lshl_b32 {sA0}, {sA0}, 16")
                self.dma(vW2, SWO, sA0, f"s_add_u32 m0, {sA1}, {R}", "wo")
            return f
        return [mk(i) for i in range(8)]
    def touch(self, base, idx, junk):
        a = self.a
        if 't' in self.o.get('skip', ''): return
        a(f"v_bfe_u32 {junk}, {vL}, 2, 1"); a(f"v_lshl_add_u32 {junk}, {junk}, 11, {vHS}")
        a(f"s_lshl_b32 {T2}, {idx}, 13"); a(f"s_add_u32 {T2}, {T2}, {base}")
        a.vmem(f"buffer_load_dword {junk}, {junk}, {SWS}, {T2} offen", "touch")
    def wo_touch(self, junk):
        a = self.a
        if not self.o.get('wot', 1): return
        a(f"v_lshrrev_b32 {junk}, 1, {vL}"); a(f"v_lshlrev_b32 {junk}, 10, {junk}")
        a(f"s_lshr_b32 {T2}, {sMM}, 1"); a(f"s_lshl_b32 {T2}, {T2}, 3"); a(f"s_add_u32 {T2}, {T2}, {sW}"); a(f"s_lshl_b32 {T2}, {T2}, 15"); a(f"s_lshl_b32 {T3}, {sN}, 7"); a(f"s_add_u32 {T2}, {T2}, {T3}")
        a.vmem(f"buffer_load_dword {junk}, {junk}, {SWO}, {T2} offen", "touch")
    def poll_flags(self, mask, pre_issued=None):
        a = self.a; L = a.label("pf"); Ld = a.label("pfd")
        if pre_issued is None:
            a.vmem(f"buffer_load_dword {V0}, {vFL}, {SWS}, 0 offen sc1", "pf"); pre_issued = "pf"
        a.wait(vm=pre_issued)
        a(f"s_mov_b32 {sSPIN}, {SPIN}")
        a(f"{L}:")
        a(f"v_cmp_ne_u32 vcc, {sTAG}, {V0}"); a("s_nop 1")
        if mask >> 32 and mask & 0xffffffff:
            a(f"s_and_b32 {T0}, vcc_lo, {mask & 0xffffffff:#x}"); a(f"s_and_b32 {T1}, vcc_hi, {mask >> 32:#x}"); a(f"s_or_b32 {T0}, {T0}, {T1}")
        elif mask >> 32: a(f"s_and_b32 {T0}, vcc_hi, {mask >> 32:#x}")
        else: a(f"s_and_b32 {T0}, vcc_lo, {mask:#x}")
        a(f"s_cbranch_scc0 {Ld}")
        a(f"s_sub_u32 {sSPIN}, {sSPIN}, 1"); a(f"s_cbranch_scc1 {Ld}")
        a(f"buffer_load_dword {V0}, {vFL}, {SWS}, 0 offen sc1"); a("s_waitcnt vmcnt(0)")
        a(f"s_branch {L}")
        a(f"{Ld}:")
    def pf_issue(self): self.a.vmem(f"buffer_load_dword {V0}, {vFL}, {SWS}, 0 offen sc1", "pf")
    def flag_word(self, addr):
        a = self.a
        a(f"v_mov_b32 {V1}, {sTAG}")
        a(f"s_mov_b64 exec, 1")
        self.store_mode(lambda f: a(f"buffer_store_dword {V1}, off, {SWS}, {addr}{f}"), "flag", 1)
        a(f"s_mov_b64 exec, -1")
    def flag_h(self, late):
        a = self.a
        a(f"s_add_u32 {T0}, {sPI}, {32 if late else 0}"); self.flag_word(T0)
    def flag_o(self):
        a = self.a
        a(f"s_and_b32 {T1}, {sRB}, 1"); a(f"s_lshl_b32 {T0}, {sC}, 1"); a(f"s_add_u32 {T0}, {T0}, {T1}"); a(f"s_lshl_b32 {T0}, {T0}, 2"); a(f"s_add_u32 {T0}, {T0}, {sTG}")
        a(f"s_lshl_b32 {T0}, {T0}, 1"); a(f"s_add_u32 {T0}, {T0}, {sBB}"); a(f"s_lshl_b32 {T0}, {T0}, 4"); a(f"s_add_u32 {T0}, {T0}, {sHP}")
        a(f"s_lshl_b32 {T0}, {T0}, 2"); a(f"s_add_u32 {T0}, {T0}, {FO_OFF}")
        self.flag_word(T0)
    def prologue(self):
        a = self.a; o = self.o
        a("s_cmp_ge_u32 s2, 256"); a("s_cbranch_scc1 L_end")
        a("s_load_dwordx16 s[4:19], s[0:1], 0"); a("s_load_dwordx4 s[20:23], s[0:1], 64"); a("s_load_dwordx2 s[24:25], s[0:1], 80")
        if o.get('stamps'): a("s_memtime s[26:27]"); a("s_memrealtime s[66:67]")
        a(f"v_lshrrev_b32 {V0}, 6, v0"); a(f"v_and_b32 {vL}, 63, v0"); a(f"v_readfirstlane_b32 {sW}, {V0}")
        a(f"s_and_b32 {sC}, s2, 7"); a(f"s_lshr_b32 {T0}, s2, 3"); a(f"s_and_b32 {T1}, {T0}, 1"); a(f"s_lshr_b32 {sJ}, {T0}, 1")
        a(f"s_lshl_b32 {T0}, {sJ}, 2")
        self.table(sType, T_A); self.table(sOWN, T_OWN); self.table(sA2, T_K); self.table(sUA, T_UA)
        if o.get('c0tab', 1): self.table(sC0, T_C0)
        else: a(f"s_mov_b32 {sC0}, {sJ}")
        a(f"s_and_b32 {sA1}, {sC}, 1")
        a(f"s_lshl_b32 {T2}, {sA1}, 2"); a(f"s_xor_b32 {sA2}, {sA2}, {T2}")
        a(f"s_mul_i32 {T2}, {sA1}, 11"); a(f"s_add_u32 {sUA}, {sUA}, {T2}")
        a(f"s_xor_b32 {T2}, {sOWN}, 1"); a(f"s_xor_b32 {T2}, {T2}, {sC}"); a(f"s_lshl_b32 {sRB}, {T2}, 1"); a(f"s_or_b32 {sRB}, {sRB}, {T1}")
        a(f"s_mul_i32 {T2}, {sRB}, {o.get('rotr', 0)}"); a(f"s_mul_i32 {sC0}, {sC0}, {o.get('rotj', 1)}"); a(f"s_add_u32 {sC0}, {sC0}, {T2}")
        a(f"s_mul_i32 {T2}, {sC}, {o.get('rotc', 1)}"); a(f"s_add_u32 {sC0}, {sC0}, {T2}"); a(f"s_and_b32 {sC0}, {sC0}, 7")
        a(f"s_and_b32 {sTG}, {sW}, 3"); a(f"s_lshr_b32 {sBB}, {sW}, 2"); a(f"s_lshl_b32 {sW1k}, {sW}, 10"); a(f"s_lshl_b32 {sW2k}, {sW}, 11")
        a(f"s_add_u32 {T2}, {sA2}, 8")
        a(f"s_cmp_eq_u32 {sType}, 0")
        self.csel(T3, 3072, 2752); self.csel(T5, 1024, 128); a(f"s_cselect_b32 {T4}, {T2}, {sUA}"); self.csel("s34", 512*3072, 512*2752)
        a(f"s_lshl_b32 {T4}, {T4}, 7")
        a(f"s_lshl_b32 {sStrA64}, {T3}, 6"); a(f"s_lshl_b32 {sStrA4}, {T3}, 2")
        a(f"s_lshl_b32 {T0}, {sRB}, 7"); a(f"s_lshl_b32 {T1}, {sW}, 4"); a(f"s_add_u32 {T0}, {T0}, {T1}"); a(f"s_lshl_b32 {T0}, {T0}, 10")
        a(f"v_lshrrev_b32 {V0}, 3, {vL}"); a(f"v_lshrrev_b32 {V1}, 4, {vL}"); a(f"v_and_b32 {V2}, 7, {vL}")
        a(f"v_xor_b32 {V3}, {V2}, {V1}"); a(f"v_lshlrev_b32 {V3}, 4, {V3}"); a(f"v_lshl_add_u32 {vX0}, {V0}, 10, {V3}"); a(f"v_add_u32 {vX0}, {T0}, {vX0}")
        a(f"v_xor_b32 {vX1}, 64, {vX0}"); a(f"v_add_u32 {vX1}, 0x2000, {vX1}")
        a(f"s_lshl_b32 {T1}, {sW}, 3")
        a(f"v_add_u32 {V3}, {T1}, {V1}"); a(f"v_mul_lo_u32 {vWA}, {V3}, {T3}")
        a(f"v_and_b32 {V3}, 15, {vL}"); a(f"v_lshlrev_b32 {V4}, 2, {V1}"); a(f"v_xor_b32 {V3}, {V3}, {V4}")
        a(f"v_lshrrev_b32 {V4}, 3, {V3}"); a(f"v_mul_lo_u32 {V4}, {V4}, {T5}"); a(f"v_and_b32 {V3}, 7, {V3}")
        a(f"v_lshl_add_u32 {V4}, {V3}, 4, {V4}"); a(f"v_add3_u32 {vWA}, {vWA}, {V4}, {T4}")
        a("s_mov_b32 s30, 0x200000"); a("s_mov_b32 s31, 0x20000"); a("s_mov_b32 s35, 0x20000")
        a(f"s_cmp_eq_u32 {sType}, 0")
        a("s_waitcnt lgkmcnt(0)")
        if o.get('stamps'): a("v_mov_b32 v23, 0"); a(f"s_mov_b32 {sST}, 0"); a("v_writelane_b32 v23, s66, 62")
        a("s_mov_b32 s28, s4"); a("s_mov_b32 s29, s5"); a(f"s_mov_b32 {sHP}, {sA2}")
        a("s_cselect_b32 s32, s6, s14"); a("s_cselect_b32 s33, s7, s15")
        a(f"s_mov_b32 {sMODE}, {sA1}")
        for f in self.dmaA(0): f()
        c1 = self.dmaA(1)
        a(f"s_lshl_b32 {T0}, {sJ}, 2")
        self.srd(STMP, 8, 16384)
        if o.get('wsoff'): a(f"s_add_u32 s24, s24, {o['wsoff']:#x}"); a("s_addc_u32 s25, s25, 0")
        a(f"s_mov_b32 s9, {sType}")
        self.table(sTB, T_B); self.table(sUB, T_UB); self.table(T1, T_PI); self.table(sN, T_N)
        a(f"s_mul_i32 {T2}, {sMODE}, 11"); a(f"s_add_u32 {sUB}, {sUB}, {T2}"); a(f"s_lshl_b32 {sW2O}, {T2}, 16")
        a(f"s_cmp_eq_u32 {sTB}, 1")
        a("s_cselect_b32 s36, s6, s14"); a("s_cselect_b32 s37, s7, s15"); self.csel("s38", 512*3072, 512*2752); a("s_mov_b32 s39, 0x20000")
        self.csel(T3, 3072, 2752); a(f"s_cselect_b32 {T4}, {sHP}, {sUB}")
        a(f"s_lshl_b32 {sStrB64}, {T3}, 6"); a(f"s_lshl_b32 {T4}, {T4}, 7")
        a(f"s_cmp_eq_u32 {sTB}, 2"); a(f"s_cselect_b32 {T4}, 0x40000000, {T4}")
        self.srd(SW2, 16, 1376*1024); self.srd(SWO, 10, 512*1024); self.srd(SWS, 24, WS_SIZE);
        self.srd(SOUT, 20, 0x200000); self.srd(SDBG, 22, 256)
        a(f"s_mov_b32 {sSIDE}, {sMODE}")
        a(f"s_lshl_b32 {T2}, {sC}, 1"); a(f"s_xor_b32 {T5}, {sOWN}, 1"); a(f"s_add_u32 {T2}, {T2}, {T5}"); a(f"s_lshl_b32 {T2}, {T2}, 1"); a(f"s_and_b32 {T5}, {sRB}, 1")
        a(f"s_add_u32 {T2}, {T2}, {T5}"); a(f"s_lshl_b32 {T2}, {T2}, 2"); a(f"s_add_u32 {T2}, {T2}, {sTG}"); a(f"s_lshl_b32 {T2}, {T2}, 1"); a(f"s_add_u32 {T2}, {T2}, {sBB}")
        a(f"s_lshl_b32 {T2}, {T2}, 4"); a(f"s_add_u32 {T2}, {T2}, {T1}"); a(f"s_lshl_b32 {T2}, {T2}, 2"); a(f"s_add_u32 {sPI}, {T2}, {FH_OFF}")
        a(f"s_lshl_b32 {T5}, {T5}, 1"); a(f"s_add_u32 {sMM}, {T5}, s9")
        a(f"v_and_b32 {V3}, 1, {V1}"); a(f"v_lshlrev_b32 {V3}, 2, {V3}"); a(f"v_xor_b32 {V3}, {V3}, {V2}"); a(f"v_lshlrev_b32 {V3}, 4, {V3}")
        a(f"s_lshl_b32 {T1}, {sW}, 3"); a(f"v_add_u32 {V4}, {T1}, {V0}")
        a(f"v_mul_lo_u32 {vWB}, {V4}, {T3}"); a(f"v_add3_u32 {vWB}, {vWB}, {V3}, {T4}")
        a(f"s_lshl_b32 {T1}, {sN}, 7"); a(f"v_lshl_add_u32 {vW2}, {V4}, 10, {V3}"); a(f"v_add_u32 {vW2}, {T1}, {vW2}")
        a(f"v_lshlrev_b32 {vL16}, 4, {vL}")
        Lg = a.label("gsrd")
        a(f"s_cmp_eq_u32 {sJ}, 11"); a(f"s_cbranch_scc0 {Lg}")
        a("s_mov_b32 s36, s18"); a("s_mov_b32 s37, s19"); a("s_mov_b32 s38, 1024"); a(f"s_mov_b32 {sStrB64}, 0")
        a(f"v_add_u32 {V4}, {sC0}, {V0}"); a(f"v_and_b32 {V4}, 7, {V4}"); a(f"v_lshlrev_b32 {V3}, 4, {V2}"); a(f"v_lshl_add_u32 {vWB}, {V4}, 7, {V3}")
        a(f"{Lg}:")
        c1[0]()
        a(f"v_lshrrev_b32 {V0}, 5, {vL}"); a(f"v_bfe_u32 {V2}, {vL}, 2, 2")
        a(f"v_and_b32 {V3}, 1, {vL}"); a(f"v_bfe_u32 {V4}, {vL}, 1, 1"); a(f"v_lshl_add_u32 {V3}, {V3}, 1, {V4}"); a(f"v_lshlrev_b32 {V3}, 3, {V3}")
        a(f"v_and_b32 {V6}, 1, {V1}"); a(f"v_lshl_add_u32 {V3}, {V6}, 5, {V3}")
        a(f"v_lshl_add_u32 {V4}, {V0}, 3, {V2}")
        a(f"v_xor_b32 {V5}, {sBB}, {V2}"); a(f"v_lshlrev_b32 {V5}, 6, {V5}"); a(f"v_lshl_add_u32 {V5}, {V4}, 8, {V5}"); a(f"v_add_u32 {V5}, {V5}, {V3}")
        a(f"v_add_u32 {vAR0}, {WSL(0)}, {V5}"); a(f"v_xor_b32 {vAR1}, 128, {vAR0}")
        a(f"v_and_b32 {V7}, 31, {vL}"); a(f"v_bfe_u32 {V5}, {vL}, 1, 3"); a(f"v_xor_b32 {V5}, {V5}, {V0}"); a(f"v_lshlrev_b32 {V5}, 4, {V5}")
        a(f"s_lshl_b32 {T0}, {sTG}, 12"); a(f"v_lshl_add_u32 {vXR0}, {V7}, 7, {V5}"); a(f"v_add_u32 {vXR0}, {T0}, {vXR0}")
        a(f"v_xor_b32 {vXR1}, 32, {vXR0}"); a(f"v_xor_b32 {vXR2}, 64, {vXR0}"); a(f"v_xor_b32 {vXR3}, 0x60, {vXR0}")
        c1[1]()
        a(f"v_lshrrev_b32 {V5}, 1, {V2}"); a(f"v_lshlrev_b32 {V5}, 6, {V5}"); a(f"v_lshl_add_u32 {V5}, {V4}, 7, {V5}"); a(f"v_add_u32 {V5}, {V5}, {V3}")
        a(f"s_lshl_b32 {T0}, {sBB}, 6"); a(f"v_xor_b32 {vBR}, {T0}, {V5}"); a(f"v_add_u32 {vBR}, {R}, {vBR}")
        a(f"s_lshr_b32 {T0}, {sW}, 1"); a(f"s_lshl_b32 {T0}, {T0}, 11"); a(f"v_add_u32 {vPR0}, {T0}, {V5}"); a(f"v_xor_b32 {vPR1}, 64, {vPR0}")
        a(f"v_add_u32 {vPO0}, {R}, {vPR0}"); a(f"v_add_u32 {vPO1}, {R}, {vPR1}")
        a(f"v_mul_u32_u24 {V5}, {512-32}, {V6}"); a(f"v_add_u32 {V5}, {V5}, {V3}"); a(f"v_lshl_add_u32 {V5}, {V4}, 5, {V5}")
        a(f"s_lshl_b32 {T0}, {sBB}, 12"); a(f"s_add_u32 {T0}, {T0}, {R + 57344}"); a(f"v_add_u32 {MWP}, {T0}, {V5}")
        a(f"s_cmp_ge_u32 {sN}, 6"); a(f"s_cselect_b32 {T0}, 6, 0"); a(f"s_sub_u32 {sR1}, {sN}, {T0}"); a(f"s_mov_b32 {sR2}, {sN}")
        if not o.get('hrot', 1): a(f"s_mov_b32 {sR1}, 0"); a(f"s_mov_b32 {sR2}, 0")
        a(f"s_lshr_b32 {T0}, {sW2O}, 3"); a(f"s_lshl_b32 {T1}, {sSIDE}, 21"); a(f"s_add_u32 {sH2}, {T0}, {T1}"); a(f"s_xor_b32 {T1}, {T1}, 0x200000"); a(f"s_add_u32 {sH1}, {T0}, {T1}")
        a(f"s_lshl_b32 {sC32}, {sC}, 5")
        a(f"s_mov_b32 {sL2E}, 0x3fb8aa3b"); a("s_mov_b32 s0, 0x3fb8aa3b"); a("s_mov_b32 s1, 0x3fb8aa3b")
        c1[2]()
        a(f"s_lshl_b32 {T0}, {sMM}, 1"); a(f"s_and_b32 {T1}, {sW}, 1"); a(f"s_add_u32 {T0}, {T0}, {T1}")
        a(f"s_lshr_b32 {T1}, {sW}, 1")
        a(f"v_lshrrev_b32 {V3}, 3, {vL}"); a(f"v_cmp_eq_u32 vcc, 3, {V3}")
        a(f"s_and_b32 {T2}, {T0}, 3"); a(f"s_add_u32 {T2}, {T2}, 9"); a(f"s_lshl_b32 {T2}, {T2}, 7"); a(f"v_add_u32 {V3}, {T2}, {vL16}"); a(f"v_cndmask_b32 {V3}, {vL16}, {V3}, vcc")
        a(f"s_and_b32 {T3}, {sC}, 6"); a(f"s_lshl_b32 {T3}, {T3}, 3"); a(f"s_add_u32 {T3}, {T3}, {T0}")
        a(f"s_lshl_b32 {T2}, {T3}, 18"); a(f"s_lshl_b32 {T3}, {T1}, 11"); a(f"s_add_u32 {T2}, {T2}, {T3}"); a(f"v_add_u32 {vHL}, {T2}, {V3}")
        a(f"s_add_u32 {T2}, {sTG}, 9"); a(f"s_lshl_b32 {T2}, {T2}, 7"); a(f"v_add_u32 {V3}, {T2}, {vL16}"); a(f"v_cndmask_b32 {vHS}, {vL16}, {V3}, vcc")
        a(f"s_lshl_b32 {T0}, {T0}, 1"); a(f"s_lshr_b32 {T1}, {T1}, 1"); a(f"s_add_u32 {T0}, {T0}, {T1}"); a(f"s_lshl_b32 {T0}, {T0}, 6")
        a(f"s_lshl_b32 {T1}, {sC}, 11"); a(f"s_add_u32 {T1}, {T1}, {T0}"); a(f"s_add_u32 {T1}, {T1}, {FH_OFF}")
        a(f"s_lshl_b32 {T2}, {sC}, 10"); a(f"s_add_u32 {T2}, {T2}, {T0}"); a(f"s_add_u32 {T2}, {T2}, {FO_OFF}")
        a(f"v_and_b32 {V3}, 15, {vL}"); a(f"v_lshlrev_b32 {V3}, 2, {V3}"); a(f"v_add_u32 {V4}, {T2}, {V3}"); a(f"v_lshl_add_u32 {V3}, {V6}, 10, {V3}"); a(f"v_add_u32 {V3}, {T1}, {V3}")
        a(f"v_cmp_gt_u32 vcc, 32, {vL}"); a(f"v_cndmask_b32 {vFL}, {V4}, {V3}, vcc")
        a(f"v_xor_b32 {V3}, 0x100, {V3}"); a(f"v_cmp_gt_u32 vcc, 48, {vL}"); a(f"v_cndmask_b32 {vFL}, {V3}, {vFL}, vcc")
        a(f"s_lshl_b32 {T0}, {sRB}, 2"); a(f"s_add_u32 {T0}, {T0}, {sTG}"); a(f"s_lshl_b32 {T0}, {T0}, 18"); a(f"s_lshl_b32 {T1}, {sBB}, 12"); a(f"s_add_u32 {T0}, {T0}, {T1}")
        a(f"v_add_u32 {vHS}, {T0}, {vHS}")
        c1[3]()
        def census():
            a(f"s_getreg_b32 {sXCC}, hwreg(HW_REG_XCC_ID, 0, 4)")
            a(f"s_mul_i32 {T2}, {sXCC}, {sXCC}"); a(f"s_lshl_b32 {T2}, {T2}, 16"); a(f"s_lshl_b32 {T3}, {sXCC}, 8"); a(f"s_add_u32 {T2}, {T2}, {T3}"); a(f"s_add_u32 {T2}, {T2}, 1")
            a(f"s_cmp_eq_u32 {sW}, 0"); a(f"s_cselect_b32 {T0}, {sC32}, 0x1000")
            a(f"v_mov_b32 {MAT}, {T2}")
            a("s_mov_b64 exec, 1")
            a.vmem(f"buffer_atomic_add {MAT}, off, {SDBG}, {T0}", "misc")
            a("s_mov_b64 exec, -1")
        def m_wphi():
            L1 = a.label("wp"); L2 = a.label("wpd")
            a(f"s_lshl_b32 {T0}, {sHP}, 11"); a(f"s_lshl_b32 {T1}, {sBB}, 10"); a(f"s_add_u32 {T0}, {T0}, {T1}")
            a(f"s_add_u32 m0, {sW1k}, {R + 57344}")
            a(f"s_cmp_eq_u32 {sTG}, 0"); a(f"s_cbranch_scc0 {L1}")
            a.vmem(f"buffer_load_dwordx4 {vL16}, {STMP}, {T0} offen lds", "misc")
            a(f"s_branch {L2}"); a(f"{L1}:")
            a(f"buffer_load_dword {MJ}, off, {STMP}, {T0}")
            a(f"{L2}:")
        def m_e():
            a(f"s_mov_b32 {T0}, {E_OFF}")
            a.vmem(f"buffer_load_dword {ME}, off, {SWS}, {T0} sc1", "misc")
        def m_code():
            a("s_getpc_b64 s[90:91]"); a("L_pc:")
            a(f"s_lshr_b32 {T0}, s2, 3"); a(f"s_lshl_b32 {T0}, {T0}, 3"); a(f"s_add_u32 {T0}, {T0}, {sW}"); a(f"s_mul_i32 {T0}, {T0}, 184")
            a(f"s_min_u32 {T0}, {T0}, L_end-L_pc-68"); a(f"v_and_b32 {MAT}, 64, {vL16}"); a(f"v_add_u32 {MAT}, {T0}, {MAT}")
            a.vmem(f"global_load_dword {MJ}, {MAT}, s[90:91]", "misc")
        m_fl = lambda: a.vmem(f"buffer_load_dword {MJ}, {vFL}, {SWS}, 0 offen sc1", "misc")
        m_code(); census()
        self.misc = [m_e, m_wphi, m_fl]
        self.stamp(1)
    def passA(self):
        a = self.a; o = self.o
        xr = [vXR0, vXR1, vXR2, vXR3]; buf = [FR, FR + 8, FR + 16, PHI]
        def reads(c, st):
            s = c % 3; b = buf[st]
            a.ds(f"ds_read_b128 {ar(16*c+4*st,4)}, {xr[st]} offset:{XS(s)}", f"r{st}")
            for u, v in ((0, vAR0), (1, vAR1)):
                for e in range(2):
                    a.ds(f"ds_read_b64_tr_b16 {vr(b+4*u+2*e,2)}, {v} offset:{s*16384 + st*4096 + e*1024}", f"r{st}")
        def landed(tag, n):
            assert a.vm.q.count(tag) == n, (tag, a.vm.q)
            a.wait(vm=tag)
        def m1(c, st, u):
            acc = (ACC0, ACC1)[u]
            cc = "0" if (c == 0 and st == 0) else vr(acc, 16)
            a(f"v_mfma_f32_32x32x16_bf16 {vr(acc,16)}, {vr(buf[st]+4*u,4)}, {ar(16*c+4*st,4)}, {cc}")
        def half(c, st, rd, nslot):
            pat = o.get('apat', 'MRMRVMVMV')
            mf = [(st, 0), (st, 1), (st+1, 0), (st+1, 1)]; rd = list(rd); left = nslot; nv = pat.count('V')
            for ch in pat:
                if ch == 'M': m1(c, *mf.pop(0))
                elif ch == 'R':
                    if rd: reads(*rd.pop(0))
                else:
                    n = -(-left // nv); self.slot(n); left -= n; nv -= 1
        bsched = o.get('bsched', [0, 0, 0, 1, 1, 3, 3, 0])
        assert sum(bsched) == 8 and sum(bsched[:5]) <= 7
        nb = 0
        self.push(*self.dmaA(2)); self.slot(2)
        self.push(*self.misc)
        landed("c0", 4); a("s_barrier")
        self.stamp(2)
        reads(0, 0); reads(0, 1)
        self.slot(2)
        for c in range(8):
            a.wait(lg="r1")
            half(c, 0, [(c, 2), (c, 3)], len(self.pend))
            if c == 4:
                a.ds(f"ds_read_b64_tr_b16 {vr(WP0,2)}, {MWP}", "r3"); a.ds(f"ds_read_b64_tr_b16 {vr(WP0+2,2)}, {MWP} offset:128", "r3")
                a(f"v_readfirstlane_b32 {sE}, {ME}")
                a(f"v_and_b32 {V0}, 16, {vL}"); a(f"v_cmp_eq_u32 vcc, 0, {V0}")
                a(f"s_add_u32 {sE}, {sE}, 1"); a(f"s_mul_i32 {sTAG}, {sE}, 0x9E3779B1"); a(f"s_add_u32 {sTAG}, {sTAG}, 0x7F4A7C15")
            a.wait(lg="r3")
            if c < 7: landed(f"c{c+1}", 4)
            else:
                assert nb == 8 and not self.pend
                a.wait(vm="B0")
            a("s_barrier")
            self.stamp(f"c{c+1}")
            if c + 3 <= 7: self.push(*self.dmaA(c + 3))
            for _ in range(bsched[c]): self.push(*self.dmaB(nb)); nb += 1
            if c == 7: self.wx = self.w2x(); n = o.get('a7', 2); self.push(*self.wx[:n]); self.wx = self.wx[n:]
            half(c, 2, [(c + 1, 0), (c + 1, 1)] if c < 7 else [], (len(self.pend) + 1)//2 if c < 7 else len(self.pend))
            if c == 4:
                for i in range(4):
                    a(f"v_cndmask_b32_e64 v{WP1+i}, v{WP0+i}, 0, vcc")
                    a(f"v_cndmask_b32 v{WP0+i}, 0, v{WP0+i}, vcc")
        self.stamp(3)
    def first_kv(self):
        a = self.a; o = self.o
        a(f"v_and_b32 {V4}, 31, {vL}"); a(f"v_lshrrev_b32 {V5}, 5, {vL}"); a(f"v_lshlrev_b32 {V5}, 4, {V5}"); a(f"v_lshl_add_u32 {V4}, {V4}, 5, {V5}")
        a(f"s_lshl_b32 {T0}, {sTG}, 10"); a(f"s_lshl_b32 {T1}, {sBB}, 13"); a(f"s_add_u32 {T2}, {T0}, {T1}"); a(f"s_add_u32 {T3}, {T2}, {T1}")
        a(f"v_add_u32 {V5}, {T2}, {V4}"); a(f"v_add_u32 {V4}, {T3}, {V4}")
        def sink(hd, sg, b):
            d = ACC0 + 8*hd + 4*sg
            return [f"v_cvt_pk_bf16_f32 v{d+i}, v{b+2*i}, v{b+2*i+1}" for i in range(4)] + \
                   [lambda: a.ds(f"ds_write_b128 {V4}, {vr(d,4)} offset:{(2*hd+sg)*4096}", "kw")]
        il = o.get('kil', 1)
        L = self.softmax(ACC0, ACC0, (ACC1, PHI), FR + 16, sink, 0 if il else 1)
        vf = PHI
        Vv = [f"v_cvt_pk_bf16_f32 v{vf+i}, v{ACC1+2*i}, v{ACC1+2*i+1}" for i in range(8)]
        Vv += [(lambda hd=hd: a.ds(f"ds_write_b128 {V5}, {vr(vf+4*hd,4)} offset:{32768 + hd*4096}", "kw")) for hd in range(2)]
        L = L[:10] + Vv + L[10:]
        n = o.get('kd1', 2); self.push(*self.wx[:n]); self.wx = self.wx[n:]
        if il: self.passB(0, L, o.get('kper', 12), 100)
        else: self.run(L)
        self.flush()
        a.wait(lg="kw"); a.wait(vm="B1")
        a("s_barrier")
        self.stamp(4)
        a(f"s_lshl_b32 {T0}, {sW}, 12"); a(f"s_lshr_b32 {T1}, {sW}, 1"); a(f"s_lshl_b32 {T1}, {T1}, 12"); a(f"s_add_u32 {T1}, {T1}, 32768")
        a(f"v_lshlrev_b32 {V0}, 3, {vL}"); a(f"v_add_u32 {V1}, {T1}, {V0}"); a(f"v_add_u32 {V0}, {T0}, {V0}")
        A, Bv, ONE, DK, DZ = ACC0, ACC1, PHI, PHI+4, PHI+8
        for st in range(4):
            for e in range(2): a.ds(f"ds_read_b64_tr_b16 {vr(A+4*st+2*e,2)}, {V0} offset:{st*1024+e*512}", f"k{st}")
            if st == 3: a.wait(lg="k0")
            for e in range(2): a.ds(f"ds_read_b64_tr_b16 {vr(Bv+4*st+2*e,2)}, {V1} offset:{st*1024+e*512}", f"k{st}")
        for i in range(4): a(f"v_mov_b32 v{ONE+i}, 0x3f803f80")
        a(f"s_lshl_b32 {T0}, {sHP}, 4"); a(f"s_add_u32 {T0}, {T0}, {sRB}"); a(f"s_lshl_b32 {T0}, {T0}, 3"); a(f"s_add_u32 {T0}, {T0}, {sW}")
        a(f"s_lshl_b32 {T1}, {T0}, 10"); a(f"s_add_u32 {T1}, {T1}, {P_OFF}"); a(f"s_lshl_b32 {T2}, {T0}, 6"); a(f"s_add_u32 {T2}, {T2}, {PZ_OFF}")
        a(f"v_and_b32 {V3}, 15, {vL}"); a(f"v_cmp_eq_u32 vcc, 0, {V3}"); a(f"v_mov_b32 {V3}, {OOB}")
        a(f"v_cndmask_b32 {V3}, {V3}, {vL}, vcc")
        a(f"s_mov_b32 {T3}, 0x07060501"); a(f"s_mov_b32 {T4}, 0x07060502"); a(f"s_mov_b32 {T5}, 0x07060503")
        for st in range(4):
            a.wait(lg=f"k{st}")
            a(f"v_mfma_f32_16x16x32_bf16 {vr(DK,4)}, {vr(A+4*st,4)}, {vr(Bv+4*st,4)}, {'0' if st == 0 else vr(DK,4)}")
            a(f"v_mfma_f32_16x16x32_bf16 {vr(DZ,4)}, {vr(A+4*st,4)}, {vr(ONE,4)}, {'0' if st == 0 else vr(DZ,4)}")
        for D in (DK, DZ):
            a(f"v_perm_b32 v{D}, v{D}, v{D+3}, {T3}"); a(f"v_perm_b32 v{D+1}, v{D+1}, v{D+3}, {T4}"); a(f"v_perm_b32 v{D+2}, v{D+2}, v{D+3}, {T5}")
            a(f"v_mov_b32 v{D+3}, {sTAG}")
        a.vmem(f"buffer_load_dword {V7}, off, {SDBG}, {sC32} sc1", "mode")
        a.vmem(f"buffer_store_dwordx4 {vr(DK,4)}, {vL16}, {SWS}, {T1} offen sc1", "part")
        a.vmem(f"buffer_store_dwordx4 {vr(DZ,4)}, {V3}, {SWS}, {T2} offen sc1", "part")
        self.ack_store()
        self.stamp(5)
        if not il: self.passB(0, [], 0, 100)
    def first_hh(self):
        a = self.a; o = self.o
        a(f"s_lshl_b32 {T0}, {sUA}, 13")
        L = []
        for u, acc in enumerate((ACC0, ACC1)):
            pk = PHI + 8*u
            hp = self.h_pack(acc, pk)
            for kk in range(2):
                L += hp[12*kk:12*kk+12]
                L += [f"s_add_u32 {T1}, {T0}, {u*UNIT + kk*STEP}",
                      lambda pk=pk, kk=kk: a.vmem(f"buffer_store_dwordx4 {vr(pk+4*kk,4)}, {vHS}, {SWS}, {T1} offen sc1", "hst")]
        n = o.get('hd1', 0)
        self.wx = self.wx + self.w2y()
        L += [self.ack_store, self.get_mode_issue, lambda: self.stamp(4), lambda: self.push(*self.wx[:n])]
        self.passB(0, L, o.get('qper', 8), 2)
        self.wx = self.wx[n:]
        self.flush()
        a.wait(vm="B1"); a("s_barrier")
        self.stamp("B1")
    def softmax_q(self, acc, pq, E, kf, mid):
        L = []; a = L.append
        for i in range(8): a(f"v_cvt_pk_bf16_f32 v{kf+i}, v{acc+2*i}, v{acc+2*i+1}")
        a(f"v_mfma_f32_32x32x16_bf16 {vr(pq,16)}, {vr(WP0,4)}, {vr(kf,4)}, 0")
        a(f"v_mfma_f32_32x32x16_bf16 {vr(pq,16)}, {vr(WP1,4)}, {vr(kf+4,4)}, {vr(pq,16)}")
        hook = lambda k: a(lambda: (self.stamp(f"sm{k}"), mid(k)))
        hook(0); a(self.slot); a(self.slot)
        S = ((kf, kf+2), (kf+4, kf+6))
        for k in range(4):
            for hd in range(2):
                p = pq + 8*hd; mp, mn = S[hd]
                if k == 0: a(f"v_max3_f32 v{mp}, v{p}, v{p+1}, v{p+2}"); a(f"v_max3_f32 v{mn}, -v{p}, -v{p+1}, -v{p+2}")
                elif k < 3: a(f"v_max3_f32 v{mp}, v{mp}, v{p+1+2*k}, v{p+2+2*k}"); a(f"v_max3_f32 v{mn}, v{mn}, -v{p+1+2*k}, -v{p+2+2*k}")
                else: a(f"v_max_f32 v{mp}, v{mp}, v{p+7}"); a(f"v_max_f32_e64 v{mn}, v{mn}, -v{p+7}")
        a(self.slot)
        def both(f):
            for hd in range(2): f(*S[hd])
        both(lambda x, y: a(f"v_permlane32_swap_b32 v{x}, v{y}"))
        both(lambda x, y: a(f"v_max_f32 v{x}, v{x}, v{y}"))
        both(lambda x, y: a(f"v_mul_f32 v{x}, {sL2E}, v{x}"))
        both(lambda x, y: a(f"v_mov_b32 v{y}, v{x}"))
        both(lambda x, y: a(f"v_permlane32_swap_b32 v{x}, v{y}"))
        a(self.slot)
        for hd in range(2):
            p = pq + 8*hd; e = E[hd]
            for sg in range(2):
                m = S[hd][sg]; b = e + 8*sg
                for i in range(8): a(f"v_fma_f32 v{b+i}, {'-' if sg else ''}v{p+i}, {sL2E}, -v{m}")
                a(self.slot)
                for i in range(8): a(f"v_exp_f32 v{b+i}, v{b+i}")
                a(self.slot)
                for i in range(4): a(f"v_cvt_pk_bf16_f32 v{PHI+8*hd+4*sg+i}, v{b+2*i}, v{b+2*i+1}")
            if hd == 0: hook(1)
        return L
    def second(self, kindA, kindB):
        a = self.a; o = self.o; P = kindA + kindB
        rest = self.wx
        n = o.get('d2' + kindA, 4); self.push(*rest[:n]); rest = rest[n:]
        self.passB(1, [], 0, 3)
        self.flush()
        self.stamp(6)
        a("s_barrier")
        if kindA == 'k': rest = rest + self.w2y()
        early = (lambda: (self.get_mode_wait(), self.flag_h(False))) if kindA == 'h' else self.get_mode_wait
        ph = Phase2(self, P)
        if kindB == 'q':
            fl = o.get('qflag', 0); qp = o.get('qp' + kindA, 0 if kindA == 'k' else 2)
            if qp == 0:
                for f in rest: f()
                self.pf_issue()
            else: self.push(*rest)
            def mid(k):
                if k == fl: early()
                if k + 1 == qp: self.flush(); self.pf_issue()
                if k == qp: ph.begin("pf", True)
            self.run(self.softmax_q(ACCB, ACC0, (ACC1, ACCB), FR, mid))
            self.flush()
            self.stamp(7)
            if qp == 2: ph.begin("pf", False)
        else:
            for f in rest: f()
            early()
            self.pf_issue()
            self.run(self.h_pack(ACCB, FR))
            ph.begin("pf", False)
            a(f"s_lshl_b32 {T2}, {sUB}, 13"); a(f"s_add_u32 {T3}, {T2}, {STEP}")
            a.vmem(f"buffer_store_dwordx4 {vr(FR,4)}, {vHS}, {SWS}, {T2} offen sc1", "hst")
            a.vmem(f"buffer_store_dwordx4 {vr(FR+4,4)}, {vHS}, {SWS}, {T3} offen sc1", "hst")
            self.stamp(7)
        ph.main()
    def gate_wave(self):
        a = self.a
        a(f"v_lshrrev_b32 {V0}, 5, {vL}"); a(f"v_lshlrev_b32 {V0}, 4, {V0}"); a(f"s_add_u32 {T0}, {sW1k}, {R + 57344}"); a(f"v_add_u32 {V0}, {T0}, {V0}")
        D = 5
        def rd(st): a.ds(f"ds_read_b128 {vr(FR+4*(st%6),4)}, {V0} offset:{st*32}", f"g{st}")
        for st in range(D): rd(st)
        for st in range(32):
            if st + D < 32: rd(st + D)
            a.wait(lg=f"g{st}")
            a(f"v_mfma_f32_32x32x16_bf16 {vr(ACCB,16)}, {vr(FR+4*(st%6),4)}, {ar(4*st,4)}, {'0' if st == 0 else vr(ACCB,16)}")
        a(f"s_lshl_b32 {T2}, {sRB}, 2"); a(f"s_add_u32 {T2}, {T2}, {sTG}"); a(f"s_lshl_b32 {T2}, {T2}, 8"); a(f"s_add_u32 {T2}, {T2}, {G_OFF}")
        a(f"v_and_b32 {V1}, 31, {vL}"); a(f"v_lshlrev_b32 {V1}, 3, {V1}"); a(f"v_mov_b32 {V3}, {sTAG}")
        a(f"v_mul_f32 {V2}, {sL2E}, v{ACCB}"); a(f"v_exp_f32_e64 {V2}, -{V2}"); a(f"v_add_f32 {V2}, 1.0, {V2}"); a(f"v_rcp_f32 {V2}, {V2}")
        a(f"s_cmp_eq_u32 {sBB}, 0"); a(f"s_cselect_b32 {T2}, {T2}, {OOB}")
        a(f"buffer_store_dwordx2 v[26:27], {V1}, {SWS}, {T2} offen sc1")
    def path_r(self):
        a = self.a; o = self.o
        Lng = a.label("ng")
        a(f"s_cmp_eq_u32 {sJ}, 11"); a(f"s_cbranch_scc0 {Lng}")
        self.gate_wave()
        a(f"{Lng}:")
        a("s_barrier")
        rest = self.wx + self.w2y()
        n = o.get('rd1', 0)
        for f in rest[:n]: f()
        a(f"s_lshl_b32 {sRB}, {sC}, 1"); a(f"s_lshr_b32 {T0}, {sMM}, 1"); a(f"s_add_u32 {sRB}, {sRB}, {T0}"); a(f"s_sub_u32 {sOWN}, {sJ}, 5")
        fin = self.reducer(lambda: None)
        self.pf_issue()
        fin()
        for f in rest[n:]: f()
        ph = Phase2(self, 'r'); ph.begin("pf", False); ph.main()
    def f_issue(self):
        a = self.a
        a(f"s_lshl_b32 {T0}, {sHP}, 3"); a(f"s_add_u32 {T0}, {T0}, {sW}")
        a(f"s_lshl_b32 {sR1}, {T0}, 10"); a(f"s_add_u32 {sR1}, {sR1}, {F_OFF}"); a(f"s_lshl_b32 {sH1}, {T0}, 6"); a(f"s_add_u32 {sH1}, {sH1}, {FZ_OFF}")
        self.f_loads(True)
    def f_loads(self, track):
        a = self.a
        a(f"v_and_b32 v28, 0x30, {vL16}")
        for s in (f"buffer_load_dwordx4 v[8:11], {vL16}, {SWS}, {sR1} offen sc1", f"buffer_load_dwordx4 v[28:31], v28, {SWS}, {sH1} offen sc1"):
            a.vmem(s, "h2") if track else a(s)
    def f_check(self):
        a = self.a
        L = a.label("h2"); Ld = a.label("h2d")
        a.wait(vm="h2")
        a(f"s_mov_b32 {sSPIN}, {SPIN}")
        a(f"{L}:")
        a(f"v_cmp_ne_u32 vcc, {sTAG}, v10"); a(f"v_cmp_ne_u32 {sM}, {sTAG}, v30"); a("s_nop 1"); a(f"s_or_b64 vcc, vcc, {sM}")
        a(f"s_cbranch_vccz {Ld}")
        a(f"s_sub_u32 {sSPIN}, {sSPIN}, 1"); a(f"s_cbranch_scc1 {Ld}")
        self.f_loads(False); a("s_waitcnt vmcnt(0)"); a(f"s_branch {L}")
        a(f"{Ld}:")
        self.stamp(9)
        a(f"s_add_u32 {T0}, {sW1k}, {KVT}")
        a(f"v_and_b32 {V2}, 15, {vL}"); a(f"v_lshrrev_b32 {V3}, 4, {vL}"); a(f"v_lshlrev_b32 {V3}, 3, {V3}"); a(f"v_lshl_add_u32 {V2}, {V2}, 5, {V3}"); a(f"v_add_u32 {V2}, {T0}, {V2}")
        a(f"v_lshlrev_b32 {V3}, 3, {vL}"); a(f"v_add_u32 {V3}, {T0}, {V3}")
        a.ds(f"ds_write_b64 {V2}, v[8:9]", "kt")
        a(f"v_cmp_gt_u32 vcc, 4, {vL}"); a(f"v_mov_b32 {V1}, 0x3f803f80"); a(f"v_cndmask_b32 v28, {V1}, v28, vcc"); a(f"v_cndmask_b32 v29, {V1}, v29, vcc")
        a("s_mov_b64 exec, 0xff")
        a.ds(f"ds_write_b64 {V3}, v[28:29] offset:512", "kt")
        a("s_mov_b64 exec, -1")
        self.o_addr()
        a.wait(lg="kt")
        a("s_barrier")
    def o_addr(self):
        a = self.a
        a(f"v_and_b32 {V3}, 3, {vL}"); a(f"v_bfe_u32 {V1}, {vL}, 2, 1"); a(f"v_bfe_u32 {V2}, {vL}, 3, 1")
        a(f"v_lshl_add_u32 {V3}, {V1}, 3, {V3}"); a(f"v_lshl_add_u32 {V3}, {V2}, 2, {V3}"); a(f"v_add_u32 {V2}, 16, {V2}")
        a(f"v_and_b32 {V1}, 16, {vL}"); a(f"v_cmp_eq_u32 vcc, 0, {V1}"); a(f"v_lshrrev_b32 {V1}, 5, {vL}"); a(f"v_lshlrev_b32 {V1}, 4, {V1}")
        a(f"v_cndmask_b32 {V3}, {V2}, {V3}, vcc"); a(f"v_lshl_add_u32 {V3}, {V3}, 5, {V1}")
        a(f"s_lshl_b32 {T0}, {sBB}, 12"); a(f"s_add_u32 {T0}, {T0}, {KVT}"); a(f"v_add_u32 {WP0V}, {T0}, {V3}")
    def o_compute(self):
        a = self.a
        DP, DM = ACCA, ACCA + 16
        def rd(hd):
            a.ds(f"ds_read_b128 v[8:11], {WP0V} offset:{(2*hd)*1024}", f"o{hd}"); a.ds(f"ds_read_b128 v[28:31], {WP0V} offset:{(2*hd+1)*1024}", f"o{hd}")
        rd(0)
        a(f"s_lshl_b32 {T0}, {sHP}, 13"); a(f"s_add_u32 {T0}, {T0}, {O_OFF}"); a(f"s_add_u32 {T1}, {T0}, {STEP}"); a(f"s_mov_b32 {T2}, 0x358637bd")
        for hd in range(2):
            a.wait(lg=f"o{hd}")
            a(f"v_mfma_f32_32x32x16_bf16 {vr(DM,16)}, v[28:31], {vr(PHI+8*hd+4,4)}, 0")
            a(f"v_mfma_f32_32x32x16_bf16 {vr(DP,16)}, v[8:11], {vr(PHI+8*hd,4)}, 0")
            if hd == 0: rd(1)
            a(f"v_rcp_f32 {V1}, v{DM+12}")
            a(f"v_fma_f32 {V2}, v{DP+12}, {T2}, v{DP+8}"); a(f"v_mul_f32 {V1}, v{DP+12}, {V1}")
            a(f"v_fmac_f32 {V2}, {V1}, v{DM+8}"); a(f"v_rcp_f32 {V2}, {V2}")
            for i in range(8): a(f"v_fmac_f32 v{DP+i}, {V1}, v{DM+i}")
            for i in range(8): a(f"v_mul_f32 v{DP+i}, {V2}, v{DP+i}")
            for i in range(4): a(f"v_cvt_pk_bf16_f32 v{PHI+8*hd+i}, v{DP+2*i}, v{DP+2*i+1}")
        self.store_mode(lambda f: (a(f"buffer_store_dwordx4 {vr(PHI,4)}, {vHS}, {SWS}, {T0} offen{f}"),
                                   a(f"buffer_store_dwordx4 {vr(PHI+8,4)}, {vHS}, {SWS}, {T1} offen{f}")), "ost", 2)
    def red_addr(self, base):
        a = self.a; R = base
        W0, W1, W2_, W3, R0, R1, OA = vX0, vX1, vWA, vWB, vXR0, vXR1, vXR2
        a(f"v_and_b32 {W0}, 31, {vL}"); a(f"v_lshrrev_b32 {V1}, 5, {vL}"); a(f"v_lshlrev_b32 {V1}, 1, {V1}"); a(f"v_and_b32 {V2}, 7, {vL}")
        a(f"v_xor_b32 {V1}, {V1}, {V2}"); a(f"v_lshlrev_b32 {V1}, 4, {V1}"); a(f"v_lshl_add_u32 {W0}, {W0}, 8, {V1}")
        a(f"s_and_b32 {T4}, {sW}, 1"); a(f"s_lshl_b32 {T4}, {T4}, 15"); a(f"s_lshr_b32 {T1}, {sW}, 1"); a(f"s_lshl_b32 {T2}, {T1}, 13"); a(f"s_add_u32 {T2}, {T2}, {T4}")
        a(f"s_add_u32 {T2}, {T2}, {R}")
        a(f"v_add_u32 {W0}, {T2}, {W0}"); a(f"v_xor_b32 {W1}, 16, {W0}"); a(f"v_xor_b32 {W2_}, 64, {W0}"); a(f"v_xor_b32 {W3}, 0x50, {W0}")
        a(f"v_lshrrev_b32 {V3}, 3, {vL}"); a(f"v_lshlrev_b32 {R0}, 1, {V2}"); a(f"v_xor_b32 {R0}, {R0}, {V3}"); a(f"v_lshlrev_b32 {R0}, 4, {R0}")
        a(f"v_lshl_add_u32 {R0}, {V3}, 8, {R0}"); a(f"s_lshl_b32 {T2}, {T1}, 11"); a(f"s_add_u32 {T2}, {T2}, {T4}"); a(f"s_add_u32 {T2}, {T2}, {R}")
        a(f"v_add_u32 {R0}, {T2}, {R0}"); a(f"v_xor_b32 {R1}, 16, {R0}")
        a(f"s_lshl_b32 {T2}, {sC}, 8"); a(f"s_lshl_b32 {T3}, {sMM}, 6"); a(f"s_add_u32 {T2}, {T2}, {T3}"); a(f"s_lshr_b32 {T3}, {T4}, 10"); a(f"s_add_u32 {T2}, {T2}, {T3}")
        a(f"s_lshl_b32 {sUA}, {T2}, 3"); a(f"s_add_u32 {sUA}, {sUA}, {G_OFF}")
        a(f"s_lshl_b32 {T3}, {T1}, 3"); a(f"s_add_u32 {T2}, {T2}, {T3}"); a(f"s_lshl_b32 {T2}, {T2}, 10"); a(f"s_lshl_b32 {T3}, {sN}, 7"); a(f"s_add_u32 {T2}, {T2}, {T3}")
        a(f"v_lshlrev_b32 {V2}, 4, {V2}"); a(f"v_lshl_add_u32 {OA}, {V3}, 10, {V2}"); a(f"v_add_u32 {OA}, {T2}, {OA}")
        a(f"s_lshl_b32 {T2}, {sC}, 2"); a(f"s_add_u32 {T2}, {T2}, {sMM}"); a(f"s_lshl_b32 {T2}, {T2}, 3"); a(f"s_add_u32 {T2}, {T2}, {sN}"); a(f"s_lshl_b32 {T2}, {T2}, 3"); a(f"s_add_u32 {T2}, {T2}, {sW}")
        a(f"s_lshl_b32 {T2}, {T2}, 11"); a(f"s_add_u32 {sUB}, {T2}, {X_OFF}")
    def red_write(self, src, pre=None, rf=vr):
        a = self.a
        wa = {(0, 0): vX0, (0, 1): vX1, (1, 0): vWA, (1, 1): vWB}
        for cb in range(2):
            for gp in range(2):
                for e in range(2):
                    b = 16*cb + 8*gp + 4*e
                    if pre: pre(b)
                    a.ds(f"ds_write_b128 {wa[(gp,e)]}, {rf(src+b,4)} offset:{cb*128}", "rw")
        a.wait(lg="rw")
        a("s_barrier")
    def red_read(self, Bq):
        a = self.a
        for k in range(4):
            a.ds(f"ds_read_b128 {vr(Bq+8*k,4)}, {vXR0} offset:{k*8192}", f"s{k}"); a.ds(f"ds_read_b128 {vr(Bq+8*k+4,4)}, {vXR1} offset:{k*8192}", f"s{k}")
        a.wait(lg="s1")
        for i in range(0, 8, 2): a(f"v_pk_add_f32 {vr(Bq+i,2)}, {vr(Bq+i,2)}, {vr(Bq+8+i,2)}")
        a.wait(lg="s3")
        for i in range(0, 8, 2): a(f"v_pk_add_f32 {vr(Bq+16+i,2)}, {vr(Bq+16+i,2)}, {vr(Bq+24+i,2)}")
        for i in range(0, 8, 2): a(f"v_pk_add_f32 {vr(Bq+i,2)}, {vr(Bq+i,2)}, {vr(Bq+16+i,2)}")
    def g_loads(self, track):
        a = self.a
        a(f"v_and_b32 {V2}, 31, {vL}"); a(f"v_lshlrev_b32 {V2}, 3, {V2}")
        a(f"v_and_b32 {V4}, 0x38, {vL}"); a(f"s_lshr_b32 {T1}, {sW}, 1"); a(f"s_lshl_b32 {T1}, {T1}, 6"); a(f"s_add_u32 {T1}, {T1}, {sUA}")
        a(f"s_xor_b32 {T2}, {sUB}, {32*8*2048}")
        for s in (f"buffer_load_dwordx2 v[26:27], {V2}, {SWS}, {sUA} offen sc1", f"buffer_load_dwordx2 v[28:29], {V4}, {SWS}, {T1} offen sc1"):
            a.vmem(s, "g") if track else a(s)
    def x_loads(self, track):
        a = self.a
        a(f"s_xor_b32 {T2}, {sUB}, {32*8*2048}")
        for s in (f"buffer_load_dwordx4 {vr(PHI,4)}, {vL16}, {SWS}, {T2} offen sc1", f"buffer_load_dwordx4 {vr(PHI+4,4)}, {vL16}, {SWS}, {T2} offen offset:1024 sc1"):
            a.vmem(s, "x") if track else a(s)
    def spin(self, regs, tag, reload):
        a = self.a; L = a.label("sp"); Ld = a.label("spd")
        a.wait(vm=tag)
        a(f"s_mov_b32 {sSPIN}, {SPIN}")
        a(f"{L}:")
        a(f"v_cmp_ne_u32 vcc, {sTAG}, {regs[0]}"); a(f"v_cmp_ne_u32 {sM}, {sTAG}, {regs[1]}"); a("s_nop 1"); a(f"s_or_b64 vcc, vcc, {sM}")
        a(f"s_cbranch_vccz {Ld}")
        a(f"s_sub_u32 {sSPIN}, {sSPIN}, 1"); a(f"s_cbranch_scc1 {Ld}")
        reload(False); a("s_waitcnt vmcnt(0)"); a(f"s_branch {L}")
        a(f"{Ld}:")
    def tail2(self):
        a = self.a
        self.g_loads(True)
        self.pf_issue()
        a.wait(vm="wo"); a("s_barrier")
        self.stamp(10)
        def rd(i):
            b = FR2 + 8*(i % 2)
            for cb, v in ((0, vPO0), (1, vPO1)):
                for e in range(2): a.ds(f"ds_read_b64_tr_b16 {vr(b+4*cb+2*e,2)}, {v} offset:{i*8192 + e*512}", f"a{i}")
        rd(0)
        self.spin(("v27", "v29"), "g", self.g_loads)
        a(f"v_sub_f32 {V3}, 1.0, {V2}"); a(f"v_sub_f32 {V4}, 1.0, {V4}")
        for i in range(0, 32, 2): a(f"v_pk_mul_f32 {vr(ACCF+i,2)}, {vr(ACCF+i,2)}, v[26:27] op_sel:[0,1] op_sel_hi:[1,1]")
        self.poll_flags(0xff << 32, "pf")
        self.stamp(11)
        def ld(i):
            a(f"s_add_u32 {T0}, {T5}, {O_OFF + i*UNIT}")
            a.vmem(f"buffer_load_dwordx4 {ar(4*i,4)}, {vHL}, {SWS}, {T0} offen sc1", f"o{i}")
        a(f"s_lshl_b32 {T5}, {sSIDE}, 21")
        LA = 4
        for i in range(LA): ld(i)
        for i in range(8):
            if i + 1 < 8: rd(i + 1)
            if i + LA < 8: ld(i + LA)
            if i == 4: self.x_loads(True)
            a.wait(vm=f"o{i}", lg=f"a{i}")
            for cb in range(2):
                acc = ACCA + 16*cb
                a(f"v_mfma_f32_32x32x16_bf16 {vr(acc,16)}, {vr(FR2+8*(i%2)+4*cb,4)}, {ar(4*i,4)}, {'0' if i == 0 else vr(acc,16)}")
        self.stamp(12)
        def pre(b):
            for i in range(0, 4, 2): a(f"v_pk_fma_f32 {vr(ACCF+b+i,2)}, {vr(ACCA+b+i,2)}, v[26:27], {vr(ACCF+b+i,2)} op_sel_hi:[1,0,1]")
        self.red_write(ACCF, pre)
        self.stamp("rw")
        Bq = ACCA
        self.red_read(Bq)
        self.spin((f"v{PHI+3}", f"v{PHI+7}"), "x", self.x_loads)
        a(f"s_mov_b32 {T1}, 0x04000c0c"); a(f"s_mov_b32 {T2}, 0x0706000c")
        for b in (PHI, PHI + 4):
            a(f"v_perm_b32 v{b+3}, v{b+2}, v{b+1}, {T1}"); a(f"v_perm_b32 v{b+3}, v{b+3}, v{b}, {T2}")
        for i in range(0, 8, 2): a(f"v_pk_fma_f32 {vr(Bq+i,2)}, {vr(PHI+i,2)}, v[28:29], {vr(Bq+i,2)} op_sel_hi:[1,0,1]")
        for i in range(4): a(f"v_cvt_pk_bf16_f32 v{Bq+8+i}, v{Bq+2*i}, v{Bq+2*i+1}")
        a.vmem(f"buffer_store_dwordx4 {vr(Bq+8,4)}, {vXR2}, {SOUT}, 0 offen", "out")
        if self.o.get('stamps'):
            self.stamp(13)
            a("s_waitcnt vmcnt(0)"); self.stamp(14); a("s_waitcnt lgkmcnt(0)"); self.stamp(15)
            a("s_waitcnt lgkmcnt(0)"); a("s_memrealtime s[26:27]"); a("s_waitcnt lgkmcnt(0)"); a("v_writelane_b32 v23, s26, 63")
            a(f"s_lshl_b32 {T0}, s2, 3"); a(f"s_add_u32 {T0}, {T0}, {sW}"); a(f"s_lshl_b32 {T0}, {T0}, 8"); a(f"s_add_u32 {T0}, {T0}, {ST_OFF}")
            a(f"v_lshlrev_b32 {V0}, 2, {vL}")
            a(f"buffer_store_dword v23, {V0}, {SWS}, {T0} offen")
        a("s_endpgm")
    def bump(self):
        a = self.a
        Lx = a.label("nb"); L = a.label("bp"); Ld = a.label("bpd")
        a("s_cmp_eq_u32 s2, 192"); a(f"s_cbranch_scc0 {Lx}"); a(f"s_cmp_eq_u32 {sW}, 0"); a(f"s_cbranch_scc0 {Lx}")
        a(f"s_mov_b32 {T0}, {ACK_OFF}"); a(f"s_mov_b32 {sSPIN}, {SPIN}")
        a(f"{L}:")
        a(f"buffer_load_dwordx4 v[8:11], {vL16}, {SWS}, {T0} offen sc1"); a("s_waitcnt vmcnt(0)")
        a(f"v_cmp_ne_u32 vcc, {sTAG}, v8")
        for i in range(1, 4):
            a(f"v_cmp_ne_u32 {sM}, {sTAG}, v{8+i}"); a("s_nop 1"); a(f"s_or_b64 vcc, vcc, {sM}")
        a(f"s_cbranch_vccz {Ld}")
        a(f"s_sub_u32 {sSPIN}, {sSPIN}, 1"); a(f"s_cbranch_scc0 {L}")
        a(f"{Ld}:")
        a(f"v_mov_b32 {V1}, {sE}"); a(f"s_mov_b32 {T0}, {E_OFF}"); a("s_mov_b64 exec, 1")
        a(f"buffer_store_dword {V1}, off, {SWS}, {T0}"); a("s_mov_b64 exec, -1"); a("s_waitcnt vmcnt(0)")
        a(f"{Lx}:")
    def save(self): return (self.a.vm.copy(), self.a.lg.copy(), list(self.pend), list(self.wx))
    def restore(self, s): self.a.vm, self.a.lg, self.pend, self.wx = s[0].copy(), s[1].copy(), list(s[2]), list(s[3])
    def body(self):
        a = self.a
        self.prologue(); self.passA()
        s0 = self.save()
        a("s_cmp_eq_u32 s9, 0"); a("s_cbranch_scc1 L_kv")
        self.first_hh(); s1 = self.save()
        a(f"s_cmp_eq_u32 {sTB}, 1"); a("s_cbranch_scc1 L_hq")
        self.second('h', 'h')
        a("L_hq:"); self.restore(s1); self.second('h', 'q')
        a("L_kv:"); self.restore(s0)
        self.first_kv(); s1 = self.save()
        a(f"s_cmp_eq_u32 {sTB}, 1"); a("s_cbranch_scc1 L_kq")
        a(f"s_cmp_eq_u32 {sTB}, 2"); a("s_cbranch_scc1 L_r")
        self.second('k', 'h')
        a("L_kq:"); self.restore(s1); self.second('k', 'q')
        a("L_r:"); self.restore(s1); self.path_r()

class Phase2:
    def __init__(self, g, P):
        self.g = g; self.P = P; o = g.o
        self.hasq = P[-1] == 'q'; self.nr1 = {'kq': 0, 'hh': 2}.get(P, 1); self.late = P in ('hh', 'kh')
        self.opt = lambda k, d: o.get(k + P, o.get(k, d))
        k1 = self.opt('k1', 2)
        E1 = [(1, 'r', k) for k in range(6)]; E2 = [(2, 'r', k) for k in range(10)]
        if self.nr1: self.seq = E1 + E2[:k1] + [(1, 's', u) for u in range(6, 11)] + E2[k1:] + [(2, 's', 10)]; self.i_send = 11 + k1
        else: self.seq = E2 + [(2, 's', 10)]; self.i_send = None
        m = lambda x: {0: x & 0xffff, 1: x, 2: x | ((x >> 16) << 48)}[self.nr1]
        self.masks = (m(M_EARLY), m(M_MID), m(M_LATE))
        self.issued = {}; self.done = -1; self.nslot = 0; self.owner = {}
        self.ok = {'mid': False, 'late': False}
        self.bufs = [vr(FR2, 8), vr(FR2 + 8, 8), ar(120, 8) if self.hasq else vr(PHI, 8)]
    def sub(self, b, lo, n):
        kind = b[0]; base = int(b[2:b.index(':')]); return f"{kind}[{base+lo}:{base+lo+n-1}]"
    def idx(self, e, dst):
        a = self.g.a; rnd, kind, k = e
        if kind == 's': a(f"s_mov_b32 {dst}, {k}"); return
        n, r = ((6, sR1), (10, sR2))[rnd - 1]
        a(f"s_add_u32 {dst}, {r}, {k}"); a(f"s_cmp_ge_u32 {dst}, {n}"); a(f"s_cselect_b32 {sA2}, {n}, 0"); a(f"s_sub_u32 {dst}, {dst}, {sA2}")
    def nld(self, i): return self.nr1 if self.seq[i][0] == 1 else 1
    def can(self, i):
        e = self.seq[i]
        for t in range(self.nld(i)):
            if self.owner.get((self.nslot + t) % 24, -1) > self.done: return False
        if e[1] == 'r': return True
        return self.ok['late'] if (e[0] == 1 and e[2] >= 9) else self.ok['mid']
    def ld(self, i):
        a = self.g.a; e = self.seq[i]; fs = []; self.issued[i] = []
        for t in range(self.nld(i)):
            sl = self.nslot % 24; self.nslot += 1; self.owner[sl] = i; self.issued[i].append(sl)
            def f(t=t, sl=sl):
                if t == 0:
                    self.idx(e, sStrB64); a(f"s_lshl_b32 {sStrB64}, {sStrB64}, 13"); a(f"s_add_u32 {sStrB64}, {sStrB64}, {sH1 if e[0] == 1 else sH2}")
                    if e[1] == 's' and e[2] == 10:
                        a(f"s_and_b32 {sA2}, {sSIDE}, {sBB}"); a(f"s_cselect_b32 {sStrB64}, 0x40000000, {sStrB64}")
                a.vmem(f"buffer_load_dwordx4 {ar(4*sl,4)}, {vHL if t == 0 else vAR0}, {SWS}, {sStrB64} offen sc1", f"h{i}")
            fs.append(f)
        return fs
    def issue(self, upto, n, defer=False):
        for i in range(len(self.seq)):
            if n <= 0: break
            if i not in self.issued and i <= upto and self.can(i):
                fs = self.ld(i); n -= len(fs)
                if defer: self.g.push(*fs)
                else:
                    for f in fs: f()
    def rd(self, i):
        a = self.g.a; b = self.bufs[i % 3]
        self.idx(self.seq[i], sA0); a(f"s_lshl_b32 {sA0}, {sA0}, 13")
        a(f"v_add_u32 {vPM0}, {sA0}, {vPR0}"); a(f"v_add_u32 {vPM1}, {sA0}, {vPR1}")
        for cb, v in ((0, vPM0), (1, vPM1)):
            for e in range(2): a.ds(f"ds_read_b64_tr_b16 {self.sub(b, 4*cb+2*e, 2)}, {v} offset:{W2B + e*512}", f"u{i}")
    def begin(self, pre, defer):
        g = self.g; a = g.a
        g.poll_flags(self.masks[0], pre)
        g.stamp(8)
        if self.nr1 == 2: a(f"v_xor_b32 {vAR0}, {2 << 18}, {vHL}"); a(f"v_lshrrev_b32 {V1}, 3, {vL}"); a(f"v_cmp_eq_u32 vcc, 3, {V1}"); a(f"v_xor_b32 {V1}, 0x100, {vAR0}"); a(f"v_cndmask_b32 {vAR0}, {vAR0}, {V1}, vcc")
        self.issue(99, self.opt('la0', 12 if defer else 6), defer)
    def send(self, src, rf, xor):
        g = self.g; a = g.a
        g.red_write(src, None, rf)
        g.red_read(ACCP)
        a(f"s_mov_b32 {T3}, 0x07060501"); a(f"s_mov_b32 {T4}, 0x07060502"); a(f"s_mov_b32 {T5}, 0x07060503"); a(f"s_xor_b32 {T2}, {sUB}, {xor}")
        for D in (ACCP, ACCP + 4):
            a(f"v_perm_b32 v{D}, v{D}, v{D+3}, {T3}"); a(f"v_perm_b32 v{D+1}, v{D+1}, v{D+3}, {T4}"); a(f"v_perm_b32 v{D+2}, v{D+2}, v{D+3}, {T5}")
            a(f"v_mov_b32 v{D+3}, {sTAG}")
        a.vmem(f"buffer_store_dwordx4 {vr(ACCP,4)}, {vL16}, {SWS}, {T2} offen sc1", "xst")
        a.vmem(f"buffer_store_dwordx4 {vr(ACCP+4,4)}, {vL16}, {SWS}, {T2} offen offset:1024 sc1", "xst")
        a("s_barrier")
    def main(self):
        g = self.g; a = g.a; seq = self.seq; N = len(seq); i_send = self.i_send
        g.red_addr(R if self.nr1 else W2B)
        a.wait(vm="w2"); a("s_barrier")
        g.stamp("f0")
        LA = self.opt('la', 6)
        pm, cm = self.opt('pm', 1), self.opt('cm', 4); pl, cl = self.opt('pl', 4), self.opt('cl', (i_send or 0) - 5)
        if not self.nr1: pm, cm = self.opt('pm0', 3), self.opt('cm0', 6); pl = cl = -1; g.push(lambda: g.touch(O_OFF, sHP, V6), *g.dmaWO())
        base = i_send - 1 if self.nr1 else self.opt('fi', 4)
        i_o = min(N - 1, base + self.opt('so', 4 if self.nr1 else 99)); i_f = min(N - 1, i_o + self.opt('sf', 2))
        first = {1: True, 2: True}
        self.rd(0); self.rd(1)
        for i in range(N):
            if i == cm: g.poll_flags(self.masks[1], "pf"); self.ok['mid'] = True
            if i == cl: g.poll_flags(self.masks[2], "pf"); self.ok['late'] = True
            if i == pm or i == pl: g.pf_issue()
            self.issue(i + LA, 2*self.nld(i))
            assert i in self.issued, (self.P, i, self.issued)
            if i + 2 < N: self.rd(i + 2)
            rnd = seq[i][0]
            a.wait(vm=f"h{i}", lg=f"u{i}")
            for t, sl in enumerate(self.issued[i]):
                for cb in range(2):
                    acc = ar(96 + 16*cb, 16) if t else vr((ACCP if rnd == 1 else ACCF) + 16*cb, 16)
                    a(f"v_mfma_f32_32x32x16_bf16 {acc}, {self.sub(self.bufs[i % 3], 4*cb, 4)}, {ar(4*sl,4)}, {'0' if first[rnd] else acc}")
            first[rnd] = False; self.done = i
            g.slot(self.opt('wo_per', 1))
            if self.late and i == self.opt('hf', 3): a.wait(vm="hst"); g.flag_h(True)
            if g.o.get('stamps', 0) >= 3 or i in (0, 5, N - 1) or i + 1 == i_send: g.stamp(f"u{i}")
            if i + 1 == i_send:
                self.issue(99, 99)
                assert len(self.issued) == N
                if self.hasq: g.touch(O_OFF, sHP, V6); g.f_issue()
                a.wait(lg=f"u{i+2}")
                self.send(ACCP, vr, 0)
                if self.nr1 == 2: self.send(96, ar, 0x20000)
                g.stamp("xs")
                g.push(*g.dmaWO())
                for r in (vX0, vX1, vWA, vWB, vXR0, vXR1): a(f"v_subrev_u32 {r}, {R - W2B}, {r}")
            if self.hasq and not self.nr1 and i == base: g.f_issue()
            if self.hasq and i == i_o: a.wait(lg=f"u{min(N-1, i+2)}"); g.f_check(); g.o_compute()
            if self.hasq and i == i_f: a.wait(vm="ost"); g.flag_o()
            if self.P == 'r' and i == i_send + 1: g.bump()
        g.flush()
        g.tail2()

if __name__ == '__main__':
    out = sys.argv[1]
    opt = json.loads(sys.argv[2]) if len(sys.argv) > 2 else {}
    open(out, 'w').write(Gen2(opt).build())
```

```python
import sys, json
from asmlib import *
import gen as B
from gen import *

FH_OFF = 0x1140000
FO_OFF = 0x1144000
STEP = 2048; UNIT = 8192; O_OFF = 88*STEP
X_OFF = 0x1400000
W2B = 8192
KVT = 0
sOWN, sUA, sUB, sPI, sMM, sSIDE = sHG, sU0, sU1, "s14", "s15", "s16"
sTB = sType
sR1, sR2, sH1, sH2, sW2O = "s4", "s5", "s6", "s7", "s8"
vL16 = vG
ACCP = ACCA
WP0V = V3
def nib(vals):
    v = 0
    for i, x in enumerate(vals): v |= x << (4*i)
    return v
T_A   = nib([0, 0, 0, 0, 1, 1, 1, 1, 1, 0, 0, 0, 0, 1, 1, 1])
T_B   = nib([1, 1, 1, 1, 1, 1, 1, 1, 0, 0, 0, 2, 2, 0, 0, 0])
T_OWN = nib([1, 1, 1, 1, 1, 1, 1, 1, 1, 0, 0, 0, 0, 0, 0, 0])
T_K   = nib([0, 1, 2, 3, 4, 5, 6, 7, 0, 0, 1, 2, 3, 0, 0, 0])
T_UA  = nib([0, 0, 0, 0, 0, 2, 4, 6, 8, 0, 0, 0, 0, 0, 2, 4])
T_UB  = nib([0, 0, 0, 0, 0, 0, 0, 0,10, 9,10, 0, 0, 6, 7, 8])
T_N   = nib([0, 1, 2, 4, 5, 6, 7, 3, 0, 5, 6, 7, 3, 1, 2, 4])
T_C0  = nib([0, 1, 2, 3, 4, 5, 6, 7, 0, 0, 1, 2, 3, 4, 5, 6])
T_PI  = nib([0, 0, 0, 0, 0, 1, 2, 3, 4, 4, 5, 0, 0, 0, 1, 2])
M_EARLY = 0x0007001F; M_MID = 0x07001000; M_LATE = 0x30000000

class Gen2(Gen):
    def table(self, dst, tab):
        a = self.a
        a(f"s_mov_b32 s92, {tab & 0xffffffff:#x}"); a(f"s_mov_b32 s93, {tab >> 32:#x}"); a(f"s_lshr_b64 s[92:93], s[92:93], {T0}"); a(f"s_and_b32 {dst}, s92, 15")
    def dmaW2(self, grp, k):
        a = self.a; n, lo = ((6, 5), (5, 0))[grp]
        def f():
            a(f"s_add_u32 {sA0}, {sMM}, {k}")
            if grp == 0: a(f"s_add_u32 {sA0}, {sA0}, {sMM}")
            for _ in range(2 if grp == 0 else 1):
                a(f"s_cmp_ge_u32 {sA0}, {n}"); a(f"s_cselect_b32 {sA1}, {n}, 0"); a(f"s_sub_u32 {sA0}, {sA0}, {sA1}")
            a(f"s_lshl_b32 {sA1}, {sA0}, 13"); a(f"s_add_u32 {sA1}, {sA1}, {sW1k}")
            a(f"s_lshl_b32 {sA0}, {sA0}, 16"); a(f"s_add_u32 {sA0}, {sA0}, {sW2O}")
            if lo: a(f"s_add_u32 {sA0}, {sA0}, {lo*65536}")
            self.dma(vW2, SW2, sA0, f"s_add_u32 m0, {sA1}, {W2B + lo*8192}", "w2")
        return f
    def w2x(self): return [self.dmaW2(0, k) for k in range(6)]
    def w2y(self): return [self.dmaW2(1, k) for k in range(5)]
    def dmaWO(self):
        a = self.a
        def mk(i):
            def f():
                a(f"s_lshl_b32 {sA0}, {sMM}, 1"); a(f"s_add_u32 {sA0}, {sA0}, {i}"); a(f"s_and_b32 {sA0}, {sA0}, 7")
                a(f"s_lshl_b32 {sA1}, {sA0}, 13"); a(f"s_add_u32 {sA1}, {sA1}, {sW1k}"); a(f"s_lshl_b32 {sA0}, {sA0}, 16")
                self.dma(vW2, SWO, sA0, f"s_add_u32 m0, {sA1}, {R}", "wo")
            return f
        return [mk(i) for i in range(8)]
    def touch(self, base, idx, junk):
        a = self.a
        if 't' in self.o.get('skip', ''): return
        a(f"v_bfe_u32 {junk}, {vL}, 2, 1"); a(f"v_lshl_add_u32 {junk}, {junk}, 11, {vHS}")
        a(f"s_lshl_b32 {T2}, {idx}, 13"); a(f"s_add_u32 {T2}, {T2}, {base}")
        a.vmem(f"buffer_load_dword {junk}, {junk}, {SWS}, {T2} offen {self.o.get('tfl', '')}", "touch")
    def wo_touch(self, junk):
        a = self.a
        if not self.o.get('wot', 1): return
        a(f"v_lshrrev_b32 {junk}, 1, {vL}"); a(f"v_lshlrev_b32 {junk}, 10, {junk}")
        a(f"s_lshr_b32 {T2}, {sMM}, 1"); a(f"s_lshl_b32 {T2}, {T2}, 3"); a(f"s_add_u32 {T2}, {T2}, {sW}"); a(f"s_lshl_b32 {T2}, {T2}, 15"); a(f"s_lshl_b32 {T3}, {sN}, 7"); a(f"s_add_u32 {T2}, {T2}, {T3}")
        a.vmem(f"buffer_load_dword {junk}, {junk}, {SWO}, {T2} offen", "touch")
    def poll_flags(self, mask, pre_issued=None):
        a = self.a; L = a.label("pf"); Ld = a.label("pfd")
        if pre_issued is None:
            a.vmem(f"buffer_load_dword {V0}, {vFL}, {SWS}, 0 offen sc1", "pf"); pre_issued = "pf"
        a.wait(vm=pre_issued)
        a(f"s_mov_b32 {sSPIN}, {SPIN}")
        a(f"{L}:")
        a(f"v_cmp_ne_u32 vcc, {sTAG}, {V0}"); a("s_nop 1")
        if mask >> 32 and mask & 0xffffffff:
            a(f"s_and_b32 {T0}, vcc_lo, {mask & 0xffffffff:#x}"); a(f"s_and_b32 {T1}, vcc_hi, {mask >> 32:#x}"); a(f"s_or_b32 {T0}, {T0}, {T1}")
        elif mask >> 32: a(f"s_and_b32 {T0}, vcc_hi, {mask >> 32:#x}")
        else: a(f"s_and_b32 {T0}, vcc_lo, {mask:#x}")
        a(f"s_cbranch_scc0 {Ld}")
        a(f"s_sub_u32 {sSPIN}, {sSPIN}, 1"); a(f"s_cbranch_scc1 {Ld}")
        a(f"buffer_load_dword {V0}, {vFL}, {SWS}, 0 offen sc1"); a("s_waitcnt vmcnt(0)")
        a(f"s_branch {L}")
        a(f"{Ld}:")
    def pf_issue(self): self.a.vmem(f"buffer_load_dword {V0}, {vFL}, {SWS}, 0 offen sc1", "pf")
    def flag_word(self, addr):
        a = self.a
        a(f"v_mov_b32 {V1}, {sTAG}")
        a(f"s_mov_b64 exec, 1")
        self.store_mode(lambda f: a(f"buffer_store_dword {V1}, off, {SWS}, {addr}{f}"), "flag", 1)
        a(f"s_mov_b64 exec, -1")
    def flag_h(self, late):
        a = self.a
        a(f"s_add_u32 {T0}, {sPI}, {32 if late else 0}"); self.flag_word(T0)
    def flag_o(self):
        a = self.a
        a(f"s_and_b32 {T1}, {sRB}, 1"); a(f"s_lshl_b32 {T0}, {sC}, 1"); a(f"s_add_u32 {T0}, {T0}, {T1}"); a(f"s_lshl_b32 {T0}, {T0}, 2"); a(f"s_add_u32 {T0}, {T0}, {sTG}")
        a(f"s_lshl_b32 {T0}, {T0}, 1"); a(f"s_add_u32 {T0}, {T0}, {sBB}"); a(f"s_lshl_b32 {T0}, {T0}, 4"); a(f"s_add_u32 {T0}, {T0}, {sHP}")
        a(f"s_lshl_b32 {T0}, {T0}, 2"); a(f"s_add_u32 {T0}, {T0}, {FO_OFF}")
        self.flag_word(T0)
    def prologue(self):
        a = self.a; o = self.o
        a("s_cmp_ge_u32 s2, 256"); a("s_cbranch_scc1 L_end")
        a("s_load_dwordx16 s[4:19], s[0:1], 0"); a("s_load_dwordx4 s[20:23], s[0:1], 64"); a("s_load_dwordx2 s[24:25], s[0:1], 80")
        if o.get('stamps'): a("s_memtime s[26:27]"); a("s_memrealtime s[66:67]")
        if o.get('span'): a("s_memrealtime s[26:27]")
        a(f"v_lshrrev_b32 {V0}, 6, v0"); a(f"v_and_b32 {vL}, 63, v0"); a(f"v_readfirstlane_b32 {sW}, {V0}")
        a(f"s_and_b32 {sC}, s2, 7"); a(f"s_lshr_b32 {T0}, s2, 3"); a(f"s_and_b32 {T1}, {T0}, 1"); a(f"s_lshr_b32 {sJ}, {T0}, 1")
        a(f"s_lshl_b32 {T0}, {sJ}, 2")
        self.table(sType, T_A); self.table(sOWN, T_OWN); self.table(sA2, T_K); self.table(sUA, T_UA)
        if o.get('c0tab', 1): self.table(sC0, T_C0)
        else: a(f"s_mov_b32 {sC0}, {sJ}")
        a(f"s_and_b32 {sA1}, {sC}, 1")
        a(f"s_lshl_b32 {T2}, {sA1}, 2"); a(f"s_xor_b32 {sA2}, {sA2}, {T2}")
        a(f"s_mul_i32 {T2}, {sA1}, 11"); a(f"s_add_u32 {sUA}, {sUA}, {T2}")
        a(f"s_xor_b32 {T2}, {sOWN}, 1"); a(f"s_xor_b32 {T2}, {T2}, {sC}"); a(f"s_lshl_b32 {sRB}, {T2}, 1"); a(f"s_or_b32 {sRB}, {sRB}, {T1}")
        a(f"s_mul_i32 {T2}, {sRB}, {o.get('rotr', 0)}"); a(f"s_mul_i32 {sC0}, {sC0}, {o.get('rotj', 1)}"); a(f"s_add_u32 {sC0}, {sC0}, {T2}")
        a(f"s_mul_i32 {T2}, {sC}, {o.get('rotc', 1)}"); a(f"s_add_u32 {sC0}, {sC0}, {T2}"); a(f"s_and_b32 {sC0}, {sC0}, 7")
        a(f"s_and_b32 {sTG}, {sW}, 3"); a(f"s_lshr_b32 {sBB}, {sW}, 2"); a(f"s_lshl_b32 {sW1k}, {sW}, 10"); a(f"s_lshl_b32 {sW2k}, {sW}, 11")
        a(f"s_add_u32 {T2}, {sA2}, 8")
        a(f"s_cmp_eq_u32 {sType}, 0")
        self.csel(T3, 3072, 2752); self.csel(T5, 1024, 128); a(f"s_cselect_b32 {T4}, {T2}, {sUA}"); self.csel("s34", 512*3072, 512*2752)
        a(f"s_lshl_b32 {T4}, {T4}, 7")
        a(f"s_lshl_b32 {sStrA64}, {T3}, 6"); a(f"s_lshl_b32 {sStrA4}, {T3}, 2")
        a(f"s_lshl_b32 {T0}, {sRB}, 7"); a(f"s_lshl_b32 {T1}, {sW}, 4"); a(f"s_add_u32 {T0}, {T0}, {T1}"); a(f"s_lshl_b32 {T0}, {T0}, 10")
        a(f"v_lshrrev_b32 {V0}, 3, {vL}"); a(f"v_lshrrev_b32 {V1}, 4, {vL}"); a(f"v_and_b32 {V2}, 7, {vL}")
        a(f"v_xor_b32 {V3}, {V2}, {V1}"); a(f"v_lshlrev_b32 {V3}, 4, {V3}"); a(f"v_lshl_add_u32 {vX0}, {V0}, 10, {V3}"); a(f"v_add_u32 {vX0}, {T0}, {vX0}")
        a(f"v_xor_b32 {vX1}, 64, {vX0}"); a(f"v_add_u32 {vX1}, 0x2000, {vX1}")
        a(f"s_lshl_b32 {T1}, {sW}, 3")
        a(f"v_add_u32 {V3}, {T1}, {V1}"); a(f"v_mul_lo_u32 {vWA}, {V3}, {T3}")
        a(f"v_and_b32 {V3}, 15, {vL}"); a(f"v_lshlrev_b32 {V4}, 2, {V1}"); a(f"v_xor_b32 {V3}, {V3}, {V4}")
        a(f"v_lshrrev_b32 {V4}, 3, {V3}"); a(f"v_mul_lo_u32 {V4}, {V4}, {T5}"); a(f"v_and_b32 {V3}, 7, {V3}")
        a(f"v_lshl_add_u32 {V4}, {V3}, 4, {V4}"); a(f"v_add3_u32 {vWA}, {vWA}, {V4}, {T4}")
        a("s_mov_b32 s30, 0x200000"); a("s_mov_b32 s31, 0x20000"); a("s_mov_b32 s35, 0x20000")
        a(f"s_cmp_eq_u32 {sType}, 0")
        a("s_waitcnt lgkmcnt(0)")
        if o.get('stamps'): a("v_mov_b32 v23, 0"); a(f"s_mov_b32 {sST}, 0"); a("v_writelane_b32 v23, s66, 62")
        a("s_mov_b32 s28, s4"); a("s_mov_b32 s29, s5"); a(f"s_mov_b32 {sHP}, {sA2}")
        a("s_cselect_b32 s32, s6, s14"); a("s_cselect_b32 s33, s7, s15")
        a(f"s_mov_b32 {sMODE}, {sA1}")
        for f in self.dmaA(0): f()
        c1 = self.dmaA(1)
        a(f"s_lshl_b32 {T0}, {sJ}, 2")
        self.srd(STMP, 8, 16384)
        if o.get('wsoff'): a(f"s_add_u32 s24, s24, {o['wsoff']:#x}"); a("s_addc_u32 s25, s25, 0")
        a(f"s_mov_b32 s9, {sType}")
        self.table(sTB, T_B); self.table(sUB, T_UB); self.table(T1, T_PI); self.table(sN, T_N)
        a(f"s_mul_i32 {T2}, {sMODE}, 11"); a(f"s_add_u32 {sUB}, {sUB}, {T2}"); a(f"s_lshl_b32 {sW2O}, {T2}, 16")
        a(f"s_cmp_eq_u32 {sTB}, 1")
        a("s_cselect_b32 s36, s6, s14"); a("s_cselect_b32 s37, s7, s15"); self.csel("s38", 512*3072, 512*2752); a("s_mov_b32 s39, 0x20000")
        self.csel(T3, 3072, 2752); a(f"s_cselect_b32 {T4}, {sHP}, {sUB}")
        a(f"s_lshl_b32 {sStrB64}, {T3}, 6"); a(f"s_lshl_b32 {T4}, {T4}, 7")
        a(f"s_cmp_eq_u32 {sTB}, 2"); a(f"s_cselect_b32 {T4}, 0x40000000, {T4}")
        self.srd(SW2, 16, 1376*1024); self.srd(SWO, 10, 512*1024); self.srd(SWS, 24, WS_SIZE);
        self.srd(SOUT, 20, 0x200000); self.srd(SDBG, 22, 256)
        a(f"s_mov_b32 {sSIDE}, {sMODE}")
        a(f"s_lshl_b32 {T2}, {sC}, 1"); a(f"s_xor_b32 {T5}, {sOWN}, 1"); a(f"s_add_u32 {T2}, {T2}, {T5}"); a(f"s_lshl_b32 {T2}, {T2}, 1"); a(f"s_and_b32 {T5}, {sRB}, 1")
        a(f"s_add_u32 {T2}, {T2}, {T5}"); a(f"s_lshl_b32 {T2}, {T2}, 2"); a(f"s_add_u32 {T2}, {T2}, {sTG}"); a(f"s_lshl_b32 {T2}, {T2}, 1"); a(f"s_add_u32 {T2}, {T2}, {sBB}")
        a(f"s_lshl_b32 {T2}, {T2}, 4"); a(f"s_add_u32 {T2}, {T2}, {T1}"); a(f"s_lshl_b32 {T2}, {T2}, 2"); a(f"s_add_u32 {sPI}, {T2}, {FH_OFF}")
        a(f"s_lshl_b32 {T5}, {T5}, 1"); a(f"s_add_u32 {sMM}, {T5}, s9")
        a(f"v_and_b32 {V3}, 1, {V1}"); a(f"v_lshlrev_b32 {V3}, 2, {V3}"); a(f"v_xor_b32 {V3}, {V3}, {V2}"); a(f"v_lshlrev_b32 {V3}, 4, {V3}")
        a(f"s_lshl_b32 {T1}, {sW}, 3"); a(f"v_add_u32 {V4}, {T1}, {V0}")
        a(f"v_mul_lo_u32 {vWB}, {V4}, {T3}"); a(f"v_add3_u32 {vWB}, {vWB}, {V3}, {T4}")
        a(f"s_lshl_b32 {T1}, {sN}, 7"); a(f"v_lshl_add_u32 {vW2}, {V4}, 10, {V3}"); a(f"v_add_u32 {vW2}, {T1}, {vW2}")
        a(f"v_lshlrev_b32 {vL16}, 4, {vL}")
        Lg = a.label("gsrd")
        a(f"s_cmp_eq_u32 {sJ}, 11"); a(f"s_cbranch_scc0 {Lg}")
        a("s_mov_b32 s36, s18"); a("s_mov_b32 s37, s19"); a("s_mov_b32 s38, 1024"); a(f"s_mov_b32 {sStrB64}, 0")
        a(f"v_add_u32 {V4}, {sC0}, {V0}"); a(f"v_and_b32 {V4}, 7, {V4}"); a(f"v_lshlrev_b32 {V3}, 4, {V2}"); a(f"v_lshl_add_u32 {vWB}, {V4}, 7, {V3}")
        a(f"{Lg}:")
        c1[0]()
        a(f"v_lshrrev_b32 {V0}, 5, {vL}"); a(f"v_bfe_u32 {V2}, {vL}, 2, 2")
        a(f"v_and_b32 {V3}, 1, {vL}"); a(f"v_bfe_u32 {V4}, {vL}, 1, 1"); a(f"v_lshl_add_u32 {V3}, {V3}, 1, {V4}"); a(f"v_lshlrev_b32 {V3}, 3, {V3}")
        a(f"v_and_b32 {V6}, 1, {V1}"); a(f"v_lshl_add_u32 {V3}, {V6}, 5, {V3}")
        a(f"v_lshl_add_u32 {V4}, {V0}, 3, {V2}")
        a(f"v_xor_b32 {V5}, {sBB}, {V2}"); a(f"v_lshlrev_b32 {V5}, 6, {V5}"); a(f"v_lshl_add_u32 {V5}, {V4}, 8, {V5}"); a(f"v_add_u32 {V5}, {V5}, {V3}")
        a(f"v_add_u32 {vAR0}, {WSL(0)}, {V5}"); a(f"v_xor_b32 {vAR1}, 128, {vAR0}")
        a(f"v_and_b32 {V7}, 31, {vL}"); a(f"v_bfe_u32 {V5}, {vL}, 1, 3"); a(f"v_xor_b32 {V5}, {V5}, {V0}"); a(f"v_lshlrev_b32 {V5}, 4, {V5}")
        a(f"s_lshl_b32 {T0}, {sTG}, 12"); a(f"v_lshl_add_u32 {vXR0}, {V7}, 7, {V5}"); a(f"v_add_u32 {vXR0}, {T0}, {vXR0}")
        a(f"v_xor_b32 {vXR1}, 32, {vXR0}"); a(f"v_xor_b32 {vXR2}, 64, {vXR0}"); a(f"v_xor_b32 {vXR3}, 0x60, {vXR0}")
        c1[1]()
        a(f"v_lshrrev_b32 {V5}, 1, {V2}"); a(f"v_lshlrev_b32 {V5}, 6, {V5}"); a(f"v_lshl_add_u32 {V5}, {V4}, 7, {V5}"); a(f"v_add_u32 {V5}, {V5}, {V3}")
        a(f"s_lshl_b32 {T0}, {sBB}, 6"); a(f"v_xor_b32 {vBR}, {T0}, {V5}"); a(f"v_add_u32 {vBR}, {R}, {vBR}")
        a(f"s_lshr_b32 {T0}, {sW}, 1"); a(f"s_lshl_b32 {T0}, {T0}, 11"); a(f"v_add_u32 {vPR0}, {T0}, {V5}"); a(f"v_xor_b32 {vPR1}, 64, {vPR0}")
        a(f"v_add_u32 {vPO0}, {R}, {vPR0}"); a(f"v_add_u32 {vPO1}, {R}, {vPR1}")
        a(f"v_mul_u32_u24 {V5}, {512-32}, {V6}"); a(f"v_add_u32 {V5}, {V5}, {V3}"); a(f"v_lshl_add_u32 {V5}, {V4}, 5, {V5}")
        a(f"s_lshl_b32 {T0}, {sBB}, 12"); a(f"s_add_u32 {T0}, {T0}, {R + 57344}"); a(f"v_add_u32 {MWP}, {T0}, {V5}")
        a(f"s_cmp_ge_u32 {sN}, 6"); a(f"s_cselect_b32 {T0}, 6, 0"); a(f"s_sub_u32 {sR1}, {sN}, {T0}"); a(f"s_mov_b32 {sR2}, {sN}")
        if not o.get('hrot', 1): a(f"s_mov_b32 {sR1}, 0"); a(f"s_mov_b32 {sR2}, 0")
        a(f"s_lshr_b32 {T0}, {sW2O}, 3"); a(f"s_lshl_b32 {T1}, {sSIDE}, 21"); a(f"s_add_u32 {sH2}, {T0}, {T1}"); a(f"s_xor_b32 {T1}, {T1}, 0x200000"); a(f"s_add_u32 {sH1}, {T0}, {T1}")
        a(f"s_lshl_b32 {sC32}, {sC}, 5")
        a(f"s_mov_b32 {sL2E}, 0x3fb8aa3b"); a("s_mov_b32 s0, 0x3fb8aa3b"); a("s_mov_b32 s1, 0x3fb8aa3b")
        c1[2]()
        a(f"s_lshl_b32 {T0}, {sMM}, 1"); a(f"s_and_b32 {T1}, {sW}, 1"); a(f"s_add_u32 {T0}, {T0}, {T1}")
        a(f"s_lshr_b32 {T1}, {sW}, 1")
        a(f"v_lshrrev_b32 {V3}, 3, {vL}"); a(f"v_cmp_eq_u32 vcc, 3, {V3}")
        a(f"s_and_b32 {T2}, {T0}, 3"); a(f"s_add_u32 {T2}, {T2}, 9"); a(f"s_lshl_b32 {T2}, {T2}, 7"); a(f"v_add_u32 {V3}, {T2}, {vL16}"); a(f"v_cndmask_b32 {V3}, {vL16}, {V3}, vcc")
        a(f"s_and_b32 {T3}, {sC}, 6"); a(f"s_lshl_b32 {T3}, {T3}, 3"); a(f"s_add_u32 {T3}, {T3}, {T0}")
        a(f"s_lshl_b32 {T2}, {T3}, 18"); a(f"s_lshl_b32 {T3}, {T1}, 11"); a(f"s_add_u32 {T2}, {T2}, {T3}"); a(f"v_add_u32 {vHL}, {T2}, {V3}")
        a(f"s_add_u32 {T2}, {sTG}, 9"); a(f"s_lshl_b32 {T2}, {T2}, 7"); a(f"v_add_u32 {V3}, {T2}, {vL16}"); a(f"v_cndmask_b32 {vHS}, {vL16}, {V3}, vcc")
        a(f"s_lshl_b32 {T0}, {T0}, 1"); a(f"s_lshr_b32 {T1}, {T1}, 1"); a(f"s_add_u32 {T0}, {T0}, {T1}"); a(f"s_lshl_b32 {T0}, {T0}, 6")
        a(f"s_lshl_b32 {T1}, {sC}, 11"); a(f"s_add_u32 {T1}, {T1}, {T0}"); a(f"s_add_u32 {T1}, {T1}, {FH_OFF}")
        a(f"s_lshl_b32 {T2}, {sC}, 10"); a(f"s_add_u32 {T2}, {T2}, {T0}"); a(f"s_add_u32 {T2}, {T2}, {FO_OFF}")
        a(f"v_and_b32 {V3}, 15, {vL}"); a(f"v_lshlrev_b32 {V3}, 2, {V3}"); a(f"v_add_u32 {V4}, {T2}, {V3}"); a(f"v_lshl_add_u32 {V3}, {V6}, 10, {V3}"); a(f"v_add_u32 {V3}, {T1}, {V3}")
        a(f"v_cmp_gt_u32 vcc, 32, {vL}"); a(f"v_cndmask_b32 {vFL}, {V4}, {V3}, vcc")
        a(f"v_xor_b32 {V3}, 0x100, {V3}"); a(f"v_cmp_gt_u32 vcc, 48, {vL}"); a(f"v_cndmask_b32 {vFL}, {V3}, {vFL}, vcc")
        a(f"s_lshl_b32 {T0}, {sRB}, 2"); a(f"s_add_u32 {T0}, {T0}, {sTG}"); a(f"s_lshl_b32 {T0}, {T0}, 18"); a(f"s_lshl_b32 {T1}, {sBB}, 12"); a(f"s_add_u32 {T0}, {T0}, {T1}")
        a(f"v_add_u32 {vHS}, {T0}, {vHS}")
        c1[3]()
        def census():
            a(f"s_getreg_b32 {sXCC}, hwreg(HW_REG_XCC_ID, 0, 4)")
            a(f"s_mul_i32 {T2}, {sXCC}, {sXCC}"); a(f"s_lshl_b32 {T2}, {T2}, 16"); a(f"s_lshl_b32 {T3}, {sXCC}, 8"); a(f"s_add_u32 {T2}, {T2}, {T3}"); a(f"s_add_u32 {T2}, {T2}, 1")
            a(f"s_cmp_eq_u32 {sW}, 0"); a(f"s_cselect_b32 {T0}, {sC32}, 0x1000")
            a(f"v_mov_b32 {MAT}, {T2}")
            a("s_mov_b64 exec, 1")
            a.vmem(f"buffer_atomic_add {MAT}, off, {SDBG}, {T0}", "misc")
            a("s_mov_b64 exec, -1")
        def m_wphi():
            L1 = a.label("wp"); L2 = a.label("wpd")
            a(f"s_lshl_b32 {T0}, {sHP}, 11"); a(f"s_lshl_b32 {T1}, {sBB}, 10"); a(f"s_add_u32 {T0}, {T0}, {T1}")
            a(f"s_add_u32 m0, {sW1k}, {R + 57344}")
            a(f"s_cmp_eq_u32 {sTG}, 0"); a(f"s_cbranch_scc0 {L1}")
            a.vmem(f"buffer_load_dwordx4 {vL16}, {STMP}, {T0} offen lds", "misc")
            a(f"s_branch {L2}"); a(f"{L1}:")
            a(f"buffer_load_dword {MJ}, off, {STMP}, {T0}")
            a(f"{L2}:")
        def m_e():
            a(f"s_mov_b32 {T0}, {E_OFF}")
            a.vmem(f"buffer_load_dword {ME}, off, {SWS}, {T0} sc1", "misc")
        def m_code():
            a("s_getpc_b64 s[90:91]"); a("L_pc:")
            a(f"s_lshr_b32 {T0}, s2, 3"); a(f"s_lshl_b32 {T0}, {T0}, 3"); a(f"s_add_u32 {T0}, {T0}, {sW}"); a(f"s_mul_i32 {T0}, {T0}, 184")
            a(f"s_min_u32 {T0}, {T0}, L_end-L_pc-68"); a(f"v_and_b32 {MAT}, 64, {vL16}"); a(f"v_add_u32 {MAT}, {T0}, {MAT}")
            a.vmem(f"global_load_dword {MJ}, {MAT}, s[90:91]", "misc")
        m_fl = lambda: a.vmem(f"buffer_load_dword {MJ}, {vFL}, {SWS}, 0 offen sc1", "misc")
        m_code(); census()
        self.misc = [m_e, m_wphi, m_fl]
        self.stamp(1)
    def passA(self):
        a = self.a; o = self.o
        xr = [vXR0, vXR1, vXR2, vXR3]; buf = [FR, FR + 8, FR + 16, PHI]
        def reads(c, st):
            s = c % 3; b = buf[st]
            a.ds(f"ds_read_b128 {ar(16*c+4*st,4)}, {xr[st]} offset:{XS(s)}", f"r{st}")
            for u, v in ((0, vAR0), (1, vAR1)):
                for e in range(2):
                    a.ds(f"ds_read_b64_tr_b16 {vr(b+4*u+2*e,2)}, {v} offset:{s*16384 + st*4096 + e*1024}", f"r{st}")
        def landed(tag, n):
            assert a.vm.q.count(tag) == n, (tag, a.vm.q)
            a.wait(vm=tag)
        def m1(c, st, u):
            acc = (ACC0, ACC1)[u]
            cc = "0" if (c == 0 and st == 0) else vr(acc, 16)
            a(f"v_mfma_f32_32x32x16_bf16 {vr(acc,16)}, {vr(buf[st]+4*u,4)}, {ar(16*c+4*st,4)}, {cc}")
        def half(c, st, rd, nslot):
            pat = o.get('apat', 'MRMRVMVMV')
            mf = [(st, 0), (st, 1), (st+1, 0), (st+1, 1)]; rd = list(rd); left = nslot; nv = pat.count('V')
            for ch in pat:
                if ch == 'M': m1(c, *mf.pop(0))
                elif ch == 'R':
                    if rd: reads(*rd.pop(0))
                else:
                    n = -(-left // nv); self.slot(n); left -= n; nv -= 1
        bsched = o.get('bsched', [0, 0, 0, 1, 1, 3, 3, 0])
        assert sum(bsched) == 8 and sum(bsched[:5]) <= 7
        nb = 0
        self.push(*self.dmaA(2)); self.slot(2)
        self.push(*self.misc)
        landed("c0", 4); a("s_barrier")
        self.stamp(2)
        reads(0, 0); reads(0, 1)
        self.slot(2)
        for c in range(8):
            a.wait(lg="r1")
            half(c, 0, [(c, 2), (c, 3)], len(self.pend))
            if c == 4:
                a.ds(f"ds_read_b64_tr_b16 {vr(WP0,2)}, {MWP}", "r3"); a.ds(f"ds_read_b64_tr_b16 {vr(WP0+2,2)}, {MWP} offset:128", "r3")
                a(f"v_readfirstlane_b32 {sE}, {ME}")
                a(f"v_and_b32 {V0}, 16, {vL}"); a(f"v_cmp_eq_u32 vcc, 0, {V0}")
                a(f"s_add_u32 {sE}, {sE}, 1"); a(f"s_mul_i32 {sTAG}, {sE}, 0x9E3779B1"); a(f"s_add_u32 {sTAG}, {sTAG}, 0x7F4A7C15")
            a.wait(lg="r3")
            if c < 7: landed(f"c{c+1}", 4)
            else:
                assert nb == 8 and not self.pend
                a.wait(vm="B0")
            a("s_barrier")
            self.stamp(f"c{c+1}")
            if c + 3 <= 7: self.push(*self.dmaA(c + 3))
            for _ in range(bsched[c]): self.push(*self.dmaB(nb)); nb += 1
            if c == 7: self.wx = self.w2x(); n = o.get('a7', 2); self.push(*self.wx[:n]); self.wx = self.wx[n:]
            half(c, 2, [(c + 1, 0), (c + 1, 1)] if c < 7 else [], (len(self.pend) + 1)//2 if c < 7 else len(self.pend))
            if c == 4:
                for i in range(4):
                    a(f"v_cndmask_b32_e64 v{WP1+i}, v{WP0+i}, 0, vcc")
                    a(f"v_cndmask_b32 v{WP0+i}, 0, v{WP0+i}, vcc")
        self.stamp(3)
    def first_kv(self):
        a = self.a; o = self.o
        a(f"v_and_b32 {V4}, 31, {vL}"); a(f"v_lshrrev_b32 {V5}, 5, {vL}"); a(f"v_lshlrev_b32 {V5}, 4, {V5}"); a(f"v_lshl_add_u32 {V4}, {V4}, 5, {V5}")
        a(f"s_lshl_b32 {T0}, {sTG}, 10"); a(f"s_lshl_b32 {T1}, {sBB}, 13"); a(f"s_add_u32 {T2}, {T0}, {T1}"); a(f"s_add_u32 {T3}, {T2}, {T1}")
        a(f"v_add_u32 {V5}, {T2}, {V4}"); a(f"v_add_u32 {V4}, {T3}, {V4}")
        def sink(hd, sg, b):
            d = ACC0 + 8*hd + 4*sg
            return [f"v_cvt_pk_bf16_f32 v{d+i}, v{b+2*i}, v{b+2*i+1}" for i in range(4)] + \
                   [lambda: a.ds(f"ds_write_b128 {V4}, {vr(d,4)} offset:{(2*hd+sg)*4096}", "kw")]
        il = o.get('kil', 1)
        L = self.softmax(ACC0, ACC0, (ACC1, PHI), FR + 16, sink, 0 if il else 1)
        vf = PHI
        Vv = [f"v_cvt_pk_bf16_f32 v{vf+i}, v{ACC1+2*i}, v{ACC1+2*i+1}" for i in range(8)]
        Vv += [(lambda hd=hd: a.ds(f"ds_write_b128 {V5}, {vr(vf+4*hd,4)} offset:{32768 + hd*4096}", "kw")) for hd in range(2)]
        L = L[:10] + Vv + L[10:]
        n = o.get('kd1', 2); self.push(*self.wx[:n]); self.wx = self.wx[n:]
        if il: self.passB(0, L, o.get('kper', 12), 100)
        else: self.run(L)
        self.flush()
        a.wait(lg="kw"); a.wait(vm="B1")
        a("s_barrier")
        self.stamp(4)
        a(f"s_lshl_b32 {T0}, {sW}, 12"); a(f"s_lshr_b32 {T1}, {sW}, 1"); a(f"s_lshl_b32 {T1}, {T1}, 12"); a(f"s_add_u32 {T1}, {T1}, 32768")
        a(f"v_lshlrev_b32 {V0}, 3, {vL}"); a(f"v_add_u32 {V1}, {T1}, {V0}"); a(f"v_add_u32 {V0}, {T0}, {V0}")
        A, Bv, ONE, DK, DZ = ACC0, ACC1, PHI, PHI+4, PHI+8
        for st in range(4):
            for e in range(2): a.ds(f"ds_read_b64_tr_b16 {vr(A+4*st+2*e,2)}, {V0} offset:{st*1024+e*512}", f"k{st}")
            if st == 3: a.wait(lg="k0")
            for e in range(2): a.ds(f"ds_read_b64_tr_b16 {vr(Bv+4*st+2*e,2)}, {V1} offset:{st*1024+e*512}", f"k{st}")
        for i in range(4): a(f"v_mov_b32 v{ONE+i}, 0x3f803f80")
        a(f"s_lshl_b32 {T0}, {sHP}, 4"); a(f"s_add_u32 {T0}, {T0}, {sRB}"); a(f"s_lshl_b32 {T0}, {T0}, 3"); a(f"s_add_u32 {T0}, {T0}, {sW}")
        a(f"s_lshl_b32 {T1}, {T0}, 10"); a(f"s_add_u32 {T1}, {T1}, {P_OFF}"); a(f"s_lshl_b32 {T2}, {T0}, 6"); a(f"s_add_u32 {T2}, {T2}, {PZ_OFF}")
        a(f"v_and_b32 {V3}, 15, {vL}"); a(f"v_cmp_eq_u32 vcc, 0, {V3}"); a(f"v_mov_b32 {V3}, {OOB}")
        a(f"v_cndmask_b32 {V3}, {V3}, {vL}, vcc")
        a(f"s_mov_b32 {T3}, 0x07060501"); a(f"s_mov_b32 {T4}, 0x07060502"); a(f"s_mov_b32 {T5}, 0x07060503")
        for st in range(4):
            a.wait(lg=f"k{st}")
            a(f"v_mfma_f32_16x16x32_bf16 {vr(DK,4)}, {vr(A+4*st,4)}, {vr(Bv+4*st,4)}, {'0' if st == 0 else vr(DK,4)}")
            a(f"v_mfma_f32_16x16x32_bf16 {vr(DZ,4)}, {vr(A+4*st,4)}, {vr(ONE,4)}, {'0' if st == 0 else vr(DZ,4)}")
        for D in (DK, DZ):
            a(f"v_perm_b32 v{D}, v{D}, v{D+3}, {T3}"); a(f"v_perm_b32 v{D+1}, v{D+1}, v{D+3}, {T4}"); a(f"v_perm_b32 v{D+2}, v{D+2}, v{D+3}, {T5}")
            a(f"v_mov_b32 v{D+3}, {sTAG}")
        a.vmem(f"buffer_load_dword {V7}, off, {SDBG}, {sC32} sc1", "mode")
        a.vmem(f"buffer_store_dwordx4 {vr(DK,4)}, {vL16}, {SWS}, {T1} offen sc1", "part")
        a.vmem(f"buffer_store_dwordx4 {vr(DZ,4)}, {V3}, {SWS}, {T2} offen sc1", "part")
        self.ack_store()
        self.stamp(5)
        if not il: self.passB(0, [], 0, 100)
    def first_hh(self):
        a = self.a; o = self.o
        a(f"s_lshl_b32 {T0}, {sUA}, 13")
        L = []
        for u, acc in enumerate((ACC0, ACC1)):
            pk = PHI + 8*u
            hp = self.h_pack(acc, pk)
            for kk in range(2):
                L += hp[12*kk:12*kk+12]
                L += [f"s_add_u32 {T1}, {T0}, {u*UNIT + kk*STEP}",
                      lambda pk=pk, kk=kk: a.vmem(f"buffer_store_dwordx4 {vr(pk+4*kk,4)}, {vHS}, {SWS}, {T1} offen sc1", "hst")]
        n = o.get('hd1', 0)
        self.wx = self.wx + self.w2y()
        L += [self.ack_store, self.get_mode_issue, lambda: self.stamp(4), lambda: self.push(*self.wx[:n])]
        self.passB(0, L, o.get('qper', 8), 2)
        self.wx = self.wx[n:]
        self.flush()
        a.wait(vm="B1"); a("s_barrier")
        self.stamp("B1")
    def softmax_q(self, acc, pq, E, kf, mid):
        L = []; a = L.append
        for i in range(8): a(f"v_cvt_pk_bf16_f32 v{kf+i}, v{acc+2*i}, v{acc+2*i+1}")
        a(f"v_mfma_f32_32x32x16_bf16 {vr(pq,16)}, {vr(WP0,4)}, {vr(kf,4)}, 0")
        a(f"v_mfma_f32_32x32x16_bf16 {vr(pq,16)}, {vr(WP1,4)}, {vr(kf+4,4)}, {vr(pq,16)}")
        hook = lambda k: a(lambda: (self.stamp(f"sm{k}"), mid(k)))
        hook(0); a(self.slot); a(self.slot)
        S = ((kf, kf+2), (kf+4, kf+6))
        for k in range(4):
            for hd in range(2):
                p = pq + 8*hd; mp, mn = S[hd]
                if k == 0: a(f"v_max3_f32 v{mp}, v{p}, v{p+1}, v{p+2}"); a(f"v_max3_f32 v{mn}, -v{p}, -v{p+1}, -v{p+2}")
                elif k < 3: a(f"v_max3_f32 v{mp}, v{mp}, v{p+1+2*k}, v{p+2+2*k}"); a(f"v_max3_f32 v{mn}, v{mn}, -v{p+1+2*k}, -v{p+2+2*k}")
                else: a(f"v_max_f32 v{mp}, v{mp}, v{p+7}"); a(f"v_max_f32_e64 v{mn}, v{mn}, -v{p+7}")
        a(self.slot)
        def both(f):
            for hd in range(2): f(*S[hd])
        both(lambda x, y: a(f"v_permlane32_swap_b32 v{x}, v{y}"))
        both(lambda x, y: a(f"v_max_f32 v{x}, v{x}, v{y}"))
        both(lambda x, y: a(f"v_mul_f32 v{x}, {sL2E}, v{x}"))
        both(lambda x, y: a(f"v_mov_b32 v{y}, v{x}"))
        both(lambda x, y: a(f"v_permlane32_swap_b32 v{x}, v{y}"))
        a(self.slot)
        for hd in range(2):
            p = pq + 8*hd; e = E[hd]
            for sg in range(2):
                m = S[hd][sg]; b = e + 8*sg
                for i in range(8): a(f"v_fma_f32 v{b+i}, {'-' if sg else ''}v{p+i}, {sL2E}, -v{m}")
                a(self.slot)
                for i in range(8): a(f"v_exp_f32 v{b+i}, v{b+i}")
                a(self.slot)
                for i in range(4): a(f"v_cvt_pk_bf16_f32 v{PHI+8*hd+4*sg+i}, v{b+2*i}, v{b+2*i+1}")
            if hd == 0: hook(1)
        return L
    def second(self, kindA, kindB):
        a = self.a; o = self.o; P = kindA + kindB
        rest = self.wx
        n = o.get('d2' + kindA, 4); self.push(*rest[:n]); rest = rest[n:]
        self.passB(1, [], 0, 3)
        self.flush()
        self.stamp(6)
        a("s_barrier")
        if kindA == 'k': rest = rest + self.w2y()
        early = (lambda: (self.get_mode_wait(), self.flag_h(False))) if kindA == 'h' else self.get_mode_wait
        ph = Phase2(self, P)
        if kindB == 'q':
            fl = o.get('qflag', 0); qp = o.get('qp' + kindA, 0 if kindA == 'k' else 2)
            if qp == 0:
                for f in rest: f()
                self.pf_issue()
            else: self.push(*rest)
            def mid(k):
                if k == fl: early()
                if k + 1 == qp: self.flush(); self.pf_issue()
                if k == qp: ph.begin("pf", True)
            self.run(self.softmax_q(ACCB, ACC0, (ACC1, ACCB), FR, mid))
            self.flush()
            self.stamp(7)
            if qp == 2: ph.begin("pf", False)
        else:
            for f in rest: f()
            early()
            self.pf_issue()
            self.run(self.h_pack(ACCB, FR))
            ph.begin("pf", False)
            a(f"s_lshl_b32 {T2}, {sUB}, 13"); a(f"s_add_u32 {T3}, {T2}, {STEP}")
            a.vmem(f"buffer_store_dwordx4 {vr(FR,4)}, {vHS}, {SWS}, {T2} offen sc1", "hst")
            a.vmem(f"buffer_store_dwordx4 {vr(FR+4,4)}, {vHS}, {SWS}, {T3} offen sc1", "hst")
            self.stamp(7)
        ph.main()
    def gate_wave(self):
        a = self.a
        a(f"v_lshrrev_b32 {V0}, 5, {vL}"); a(f"v_lshlrev_b32 {V0}, 4, {V0}"); a(f"s_add_u32 {T0}, {sW1k}, {R + 57344}"); a(f"v_add_u32 {V0}, {T0}, {V0}")
        D = 5
        def rd(st): a.ds(f"ds_read_b128 {vr(FR+4*(st%6),4)}, {V0} offset:{st*32}", f"g{st}")
        for st in range(D): rd(st)
        for st in range(32):
            if st + D < 32: rd(st + D)
            a.wait(lg=f"g{st}")
            a(f"v_mfma_f32_32x32x16_bf16 {vr(ACCB,16)}, {vr(FR+4*(st%6),4)}, {ar(4*st,4)}, {'0' if st == 0 else vr(ACCB,16)}")
        a(f"s_lshl_b32 {T2}, {sRB}, 2"); a(f"s_add_u32 {T2}, {T2}, {sTG}"); a(f"s_lshl_b32 {T2}, {T2}, 8"); a(f"s_add_u32 {T2}, {T2}, {G_OFF}")
        a(f"v_and_b32 {V1}, 31, {vL}"); a(f"v_lshlrev_b32 {V1}, 3, {V1}"); a(f"v_mov_b32 {V3}, {sTAG}")
        a(f"v_mul_f32 {V2}, {sL2E}, v{ACCB}"); a(f"v_exp_f32_e64 {V2}, -{V2}"); a(f"v_add_f32 {V2}, 1.0, {V2}"); a(f"v_rcp_f32 {V2}, {V2}")
        a(f"s_cmp_eq_u32 {sBB}, 0"); a(f"s_cselect_b32 {T2}, {T2}, {OOB}")
        a(f"buffer_store_dwordx2 v[26:27], {V1}, {SWS}, {T2} offen sc1")
    def path_r(self):
        a = self.a; o = self.o
        Lng = a.label("ng")
        a(f"s_cmp_eq_u32 {sJ}, 11"); a(f"s_cbranch_scc0 {Lng}")
        self.gate_wave()
        a(f"{Lng}:")
        a("s_barrier")
        rest = self.wx + self.w2y()
        n = o.get('rd1', 0)
        for f in rest[:n]: f()
        a(f"s_lshl_b32 {sRB}, {sC}, 1"); a(f"s_lshr_b32 {T0}, {sMM}, 1"); a(f"s_add_u32 {sRB}, {sRB}, {T0}"); a(f"s_sub_u32 {sOWN}, {sJ}, 5")
        fin = self.reducer(lambda: None)
        self.pf_issue()
        fin()
        for f in rest[n:]: f()
        ph = Phase2(self, 'r'); ph.begin("pf", False); ph.main()
    def f_issue(self):
        a = self.a
        a(f"s_lshl_b32 {T0}, {sHP}, 3"); a(f"s_add_u32 {T0}, {T0}, {sW}")
        a(f"s_lshl_b32 {sR1}, {T0}, 10"); a(f"s_add_u32 {sR1}, {sR1}, {F_OFF}"); a(f"s_lshl_b32 {sH1}, {T0}, 6"); a(f"s_add_u32 {sH1}, {sH1}, {FZ_OFF}")
        self.f_loads(True)
    def f_loads(self, track):
        a = self.a
        a(f"v_and_b32 v28, 0x30, {vL16}")
        for s in (f"buffer_load_dwordx4 v[8:11], {vL16}, {SWS}, {sR1} offen sc1", f"buffer_load_dwordx4 v[28:31], v28, {SWS}, {sH1} offen sc1"):
            a.vmem(s, "h2") if track else a(s)
    def f_check(self):
        a = self.a
        L = a.label("h2"); Ld = a.label("h2d")
        a.wait(vm="h2")
        a(f"s_mov_b32 {sSPIN}, {SPIN}")
        a(f"{L}:")
        a(f"v_cmp_ne_u32 vcc, {sTAG}, v10"); a(f"v_cmp_ne_u32 {sM}, {sTAG}, v30"); a("s_nop 1"); a(f"s_or_b64 vcc, vcc, {sM}")
        a(f"s_cbranch_vccz {Ld}")
        a(f"s_sub_u32 {sSPIN}, {sSPIN}, 1"); a(f"s_cbranch_scc1 {Ld}")
        self.f_loads(False); a("s_waitcnt vmcnt(0)"); a(f"s_branch {L}")
        a(f"{Ld}:")
        self.stamp(9)
        a(f"s_add_u32 {T0}, {sW1k}, {KVT}")
        a(f"v_and_b32 {V2}, 15, {vL}"); a(f"v_lshrrev_b32 {V3}, 4, {vL}"); a(f"v_lshlrev_b32 {V3}, 3, {V3}"); a(f"v_lshl_add_u32 {V2}, {V2}, 5, {V3}"); a(f"v_add_u32 {V2}, {T0}, {V2}")
        a(f"v_lshlrev_b32 {V3}, 3, {vL}"); a(f"v_add_u32 {V3}, {T0}, {V3}")
        a.ds(f"ds_write_b64 {V2}, v[8:9]", "kt")
        a(f"v_cmp_gt_u32 vcc, 4, {vL}"); a(f"v_mov_b32 {V1}, 0x3f803f80"); a(f"v_cndmask_b32 v28, {V1}, v28, vcc"); a(f"v_cndmask_b32 v29, {V1}, v29, vcc")
        a("s_mov_b64 exec, 0xff")
        a.ds(f"ds_write_b64 {V3}, v[28:29] offset:512", "kt")
        a("s_mov_b64 exec, -1")
        self.o_addr()
        a.wait(lg="kt")
        a("s_barrier")
    def o_addr(self):
        a = self.a
        a(f"v_and_b32 {V3}, 3, {vL}"); a(f"v_bfe_u32 {V1}, {vL}, 2, 1"); a(f"v_bfe_u32 {V2}, {vL}, 3, 1")
        a(f"v_lshl_add_u32 {V3}, {V1}, 3, {V3}"); a(f"v_lshl_add_u32 {V3}, {V2}, 2, {V3}"); a(f"v_add_u32 {V2}, 16, {V2}")
        a(f"v_and_b32 {V1}, 16, {vL}"); a(f"v_cmp_eq_u32 vcc, 0, {V1}"); a(f"v_lshrrev_b32 {V1}, 5, {vL}"); a(f"v_lshlrev_b32 {V1}, 4, {V1}")
        a(f"v_cndmask_b32 {V3}, {V2}, {V3}, vcc"); a(f"v_lshl_add_u32 {V3}, {V3}, 5, {V1}")
        a(f"s_lshl_b32 {T0}, {sBB}, 12"); a(f"s_add_u32 {T0}, {T0}, {KVT}"); a(f"v_add_u32 {WP0V}, {T0}, {V3}")
    def o_compute(self):
        a = self.a
        DP, DM = ACCA, ACCA + 16
        def rd(hd):
            a.ds(f"ds_read_b128 v[8:11], {WP0V} offset:{(2*hd)*1024}", f"o{hd}"); a.ds(f"ds_read_b128 v[28:31], {WP0V} offset:{(2*hd+1)*1024}", f"o{hd}")
        rd(0)
        a(f"s_lshl_b32 {T0}, {sHP}, 13"); a(f"s_add_u32 {T0}, {T0}, {O_OFF}"); a(f"s_add_u32 {T1}, {T0}, {STEP}"); a(f"s_mov_b32 {T2}, 0x358637bd")
        for hd in range(2):
            a.wait(lg=f"o{hd}")
            a(f"v_mfma_f32_32x32x16_bf16 {vr(DM,16)}, v[28:31], {vr(PHI+8*hd+4,4)}, 0")
            a(f"v_mfma_f32_32x32x16_bf16 {vr(DP,16)}, v[8:11], {vr(PHI+8*hd,4)}, 0")
            if hd == 0: rd(1)
            a(f"v_rcp_f32 {V1}, v{DM+12}")
            a(f"v_fma_f32 {V2}, v{DP+12}, {T2}, v{DP+8}"); a(f"v_mul_f32 {V1}, v{DP+12}, {V1}")
            a(f"v_fmac_f32 {V2}, {V1}, v{DM+8}"); a(f"v_rcp_f32 {V2}, {V2}")
            for i in range(8): a(f"v_fmac_f32 v{DP+i}, {V1}, v{DM+i}")
            for i in range(8): a(f"v_mul_f32 v{DP+i}, {V2}, v{DP+i}")
            for i in range(4): a(f"v_cvt_pk_bf16_f32 v{PHI+8*hd+i}, v{DP+2*i}, v{DP+2*i+1}")
        self.store_mode(lambda f: (a(f"buffer_store_dwordx4 {vr(PHI,4)}, {vHS}, {SWS}, {T0} offen{f}"),
                                   a(f"buffer_store_dwordx4 {vr(PHI+8,4)}, {vHS}, {SWS}, {T1} offen{f}")), "ost", 2)
    def red_addr(self, base):
        a = self.a; R = base
        W0, W1, W2_, W3, R0, R1, OA = vX0, vX1, vWA, vWB, vXR0, vXR1, vXR2
        a(f"v_and_b32 {W0}, 31, {vL}"); a(f"v_lshrrev_b32 {V1}, 5, {vL}"); a(f"v_lshlrev_b32 {V1}, 1, {V1}"); a(f"v_and_b32 {V2}, 7, {vL}")
        a(f"v_xor_b32 {V1}, {V1}, {V2}"); a(f"v_lshlrev_b32 {V1}, 4, {V1}"); a(f"v_lshl_add_u32 {W0}, {W0}, 8, {V1}")
        a(f"s_and_b32 {T4}, {sW}, 1"); a(f"s_lshl_b32 {T4}, {T4}, 15"); a(f"s_lshr_b32 {T1}, {sW}, 1"); a(f"s_lshl_b32 {T2}, {T1}, 13"); a(f"s_add_u32 {T2}, {T2}, {T4}")
        a(f"s_add_u32 {T2}, {T2}, {R}")
        a(f"v_add_u32 {W0}, {T2}, {W0}"); a(f"v_xor_b32 {W1}, 16, {W0}"); a(f"v_xor_b32 {W2_}, 64, {W0}"); a(f"v_xor_b32 {W3}, 0x50, {W0}")
        a(f"v_lshrrev_b32 {V3}, 3, {vL}"); a(f"v_lshlrev_b32 {R0}, 1, {V2}"); a(f"v_xor_b32 {R0}, {R0}, {V3}"); a(f"v_lshlrev_b32 {R0}, 4, {R0}")
        a(f"v_lshl_add_u32 {R0}, {V3}, 8, {R0}"); a(f"s_lshl_b32 {T2}, {T1}, 11"); a(f"s_add_u32 {T2}, {T2}, {T4}"); a(f"s_add_u32 {T2}, {T2}, {R}")
        a(f"v_add_u32 {R0}, {T2}, {R0}"); a(f"v_xor_b32 {R1}, 16, {R0}")
        a(f"s_lshl_b32 {T2}, {sC}, 8"); a(f"s_lshl_b32 {T3}, {sMM}, 6"); a(f"s_add_u32 {T2}, {T2}, {T3}"); a(f"s_lshr_b32 {T3}, {T4}, 10"); a(f"s_add_u32 {T2}, {T2}, {T3}")
        a(f"s_lshl_b32 {sUA}, {T2}, 3"); a(f"s_add_u32 {sUA}, {sUA}, {G_OFF}")
        a(f"s_lshl_b32 {T3}, {T1}, 3"); a(f"s_add_u32 {T2}, {T2}, {T3}"); a(f"s_lshl_b32 {T2}, {T2}, 10"); a(f"s_lshl_b32 {T3}, {sN}, 7"); a(f"s_add_u32 {T2}, {T2}, {T3}")
        a(f"v_lshlrev_b32 {V2}, 4, {V2}"); a(f"v_lshl_add_u32 {OA}, {V3}, 10, {V2}"); a(f"v_add_u32 {OA}, {T2}, {OA}")
        a(f"s_lshl_b32 {T2}, {sC}, 2"); a(f"s_add_u32 {T2}, {T2}, {sMM}"); a(f"s_lshl_b32 {T2}, {T2}, 3"); a(f"s_add_u32 {T2}, {T2}, {sN}"); a(f"s_lshl_b32 {T2}, {T2}, 3"); a(f"s_add_u32 {T2}, {T2}, {sW}")
        a(f"s_lshl_b32 {T2}, {T2}, 11"); a(f"s_add_u32 {sUB}, {T2}, {X_OFF}")
    def red_write(self, src, pre=None, rf=vr):
        a = self.a
        wa = {(0, 0): vX0, (0, 1): vX1, (1, 0): vWA, (1, 1): vWB}
        for cb in range(2):
            for gp in range(2):
                for e in range(2):
                    b = 16*cb + 8*gp + 4*e
                    if pre: pre(b)
                    a.ds(f"ds_write_b128 {wa[(gp,e)]}, {rf(src+b,4)} offset:{cb*128}", "rw")
        a.wait(lg="rw")
        a("s_barrier")
    def red_read(self, Bq):
        a = self.a
        for k in range(4):
            a.ds(f"ds_read_b128 {vr(Bq+8*k,4)}, {vXR0} offset:{k*8192}", f"s{k}"); a.ds(f"ds_read_b128 {vr(Bq+8*k+4,4)}, {vXR1} offset:{k*8192}", f"s{k}")
        a.wait(lg="s1")
        for i in range(0, 8, 2): a(f"v_pk_add_f32 {vr(Bq+i,2)}, {vr(Bq+i,2)}, {vr(Bq+8+i,2)}")
        a.wait(lg="s3")
        for i in range(0, 8, 2): a(f"v_pk_add_f32 {vr(Bq+16+i,2)}, {vr(Bq+16+i,2)}, {vr(Bq+24+i,2)}")
        for i in range(0, 8, 2): a(f"v_pk_add_f32 {vr(Bq+i,2)}, {vr(Bq+i,2)}, {vr(Bq+16+i,2)}")
    def g_loads(self, track):
        a = self.a
        a(f"v_and_b32 {V2}, 31, {vL}"); a(f"v_lshlrev_b32 {V2}, 3, {V2}")
        a(f"v_and_b32 {V4}, 0x38, {vL}"); a(f"s_lshr_b32 {T1}, {sW}, 1"); a(f"s_lshl_b32 {T1}, {T1}, 6"); a(f"s_add_u32 {T1}, {T1}, {sUA}")
        a(f"s_xor_b32 {T2}, {sUB}, {32*8*2048}")
        for s in (f"buffer_load_dwordx2 v[26:27], {V2}, {SWS}, {sUA} offen sc1", f"buffer_load_dwordx2 v[28:29], {V4}, {SWS}, {T1} offen sc1"):
            a.vmem(s, "g") if track else a(s)
    def x_loads(self, track):
        a = self.a
        a(f"s_xor_b32 {T2}, {sUB}, {32*8*2048}")
        for s in (f"buffer_load_dwordx4 {vr(PHI,4)}, {vL16}, {SWS}, {T2} offen sc1", f"buffer_load_dwordx4 {vr(PHI+4,4)}, {vL16}, {SWS}, {T2} offen offset:1024 sc1"):
            a.vmem(s, "x") if track else a(s)
    def spin(self, regs, tag, reload):
        a = self.a; L = a.label("sp"); Ld = a.label("spd")
        a.wait(vm=tag)
        a(f"s_mov_b32 {sSPIN}, {SPIN}")
        a(f"{L}:")
        a(f"v_cmp_ne_u32 vcc, {sTAG}, {regs[0]}"); a(f"v_cmp_ne_u32 {sM}, {sTAG}, {regs[1]}"); a("s_nop 1"); a(f"s_or_b64 vcc, vcc, {sM}")
        a(f"s_cbranch_vccz {Ld}")
        a(f"s_sub_u32 {sSPIN}, {sSPIN}, 1"); a(f"s_cbranch_scc1 {Ld}")
        reload(False); a("s_waitcnt vmcnt(0)"); a(f"s_branch {L}")
        a(f"{Ld}:")
    def tail2(self):
        a = self.a
        self.g_loads(True)
        self.pf_issue()
        a.wait(vm="wo"); a("s_barrier")
        self.stamp(10)
        def rd(i):
            b = FR2 + 8*(i % 2)
            for cb, v in ((0, vPO0), (1, vPO1)):
                for e in range(2): a.ds(f"ds_read_b64_tr_b16 {vr(b+4*cb+2*e,2)}, {v} offset:{i*8192 + e*512}", f"a{i}")
        rd(0)
        self.spin(("v27", "v29"), "g", self.g_loads)
        a(f"v_sub_f32 {V3}, 1.0, {V2}"); a(f"v_sub_f32 {V4}, 1.0, {V4}")
        for i in range(0, 32, 2): a(f"v_pk_mul_f32 {vr(ACCF+i,2)}, {vr(ACCF+i,2)}, v[26:27] op_sel:[0,1] op_sel_hi:[1,1]")
        self.poll_flags(0xff << 32, "pf")
        self.stamp(11)
        def ld(i):
            a(f"s_add_u32 {T0}, {T5}, {O_OFF + i*UNIT}")
            a.vmem(f"buffer_load_dwordx4 {ar(4*i,4)}, {vHL}, {SWS}, {T0} offen sc1", f"o{i}")
        a(f"s_lshl_b32 {T5}, {sSIDE}, 21")
        LA = 4
        for i in range(LA): ld(i)
        for i in range(8):
            if i + 1 < 8: rd(i + 1)
            if i + LA < 8: ld(i + LA)
            if i == 4: self.x_loads(True)
            a.wait(vm=f"o{i}", lg=f"a{i}")
            for cb in range(2):
                acc = ACCA + 16*cb
                a(f"v_mfma_f32_32x32x16_bf16 {vr(acc,16)}, {vr(FR2+8*(i%2)+4*cb,4)}, {ar(4*i,4)}, {'0' if i == 0 else vr(acc,16)}")
        self.stamp(12)
        def pre(b):
            for i in range(0, 4, 2): a(f"v_pk_fma_f32 {vr(ACCF+b+i,2)}, {vr(ACCA+b+i,2)}, v[26:27], {vr(ACCF+b+i,2)} op_sel_hi:[1,0,1]")
        self.red_write(ACCF, pre)
        self.stamp("rw")
        Bq = ACCA
        self.red_read(Bq)
        self.spin((f"v{PHI+3}", f"v{PHI+7}"), "x", self.x_loads)
        a(f"s_mov_b32 {T1}, 0x04000c0c"); a(f"s_mov_b32 {T2}, 0x0706000c")
        for b in (PHI, PHI + 4):
            a(f"v_perm_b32 v{b+3}, v{b+2}, v{b+1}, {T1}"); a(f"v_perm_b32 v{b+3}, v{b+3}, v{b}, {T2}")
        for i in range(0, 8, 2): a(f"v_pk_fma_f32 {vr(Bq+i,2)}, {vr(PHI+i,2)}, v[28:29], {vr(Bq+i,2)} op_sel_hi:[1,0,1]")
        for i in range(4): a(f"v_cvt_pk_bf16_f32 v{Bq+8+i}, v{Bq+2*i}, v{Bq+2*i+1}")
        a.vmem(f"buffer_store_dwordx4 {vr(Bq+8,4)}, {vXR2}, {SOUT}, 0 offen", "out")
        if self.o.get('span'):
            a("s_waitcnt vmcnt(0)"); a("v_mov_b32 v24, s26"); a("s_memrealtime s[26:27]"); a("s_waitcnt lgkmcnt(0)"); a("v_mov_b32 v25, s26")
            a(f"s_lshl_b32 {T0}, s2, 3"); a(f"s_add_u32 {T0}, {T0}, {sW}"); a(f"s_lshl_b32 {T0}, {T0}, 8"); a(f"s_add_u32 {T0}, {T0}, {ST_OFF + 248}")
            a("s_mov_b64 exec, 1"); a(f"buffer_store_dwordx2 v[24:25], off, {SWS}, {T0}")
        if self.o.get('stamps'):
            self.stamp(13)
            a("s_waitcnt vmcnt(0)"); self.stamp(14); a("s_waitcnt lgkmcnt(0)"); self.stamp(15)
            a("s_waitcnt lgkmcnt(0)"); a("s_memrealtime s[26:27]"); a("s_waitcnt lgkmcnt(0)"); a("v_writelane_b32 v23, s26, 63")
            a(f"s_lshl_b32 {T0}, s2, 3"); a(f"s_add_u32 {T0}, {T0}, {sW}"); a(f"s_lshl_b32 {T0}, {T0}, 8"); a(f"s_add_u32 {T0}, {T0}, {ST_OFF}")
            a(f"v_lshlrev_b32 {V0}, 2, {vL}")
            a(f"buffer_store_dword v23, {V0}, {SWS}, {T0} offen")
        a("s_endpgm")
    def bump(self):
        a = self.a
        Lx = a.label("nb"); L = a.label("bp"); Ld = a.label("bpd")
        a("s_cmp_eq_u32 s2, 192"); a(f"s_cbranch_scc0 {Lx}"); a(f"s_cmp_eq_u32 {sW}, 0"); a(f"s_cbranch_scc0 {Lx}")
        a(f"s_mov_b32 {T0}, {ACK_OFF}"); a(f"s_mov_b32 {sSPIN}, {SPIN}")
        a(f"{L}:")
        a(f"buffer_load_dwordx4 v[8:11], {vL16}, {SWS}, {T0} offen sc1"); a("s_waitcnt vmcnt(0)")
        a(f"v_cmp_ne_u32 vcc, {sTAG}, v8")
        for i in range(1, 4):
            a(f"v_cmp_ne_u32 {sM}, {sTAG}, v{8+i}"); a("s_nop 1"); a(f"s_or_b64 vcc, vcc, {sM}")
        a(f"s_cbranch_vccz {Ld}")
        a(f"s_sub_u32 {sSPIN}, {sSPIN}, 1"); a(f"s_cbranch_scc0 {L}")
        a(f"{Ld}:")
        a(f"v_mov_b32 {V1}, {sE}"); a(f"s_mov_b32 {T0}, {E_OFF}"); a("s_mov_b64 exec, 1")
        a(f"buffer_store_dword {V1}, off, {SWS}, {T0}"); a("s_mov_b64 exec, -1"); a("s_waitcnt vmcnt(0)")
        a(f"{Lx}:")
    def save(self): return (self.a.vm.copy(), self.a.lg.copy(), list(self.pend), list(self.wx))
    def restore(self, s): self.a.vm, self.a.lg, self.pend, self.wx = s[0].copy(), s[1].copy(), list(s[2]), list(s[3])
    def body(self):
        a = self.a
        self.prologue(); self.passA()
        s0 = self.save()
        a("s_cmp_eq_u32 s9, 0"); a("s_cbranch_scc1 L_kv")
        self.first_hh(); s1 = self.save()
        a(f"s_cmp_eq_u32 {sTB}, 1"); a("s_cbranch_scc1 L_hq")
        self.second('h', 'h')
        a("L_hq:"); self.restore(s1); self.second('h', 'q')
        a("L_kv:"); self.restore(s0)
        self.first_kv(); s1 = self.save()
        a(f"s_cmp_eq_u32 {sTB}, 1"); a("s_cbranch_scc1 L_kq")
        a(f"s_cmp_eq_u32 {sTB}, 2"); a("s_cbranch_scc1 L_r")
        self.second('k', 'h')
        a("L_kq:"); self.restore(s1); self.second('k', 'q')
        a("L_r:"); self.restore(s1); self.path_r()

class Phase2:
    def __init__(self, g, P):
        self.g = g; self.P = P; o = g.o
        self.hasq = P[-1] == 'q'; self.nr1 = {'kq': 0, 'hh': 2}.get(P, 1); self.late = P in ('hh', 'kh')
        self.opt = lambda k, d: o.get(k + P, o.get(k, d))
        k1 = self.opt('k1', 2)
        E1 = [(1, 'r', k) for k in range(6)]; E2 = [(2, 'r', k) for k in range(10)]
        if self.nr1: self.seq = E1 + E2[:k1] + [(1, 's', u) for u in range(6, 11)] + E2[k1:] + [(2, 's', 10)]; self.i_send = 11 + k1
        else: self.seq = E2 + [(2, 's', 10)]; self.i_send = None
        m = lambda x: {0: x & 0xffff, 1: x, 2: x | ((x >> 16) << 48)}[self.nr1]
        self.masks = (m(M_EARLY), m(M_MID), m(M_LATE))
        self.issued = {}; self.done = -1; self.nslot = 0; self.owner = {}
        self.ok = {'mid': False, 'late': False}
        self.bufs = [vr(FR2, 8), vr(FR2 + 8, 8), ar(120, 8) if self.hasq else vr(PHI, 8)]
    def sub(self, b, lo, n):
        kind = b[0]; base = int(b[2:b.index(':')]); return f"{kind}[{base+lo}:{base+lo+n-1}]"
    def idx(self, e, dst):
        a = self.g.a; rnd, kind, k = e
        if kind == 's': a(f"s_mov_b32 {dst}, {k}"); return
        n, r = ((6, sR1), (10, sR2))[rnd - 1]
        a(f"s_add_u32 {dst}, {r}, {k}"); a(f"s_cmp_ge_u32 {dst}, {n}"); a(f"s_cselect_b32 {sA2}, {n}, 0"); a(f"s_sub_u32 {dst}, {dst}, {sA2}")
    def nld(self, i): return self.nr1 if self.seq[i][0] == 1 else 1
    def can(self, i):
        e = self.seq[i]
        for t in range(self.nld(i)):
            if self.owner.get((self.nslot + t) % 24, -1) > self.done: return False
        if e[1] == 'r': return True
        return self.ok['late'] if (e[0] == 1 and e[2] >= 9) else self.ok['mid']
    def ld(self, i):
        a = self.g.a; e = self.seq[i]; fs = []; self.issued[i] = []
        for t in range(self.nld(i)):
            sl = self.nslot % 24; self.nslot += 1; self.owner[sl] = i; self.issued[i].append(sl)
            def f(t=t, sl=sl):
                if t == 0:
                    self.idx(e, sStrB64); a(f"s_lshl_b32 {sStrB64}, {sStrB64}, 13"); a(f"s_add_u32 {sStrB64}, {sStrB64}, {sH1 if e[0] == 1 else sH2}")
                    if e[1] == 's' and e[2] == 10:
                        a(f"s_and_b32 {sA2}, {sSIDE}, {sBB}"); a(f"s_cselect_b32 {sStrB64}, 0x40000000, {sStrB64}")
                a.vmem(f"buffer_load_dwordx4 {ar(4*sl,4)}, {vHL if t == 0 else vAR0}, {SWS}, {sStrB64} offen sc1", f"h{i}")
            fs.append(f)
        return fs
    def issue(self, upto, n, defer=False):
        for i in range(len(self.seq)):
            if n <= 0: break
            if i not in self.issued and i <= upto and self.can(i):
                fs = self.ld(i); n -= len(fs)
                if defer: self.g.push(*fs)
                else:
                    for f in fs: f()
    def rd(self, i):
        a = self.g.a; b = self.bufs[i % 3]
        self.idx(self.seq[i], sA0); a(f"s_lshl_b32 {sA0}, {sA0}, 13")
        a(f"v_add_u32 {vPM0}, {sA0}, {vPR0}"); a(f"v_add_u32 {vPM1}, {sA0}, {vPR1}")
        for cb, v in ((0, vPM0), (1, vPM1)):
            for e in range(2): a.ds(f"ds_read_b64_tr_b16 {self.sub(b, 4*cb+2*e, 2)}, {v} offset:{W2B + e*512}", f"u{i}")
    def begin(self, pre, defer):
        g = self.g; a = g.a
        g.poll_flags(self.masks[0], pre)
        g.stamp(8)
        if self.nr1 == 2: a(f"v_xor_b32 {vAR0}, {2 << 18}, {vHL}"); a(f"v_lshrrev_b32 {V1}, 3, {vL}"); a(f"v_cmp_eq_u32 vcc, 3, {V1}"); a(f"v_xor_b32 {V1}, 0x100, {vAR0}"); a(f"v_cndmask_b32 {vAR0}, {vAR0}, {V1}, vcc")
        self.issue(99, self.opt('la0', 12 if defer else 6), defer)
    def send(self, src, rf, xor):
        g = self.g; a = g.a
        g.red_write(src, None, rf)
        g.red_read(ACCP)
        a(f"s_mov_b32 {T3}, 0x07060501"); a(f"s_mov_b32 {T4}, 0x07060502"); a(f"s_mov_b32 {T5}, 0x07060503"); a(f"s_xor_b32 {T2}, {sUB}, {xor}")
        for D in (ACCP, ACCP + 4):
            a(f"v_perm_b32 v{D}, v{D}, v{D+3}, {T3}"); a(f"v_perm_b32 v{D+1}, v{D+1}, v{D+3}, {T4}"); a(f"v_perm_b32 v{D+2}, v{D+2}, v{D+3}, {T5}")
            a(f"v_mov_b32 v{D+3}, {sTAG}")
        a.vmem(f"buffer_store_dwordx4 {vr(ACCP,4)}, {vL16}, {SWS}, {T2} offen sc1", "xst")
        a.vmem(f"buffer_store_dwordx4 {vr(ACCP+4,4)}, {vL16}, {SWS}, {T2} offen offset:1024 sc1", "xst")
        a("s_barrier")
    def main(self):
        g = self.g; a = g.a; seq = self.seq; N = len(seq); i_send = self.i_send
        g.red_addr(R if self.nr1 else W2B)
        a.wait(vm="w2"); a("s_barrier")
        g.stamp("f0")
        LA = self.opt('la', 6)
        pm, cm = self.opt('pm', 1), self.opt('cm', 4); pl, cl = self.opt('pl', 4), self.opt('cl', (i_send or 0) - 5)
        if not self.nr1: pm, cm = self.opt('pm0', 3), self.opt('cm0', 6); pl = cl = -1; g.push(lambda: g.touch(O_OFF, sHP, V6), *g.dmaWO())
        base = i_send - 1 if self.nr1 else self.opt('fi', 4)
        i_o = min(N - 1, base + self.opt('so', 4 if self.nr1 else 99)); i_f = min(N - 1, i_o + self.opt('sf', 2))
        first = {1: True, 2: True}
        self.rd(0); self.rd(1)
        for i in range(N):
            if i == cm: g.poll_flags(self.masks[1], "pf"); self.ok['mid'] = True
            if i == cl: g.poll_flags(self.masks[2], "pf"); self.ok['late'] = True
            if i == pm or i == pl: g.pf_issue()
            self.issue(i + LA, 2*self.nld(i))
            assert i in self.issued, (self.P, i, self.issued)
            if i + 2 < N: self.rd(i + 2)
            rnd = seq[i][0]
            a.wait(vm=f"h{i}", lg=f"u{i}")
            for t, sl in enumerate(self.issued[i]):
                for cb in range(2):
                    acc = ar(96 + 16*cb, 16) if t else vr((ACCP if rnd == 1 else ACCF) + 16*cb, 16)
                    a(f"v_mfma_f32_32x32x16_bf16 {acc}, {self.sub(self.bufs[i % 3], 4*cb, 4)}, {ar(4*sl,4)}, {'0' if first[rnd] else acc}")
            first[rnd] = False; self.done = i
            g.slot(self.opt('wo_per', 1))
            if self.late and i == self.opt('hf', 3): a.wait(vm="hst"); g.flag_h(True)
            if g.o.get('stamps', 0) >= 3 or i in (0, 5, N - 1) or i + 1 == i_send: g.stamp(f"u{i}")
            if i + 1 == i_send:
                self.issue(99, 99)
                assert len(self.issued) == N
                if self.hasq: g.touch(O_OFF, sHP, V6); g.f_issue()
                a.wait(lg=f"u{i+2}")
                self.send(ACCP, vr, 0)
                if self.nr1 == 2: self.send(96, ar, 0x20000)
                g.stamp("xs")
                g.push(*g.dmaWO())
                for r in (vX0, vX1, vWA, vWB, vXR0, vXR1): a(f"v_subrev_u32 {r}, {R - W2B}, {r}")
            if self.hasq and not self.nr1 and i == base: g.f_issue()
            if self.hasq and i == i_o: a.wait(lg=f"u{min(N-1, i+2)}"); g.f_check(); g.o_compute()
            if self.hasq and i == i_f: a.wait(vm="ost"); g.flag_o()
            if self.P == 'r' and i == i_send + 1: g.bump()
        g.flush()
        g.tail2()

if __name__ == '__main__':
    out = sys.argv[1]
    opt = json.loads(sys.argv[2]) if len(sys.argv) > 2 else {}
    open(out, 'w').write(Gen2(opt).build())
```

```python
import sys, json
from asmlib import *
import gen as B
from gen import *

FH_OFF = 0x1140000
FO_OFF = 0x1144000
STEP = 2048; UNIT = 8192; O_OFF = 88*STEP
X_OFF = 0x1400000
W2B = 8192
KVT = 0
sOWN, sUA, sUB, sPI, sMM, sSIDE = sHG, sU0, sU1, "s14", "s15", "s16"
sTB = sType
sR1, sR2, sH1, sH2, sW2O = "s4", "s5", "s6", "s7", "s8"
vL16 = vG
ACCP = ACCA
WP0V = V3
def nib(vals):
    v = 0
    for i, x in enumerate(vals): v |= x << (4*i)
    return v
T_A   = nib([0, 0, 0, 0, 1, 1, 1, 1, 1, 0, 0, 0, 0, 1, 1, 1])
T_B   = nib([1, 1, 1, 1, 1, 1, 1, 1, 0, 0, 0, 2, 2, 0, 0, 0])
T_OWN = nib([1, 1, 1, 1, 1, 1, 1, 1, 1, 0, 0, 0, 0, 0, 0, 0])
T_K   = nib([0, 1, 2, 3, 4, 5, 6, 7, 0, 0, 1, 2, 3, 0, 0, 0])
T_UA  = nib([0, 0, 0, 0, 0, 2, 4, 6, 8, 0, 0, 0, 0, 0, 2, 4])
T_UB  = nib([0, 0, 0, 0, 0, 0, 0, 0,10, 9,10, 0, 0, 6, 7, 8])
T_N   = nib([0, 1, 2, 4, 5, 6, 7, 3, 0, 5, 6, 7, 3, 1, 2, 4])
T_C0  = nib([0, 1, 2, 3, 4, 5, 6, 7, 0, 0, 1, 2, 3, 4, 5, 6])
T_PI  = nib([0, 0, 0, 0, 0, 1, 2, 3, 4, 4, 5, 0, 0, 0, 1, 2])
M_EARLY = 0x0007001F; M_MID = 0x07001000; M_LATE = 0x30000000

class Gen2(Gen):
    def table(self, dst, tab):
        a = self.a
        a(f"s_mov_b32 s92, {tab & 0xffffffff:#x}"); a(f"s_mov_b32 s93, {tab >> 32:#x}"); a(f"s_lshr_b64 s[92:93], s[92:93], {T0}"); a(f"s_and_b32 {dst}, s92, 15")
    def dmaW2(self, grp, k):
        a = self.a; n, lo = ((6, 5), (5, 0))[grp]
        def f():
            a(f"s_add_u32 {sA0}, {sMM}, {k}")
            if grp == 0: a(f"s_add_u32 {sA0}, {sA0}, {sMM}")
            for _ in range(2 if grp == 0 else 1):
                a(f"s_cmp_ge_u32 {sA0}, {n}"); a(f"s_cselect_b32 {sA1}, {n}, 0"); a(f"s_sub_u32 {sA0}, {sA0}, {sA1}")
            a(f"s_lshl_b32 {sA1}, {sA0}, 13"); a(f"s_add_u32 {sA1}, {sA1}, {sW1k}")
            a(f"s_lshl_b32 {sA0}, {sA0}, 16"); a(f"s_add_u32 {sA0}, {sA0}, {sW2O}")
            if lo: a(f"s_add_u32 {sA0}, {sA0}, {lo*65536}")
            self.dma(vW2, SW2, sA0, f"s_add_u32 m0, {sA1}, {W2B + lo*8192}", "w2")
        return f
    def w2x(self): return [self.dmaW2(0, k) for k in range(6)]
    def w2y(self): return [self.dmaW2(1, k) for k in range(5)]
    def dmaWO(self, half):
        a = self.a
        def mk(i):
            def f():
                a(f"s_add_u32 {sA0}, {sMM}, {i}"); a(f"s_and_b32 {sA0}, {sA0}, 3")
                a(f"s_lshl_b32 {sA1}, {sMM}, 1"); a(f"s_and_b32 {sA1}, {sA1}, 4"); a(f"s_xor_b32 {sA1}, {sA1}, {4*half}"); a(f"s_add_u32 {sA0}, {sA0}, {sA1}")
                a(f"s_lshl_b32 {sA1}, {sA0}, 13"); a(f"s_add_u32 {sA1}, {sA1}, {sW1k}"); a(f"s_lshl_b32 {sA0}, {sA0}, 16")
                self.dma(vW2, SWO, sA0, f"s_add_u32 m0, {sA1}, {R}", "wo")
            return f
        return [mk(i) for i in range(4)]
    def touch(self):
        a = self.a
        if 't' in self.o.get('skip', ''): return
        a(f"v_bfe_u32 {V6}, {vL}, 2, 1"); a(f"v_lshl_add_u32 {V6}, {V6}, 11, {vHS}")
        a(f"s_lshl_b32 {T2}, {sHP}, 13"); a(f"s_add_u32 {T2}, {T2}, {O_OFF}"); a(f"s_cmp_eq_u32 {sTB}, 1"); a(f"s_cselect_b32 {T2}, {T2}, 0x40000000")
        a.vmem(f"buffer_load_dword {V6}, {V6}, {SWS}, {T2} offen", "touch")
    def wo_touch(self, junk):
        a = self.a
        if not self.o.get('wot', 1): return
        a(f"v_lshrrev_b32 {junk}, 1, {vL}"); a(f"v_lshlrev_b32 {junk}, 10, {junk}")
        a(f"s_lshr_b32 {T2}, {sMM}, 1"); a(f"s_lshl_b32 {T2}, {T2}, 3"); a(f"s_add_u32 {T2}, {T2}, {sW}"); a(f"s_lshl_b32 {T2}, {T2}, 15"); a(f"s_lshl_b32 {T3}, {sN}, 7"); a(f"s_add_u32 {T2}, {T2}, {T3}")
        a.vmem(f"buffer_load_dword {junk}, {junk}, {SWO}, {T2} offen", "touch")
    def poll_flags(self, mask, pre_issued=None):
        a = self.a; L = a.label("pf"); Ld = a.label("pfd")
        if pre_issued is None:
            a.vmem(f"buffer_load_dword {V0}, {vFL}, {SWS}, 0 offen sc1", "pf"); pre_issued = "pf"
        a.wait(vm=pre_issued)
        a(f"s_mov_b32 {sSPIN}, {SPIN}")
        a(f"{L}:")
        a(f"v_cmp_ne_u32 vcc, {sTAG}, {V0}"); a("s_nop 1")
        if mask >> 32 and mask & 0xffffffff:
            a(f"s_and_b32 {T0}, vcc_lo, {mask & 0xffffffff:#x}"); a(f"s_and_b32 {T1}, vcc_hi, {mask >> 32:#x}"); a(f"s_or_b32 {T0}, {T0}, {T1}")
        elif mask >> 32: a(f"s_and_b32 {T0}, vcc_hi, {mask >> 32:#x}")
        else: a(f"s_and_b32 {T0}, vcc_lo, {mask:#x}")
        a(f"s_cbranch_scc0 {Ld}")
        a(f"s_sub_u32 {sSPIN}, {sSPIN}, 1"); a(f"s_cbranch_scc1 {Ld}")
        a(f"buffer_load_dword {V0}, {vFL}, {SWS}, 0 offen sc1"); a("s_waitcnt vmcnt(0)")
        a(f"s_branch {L}")
        a(f"{Ld}:")
    def pf_issue(self): self.a.vmem(f"buffer_load_dword {V0}, {vFL}, {SWS}, 0 offen sc1", "pf")
    def flag_word(self, addr):
        a = self.a
        a(f"v_mov_b32 {V1}, {sTAG}")
        a(f"s_mov_b64 exec, 1")
        self.store_mode(lambda f: a(f"buffer_store_dword {V1}, off, {SWS}, {addr}{f}"), "flag", 1)
        a(f"s_mov_b64 exec, -1")
    def flag_h(self, late):
        a = self.a
        a(f"s_add_u32 {T0}, {sPI}, {32 if late else 0}"); self.flag_word(T0)
    def flag_o(self):
        a = self.a
        a(f"s_and_b32 {T1}, {sRB}, 1"); a(f"s_lshl_b32 {T0}, {sC}, 1"); a(f"s_add_u32 {T0}, {T0}, {T1}"); a(f"s_lshl_b32 {T0}, {T0}, 2"); a(f"s_add_u32 {T0}, {T0}, {sTG}")
        a(f"s_lshl_b32 {T0}, {T0}, 1"); a(f"s_add_u32 {T0}, {T0}, {sBB}"); a(f"s_lshl_b32 {T0}, {T0}, 4"); a(f"s_add_u32 {T0}, {T0}, {sHP}")
        a(f"s_lshl_b32 {T0}, {T0}, 2"); a(f"s_add_u32 {T0}, {T0}, {FO_OFF}")
        self.flag_word(T0)
    def prologue(self):
        a = self.a; o = self.o
        a("s_cmp_ge_u32 s2, 256"); a("s_cbranch_scc1 L_end")
        a("s_load_dwordx16 s[4:19], s[0:1], 0"); a("s_load_dwordx4 s[20:23], s[0:1], 64"); a("s_load_dwordx2 s[24:25], s[0:1], 80")
        if o.get('stamps'): a("s_memtime s[26:27]"); a("s_memrealtime s[66:67]")
        if o.get('span'): a("s_memrealtime s[26:27]")
        if o.get('cp0', 1):
            a("s_getpc_b64 s[90:91]"); a("L_pc:")
            a(f"s_lshr_b32 {T0}, s2, 3"); a(f"s_mul_i32 {T0}, {T0}, {8*184}")
            a(f"v_lshrrev_b32 {V0}, 6, v0"); a(f"v_mul_u32_u24 {V1}, 184, {V0}"); a(f"v_and_b32 {V2}, 1, v0"); a(f"v_lshl_add_u32 {V1}, {V2}, 6, {V1}")
            a(f"v_add_u32 {V1}, {T0}, {V1}"); a(f"v_min_u32 {V1}, L_end-L_pc-4, {V1}")
            a.vmem(f"global_load_dword {MJ}, {V1}, s[90:91]", "misc")
        a(f"v_lshrrev_b32 {V0}, 6, v0"); a(f"v_and_b32 {vL}, 63, v0"); a(f"v_readfirstlane_b32 {sW}, {V0}")
        a(f"s_and_b32 {sC}, s2, 7"); a(f"s_lshr_b32 {T0}, s2, 3"); a(f"s_and_b32 {T1}, {T0}, 1"); a(f"s_lshr_b32 {sJ}, {T0}, 1")
        a(f"s_lshl_b32 {T0}, {sJ}, 2")
        self.table(sType, T_A); self.table(sOWN, T_OWN); self.table(sA2, T_K); self.table(sUA, T_UA)
        if o.get('c0tab', 1): self.table(sC0, T_C0)
        else: a(f"s_mov_b32 {sC0}, {sJ}")
        a(f"s_and_b32 {sA1}, {sC}, 1")
        a(f"s_lshl_b32 {T2}, {sA1}, 2"); a(f"s_xor_b32 {sA2}, {sA2}, {T2}")
        a(f"s_mul_i32 {T2}, {sA1}, 11"); a(f"s_add_u32 {sUA}, {sUA}, {T2}")
        a(f"s_xor_b32 {T2}, {sOWN}, 1"); a(f"s_xor_b32 {T2}, {T2}, {sC}"); a(f"s_lshl_b32 {sRB}, {T2}, 1"); a(f"s_or_b32 {sRB}, {sRB}, {T1}")
        a(f"s_mul_i32 {T2}, {sRB}, {o.get('rotr', 0)}"); a(f"s_mul_i32 {sC0}, {sC0}, {o.get('rotj', 1)}"); a(f"s_add_u32 {sC0}, {sC0}, {T2}")
        a(f"s_mul_i32 {T2}, {sC}, {o.get('rotc', 1)}"); a(f"s_add_u32 {sC0}, {sC0}, {T2}"); a(f"s_and_b32 {sC0}, {sC0}, 7")
        a(f"s_and_b32 {sTG}, {sW}, 3"); a(f"s_lshr_b32 {sBB}, {sW}, 2"); a(f"s_lshl_b32 {sW1k}, {sW}, 10"); a(f"s_lshl_b32 {sW2k}, {sW}, 11")
        a(f"s_add_u32 {T2}, {sA2}, 8")
        a(f"s_cmp_eq_u32 {sType}, 0")
        self.csel(T3, 3072, 2752); self.csel(T5, 1024, 128); a(f"s_cselect_b32 {T4}, {T2}, {sUA}"); self.csel("s34", 512*3072, 512*2752)
        a(f"s_lshl_b32 {T4}, {T4}, 7")
        a(f"s_lshl_b32 {sStrA64}, {T3}, 6"); a(f"s_lshl_b32 {sStrA4}, {T3}, 2")
        a(f"s_lshl_b32 {T0}, {sRB}, 7"); a(f"s_lshl_b32 {T1}, {sW}, 4"); a(f"s_add_u32 {T0}, {T0}, {T1}"); a(f"s_lshl_b32 {T0}, {T0}, 10")
        a(f"v_lshrrev_b32 {V0}, 3, {vL}"); a(f"v_lshrrev_b32 {V1}, 4, {vL}"); a(f"v_and_b32 {V2}, 7, {vL}")
        a(f"v_xor_b32 {V3}, {V2}, {V1}"); a(f"v_lshlrev_b32 {V3}, 4, {V3}"); a(f"v_lshl_add_u32 {vX0}, {V0}, 10, {V3}"); a(f"v_add_u32 {vX0}, {T0}, {vX0}")
        a(f"v_xor_b32 {vX1}, 64, {vX0}"); a(f"v_add_u32 {vX1}, 0x2000, {vX1}")
        a(f"s_lshl_b32 {T1}, {sW}, 3")
        a(f"v_add_u32 {V3}, {T1}, {V1}"); a(f"v_mul_lo_u32 {vWA}, {V3}, {T3}")
        a(f"v_and_b32 {V3}, 15, {vL}"); a(f"v_lshlrev_b32 {V4}, 2, {V1}"); a(f"v_xor_b32 {V3}, {V3}, {V4}")
        a(f"v_lshrrev_b32 {V4}, 3, {V3}"); a(f"v_mul_lo_u32 {V4}, {V4}, {T5}"); a(f"v_and_b32 {V3}, 7, {V3}")
        a(f"v_lshl_add_u32 {V4}, {V3}, 4, {V4}"); a(f"v_add3_u32 {vWA}, {vWA}, {V4}, {T4}")
        a("s_mov_b32 s30, 0x200000"); a("s_mov_b32 s31, 0x20000"); a("s_mov_b32 s35, 0x20000")
        a(f"s_cmp_eq_u32 {sType}, 0")
        a("s_waitcnt lgkmcnt(0)")
        if o.get('stamps'): a("v_mov_b32 v23, 0"); a(f"s_mov_b32 {sST}, 0"); a("v_writelane_b32 v23, s66, 62")
        a("s_mov_b32 s28, s4"); a("s_mov_b32 s29, s5"); a(f"s_mov_b32 {sHP}, {sA2}")
        a("s_cselect_b32 s32, s6, s14"); a("s_cselect_b32 s33, s7, s15")
        a(f"s_mov_b32 {sMODE}, {sA1}")
        for f in self.dmaA(0): f()
        c1 = self.dmaA(1)
        a(f"s_lshl_b32 {T0}, {sJ}, 2")
        self.srd(STMP, 8, 16384)
        if o.get('wsoff'): a(f"s_add_u32 s24, s24, {o['wsoff']:#x}"); a("s_addc_u32 s25, s25, 0")
        a(f"s_mov_b32 s9, {sType}")
        self.table(sTB, T_B); self.table(sUB, T_UB); self.table(T1, T_PI); self.table(sN, T_N)
        a(f"s_mul_i32 {T2}, {sMODE}, 11"); a(f"s_add_u32 {sUB}, {sUB}, {T2}"); a(f"s_lshl_b32 {sW2O}, {T2}, 16")
        a(f"s_cmp_eq_u32 {sTB}, 1")
        a("s_cselect_b32 s36, s6, s14"); a("s_cselect_b32 s37, s7, s15"); self.csel("s38", 512*3072, 512*2752); a("s_mov_b32 s39, 0x20000")
        self.csel(T3, 3072, 2752); a(f"s_cselect_b32 {T4}, {sHP}, {sUB}")
        a(f"s_lshl_b32 {sStrB64}, {T3}, 6"); a(f"s_lshl_b32 {T4}, {T4}, 7")
        a(f"s_cmp_eq_u32 {sTB}, 2"); a(f"s_cselect_b32 {T4}, 0x40000000, {T4}")
        self.srd(SW2, 16, 1376*1024); self.srd(SWO, 10, 512*1024); self.srd(SWS, 24, WS_SIZE);
        self.srd(SOUT, 20, 0x200000); self.srd(SDBG, 22, 256)
        a(f"s_mov_b32 {sSIDE}, {sMODE}")
        a(f"s_lshl_b32 {T2}, {sC}, 1"); a(f"s_xor_b32 {T5}, {sOWN}, 1"); a(f"s_add_u32 {T2}, {T2}, {T5}"); a(f"s_lshl_b32 {T2}, {T2}, 1"); a(f"s_and_b32 {T5}, {sRB}, 1")
        a(f"s_add_u32 {T2}, {T2}, {T5}"); a(f"s_lshl_b32 {T2}, {T2}, 2"); a(f"s_add_u32 {T2}, {T2}, {sTG}"); a(f"s_lshl_b32 {T2}, {T2}, 1"); a(f"s_add_u32 {T2}, {T2}, {sBB}")
        a(f"s_lshl_b32 {T2}, {T2}, 4"); a(f"s_add_u32 {T2}, {T2}, {T1}"); a(f"s_lshl_b32 {T2}, {T2}, 2"); a(f"s_add_u32 {sPI}, {T2}, {FH_OFF}")
        a(f"s_lshl_b32 {T5}, {T5}, 1"); a(f"s_add_u32 {sMM}, {T5}, s9")
        a(f"v_and_b32 {V3}, 1, {V1}"); a(f"v_lshlrev_b32 {V3}, 2, {V3}"); a(f"v_xor_b32 {V3}, {V3}, {V2}"); a(f"v_lshlrev_b32 {V3}, 4, {V3}")
        a(f"s_lshl_b32 {T1}, {sW}, 3"); a(f"v_add_u32 {V4}, {T1}, {V0}")
        a(f"v_mul_lo_u32 {vWB}, {V4}, {T3}"); a(f"v_add3_u32 {vWB}, {vWB}, {V3}, {T4}")
        a(f"s_lshl_b32 {T1}, {sN}, 7"); a(f"v_lshl_add_u32 {vW2}, {V4}, 10, {V3}"); a(f"v_add_u32 {vW2}, {T1}, {vW2}")
        a(f"v_lshlrev_b32 {vL16}, 4, {vL}")
        Lg = a.label("gsrd")
        a(f"s_cmp_eq_u32 {sJ}, 11"); a(f"s_cbranch_scc0 {Lg}")
        a("s_mov_b32 s36, s18"); a("s_mov_b32 s37, s19"); a("s_mov_b32 s38, 1024"); a(f"s_mov_b32 {sStrB64}, 0")
        a(f"v_add_u32 {V4}, {sC0}, {V0}"); a(f"v_and_b32 {V4}, 7, {V4}"); a(f"v_lshlrev_b32 {V3}, 4, {V2}"); a(f"v_lshl_add_u32 {vWB}, {V4}, 7, {V3}")
        a(f"{Lg}:")
        c1[0]()
        a(f"v_lshrrev_b32 {V0}, 5, {vL}"); a(f"v_bfe_u32 {V2}, {vL}, 2, 2")
        a(f"v_and_b32 {V3}, 1, {vL}"); a(f"v_bfe_u32 {V4}, {vL}, 1, 1"); a(f"v_lshl_add_u32 {V3}, {V3}, 1, {V4}"); a(f"v_lshlrev_b32 {V3}, 3, {V3}")
        a(f"v_and_b32 {V6}, 1, {V1}"); a(f"v_lshl_add_u32 {V3}, {V6}, 5, {V3}")
        a(f"v_lshl_add_u32 {V4}, {V0}, 3, {V2}")
        a(f"v_xor_b32 {V5}, {sBB}, {V2}"); a(f"v_lshlrev_b32 {V5}, 6, {V5}"); a(f"v_lshl_add_u32 {V5}, {V4}, 8, {V5}"); a(f"v_add_u32 {V5}, {V5}, {V3}")
        a(f"v_add_u32 {vAR0}, {WSL(0)}, {V5}"); a(f"v_xor_b32 {vAR1}, 128, {vAR0}")
        a(f"v_and_b32 {V7}, 31, {vL}"); a(f"v_bfe_u32 {V5}, {vL}, 1, 3"); a(f"v_xor_b32 {V5}, {V5}, {V0}"); a(f"v_lshlrev_b32 {V5}, 4, {V5}")
        a(f"s_lshl_b32 {T0}, {sTG}, 12"); a(f"v_lshl_add_u32 {vXR0}, {V7}, 7, {V5}"); a(f"v_add_u32 {vXR0}, {T0}, {vXR0}")
        a(f"v_xor_b32 {vXR1}, 32, {vXR0}"); a(f"v_xor_b32 {vXR2}, 64, {vXR0}"); a(f"v_xor_b32 {vXR3}, 0x60, {vXR0}")
        c1[1]()
        a(f"v_lshrrev_b32 {V5}, 1, {V2}"); a(f"v_lshlrev_b32 {V5}, 6, {V5}"); a(f"v_lshl_add_u32 {V5}, {V4}, 7, {V5}"); a(f"v_add_u32 {V5}, {V5}, {V3}")
        a(f"s_lshl_b32 {T0}, {sBB}, 6"); a(f"v_xor_b32 {vBR}, {T0}, {V5}"); a(f"v_add_u32 {vBR}, {R}, {vBR}")
        a(f"s_lshr_b32 {T0}, {sW}, 1"); a(f"s_lshl_b32 {T0}, {T0}, 11"); a(f"v_add_u32 {vPR0}, {T0}, {V5}"); a(f"v_xor_b32 {vPR1}, 64, {vPR0}")
        a(f"v_add_u32 {vPO0}, {R}, {vPR0}"); a(f"v_add_u32 {vPO1}, {R}, {vPR1}")
        a(f"v_mul_u32_u24 {V5}, {512-32}, {V6}"); a(f"v_add_u32 {V5}, {V5}, {V3}"); a(f"v_lshl_add_u32 {V5}, {V4}, 5, {V5}")
        a(f"s_lshl_b32 {T0}, {sBB}, 12"); a(f"s_add_u32 {T0}, {T0}, {R + 57344}"); a(f"v_add_u32 {MWP}, {T0}, {V5}")
        a(f"s_cmp_ge_u32 {sN}, 6"); a(f"s_cselect_b32 {T0}, 6, 0"); a(f"s_sub_u32 {sR1}, {sN}, {T0}"); a(f"s_mov_b32 {sR2}, {sN}")
        if not o.get('hrot', 1): a(f"s_mov_b32 {sR1}, 0"); a(f"s_mov_b32 {sR2}, 0")
        a(f"s_lshr_b32 {T0}, {sW2O}, 3"); a(f"s_lshl_b32 {T1}, {sSIDE}, 21"); a(f"s_add_u32 {sH2}, {T0}, {T1}"); a(f"s_xor_b32 {T1}, {T1}, 0x200000"); a(f"s_add_u32 {sH1}, {T0}, {T1}")
        a(f"s_lshl_b32 {sC32}, {sC}, 5")
        a(f"s_mov_b32 {sL2E}, 0x3fb8aa3b"); a("s_mov_b32 s0, 0x3fb8aa3b"); a("s_mov_b32 s1, 0x3fb8aa3b")
        c1[2]()
        a(f"s_lshl_b32 {T0}, {sMM}, 1"); a(f"s_and_b32 {T1}, {sW}, 1"); a(f"s_add_u32 {T0}, {T0}, {T1}")
        a(f"s_lshr_b32 {T1}, {sW}, 1")
        a(f"v_lshrrev_b32 {V3}, 3, {vL}"); a(f"v_cmp_eq_u32 vcc, 3, {V3}")
        a(f"s_and_b32 {T2}, {T0}, 3"); a(f"s_add_u32 {T2}, {T2}, 9"); a(f"s_lshl_b32 {T2}, {T2}, 7"); a(f"v_add_u32 {V3}, {T2}, {vL16}"); a(f"v_cndmask_b32 {V3}, {vL16}, {V3}, vcc")
        a(f"s_and_b32 {T3}, {sC}, 6"); a(f"s_lshl_b32 {T3}, {T3}, 3"); a(f"s_add_u32 {T3}, {T3}, {T0}")
        a(f"s_lshl_b32 {T2}, {T3}, 18"); a(f"s_lshl_b32 {T3}, {T1}, 11"); a(f"s_add_u32 {T2}, {T2}, {T3}"); a(f"v_add_u32 {vHL}, {T2}, {V3}")
        a(f"s_add_u32 {T2}, {sTG}, 9"); a(f"s_lshl_b32 {T2}, {T2}, 7"); a(f"v_add_u32 {V3}, {T2}, {vL16}"); a(f"v_cndmask_b32 {vHS}, {vL16}, {V3}, vcc")
        a(f"s_lshl_b32 {T0}, {T0}, 1"); a(f"s_lshr_b32 {T1}, {T1}, 1"); a(f"s_add_u32 {T0}, {T0}, {T1}"); a(f"s_lshl_b32 {T0}, {T0}, 6")
        a(f"s_lshl_b32 {T1}, {sC}, 11"); a(f"s_add_u32 {T1}, {T1}, {T0}"); a(f"s_add_u32 {T1}, {T1}, {FH_OFF}")
        a(f"s_lshl_b32 {T2}, {sC}, 10"); a(f"s_add_u32 {T2}, {T2}, {T0}"); a(f"s_add_u32 {T2}, {T2}, {FO_OFF}")
        a(f"s_and_b32 {T3}, {sMM}, 2"); a(f"s_add_u32 {T3}, {T3}, {sBB}"); a(f"s_lshl_b32 {T3}, {T3}, 2"); a(f"s_and_b32 {T4}, {sW}, 1"); a(f"s_lshl_b32 {T4}, {T4}, 1"); a(f"s_add_u32 {T3}, {T3}, {T4}")
        a(f"s_bfe_u32 {T4}, {sW}, 0x10001"); a(f"s_add_u32 {T3}, {T3}, {T4}"); a(f"s_lshl_b32 {T3}, {T3}, 6"); a(f"s_lshl_b32 {T4}, {sC}, 11"); a(f"s_add_u32 {T3}, {T3}, {T4}"); a(f"s_add_u32 {T3}, {T3}, {FH_OFF + 1024}")
        a(f"v_and_b32 {V3}, 15, {vL}"); a(f"v_lshlrev_b32 {V3}, 2, {V3}"); a(f"v_add_u32 {V4}, {T2}, {V3}"); a(f"v_add_u32 {V5}, {T3}, {V3}"); a(f"v_add_u32 {V3}, {T1}, {V3}")
        a(f"v_cmp_gt_u32 vcc, 32, {vL}"); a(f"v_cndmask_b32 {vFL}, {V4}, {V5}, vcc")
        a(f"v_cmp_gt_u32 vcc, 16, {vL}"); a(f"v_cndmask_b32 {vFL}, {vFL}, {V3}, vcc")
        a(f"s_lshl_b32 {T0}, {sRB}, 2"); a(f"s_add_u32 {T0}, {T0}, {sTG}"); a(f"s_lshl_b32 {T0}, {T0}, 18"); a(f"s_lshl_b32 {T1}, {sBB}, 12"); a(f"s_add_u32 {T0}, {T0}, {T1}")
        a(f"v_add_u32 {vHS}, {T0}, {vHS}")
        c1[3]()
        def census():
            a(f"s_getreg_b32 {sXCC}, hwreg(HW_REG_XCC_ID, 0, 4)")
            a(f"s_mul_i32 {T2}, {sXCC}, {sXCC}"); a(f"s_lshl_b32 {T2}, {T2}, 16"); a(f"s_lshl_b32 {T3}, {sXCC}, 8"); a(f"s_add_u32 {T2}, {T2}, {T3}"); a(f"s_add_u32 {T2}, {T2}, 1")
            a(f"s_cmp_eq_u32 {sW}, 0"); a(f"s_cselect_b32 {T0}, {sC32}, 0x1000")
            a(f"v_mov_b32 {MAT}, {T2}")
            a("s_mov_b64 exec, 1")
            a.vmem(f"buffer_atomic_add {MAT}, off, {SDBG}, {T0}", "misc")
            a("s_mov_b64 exec, -1")
        def m_wphi():
            L1 = a.label("wp"); L2 = a.label("wpd")
            a(f"s_lshl_b32 {T0}, {sHP}, 11"); a(f"s_lshl_b32 {T1}, {sBB}, 10"); a(f"s_add_u32 {T0}, {T0}, {T1}")
            a(f"s_add_u32 m0, {sW1k}, {R + 57344}")
            a(f"s_cmp_eq_u32 {sTG}, 0"); a(f"s_cbranch_scc0 {L1}")
            a.vmem(f"buffer_load_dwordx4 {vL16}, {STMP}, {T0} offen lds", "misc")
            a(f"s_branch {L2}"); a(f"{L1}:")
            a(f"buffer_load_dword {MJ}, off, {STMP}, {T0}")
            a(f"{L2}:")
        def m_e():
            a(f"s_mov_b32 {T0}, {E_OFF}")
            a.vmem(f"buffer_load_dword {ME}, off, {SWS}, {T0} sc1", "misc")
        def m_code():
            a("s_getpc_b64 s[90:91]"); a("L_pc:")
            a(f"s_lshr_b32 {T0}, s2, 3"); a(f"s_lshl_b32 {T0}, {T0}, 3"); a(f"s_add_u32 {T0}, {T0}, {sW}"); a(f"s_mul_i32 {T0}, {T0}, 184")
            a(f"s_min_u32 {T0}, {T0}, L_end-L_pc-68"); a(f"v_and_b32 {MAT}, 64, {vL16}"); a(f"v_add_u32 {MAT}, {T0}, {MAT}")
            a.vmem(f"global_load_dword {MJ}, {MAT}, s[90:91]", "misc")
        m_fl = lambda: a.vmem(f"buffer_load_dword {MJ}, {vFL}, {SWS}, 0 offen sc1", "misc")
        if not o.get('cp0', 1): m_code()
        census()
        self.misc = [m_e, m_wphi, m_fl]
        self.stamp(1)
    def passA(self):
        a = self.a; o = self.o
        xr = [vXR0, vXR1, vXR2, vXR3]; buf = [FR, FR + 8, FR + 16, PHI]
        def reads(c, st):
            s = c % 3; b = buf[st]
            a.ds(f"ds_read_b128 {ar(16*c+4*st,4)}, {xr[st]} offset:{XS(s)}", f"r{st}")
            for u, v in ((0, vAR0), (1, vAR1)):
                for e in range(2):
                    a.ds(f"ds_read_b64_tr_b16 {vr(b+4*u+2*e,2)}, {v} offset:{s*16384 + st*4096 + e*1024}", f"r{st}")
        def landed(tag, n):
            assert a.vm.q.count(tag) == n, (tag, a.vm.q)
            a.wait(vm=tag)
        def m1(c, st, u):
            acc = (ACC0, ACC1)[u]
            cc = "0" if (c == 0 and st == 0) else vr(acc, 16)
            a(f"v_mfma_f32_32x32x16_bf16 {vr(acc,16)}, {vr(buf[st]+4*u,4)}, {ar(16*c+4*st,4)}, {cc}")
        def half(c, st, rd, nslot):
            pat = o.get('apat', 'MRMRVMVMV')
            mf = [(st, 0), (st, 1), (st+1, 0), (st+1, 1)]; rd = list(rd); left = nslot; nv = pat.count('V')
            for ch in pat:
                if ch == 'M': m1(c, *mf.pop(0))
                elif ch == 'R':
                    if rd: reads(*rd.pop(0))
                else:
                    n = -(-left // nv); self.slot(n); left -= n; nv -= 1
        bsched = o.get('bsched', [0, 0, 0, 1, 1, 3, 3, 0])
        assert sum(bsched) == 8 and sum(bsched[:5]) <= 7
        bl = o.get('blate', 0); assert not (bl and o.get('kil', 1))
        nb = 0
        self.push(*self.dmaA(2)); self.slot(2)
        self.push(*self.misc)
        landed("c0", 4); a("s_barrier")
        self.stamp(2)
        reads(0, 0); reads(0, 1)
        self.slot(2)
        for c in range(8):
            a.wait(lg="r1")
            half(c, 0, [(c, 2), (c, 3)], len(self.pend))
            if c == 4:
                a.ds(f"ds_read_b64_tr_b16 {vr(WP0,2)}, {MWP}", "r3"); a.ds(f"ds_read_b64_tr_b16 {vr(WP0+2,2)}, {MWP} offset:128", "r3")
                a(f"v_readfirstlane_b32 {sE}, {ME}")
                a(f"v_and_b32 {V0}, 16, {vL}"); a(f"v_cmp_eq_u32 vcc, 0, {V0}")
                a(f"s_add_u32 {sE}, {sE}, 1"); a(f"s_mul_i32 {sTAG}, {sE}, 0x9E3779B1"); a(f"s_add_u32 {sTAG}, {sTAG}, 0x7F4A7C15")
            a.wait(lg="r3")
            if c < 7: landed(f"c{c+1}", 4)
            elif not bl:
                assert nb == 8 and not self.pend
                a.wait(vm="B0")
            a("s_barrier")
            self.stamp(f"c{c+1}")
            if c + 3 <= 7: self.push(*self.dmaA(c + 3))
            for _ in range(bsched[c]): self.push(*self.dmaB(nb)); nb += 1
            if c == 7: self.wx = self.w2x(); n = o.get('a7', 2); self.push(*self.wx[:n]); self.wx = self.wx[n:]
            half(c, 2, [(c + 1, 0), (c + 1, 1)] if c < 7 else [], (len(self.pend) + 1)//2 if c < 7 else len(self.pend))
            if c == 4:
                for i in range(4):
                    a(f"v_cndmask_b32_e64 v{WP1+i}, v{WP0+i}, 0, vcc")
                    a(f"v_cndmask_b32 v{WP0+i}, 0, v{WP0+i}, vcc")
        self.stamp(3)
    def first_kv(self):
        a = self.a; o = self.o
        a(f"v_and_b32 {V4}, 31, {vL}"); a(f"v_lshrrev_b32 {V5}, 5, {vL}"); a(f"v_lshlrev_b32 {V5}, 4, {V5}"); a(f"v_lshl_add_u32 {V4}, {V4}, 5, {V5}")
        a(f"s_lshl_b32 {T0}, {sTG}, 10"); a(f"s_lshl_b32 {T1}, {sBB}, 13"); a(f"s_add_u32 {T2}, {T0}, {T1}"); a(f"s_add_u32 {T3}, {T2}, {T1}")
        a(f"v_add_u32 {V5}, {T2}, {V4}"); a(f"v_add_u32 {V4}, {T3}, {V4}")
        def sink(hd, sg, b):
            d = ACC0 + 8*hd + 4*sg
            return [f"v_cvt_pk_bf16_f32 v{d+i}, v{b+2*i}, v{b+2*i+1}" for i in range(4)] + \
                   [lambda: a.ds(f"ds_write_b128 {V4}, {vr(d,4)} offset:{(2*hd+sg)*4096}", "kw")]
        il = o.get('kil', 1)
        L = self.softmax(ACC0, ACC0, (ACC1, PHI), FR + 16, sink, 0 if il else 1)
        vf = PHI
        Vv = [f"v_cvt_pk_bf16_f32 v{vf+i}, v{ACC1+2*i}, v{ACC1+2*i+1}" for i in range(8)]
        Vv += [(lambda hd=hd: a.ds(f"ds_write_b128 {V5}, {vr(vf+4*hd,4)} offset:{32768 + hd*4096}", "kw")) for hd in range(2)]
        L = L[:10] + Vv + L[10:]
        n = o.get('kd1', 2); self.push(*self.wx[:n]); self.wx = self.wx[n:]
        if il: self.passB(0, L, o.get('kper', 12), 100)
        else: self.run(L)
        self.flush()
        a.wait(lg="kw"); a.wait(vm="B1")
        a("s_barrier")
        self.stamp(4)
        a(f"s_lshl_b32 {T0}, {sW}, 12"); a(f"s_lshr_b32 {T1}, {sW}, 1"); a(f"s_lshl_b32 {T1}, {T1}, 12"); a(f"s_add_u32 {T1}, {T1}, 32768")
        a(f"v_lshlrev_b32 {V0}, 3, {vL}"); a(f"v_add_u32 {V1}, {T1}, {V0}"); a(f"v_add_u32 {V0}, {T0}, {V0}")
        A, Bv, ONE, DK, DZ = ACC0, ACC1, PHI, PHI+4, PHI+8
        for st in range(4):
            for e in range(2): a.ds(f"ds_read_b64_tr_b16 {vr(A+4*st+2*e,2)}, {V0} offset:{st*1024+e*512}", f"k{st}")
            if st == 3: a.wait(lg="k0")
            for e in range(2): a.ds(f"ds_read_b64_tr_b16 {vr(Bv+4*st+2*e,2)}, {V1} offset:{st*1024+e*512}", f"k{st}")
        for i in range(4): a(f"v_mov_b32 v{ONE+i}, 0x3f803f80")
        a(f"s_lshl_b32 {T0}, {sHP}, 4"); a(f"s_add_u32 {T0}, {T0}, {sRB}"); a(f"s_lshl_b32 {T0}, {T0}, 3"); a(f"s_add_u32 {T0}, {T0}, {sW}")
        a(f"s_lshl_b32 {T1}, {T0}, 10"); a(f"s_add_u32 {T1}, {T1}, {P_OFF}"); a(f"s_lshl_b32 {T2}, {T0}, 6"); a(f"s_add_u32 {T2}, {T2}, {PZ_OFF}")
        a(f"v_and_b32 {V3}, 15, {vL}"); a(f"v_cmp_eq_u32 vcc, 0, {V3}"); a(f"v_mov_b32 {V3}, {OOB}")
        a(f"v_cndmask_b32 {V3}, {V3}, {vL}, vcc")
        a(f"s_mov_b32 {T3}, 0x07060501"); a(f"s_mov_b32 {T4}, 0x07060502"); a(f"s_mov_b32 {T5}, 0x07060503")
        for st in range(4):
            a.wait(lg=f"k{st}")
            a(f"v_mfma_f32_16x16x32_bf16 {vr(DK,4)}, {vr(A+4*st,4)}, {vr(Bv+4*st,4)}, {'0' if st == 0 else vr(DK,4)}")
            a(f"v_mfma_f32_16x16x32_bf16 {vr(DZ,4)}, {vr(A+4*st,4)}, {vr(ONE,4)}, {'0' if st == 0 else vr(DZ,4)}")
        for D in (DK, DZ):
            a(f"v_perm_b32 v{D}, v{D}, v{D+3}, {T3}"); a(f"v_perm_b32 v{D+1}, v{D+1}, v{D+3}, {T4}"); a(f"v_perm_b32 v{D+2}, v{D+2}, v{D+3}, {T5}")
            a(f"v_mov_b32 v{D+3}, {sTAG}")
        a.vmem(f"buffer_load_dword {V7}, off, {SDBG}, {sC32} sc1", "mode")
        a.vmem(f"buffer_store_dwordx4 {vr(DK,4)}, {vL16}, {SWS}, {T1} offen sc1", "part")
        a.vmem(f"buffer_store_dwordx4 {vr(DZ,4)}, {V3}, {SWS}, {T2} offen sc1", "part")
        self.ack_store(); self.touch()
        self.stamp(5)
    def first_hh(self):
        a = self.a; o = self.o
        a(f"s_lshl_b32 {T0}, {sUA}, 13")
        L = []
        for u, acc in enumerate((ACC0, ACC1)):
            pk = PHI + 8*u
            hp = self.h_pack(acc, pk)
            for kk in range(2):
                L += hp[12*kk:12*kk+12]
                L += [f"s_add_u32 {T1}, {T0}, {u*UNIT + kk*STEP}",
                      lambda pk=pk, kk=kk: a.vmem(f"buffer_store_dwordx4 {vr(pk+4*kk,4)}, {vHS}, {SWS}, {T1} offen sc1", "hst")]
        n = o.get('hd1', 0)
        self.wx = self.wx + self.w2y()
        L += [self.ack_store, self.get_mode_issue, self.touch, lambda: self.stamp(4), lambda: self.push(*self.wx[:n])]
        if o.get('blate', 0):
            self.run(L); L = []
            a.wait(vm="B0"); a("s_barrier")
        self.passB(0, L, o.get('qper', 8), 2)
        self.wx = self.wx[n:]
        self.flush()
        a.wait(vm="B1"); a("s_barrier")
        self.stamp("B1")
    def softmax_q(self, acc, pq, E, kf, mid):
        L = []; a = L.append
        for i in range(8): a(f"v_cvt_pk_bf16_f32 v{kf+i}, v{acc+2*i}, v{acc+2*i+1}")
        a(f"v_mfma_f32_32x32x16_bf16 {vr(pq,16)}, {vr(WP0,4)}, {vr(kf,4)}, 0")
        a(f"v_mfma_f32_32x32x16_bf16 {vr(pq,16)}, {vr(WP1,4)}, {vr(kf+4,4)}, {vr(pq,16)}")
        hook = lambda k: a(lambda: (self.stamp(f"sm{k}"), mid(k)))
        hook(0); a(self.slot); a(self.slot)
        S = ((kf, kf+2), (kf+4, kf+6))
        for k in range(4):
            for hd in range(2):
                p = pq + 8*hd; mp, mn = S[hd]
                if k == 0: a(f"v_max3_f32 v{mp}, v{p}, v{p+1}, v{p+2}"); a(f"v_max3_f32 v{mn}, -v{p}, -v{p+1}, -v{p+2}")
                elif k < 3: a(f"v_max3_f32 v{mp}, v{mp}, v{p+1+2*k}, v{p+2+2*k}"); a(f"v_max3_f32 v{mn}, v{mn}, -v{p+1+2*k}, -v{p+2+2*k}")
                else: a(f"v_max_f32 v{mp}, v{mp}, v{p+7}"); a(f"v_max_f32_e64 v{mn}, v{mn}, -v{p+7}")
        a(self.slot)
        def both(f):
            for hd in range(2): f(*S[hd])
        both(lambda x, y: a(f"v_permlane32_swap_b32 v{x}, v{y}"))
        both(lambda x, y: a(f"v_max_f32 v{x}, v{x}, v{y}"))
        both(lambda x, y: a(f"v_mul_f32 v{x}, {sL2E}, v{x}"))
        both(lambda x, y: a(f"v_mov_b32 v{y}, v{x}"))
        both(lambda x, y: a(f"v_permlane32_swap_b32 v{x}, v{y}"))
        a(self.slot)
        for hd in range(2):
            p = pq + 8*hd; e = E[hd]
            for sg in range(2):
                m = S[hd][sg]; b = e + 8*sg
                for i in range(8): a(f"v_fma_f32 v{b+i}, {'-' if sg else ''}v{p+i}, {sL2E}, -v{m}")
                a(self.slot)
                for i in range(8): a(f"v_exp_f32 v{b+i}, v{b+i}")
                a(self.slot)
                for i in range(4): a(f"v_cvt_pk_bf16_f32 v{PHI+8*hd+4*sg+i}, v{b+2*i}, v{b+2*i+1}")
            if hd == 0: hook(1)
        return L
    def second(self, kindA, kindB):
        a = self.a; o = self.o; P = kindA + kindB
        rest = self.wx
        n = o.get('d2' + kindA, 4); self.push(*rest[:n]); rest = rest[n:]
        if kindA == 'k' and not o.get('kil', 1): self.passB(0, [], 0, 4)
        early = (lambda: (self.get_mode_wait(), self.flag_h(False))) if kindA == 'h' else self.get_mode_wait
        ef = o.get('ef', 99) if kindA == 'h' else 99
        self.passB(1, [(lambda: None)]*ef + [early] if ef < 16 else [], 1, 3)
        if ef < 16: early = lambda: None
        self.flush()
        self.stamp(6)
        a("s_barrier")
        if kindA == 'k': rest = rest + self.w2y()
        ph = Phase2(self, P)
        if kindB == 'q':
            fl = o.get('qflag', 0); qp = o.get('qp' + kindA, 0 if kindA == 'k' else 2)
            if qp == 0:
                for f in rest: f()
                self.pf_issue()
            else: self.push(*rest)
            def mid(k):
                if k == fl: early()
                if k + 1 == qp: self.flush(); self.pf_issue()
                if k == qp: ph.begin("pf", True)
                if kindA == 'h' and k == o.get('h1i', 2): self.red1_issue()
            self.run(self.softmax_q(ACCB, ACC0, (ACC1, ACCB), FR, mid))
            self.flush()
            self.stamp(7)
            fin = None
            if kindA == 'h':
                if o.get('h1i', 2) == 2: self.red1_issue()
                fin = self.red1_finish()
                if qp == 3: self.pf_issue()
            if qp >= 2: ph.begin("pf", False, fin)
            elif fin: fin()
        else:
            def stores():
                a(f"s_lshl_b32 {T2}, {sUB}, 13"); a(f"s_add_u32 {T3}, {T2}, {STEP}")
                a.vmem(f"buffer_store_dwordx4 {vr(FR,4)}, {vHS}, {SWS}, {T2} offen sc1", "hst")
                a.vmem(f"buffer_store_dwordx4 {vr(FR+4,4)}, {vHS}, {SWS}, {T3} offen sc1", "hst")
            sf = o.get('sfirst' + P, 1)
            if sf == 1:
                for f in rest: f()
                self.run(self.h_pack(ACCB, FR)); early(); stores()
                self.stamp(7)
                a.wait(vm="hst"); self.flag_h(True); ph.late = False
                ph.begin(None, False)
            else:
                for f in rest: f()
                early(); self.pf_issue()
                self.run(self.h_pack(ACCB, FR))
                ph.begin("pf", False); stores()
                self.stamp(7)
        ph.main()
    def gate_wave(self):
        a = self.a
        a(f"v_lshrrev_b32 {V0}, 5, {vL}"); a(f"v_lshlrev_b32 {V0}, 4, {V0}"); a(f"s_add_u32 {T0}, {sW1k}, {R + 57344}"); a(f"v_add_u32 {V0}, {T0}, {V0}")
        D = 5
        def rd(st): a.ds(f"ds_read_b128 {vr(FR+4*(st%6),4)}, {V0} offset:{st*32}", f"g{st}")
        for st in range(D): rd(st)
        for st in range(32):
            if st + D < 32: rd(st + D)
            a.wait(lg=f"g{st}")
            a(f"v_mfma_f32_32x32x16_bf16 {vr(ACCB,16)}, {vr(FR+4*(st%6),4)}, {ar(4*st,4)}, {'0' if st == 0 else vr(ACCB,16)}")
        a(f"s_lshl_b32 {T2}, {sRB}, 2"); a(f"s_add_u32 {T2}, {T2}, {sTG}"); a(f"s_lshl_b32 {T2}, {T2}, 8"); a(f"s_add_u32 {T2}, {T2}, {G_OFF}")
        a(f"v_and_b32 {V1}, 31, {vL}"); a(f"v_lshlrev_b32 {V1}, 3, {V1}"); a(f"v_mov_b32 {V3}, {sTAG}")
        a(f"v_mul_f32 {V2}, {sL2E}, v{ACCB}"); a(f"v_exp_f32_e64 {V2}, -{V2}"); a(f"v_add_f32 {V2}, 1.0, {V2}"); a(f"v_rcp_f32 {V2}, {V2}")
        a(f"s_cmp_eq_u32 {sBB}, 0"); a(f"s_cselect_b32 {T2}, {T2}, {OOB}")
        a(f"buffer_store_dwordx2 v[26:27], {V1}, {SWS}, {T2} offen sc1")
    def path_r(self):
        a = self.a; o = self.o
        Lng = a.label("ng")
        a(f"s_cmp_eq_u32 {sJ}, 11"); a(f"s_cbranch_scc0 {Lng}")
        self.gate_wave()
        a(f"{Lng}:")
        a("s_barrier")
        for f in self.wx + self.w2y(): f()
        ph = Phase2(self, 'r'); ph.begin(None, False); ph.main()
    def red1_issue(self):
        a = self.a
        a(f"s_and_b32 {T0}, {sRB}, 1"); a(f"s_lshl_b32 {T0}, {T0}, 2"); a(f"s_add_u32 {T0}, {T0}, {sJ}"); a(f"s_sub_u32 {T0}, {T0}, 4")
        a(f"s_lshl_b32 {T2}, {sC}, 7"); a(f"s_add_u32 {T2}, {T2}, {T0}")
        a(f"s_lshl_b32 {T3}, {T2}, 10"); a(f"s_lshl_b32 {T4}, {sW}, 7"); a(f"s_add_u32 {T3}, {T3}, {T4}"); a(f"s_add_u32 {T3}, {T3}, {P_OFF}")
        a(f"v_lshrrev_b32 {V2}, 3, {vL}"); a(f"v_and_b32 {V1}, 7, {vL}"); a(f"v_lshlrev_b32 {V1}, 4, {V1}"); a(f"v_lshl_add_u32 {V2}, {V2}, 13, {V1}"); a(f"v_add_u32 {V2}, {T3}, {V2}")
        a(f"s_lshl_b32 {T3}, {T2}, 6"); a(f"s_add_u32 {T3}, {T3}, {PZ_OFF}")
        a(f"v_lshrrev_b32 {V4}, 2, {vL}"); a(f"v_and_b32 {V3}, 3, {vL}"); a(f"v_lshlrev_b32 {V3}, 4, {V3}"); a(f"v_lshl_add_u32 {V3}, {V4}, 9, {V3}"); a(f"v_add_u32 {V3}, {T3}, {V3}")
        a(f"s_lshl_b32 {T2}, {sC}, 3"); a(f"s_add_u32 {T2}, {T2}, {T0}")
        a(f"s_lshl_b32 {T3}, {T2}, 10"); a(f"s_add_u32 {T3}, {T3}, {T4}"); a(f"s_add_u32 {T3}, {T3}, {F_OFF}")
        a(f"v_mov_b32 {V6}, {OOB}"); a(f"v_cmp_gt_u32 vcc, 8, {vL}"); a(f"v_add_u32 {V4}, {T3}, {V1}"); a(f"v_cndmask_b32 {V4}, {V6}, {V4}, vcc")
        a(f"s_lshl_b32 {T3}, {T2}, 6"); a(f"s_add_u32 {T3}, {T3}, {FZ_OFF}"); a(f"s_cmp_eq_u32 {sW}, 0"); a(f"s_cselect_b32 {T3}, {T3}, {OOB - 0x100}")
        a(f"v_cmp_gt_u32 vcc, 4, {vL}"); a(f"v_add_u32 {V5}, {T3}, {V1}"); a(f"v_cndmask_b32 {V5}, {V6}, {V5}, vcc")
        self.red1_loads(True)
    def red1_loads(self, track):
        a = self.a; Bq = FR + 8
        a(f"s_mov_b32 {T5}, 0x10000")
        for s in (f"buffer_load_dwordx4 {vr(Bq,4)}, {V2}, {SWS}, 0 offen sc1", f"buffer_load_dwordx4 {vr(Bq+4,4)}, {V2}, {SWS}, {T5} offen sc1",
                  f"buffer_load_dwordx4 {vr(Bq+8,4)}, {V3}, {SWS}, 0 offen sc1"):
            a.vmem(s, "h1") if track else a(s)
    def red1_finish(self):
        a = self.a; Bq = FR + 8; Z = Bq + 8; Tm = ACC0
        L = a.label("h1"); Ld = a.label("h1d")
        a.wait(vm="h1")
        a(f"s_mov_b32 {sSPIN}, {SPIN}")
        a(f"{L}:")
        a(f"v_cmp_ne_u32 vcc, {sTAG}, v{Bq+3}")
        for i in range(1, 3):
            a(f"v_cmp_ne_u32 {sM}, {sTAG}, v{Bq+4*i+3}"); a("s_nop 1"); a(f"s_or_b64 vcc, vcc, {sM}")
        a(f"s_cbranch_vccz {Ld}")
        a(f"s_sub_u32 {sSPIN}, {sSPIN}, 1"); a(f"s_cbranch_scc1 {Ld}")
        self.red1_loads(False); a("s_waitcnt vmcnt(0)"); a(f"s_branch {L}")
        a(f"{Ld}:")
        self.stamp("h1")
        a(f"s_mov_b32 {T1}, 0x04000c0c"); a(f"s_mov_b32 {T2}, 0x0706000c")
        for i in range(3):
            b = Bq + 4*i
            a(f"v_perm_b32 v{b+3}, v{b+2}, v{b+1}, {T1}"); a(f"v_perm_b32 v{b+3}, v{b+3}, v{b}, {T2}")
        for i in range(4): a(f"v_add_f32 v{Bq+i}, v{Bq+i}, v{Bq+4+i}")
        for i in range(4): a(f"v_add_f32_dpp v{Z+i}, v{Z+i}, v{Z+i} row_ror:4 row_mask:0xf bank_mask:0xf")
        vals = list(range(Bq, Bq+4)) + list(range(Z, Z+4))
        for v in vals: a(f"v_add_f32_dpp v{v}, v{v}, v{v} row_ror:8 row_mask:0xf bank_mask:0xf")
        for op in ("v_permlane16_swap_b32", "v_permlane32_swap_b32"):
            for k, v in enumerate(vals): a(f"v_mov_b32 v{Tm+k}, v{v}")
            for k, v in enumerate(vals): a(f"{op} v{v}, v{Tm+k}")
            for k, v in enumerate(vals): a(f"v_add_f32 v{v}, v{v}, v{Tm+k}")
        for k, b in enumerate((Bq, Z)):
            d = Tm + 4*k
            a(f"v_cvt_pk_bf16_f32 v{d}, v{b}, v{b+1}"); a(f"v_cvt_pk_bf16_f32 v{d+1}, v{b+2}, v{b+3}")
            a(f"v_mov_b32 v{d+2}, {sTAG}"); a(f"v_mov_b32 v{d+3}, {sTAG}")
        return lambda: (a.vmem(f"buffer_store_dwordx4 {vr(Tm,4)}, {V4}, {SWS}, 0 offen sc1", "fin"),
                        a.vmem(f"buffer_store_dwordx4 {vr(Tm+4,4)}, {V5}, {SWS}, 0 offen sc1", "fin"))
    def f_issue(self):
        a = self.a
        a(f"s_lshl_b32 {T0}, {sHP}, 3"); a(f"s_add_u32 {T0}, {T0}, {sW}")
        a(f"s_lshl_b32 {sR1}, {T0}, 10"); a(f"s_add_u32 {sR1}, {sR1}, {F_OFF}"); a(f"s_lshl_b32 {sH1}, {T0}, 6"); a(f"s_add_u32 {sH1}, {sH1}, {FZ_OFF}")
        self.f_loads(True)
    def f_loads(self, track):
        a = self.a
        a(f"v_and_b32 v28, 0x30, {vL16}")
        for s in (f"buffer_load_dwordx4 v[8:11], {vL16}, {SWS}, {sR1} offen sc1", f"buffer_load_dwordx4 v[28:31], v28, {SWS}, {sH1} offen sc1"):
            a.vmem(s, "h2") if track else a(s)
    def f_check(self):
        a = self.a
        L = a.label("h2"); Ld = a.label("h2d")
        a.wait(vm="h2")
        a(f"s_mov_b32 {sSPIN}, {SPIN}")
        a(f"{L}:")
        a(f"v_cmp_ne_u32 vcc, {sTAG}, v10"); a(f"v_cmp_ne_u32 {sM}, {sTAG}, v30"); a("s_nop 1"); a(f"s_or_b64 vcc, vcc, {sM}")
        a(f"s_cbranch_vccz {Ld}")
        a(f"s_sub_u32 {sSPIN}, {sSPIN}, 1"); a(f"s_cbranch_scc1 {Ld}")
        self.f_loads(False); a("s_waitcnt vmcnt(0)"); a(f"s_branch {L}")
        a(f"{Ld}:")
        self.stamp(9)
        a(f"s_add_u32 {T0}, {sW1k}, {KVT}")
        a(f"v_and_b32 {V2}, 15, {vL}"); a(f"v_lshrrev_b32 {V3}, 4, {vL}"); a(f"v_lshlrev_b32 {V3}, 3, {V3}"); a(f"v_lshl_add_u32 {V2}, {V2}, 5, {V3}"); a(f"v_add_u32 {V2}, {T0}, {V2}")
        a(f"v_lshlrev_b32 {V3}, 3, {vL}"); a(f"v_add_u32 {V3}, {T0}, {V3}")
        a.ds(f"ds_write_b64 {V2}, v[8:9]", "kt")
        a(f"v_cmp_gt_u32 vcc, 4, {vL}"); a(f"v_mov_b32 {V1}, 0x3f803f80"); a(f"v_cndmask_b32 v28, {V1}, v28, vcc"); a(f"v_cndmask_b32 v29, {V1}, v29, vcc")
        a("s_mov_b64 exec, 0xff")
        a.ds(f"ds_write_b64 {V3}, v[28:29] offset:512", "kt")
        a("s_mov_b64 exec, -1")
        self.o_addr()
        a.wait(lg="kt")
        a("s_barrier")
    def o_addr(self):
        a = self.a
        a(f"v_and_b32 {V3}, 3, {vL}"); a(f"v_bfe_u32 {V1}, {vL}, 2, 1"); a(f"v_bfe_u32 {V2}, {vL}, 3, 1")
        a(f"v_lshl_add_u32 {V3}, {V1}, 3, {V3}"); a(f"v_lshl_add_u32 {V3}, {V2}, 2, {V3}"); a(f"v_add_u32 {V2}, 16, {V2}")
        a(f"v_and_b32 {V1}, 16, {vL}"); a(f"v_cmp_eq_u32 vcc, 0, {V1}"); a(f"v_lshrrev_b32 {V1}, 5, {vL}"); a(f"v_lshlrev_b32 {V1}, 4, {V1}")
        a(f"v_cndmask_b32 {V3}, {V2}, {V3}, vcc"); a(f"v_lshl_add_u32 {V3}, {V3}, 5, {V1}")
        a(f"s_lshl_b32 {T0}, {sBB}, 12"); a(f"s_add_u32 {T0}, {T0}, {KVT}"); a(f"v_add_u32 {WP0V}, {T0}, {V3}")
    def o_compute(self):
        a = self.a
        DP, DM = ACCA, ACCA + 16
        def rd(hd):
            a.ds(f"ds_read_b128 v[8:11], {WP0V} offset:{(2*hd)*1024}", f"o{hd}"); a.ds(f"ds_read_b128 v[28:31], {WP0V} offset:{(2*hd+1)*1024}", f"o{hd}")
        rd(0)
        a(f"s_lshl_b32 {T0}, {sHP}, 13"); a(f"s_add_u32 {T0}, {T0}, {O_OFF}"); a(f"s_add_u32 {T1}, {T0}, {STEP}"); a(f"s_mov_b32 {T2}, 0x358637bd")
        for hd in range(2):
            a.wait(lg=f"o{hd}")
            a(f"v_mfma_f32_32x32x16_bf16 {vr(DM,16)}, v[28:31], {vr(PHI+8*hd+4,4)}, 0")
            a(f"v_mfma_f32_32x32x16_bf16 {vr(DP,16)}, v[8:11], {vr(PHI+8*hd,4)}, 0")
            if hd == 0: rd(1)
            a(f"v_rcp_f32 {V1}, v{DM+12}")
            a(f"v_fma_f32 {V2}, v{DP+12}, {T2}, v{DP+8}"); a(f"v_mul_f32 {V1}, v{DP+12}, {V1}")
            a(f"v_fmac_f32 {V2}, {V1}, v{DM+8}"); a(f"v_rcp_f32 {V2}, {V2}")
            for i in range(8): a(f"v_fmac_f32 v{DP+i}, {V1}, v{DM+i}")
            for i in range(8): a(f"v_mul_f32 v{DP+i}, {V2}, v{DP+i}")
            for i in range(4): a(f"v_cvt_pk_bf16_f32 v{PHI+8*hd+i}, v{DP+2*i}, v{DP+2*i+1}")
        self.store_mode(lambda f: (a(f"buffer_store_dwordx4 {vr(PHI,4)}, {vHS}, {SWS}, {T0} offen{f}"),
                                   a(f"buffer_store_dwordx4 {vr(PHI+8,4)}, {vHS}, {SWS}, {T1} offen{f}")), "ost", 2)
    def red_addr(self, base):
        a = self.a; R = base
        W0, W1, W2_, W3, R0, R1, OA = vX0, vX1, vWA, vWB, vXR0, vXR1, vXR2
        a(f"v_and_b32 {W0}, 31, {vL}"); a(f"v_lshrrev_b32 {V1}, 5, {vL}"); a(f"v_lshlrev_b32 {V1}, 1, {V1}"); a(f"v_and_b32 {V2}, 7, {vL}")
        a(f"v_xor_b32 {V1}, {V1}, {V2}"); a(f"v_lshlrev_b32 {V1}, 4, {V1}"); a(f"v_lshl_add_u32 {W0}, {W0}, 8, {V1}")
        a(f"s_and_b32 {T4}, {sW}, 1"); a(f"s_lshl_b32 {T4}, {T4}, 15"); a(f"s_lshr_b32 {T1}, {sW}, 1"); a(f"s_lshl_b32 {T2}, {T1}, 13"); a(f"s_add_u32 {T2}, {T2}, {T4}")
        a(f"s_add_u32 {T2}, {T2}, {R}")
        a(f"v_add_u32 {W0}, {T2}, {W0}"); a(f"v_xor_b32 {W1}, 16, {W0}"); a(f"v_xor_b32 {W2_}, 64, {W0}"); a(f"v_xor_b32 {W3}, 0x50, {W0}")
        a(f"v_lshrrev_b32 {V3}, 3, {vL}"); a(f"v_lshlrev_b32 {R0}, 1, {V2}"); a(f"v_xor_b32 {R0}, {R0}, {V3}"); a(f"v_lshlrev_b32 {R0}, 4, {R0}")
        a(f"v_lshl_add_u32 {R0}, {V3}, 8, {R0}"); a(f"s_lshl_b32 {T2}, {T1}, 11"); a(f"s_add_u32 {T2}, {T2}, {T4}"); a(f"s_add_u32 {T2}, {T2}, {R}")
        a(f"v_add_u32 {R0}, {T2}, {R0}"); a(f"v_xor_b32 {R1}, 16, {R0}")
        a(f"s_lshl_b32 {T2}, {sC}, 8"); a(f"s_lshl_b32 {T3}, {sMM}, 6"); a(f"s_add_u32 {T2}, {T2}, {T3}"); a(f"s_lshr_b32 {T3}, {T4}, 10"); a(f"s_add_u32 {T2}, {T2}, {T3}")
        a(f"s_lshl_b32 {sUA}, {T2}, 3"); a(f"s_add_u32 {sUA}, {sUA}, {G_OFF}")
        a(f"s_lshl_b32 {T3}, {T1}, 3"); a(f"s_add_u32 {T2}, {T2}, {T3}"); a(f"s_lshl_b32 {T2}, {T2}, 10"); a(f"s_lshl_b32 {T3}, {sN}, 7"); a(f"s_add_u32 {T2}, {T2}, {T3}")
        a(f"v_lshlrev_b32 {V2}, 4, {V2}"); a(f"v_lshl_add_u32 {OA}, {V3}, 10, {V2}"); a(f"v_add_u32 {OA}, {T2}, {OA}")
        a(f"s_lshl_b32 {T2}, {sC}, 2"); a(f"s_add_u32 {T2}, {T2}, {sMM}"); a(f"s_lshl_b32 {T2}, {T2}, 3"); a(f"s_add_u32 {T2}, {T2}, {sN}")
        a(f"s_lshl_b32 {T2}, {T2}, 14"); a(f"s_lshr_b32 {T3}, {T4}, 2"); a(f"s_add_u32 {T2}, {T2}, {T3}"); a(f"s_add_u32 {sUB}, {T2}, {X_OFF}")
    def red_write(self, src, pre=None, rf=vr):
        a = self.a
        wa = {(0, 0): vX0, (0, 1): vX1, (1, 0): vWA, (1, 1): vWB}
        for cb in range(2):
            for gp in range(2):
                for e in range(2):
                    b = 16*cb + 8*gp + 4*e
                    if pre: pre(b)
                    a.ds(f"ds_write_b128 {wa[(gp,e)]}, {rf(src+b,4)} offset:{cb*128}", "rw")
        a.wait(lg="rw")
        a("s_barrier")
    def red_read(self, Bq):
        a = self.a
        for k in range(4):
            a.ds(f"ds_read_b128 {vr(Bq+8*k,4)}, {vXR0} offset:{k*8192}", f"s{k}"); a.ds(f"ds_read_b128 {vr(Bq+8*k+4,4)}, {vXR1} offset:{k*8192}", f"s{k}")
        a.wait(lg="s1")
        for i in range(0, 8, 2): a(f"v_pk_add_f32 {vr(Bq+i,2)}, {vr(Bq+i,2)}, {vr(Bq+8+i,2)}")
        a.wait(lg="s3")
        for i in range(0, 8, 2): a(f"v_pk_add_f32 {vr(Bq+16+i,2)}, {vr(Bq+16+i,2)}, {vr(Bq+24+i,2)}")
        for i in range(0, 8, 2): a(f"v_pk_add_f32 {vr(Bq+i,2)}, {vr(Bq+i,2)}, {vr(Bq+16+i,2)}")
    def g_loads(self, track):
        a = self.a
        a(f"v_and_b32 {V2}, 31, {vL}"); a(f"v_lshlrev_b32 {V2}, 3, {V2}")
        a(f"v_and_b32 {V4}, 0x38, {vL}"); a(f"s_lshr_b32 {T1}, {sW}, 1"); a(f"s_lshl_b32 {T1}, {T1}, 6"); a(f"s_add_u32 {T1}, {T1}, {sUA}")
        for s in (f"buffer_load_dwordx2 v[26:27], {V2}, {SWS}, {sUA} offen sc1", f"buffer_load_dwordx2 v[28:29], {V4}, {SWS}, {T1} offen sc1"):
            a.vmem(s, "g") if track else a(s)
    def x_loads(self, track):
        a = self.a
        a(f"s_xor_b32 {T2}, {sUB}, {32*8*2048}"); a(f"s_lshr_b32 {T3}, {sW}, 1"); a(f"s_lshl_b32 {T3}, {T3}, 7"); a(f"s_add_u32 {T2}, {T2}, {T3}")
        a(f"v_bfe_u32 v8, {vL}, 1, 2"); a(f"v_and_b32 v9, 1, {vL}"); a(f"v_lshlrev_b32 v8, 11, v8"); a(f"v_lshl_add_u32 v8, v9, 9, v8")
        a(f"v_lshrrev_b32 v9, 3, {vL}"); a(f"v_lshl_add_u32 v8, v9, 4, v8")
        for s in (f"buffer_load_dwordx4 {vr(PHI,4)}, v8, {SWS}, {T2} offen sc1", f"buffer_load_dwordx4 {vr(PHI+4,4)}, v8, {SWS}, {T2} offen offset:1024 sc1"):
            a.vmem(s, "x") if track else a(s)
    def spin(self, regs, tag, reload):
        a = self.a; L = a.label("sp"); Ld = a.label("spd")
        a.wait(vm=tag)
        a(f"s_mov_b32 {sSPIN}, {SPIN}")
        a(f"{L}:")
        a(f"v_cmp_ne_u32 vcc, {sTAG}, {regs[0]}"); a(f"v_cmp_ne_u32 {sM}, {sTAG}, {regs[1]}"); a("s_nop 1"); a(f"s_or_b64 vcc, vcc, {sM}")
        a(f"s_cbranch_vccz {Ld}")
        a(f"s_sub_u32 {sSPIN}, {sSPIN}, 1"); a(f"s_cbranch_scc1 {Ld}")
        reload(False); a("s_waitcnt vmcnt(0)"); a(f"s_branch {L}")
        a(f"{Ld}:")
    def tail2(self):
        a = self.a
        self.g_loads(True)
        self.pf_issue()
        a.wait(vm="wo"); a("s_barrier")
        self.stamp(10)
        def rd(i):
            b = FR2 + 8*(i % 2)
            for cb, v in ((0, vPO0), (1, vPO1)):
                for e in range(2): a.ds(f"ds_read_b64_tr_b16 {vr(b+4*cb+2*e,2)}, {v} offset:{i*8192 + e*512}", f"a{i}")
        rd(0)
        self.spin(("v27", "v29"), "g", self.g_loads)
        a(f"v_sub_f32 {V3}, 1.0, {V2}"); a(f"v_sub_f32 {V4}, 1.0, {V4}")
        for i in range(0, 32, 2): a(f"v_pk_mul_f32 {vr(ACCF+i,2)}, {vr(ACCF+i,2)}, v[26:27] op_sel:[0,1] op_sel_hi:[1,1]")
        self.poll_flags(0xff << 32, "pf")
        self.stamp(11)
        def ld(i):
            a(f"s_add_u32 {T0}, {T5}, {O_OFF + i*UNIT}")
            a.vmem(f"buffer_load_dwordx4 {ar(4*i,4)}, {vHL}, {SWS}, {T0} offen sc1", f"o{i}")
        a(f"s_lshl_b32 {T5}, {sSIDE}, 21")
        LA = self.o.get('ola', 4)
        for i in range(LA): ld(i)
        for i in range(8):
            if i + 1 < 8: rd(i + 1)
            if i + LA < 8: ld(i + LA)
            if i == self.o.get('xi', 4): self.x_loads(True)
            a.wait(vm=f"o{i}", lg=f"a{i}")
            for cb in range(2):
                acc = ACCA + 16*cb
                a(f"v_mfma_f32_32x32x16_bf16 {vr(acc,16)}, {vr(FR2+8*(i%2)+4*cb,4)}, {ar(4*i,4)}, {'0' if i == 0 else vr(acc,16)}")
        self.stamp(12)
        def pre(b):
            for i in range(0, 4, 2): a(f"v_pk_fma_f32 {vr(ACCF+b+i,2)}, {vr(ACCA+b+i,2)}, v[26:27], {vr(ACCF+b+i,2)} op_sel_hi:[1,0,1]")
        self.red_write(ACCF, pre)
        self.stamp("rw")
        Bq = ACCA
        self.red_read(Bq)
        self.spin((f"v{PHI+3}", f"v{PHI+7}"), "x", self.x_loads)
        a(f"s_mov_b32 {T1}, 0x04000c0c"); a(f"s_mov_b32 {T2}, 0x0706000c")
        for b in (PHI, PHI + 4):
            a(f"v_perm_b32 v{b+3}, v{b+2}, v{b+1}, {T1}"); a(f"v_perm_b32 v{b+3}, v{b+3}, v{b}, {T2}")
        for i in range(0, 8, 2): a(f"v_pk_fma_f32 {vr(Bq+i,2)}, {vr(PHI+i,2)}, v[28:29], {vr(Bq+i,2)} op_sel_hi:[1,0,1]")
        for i in range(4): a(f"v_cvt_pk_bf16_f32 v{Bq+8+i}, v{Bq+2*i}, v{Bq+2*i+1}")
        a.vmem(f"buffer_store_dwordx4 {vr(Bq+8,4)}, {vXR2}, {SOUT}, 0 offen", "out")
        if self.o.get('span'):
            a("s_waitcnt vmcnt(0)"); a("v_mov_b32 v24, s26"); a("s_memrealtime s[26:27]"); a("s_waitcnt lgkmcnt(0)"); a("v_mov_b32 v25, s26")
            a(f"s_lshl_b32 {T0}, s2, 3"); a(f"s_add_u32 {T0}, {T0}, {sW}"); a(f"s_lshl_b32 {T0}, {T0}, 8"); a(f"s_add_u32 {T0}, {T0}, {ST_OFF + 248}")
            a("s_mov_b64 exec, 1"); a(f"buffer_store_dwordx2 v[24:25], off, {SWS}, {T0}")
        if self.o.get('stamps'):
            self.stamp(13)
            a("s_waitcnt vmcnt(0)"); self.stamp(14); a("s_waitcnt lgkmcnt(0)"); self.stamp(15)
            a("s_waitcnt lgkmcnt(0)"); a("s_memrealtime s[26:27]"); a("s_waitcnt lgkmcnt(0)"); a("v_writelane_b32 v23, s26, 63")
            a(f"s_lshl_b32 {T0}, s2, 3"); a(f"s_add_u32 {T0}, {T0}, {sW}"); a(f"s_lshl_b32 {T0}, {T0}, 8"); a(f"s_add_u32 {T0}, {T0}, {ST_OFF}")
            a(f"v_lshlrev_b32 {V0}, 2, {vL}")
            a(f"buffer_store_dword v23, {V0}, {SWS}, {T0} offen")
        a("s_endpgm")
    def bump(self):
        a = self.a
        Lx = a.label("nb"); L = a.label("bp"); Ld = a.label("bpd")
        a("s_cmp_eq_u32 s2, 192"); a(f"s_cbranch_scc0 {Lx}"); a(f"s_cmp_eq_u32 {sW}, 0"); a(f"s_cbranch_scc0 {Lx}")
        a(f"s_mov_b32 {T0}, {ACK_OFF}"); a(f"s_mov_b32 {sSPIN}, {SPIN}")
        a(f"{L}:")
        a(f"buffer_load_dwordx4 v[8:11], {vL16}, {SWS}, {T0} offen sc1"); a("s_waitcnt vmcnt(0)")
        a(f"v_cmp_ne_u32 vcc, {sTAG}, v8")
        for i in range(1, 4):
            a(f"v_cmp_ne_u32 {sM}, {sTAG}, v{8+i}"); a("s_nop 1"); a(f"s_or_b64 vcc, vcc, {sM}")
        a(f"s_cbranch_vccz {Ld}")
        a(f"s_sub_u32 {sSPIN}, {sSPIN}, 1"); a(f"s_cbranch_scc0 {L}")
        a(f"{Ld}:")
        a(f"v_mov_b32 {V1}, {sE}"); a(f"s_mov_b32 {T0}, {E_OFF}"); a("s_mov_b64 exec, 1")
        a(f"buffer_store_dword {V1}, off, {SWS}, {T0}"); a("s_mov_b64 exec, -1"); a("s_waitcnt vmcnt(0)")
        a(f"{Lx}:")
    def save(self): return (self.a.vm.copy(), self.a.lg.copy(), list(self.pend), list(self.wx))
    def restore(self, s): self.a.vm, self.a.lg, self.pend, self.wx = s[0].copy(), s[1].copy(), list(s[2]), list(s[3])
    def body(self):
        a = self.a
        self.prologue(); self.passA()
        s0 = self.save()
        a("s_cmp_eq_u32 s9, 0"); a("s_cbranch_scc1 L_kv")
        self.first_hh(); s1 = self.save()
        a(f"s_cmp_eq_u32 {sTB}, 1"); a("s_cbranch_scc1 L_hq")
        self.second('h', 'h')
        a("L_hq:"); self.restore(s1); self.second('h', 'q')
        a("L_kv:"); self.restore(s0)
        self.first_kv(); s1 = self.save()
        a(f"s_cmp_eq_u32 {sTB}, 1"); a("s_cbranch_scc1 L_kq")
        a(f"s_cmp_eq_u32 {sTB}, 2"); a("s_cbranch_scc1 L_r")
        self.second('k', 'h')
        a("L_kq:"); self.restore(s1); self.second('k', 'q')
        a("L_r:"); self.restore(s1); self.path_r()

class Phase2:
    NS = 30
    def __init__(self, g, P):
        self.g = g; self.P = P; o = g.o
        self.hasq = P[-1] == 'q'; self.r1 = not self.hasq; self.late = P in ('hh', 'kh')
        self.opt = lambda k, d: o.get(k + P, o.get(k, d))
        k1 = self.opt('k1', 2)
        E1 = [(1, 'r', k, s) for k in range(6) for s in range(2)]; E2 = [(2, 'r', k, 0) for k in range(10)]
        if self.r1: self.seq = E1 + E2[:k1] + [(1, 's', u, s) for u in range(6, 11) for s in range(2)] + E2[k1:] + [(2, 's', 10, 0)]; self.i_send = 22 + k1
        else: self.seq = E2 + [(2, 's', 10, 0)]; self.i_send = None
        m = lambda x: x if self.r1 else x & 0xffff
        self.masks = (m(M_EARLY), m(M_MID), m(M_LATE))
        self.issued = {}; self.done = -1; self.nslot = 0; self.owner = {}
        self.ok = {'mid': False, 'late': False}
        self.bufs = [vr(FR2, 8), vr(FR2 + 8, 8), ar(120, 8)]
    def sub(self, b, lo, n):
        kind = b[0]; base = int(b[2:b.index(':')]); return f"{kind}[{base+lo}:{base+lo+n-1}]"
    def idx(self, e, dst):
        a = self.g.a; rnd, kind, k, s = e
        if kind == 's': a(f"s_mov_b32 {dst}, {k}"); return
        n, r = ((6, sR1), (10, sR2))[rnd - 1]
        a(f"s_add_u32 {dst}, {r}, {k}"); a(f"s_cmp_ge_u32 {dst}, {n}"); a(f"s_cselect_b32 {sA2}, {n}, 0"); a(f"s_sub_u32 {dst}, {dst}, {sA2}")
    def can(self, i):
        e = self.seq[i]
        if self.owner.get(self.nslot % self.NS, -1) > self.done: return False
        if e[1] == 'r': return True
        return self.ok['late'] if (e[0] == 1 and e[2] >= 9) else self.ok['mid']
    def ld(self, i):
        a = self.g.a; e = self.seq[i]
        sl = self.nslot % self.NS; self.nslot += 1; self.owner[sl] = i; self.issued[i] = sl
        def f():
            self.idx(e, sStrB64); a(f"s_lshl_b32 {sStrB64}, {sStrB64}, 13"); a(f"s_add_u32 {sStrB64}, {sStrB64}, {sH1 if e[0] == 1 else sH2}")
            if e[1] == 's' and e[2] == 10:
                if e[0] == 1: a(f"s_lshr_b32 {sA2}, {sW}, 1"); a(f"s_and_b32 {sA2}, {sA2}, {sSIDE}")
                else: a(f"s_and_b32 {sA2}, {sSIDE}, {sBB}")
                a(f"s_cselect_b32 {sStrB64}, 0x40000000, {sStrB64}")
            a.vmem(f"buffer_load_dwordx4 {ar(4*sl,4)}, {'v9' if e[0] == 1 else vHL}, {SWS}, {sStrB64} offen offset:{e[3]*2048} sc1", f"h{i}")
        return f
    def issue(self, upto, n, defer=False):
        for i in range(len(self.seq)):
            if n <= 0: break
            if i not in self.issued and i <= upto and self.can(i):
                f = self.ld(i); n -= 1
                self.g.push(f) if defer else f()
    def rd(self, i):
        a = self.g.a; b = self.bufs[i % 3]; e = self.seq[i]
        if e[3] == 0:
            self.idx(e, sA0); a(f"s_lshl_b32 {sA0}, {sA0}, 13")
            a(f"v_add_u32 {vPM0}, {sA0}, {'v10' if e[0] == 1 else vPR0}"); a(f"v_add_u32 {vPM1}, {sA0}, {'v11' if e[0] == 1 else vPR1}")
        for cb, v in ((0, vPM0), (1, vPM1)):
            for k in range(2): a.ds(f"ds_read_b64_tr_b16 {self.sub(b, 4*cb+2*k, 2)}, {v} offset:{W2B + e[3]*2048 + k*512}", f"u{i}")
    def begin(self, pre, defer, fin=None):
        g = self.g; a = g.a
        if self.r1:
            a(f"s_bfe_u32 {T1}, {sW}, 0x10001"); a(f"s_lshl_b32 {T2}, {sBB}, 1"); a(f"s_sub_u32 {T2}, {T1}, {T2}"); a(f"s_lshl_b32 {T2}, {T2}, 11")
            a(f"s_lshl_b32 {T1}, {T1}, 6"); a(f"v_add_u32 v10, {T2}, {vPR0}"); a(f"v_xor_b32 v10, {T1}, v10"); a("v_xor_b32 v11, 64, v10")
            a(f"s_xor_b32 {T1}, {sMM}, {sBB}"); a(f"s_and_b32 {T1}, {T1}, 1"); a(f"s_lshl_b32 {T3}, {T1}, 19"); a(f"s_lshl_b32 {T1}, {T1}, 8")
            a(f"v_add_u32 v9, {T2}, {vHL}"); a(f"v_xor_b32 v9, {T3}, v9")
            a(f"v_lshrrev_b32 {V1}, 3, {vL}"); a(f"v_cmp_eq_u32 vcc, 3, {V1}"); a(f"v_xor_b32 {V1}, {T1}, v9"); a(f"v_cndmask_b32 v9, v9, {V1}, vcc")
        nb = self.opt('rfin', 0)
        if fin and nb == 0: fin()
        g.poll_flags(self.masks[0], pre)
        g.stamp(8)
        if fin and nb: self.issue(99, nb); fin()
        self.issue(99, self.opt('la0', 12 if defer else 6), defer)
        if self.hasq and self.opt('wo_at', 0) < 0:
            g.push(*(g.dmaWO(1) + g.dmaWO(0)))
            if not defer: g.flush()
    def send(self):
        g = self.g; a = g.a
        a(f"s_lshl_b32 {T0}, {sW}, 12"); a(f"s_and_b32 {T1}, {sMM}, 2"); a(f"s_lshl_b32 {T1}, {T1}, 14"); a(f"s_add_u32 {T0}, {T0}, {T1}")
        a(f"s_add_u32 {T1}, {T0}, {R}"); a(f"s_xor_b32 {T0}, {T0}, 0x2000"); a(f"s_add_u32 {T0}, {T0}, {R}")
        a(f"v_add_u32 {V1}, {T1}, {vL16}"); a(f"v_add_u32 {V2}, {T0}, {vL16}")
        for k in range(4): a.ds(f"ds_write_b128 {V1}, {vr(ACCP+16+4*k,4)} offset:{k*1024}", "rw")
        a(f"s_xor_b32 {T1}, {sMM}, {sBB}"); a(f"s_and_b32 {T1}, {T1}, 1"); a(f"s_lshl_b32 {T1}, {T1}, 17"); a(f"s_xor_b32 {T2}, {sUB}, {T1}")
        a(f"s_bfe_u32 {T1}, {sW}, 0x10001"); a(f"s_lshl_b32 {T1}, {T1}, 12"); a(f"s_add_u32 {T2}, {T2}, {T1}")
        a(f"s_mov_b32 {T3}, 0x07060501"); a(f"s_mov_b32 {T4}, 0x07060502"); a(f"s_mov_b32 {T5}, 0x07060503")
        a.wait(lg="rw"); a("s_barrier")
        for k in range(4): a.ds(f"ds_read_b128 {vr(ACCP+16+4*k,4)}, {V2} offset:{k*1024}", f"x{k}")
        for k in range(4):
            D = ACCP + 4*k
            a.wait(lg=f"x{k}")
            for i in range(4): a(f"v_add_f32 v{D+i}, v{D+i}, v{D+16+i}")
            a(f"v_perm_b32 v{D}, v{D}, v{D+3}, {T3}"); a(f"v_perm_b32 v{D+1}, v{D+1}, v{D+3}, {T4}"); a(f"v_perm_b32 v{D+2}, v{D+2}, v{D+3}, {T5}")
            a(f"v_mov_b32 v{D+3}, {sTAG}")
            a.vmem(f"buffer_store_dwordx4 {vr(D,4)}, {vL16}, {SWS}, {T2} offen offset:{k*1024} sc1", "xst")
        a("s_barrier")
    def main(self):
        g = self.g; a = g.a; seq = self.seq; N = len(seq); i_send = self.i_send
        g.red_addr(W2B)
        a.wait(vm="w2"); a("s_barrier")
        g.stamp("f0")
        LA = self.opt('la', 6)
        if self.r1:
            i_mid = i_send - 10
            cm = i_mid - self.opt('cmb', 4); pm = cm - self.opt('pmb', 3); cl = i_mid + 6 - self.opt('clb', 4); pl = max(cm, cl - self.opt('plb', 3))
        else:
            pm, cm = self.opt('pm0', 3), self.opt('cm0', 6); pl = cl = -1
        wo_at = self.opt('wo_at', 0); fi = self.opt('fi', 4)
        i_o = min(N - 1, self.opt('so', 99)); i_f = min(N - 1, i_o + self.opt('sf', 2))
        first = {1: True, 2: True}
        self.rd(0); self.rd(1)
        for i in range(N):
            if i == cm: g.poll_flags(self.masks[1], "pf"); self.ok['mid'] = True
            if i == cl: g.poll_flags(self.masks[2], "pf"); self.ok['late'] = True
            if i == pm or i == pl: g.pf_issue()
            if self.hasq and i == wo_at: g.push(*(g.dmaWO(1) + g.dmaWO(0)))
            if self.r1 and i == self.opt('wo1_at', 12): g.push(*g.dmaWO(1))
            self.issue(i + LA, 2)
            assert i in self.issued, (self.P, i, self.issued)
            if i + 2 < N: self.rd(i + 2)
            rnd = seq[i][0]
            a.wait(vm=f"h{i}", lg=f"u{i}")
            for cb in range(2):
                acc = vr((ACCP if rnd == 1 else ACCF) + 16*cb, 16)
                a(f"v_mfma_f32_32x32x16_bf16 {acc}, {self.sub(self.bufs[i % 3], 4*cb, 4)}, {ar(4*self.issued[i],4)}, {'0' if first[rnd] else acc}")
            first[rnd] = False; self.done = i
            g.slot(self.opt('wo_per', 1))
            if self.late and i == self.opt('hf', 3): a.wait(vm="hst"); g.flag_h(True)
            if g.o.get('stamps', 0) >= 3 and i % 2 == 0 or i in (0, N - 1) or i + 1 == i_send: g.stamp(f"u{i}")
            if i + 1 == i_send:
                self.issue(99, 99)
                assert len(self.issued) == N
                a.wait(lg=f"u{i+2}")
                self.send()
                g.stamp("xs")
                g.push(*g.dmaWO(0))
            if self.hasq and i == fi: g.f_issue()
            if self.hasq and i == i_o: a.wait(lg=f"u{min(N-1, i+2)}"); g.f_check(); g.o_compute()
            if self.hasq and i == i_f: a.wait(vm="ost"); g.flag_o()
            if self.P == 'r' and i == i_send + 1: g.bump()
        g.flush()
        g.tail2()
    def hop1(self, i):
        g = self.g
        assert all(e[0] == 1 for e in self.seq[:i+1])
        fin = g.reducer(lambda: None, PHI)
        self.issue(99, self.opt('rla', 99))
        fin()

if __name__ == '__main__':
    out = sys.argv[1]
    opt = json.loads(sys.argv[2]) if len(sys.argv) > 2 else {}
    open(out, 'w').write(Gen2(opt).build())
```

```python
import sys, json
from asmlib import *

NAME = "gated_mix__linear_kernel_hedgehog__dense_activation_relu__prompt"
STEP = 131072; UNIT = 4*STEP
H_OFF = 0; H_SIZE = 86*STEP
O_OFF = 0xC00000; P_OFF = 0x1000000; PZ_OFF = 0x1100000; G_OFF = 0x1110000
F_OFF = 0x1120000; FZ_OFF = 0x1130000; FH_OFF = 0x1140000; FO_OFF = 0x1142000; ACK_OFF = 0x1148000
E_OFF = 0x1150000; ST_OFF = 0x1200000; WS_SIZE = 0x2000000
OOB = 0x7ffffff0
XS = lambda s: s*16384
WSL = lambda s: 49152 + s*16384
R = 98304
RING = lambda d: ((d + 3) % 5)*16384
KVT = 65536
SPIN = 40000
SX, SWA, SWB, SW2, SWO, SWS, SH, SOUT, STMP, SDBG = [f"s[{28+4*i}:{31+4*i}]" for i in range(10)]
sC, sRB, sJ, sHG, sW, sTG, sBB, sC0, sTAG, sMODE, sStrA64, sStrA4, sStrB64, sType, sW1k, sW2k, sL2E, sU0, sU1, sE = [f"s{68+i}" for i in range(20)]
T0, T1, T2, T3, T4, T5 = [f"s{88+i}" for i in range(6)]
sSPIN = "s94"; sXCC = "s95"; sA0 = "s96"; sA1 = "s97"; sM = "s[98:99]"; sA2 = "s100"; sL2P = "s[0:1]"; sC32 = "s101"; sST = "s12"; sHP = "s13"; sN = "s3"
vL = "v0"
vX0, vX1, vWA, vWB, vXR0, vXR1, vXR2, vXR3, vAR0, vAR1, vBR = [f"v{1+i}" for i in range(11)]
vW2, vPR0, vPR1, vPM0, vPM1, vPO0, vPO1, vHL, vHS, vFL, vG = [f"v{12+i}" for i in range(11)]
V0, V1, V2, V3, V4, V5, V6, V7 = [f"v{24+i}" for i in range(8)]
ACC0, ACC1, ACCB, FR, WP0, WP1, PHI = 32, 48, 64, 80, 104, 108, 112
ACCF, ACCA, FR2 = 32, 64, 96
M16, MTO, MAT, MWP, ME, MJ = [f"v{64+i}" for i in range(6)]
vr = lambda b, n: f"v[{b}:{b+n-1}]"
ar = lambda b, n: f"a[{b}:{b+n-1}]"

class Gen:
    def __init__(self, opt):
        self.o = opt; self.a = Asm(); self.nst = 0; self.pend = []; self.nring = 6; self.names = ['0']
    def ring(self, d):
        return (81920, 49152, 65536)[d % 3] if d < 8 else (d - 8)*16384
    def push(self, *fs): self.pend += list(fs)
    def slot(self, n=1):
        for _ in range(n):
            if self.pend: self.pend.pop(0)()
    def flush(self): self.slot(len(self.pend))
    def stamp(self, name):
        if not self.o.get('stamps'): return
        a = self.a
        name = str(name)
        if self.o['stamps'] == 1 and not name.isdigit(): return
        if name not in self.names: self.names.append(name)
        i = self.names.index(name); assert i < 63
        a("s_mov_b32 s27, m0"); a(f"s_mov_b32 m0, {sST}"); a("s_nop 0"); a("v_writelane_b32 v23, s26, m0"); a("s_mov_b32 m0, s27")
        a(f"s_mov_b32 {sST}, {i}")
        a("s_memtime s[26:27]")
    def csel(self, dst, x, y):
        self.a(f"s_mov_b32 {dst}, {y}"); self.a(f"s_cmov_b32 {dst}, {x}")
    def srd(self, s, base, size):
        a = self.a; b = int(s[2:s.index(':')])
        a(f"s_mov_b32 s{b}, s{base}"); a(f"s_mov_b32 s{b+1}, s{base+1}")
        a(f"s_mov_b32 s{b+2}, {size}"); a(f"s_mov_b32 s{b+3}, 0x20000")
    def dma(self, voff, srd, soff, m0expr, tag):
        a = self.a
        if 'offen' not in soff: soff += " offen"
        a(m0expr); a.vmem(f"buffer_load_dwordx4 {voff}, {srd}, {soff} lds", tag)
    def dmaA(self, c):
        a = self.a; s = c % 3
        def first():
            a(f"s_add_u32 {sA0}, {sC0}, {c}"); a(f"s_and_b32 {sA0}, {sA0}, 7")
            a(f"s_mul_i32 {sA1}, {sA0}, {sStrA64}"); a(f"s_lshl_b32 {sA0}, {sA0}, 7")
            self.dma(vX0, SX, sA0 + " offen " + self.o.get('xfl', ''), f"s_add_u32 m0, {sW2k}, {XS(s)}", f"c{c}")
        def fourth():
            a(f"s_add_u32 {sA1}, {sA1}, {sStrA4}")
            self.dma(vWA, SWA, sA1, f"s_add_u32 m0, {sW2k}, {WSL(s)+1024}", f"c{c}")
        return [first,
                lambda: self.dma(vWA, SWA, sA1, f"s_add_u32 m0, {sW2k}, {WSL(s)}", f"c{c}"),
                lambda: self.dma(vX1, SX, sA0 + " offen " + self.o.get('xfl', ''), f"s_add_u32 m0, {sW2k}, {XS(s)+1024}", f"c{c}"),
                fourth]
    def dmaB(self, ci):
        a = self.a
        def f():
            a(f"s_add_u32 {sA2}, {sC0}, {ci}"); a(f"s_and_b32 {sA2}, {sA2}, 7"); a(f"s_mul_i32 {sA2}, {sA2}, {sStrB64}")
            self.dma(vWB, SWB, sA2, f"s_add_u32 m0, {sW1k}, {R + ci*8192}", f"B{ci>>2}")
        return [f]
    def unit_of(self, d, dst):
        a = self.a
        if d < 8:
            a(f"s_add_u32 {dst}, {sU0}, {d}"); a(f"s_and_b32 {dst}, {dst}, 7"); a(f"s_lshl_b32 {dst}, {dst}, 1")
        else:
            a(f"s_add_u32 {dst}, {sU1}, {d-8}"); a(f"s_cmp_ge_u32 {dst}, 3"); a(f"s_cselect_b32 {sA2}, 3, 0")
            a(f"s_sub_u32 {dst}, {dst}, {sA2}"); a(f"s_lshl_b32 {dst}, {dst}, 1"); a(f"s_add_u32 {dst}, {dst}, 16")
    def dmaW2(self, d):
        a = self.a
        def f0():
            self.unit_of(d, sA0); a(f"s_lshl_b32 {sA0}, {sA0}, 16")
            self.dma(vW2, SW2, sA0, f"s_add_u32 m0, {sW1k}, {self.ring(d)}", f"w2_{d}")
        def f1():
            a(f"s_add_u32 {sA0}, {sA0}, 0x10000")
            self.dma(vW2, SW2, sA0, f"s_add_u32 m0, {sW1k}, {self.ring(d)+8192}", f"w2_{d}")
        return [f0, f1]
    def dmaWO(self, lo=0, hi=8):
        a = self.a
        def mk(i):
            def f():
                a(f"s_mov_b32 {sA2}, {i*65536}")
                self.dma(vW2, SWO, sA2, f"s_add_u32 m0, {sW1k}, {R + i*8192}", "wo")
            return f
        return [mk(i) for i in range(lo, hi)]
    def ldH(self, d):
        a = self.a
        def f0():
            self.unit_of(d, sA1); a(f"s_lshl_b32 {sA1}, {sA1}, 19")
            a.vmem(f"buffer_load_dwordx4 {ar(8*d,4)}, {vHL}, {SH}, {sA1} offen sc1", f"h{d}")
        def f1():
            a(f"s_add_u32 {sA1}, {sA1}, {UNIT}")
            a.vmem(f"buffer_load_dwordx4 {ar(8*d+4,4)}, {vHL}, {SH}, {sA1} offen sc1", f"h{d}")
        return [f0, f1]
    def poll_flags(self, mask, pre_issued=None):
        a = self.a; L = a.label("pf"); Ld = a.label("pfd")
        if pre_issued is None:
            a.vmem(f"buffer_load_dword {V0}, {vFL}, {SWS}, 0 offen sc1", "pf"); pre_issued = "pf"
        a.wait(vm=pre_issued)
        a(f"s_mov_b32 {sSPIN}, {SPIN}")
        a(f"{L}:")
        a(f"v_cmp_ne_u32 vcc, {sTAG}, {V0}"); a("s_nop 1")
        a(f"s_and_b32 {T0}, vcc_lo, {mask:#x}"); a(f"s_cbranch_scc0 {Ld}")
        a(f"s_sub_u32 {sSPIN}, {sSPIN}, 1"); a(f"s_cbranch_scc1 {Ld}")
        a(f"buffer_load_dword {V0}, {vFL}, {SWS}, 0 offen sc1"); a("s_waitcnt vmcnt(0)")
        a(f"s_branch {L}")
        a(f"{Ld}:")
    def get_mode_issue(self):
        a = self.a
        a(f"s_lshl_b32 {T0}, {sC}, 5")
        a.vmem(f"buffer_load_dword {V7}, off, {SDBG}, {T0} sc1", "mode")
    def get_mode_wait(self):
        a = self.a; L = a.label("gm"); Ld = a.label("gmd")
        a.wait(vm="mode")
        a(f"s_mov_b32 {sSPIN}, {0 if 'a' in self.o.get('skip', '') else SPIN}")
        a(f"{L}:")
        a(f"v_readfirstlane_b32 {T1}, {V7}"); a("s_nop 1")
        a(f"s_and_b32 {T2}, {T1}, 31"); a(f"s_cselect_b32 {T2}, 0, {T1}"); a(f"s_cmp_lg_u32 {T2}, 0"); a(f"s_cbranch_scc1 {Ld}")
        a(f"s_sub_u32 {sSPIN}, {sSPIN}, 1"); a(f"s_cbranch_scc1 {Ld}")
        a(f"s_lshl_b32 {T0}, {sC}, 5")
        a(f"buffer_load_dword {V7}, off, {SDBG}, {T0} sc1"); a("s_waitcnt vmcnt(0)")
        a(f"s_branch {L}")
        a(f"{Ld}:")
        a(f"s_mul_i32 {T2}, {sXCC}, {sXCC}"); a(f"s_lshl_b32 {T2}, {T2}, 16"); a(f"s_lshl_b32 {T3}, {sXCC}, 8")
        a(f"s_add_u32 {T2}, {T2}, {T3}"); a(f"s_add_u32 {T2}, {T2}, 1"); a(f"s_lshl_b32 {T2}, {T2}, 5")
        a(f"s_cmp_eq_u32 {T1}, {T2}"); a(f"s_cselect_b32 {sMODE}, 1, 0")
        if self.o.get('force_slow'): a(f"s_mov_b32 {sMODE}, 0")
        if 'a' in self.o.get('skip', ''): a(f"s_mov_b32 {sMODE}, 1")
    def store_mode(self, fn, tag, n):
        a = self.a; Ls = a.label("sl"); Ld = a.label("sd")
        a(f"s_cmp_eq_u32 {sMODE}, 1"); a(f"s_cbranch_scc0 {Ls}")
        fn(""); a(f"s_branch {Ld}")
        a(f"{Ls}:"); fn(" sc1"); a(f"{Ld}:")
        for _ in range(n): a.vm.issue(tag)
    def flag_store(self, base, idx):
        a = self.a
        a(f"s_lshl_b32 {T0}, {sRB}, 2"); a(f"s_add_u32 {T0}, {T0}, {sTG}"); a(f"s_lshl_b32 {T0}, {T0}, 1"); a(f"s_add_u32 {T0}, {T0}, {sBB}")
        a(f"s_lshl_b32 {T0}, {T0}, 6"); a(f"s_lshl_b32 {T1}, {idx}, 2"); a(f"s_add_u32 {T0}, {T0}, {T1}"); a(f"s_add_u32 {T0}, {T0}, {base}")
        a(f"v_mov_b32 {V1}, {sTAG}")
        a(f"s_mov_b64 exec, 1")
        self.store_mode(lambda f: a(f"buffer_store_dword {V1}, off, {SWS}, {T0}{f}"), "flag", 1)
        a(f"s_mov_b64 exec, -1")
    def touch(self, base, idx, junk):
        a = self.a
        if 't' in self.o.get('skip', ''): return
        a(f"v_bfe_u32 {junk}, {vL}, 2, 1"); a(f"v_lshl_add_u32 {junk}, {junk}, 17, {vHS}")
        a(f"s_lshl_b32 {T2}, {idx}, 19"); a(f"s_add_u32 {T2}, {T2}, {base}")
        a.vmem(f"buffer_load_dword {junk}, {junk}, {SWS}, {T2} offen", "touch")
    def ack_store(self):
        a = self.a
        a(f"s_lshl_b32 {T0}, s2, 2"); a(f"s_add_u32 {T0}, {T0}, {ACK_OFF}")
        a(f"s_cmp_eq_u32 {sW}, 0"); a(f"s_cselect_b32 {T0}, {T0}, {OOB}")
        a(f"v_mov_b32 {V1}, {sTAG}")
        a(f"s_mov_b64 exec, 1")
        a.vmem(f"buffer_store_dword {V1}, off, {SWS}, {T0} sc1", "ack")
        a(f"s_mov_b64 exec, -1")
    def prologue(self):
        a = self.a; o = self.o
        a("s_cmp_ge_u32 s2, 256"); a("s_cbranch_scc1 L_end")
        a("s_load_dwordx16 s[4:19], s[0:1], 0"); a("s_load_dwordx4 s[20:23], s[0:1], 64"); a("s_load_dwordx2 s[24:25], s[0:1], 80")
        if o.get('stamps'):
            a("s_memtime s[26:27]")
        if o.get('probe'): a("s_memrealtime s[26:27]")
        a(f"v_lshrrev_b32 {V0}, 6, v0"); a(f"v_and_b32 {vL}, 63, v0"); a(f"v_readfirstlane_b32 {sW}, {V0}")
        a(f"s_and_b32 {sC}, s2, 7"); a(f"s_lshr_b32 {T0}, s2, 3"); a(f"s_and_b32 {T1}, {T0}, 1"); a(f"s_lshr_b32 {sJ}, {T0}, 1")
        a(f"s_lshl_b32 {sRB}, {sC}, 1"); a(f"s_or_b32 {sRB}, {sRB}, {T1}")
        a(f"s_and_b32 {sType}, {sJ}, 1"); a(f"s_lshr_b32 {sHG}, {sJ}, 1")
        a(f"s_lshl_b32 {sA2}, {sHG}, 2"); a(f"s_lshr_b32 {sA2}, 0x37654210, {sA2}"); a(f"s_and_b32 {sA2}, {sA2}, 7")
        a(f"s_add_u32 {sN}, {sHG}, 5"); a(f"s_and_b32 {sN}, {sN}, 7")
        a(f"s_mul_i32 {T2}, {T1}, {o.get('rotr', 4)}"); a(f"s_mul_i32 {sC0}, {sJ}, {o.get('rotj', 1)}"); a(f"s_add_u32 {sC0}, {sC0}, {T2}")
        if o.get('rotc', 0): a(f"s_mul_i32 {T2}, {sC}, {o.get('rotc')}"); a(f"s_add_u32 {sC0}, {sC0}, {T2}")
        a(f"s_and_b32 {sC0}, {sC0}, 7")
        a(f"s_and_b32 {sTG}, {sW}, 3"); a(f"s_lshr_b32 {sBB}, {sW}, 2"); a(f"s_lshl_b32 {sW1k}, {sW}, 10"); a(f"s_lshl_b32 {sW2k}, {sW}, 11")
        a(f"s_cmp_eq_u32 {sType}, 0")
        self.csel(T3, 3072, 2752); self.csel(T5, 1024, 128); a(f"s_cselect_b32 {T2}, 7, 8")
        a(f"s_cselect_b32 {T1}, 1024, 0"); a(f"s_cselect_b32 {T4}, {sA2}, {sHG}"); a(f"s_lshl_b32 {T4}, {T4}, {T2}"); a(f"s_add_u32 {T4}, {T4}, {T1}")
        a(f"s_lshl_b32 {sStrA64}, {T3}, 6"); a(f"s_lshl_b32 {sStrA4}, {T3}, 2")
        a(f"s_lshl_b32 {T0}, {sRB}, 7"); a(f"s_lshl_b32 {T1}, {sW}, 4"); a(f"s_add_u32 {T0}, {T0}, {T1}"); a(f"s_lshl_b32 {T0}, {T0}, 10")
        a(f"v_lshrrev_b32 {V0}, 3, {vL}"); a(f"v_lshrrev_b32 {V1}, 4, {vL}"); a(f"v_and_b32 {V2}, 7, {vL}")
        a(f"v_xor_b32 {V3}, {V2}, {V1}"); a(f"v_lshlrev_b32 {V3}, 4, {V3}"); a(f"v_lshl_add_u32 {vX0}, {V0}, 10, {V3}"); a(f"v_add_u32 {vX0}, {T0}, {vX0}")
        a(f"v_xor_b32 {vX1}, 64, {vX0}"); a(f"v_add_u32 {vX1}, 0x2000, {vX1}")
        a(f"s_lshl_b32 {T1}, {sW}, 3")
        a(f"v_add_u32 {V3}, {T1}, {V1}"); a(f"v_mul_lo_u32 {vWA}, {V3}, {T3}")
        a(f"v_and_b32 {V3}, 15, {vL}"); a(f"v_lshlrev_b32 {V4}, 2, {V1}"); a(f"v_xor_b32 {V3}, {V3}, {V4}")
        a(f"v_lshrrev_b32 {V4}, 3, {V3}"); a(f"v_mul_lo_u32 {V4}, {V4}, {T5}"); a(f"v_and_b32 {V3}, 7, {V3}")
        a(f"v_lshl_add_u32 {V4}, {V3}, 4, {V4}"); a(f"v_add3_u32 {vWA}, {vWA}, {V4}, {T4}")
        a("s_mov_b32 s30, 0x200000"); a("s_mov_b32 s31, 0x20000"); a("s_mov_b32 s35, 0x20000")
        a(f"s_cmp_eq_u32 {sType}, 0"); self.csel("s34", 512*3072, 512*2752)
        a("s_waitcnt lgkmcnt(0)")
        if o.get('stamps'): a("v_mov_b32 v23, 0"); a(f"s_mov_b32 {sST}, 0")
        a("s_mov_b32 s28, s4"); a("s_mov_b32 s29, s5"); a(f"s_mov_b32 {sHP}, {sA2}")
        a("s_cselect_b32 s32, s6, s14"); a("s_cselect_b32 s33, s7, s15")
        for f in self.dmaA(0): f()
        c1 = self.dmaA(1)
        a(f"s_cmp_eq_u32 {sType}, 0")
        a("s_cselect_b32 s36, s14, s6"); a("s_cselect_b32 s37, s15, s7"); self.csel("s38", 512*2752, 512*3072); a("s_mov_b32 s39, 0x20000")
        self.csel(T3, 2752, 3072); a(f"s_cselect_b32 {T4}, 16, 0"); a(f"s_cselect_b32 {T5}, {sHG}, {sHP}")
        a(f"s_lshl_b32 {sStrB64}, {T3}, 6"); a(f"s_add_u32 {T4}, {T4}, {T5}"); a(f"s_lshl_b32 {T4}, {T4}, 7")
        a(f"s_cmp_ge_u32 {T4}, 2752"); a(f"s_cselect_b32 {T4}, 0x40000000, {T4}")
        self.srd(SW2, 16, 1376*1024); self.srd(SWO, 10, 512*1024); self.srd(SWS, 24, WS_SIZE); self.srd(SH, 24, H_SIZE)
        self.srd(SOUT, 20, 0x200000); self.srd(SDBG, 22, 256); self.srd(STMP, 8, 16384)
        a(f"v_and_b32 {V3}, 1, {V1}"); a(f"v_lshlrev_b32 {V3}, 2, {V3}"); a(f"v_xor_b32 {V3}, {V3}, {V2}"); a(f"v_lshlrev_b32 {V3}, 4, {V3}")
        a(f"s_lshl_b32 {T1}, {sW}, 3"); a(f"v_add_u32 {V4}, {T1}, {V0}")
        a(f"v_mul_lo_u32 {vWB}, {V4}, {T3}"); a(f"v_add3_u32 {vWB}, {vWB}, {V3}, {T4}")
        a(f"s_lshl_b32 {T1}, {sN}, 7"); a(f"v_lshl_add_u32 {vW2}, {V4}, 10, {V3}"); a(f"v_add_u32 {vW2}, {T1}, {vW2}")
        a(f"v_lshlrev_b32 {M16}, 4, {vL}")
        Lg = a.label("gsrd")
        a(f"s_cmp_eq_u32 {sJ}, 12"); a(f"s_cbranch_scc0 {Lg}")
        a("s_mov_b32 s36, s18"); a("s_mov_b32 s37, s19"); a("s_mov_b32 s38, 1024"); a(f"s_mov_b32 {sStrB64}, 0")
        a(f"v_add_u32 {V4}, {sC0}, {V0}"); a(f"v_and_b32 {V4}, 7, {V4}"); a(f"v_lshlrev_b32 {V3}, 4, {V2}"); a(f"v_lshl_add_u32 {vWB}, {V4}, 7, {V3}")
        a(f"{Lg}:")
        c1[0]()
        a(f"v_lshrrev_b32 {V0}, 5, {vL}"); a(f"v_bfe_u32 {V2}, {vL}, 2, 2")
        a(f"v_and_b32 {V3}, 1, {vL}"); a(f"v_bfe_u32 {V4}, {vL}, 1, 1"); a(f"v_lshl_add_u32 {V3}, {V3}, 1, {V4}"); a(f"v_lshlrev_b32 {V3}, 3, {V3}")
        a(f"v_and_b32 {V6}, 1, {V1}"); a(f"v_lshl_add_u32 {V3}, {V6}, 5, {V3}")
        a(f"v_lshl_add_u32 {V4}, {V0}, 3, {V2}")
        a(f"v_xor_b32 {V5}, {sBB}, {V2}"); a(f"v_lshlrev_b32 {V5}, 6, {V5}"); a(f"v_lshl_add_u32 {V5}, {V4}, 8, {V5}"); a(f"v_add_u32 {V5}, {V5}, {V3}")
        a(f"v_add_u32 {vAR0}, {WSL(0)}, {V5}"); a(f"v_xor_b32 {vAR1}, 128, {vAR0}")
        a(f"v_and_b32 {V7}, 31, {vL}"); a(f"v_bfe_u32 {V5}, {vL}, 1, 3"); a(f"v_xor_b32 {V5}, {V5}, {V0}"); a(f"v_lshlrev_b32 {V5}, 4, {V5}")
        a(f"s_lshl_b32 {T0}, {sTG}, 12"); a(f"v_lshl_add_u32 {vXR0}, {V7}, 7, {V5}"); a(f"v_add_u32 {vXR0}, {T0}, {vXR0}")
        a(f"v_xor_b32 {vXR1}, 32, {vXR0}"); a(f"v_xor_b32 {vXR2}, 64, {vXR0}"); a(f"v_xor_b32 {vXR3}, 0x60, {vXR0}")
        c1[1]()
        a(f"v_lshrrev_b32 {V5}, 1, {V2}"); a(f"v_lshlrev_b32 {V5}, 6, {V5}"); a(f"v_lshl_add_u32 {V5}, {V4}, 7, {V5}"); a(f"v_add_u32 {V5}, {V5}, {V3}")
        a(f"s_lshl_b32 {T0}, {sBB}, 6"); a(f"v_xor_b32 {vBR}, {T0}, {V5}"); a(f"v_add_u32 {vBR}, {R}, {vBR}")
        a(f"s_lshr_b32 {T0}, {sW}, 1"); a(f"s_lshl_b32 {T0}, {T0}, 11"); a(f"v_add_u32 {vPR0}, {T0}, {V5}"); a(f"v_xor_b32 {vPR1}, 64, {vPR0}")
        a(f"v_add_u32 {vPM0}, 0x10000, {vPR0}"); a(f"v_add_u32 {vPM1}, 0x10000, {vPR1}"); a(f"v_add_u32 {vPO0}, {R}, {vPR0}"); a(f"v_add_u32 {vPO1}, {R}, {vPR1}")
        a(f"v_mul_u32_u24 {V5}, {512-32}, {V6}"); a(f"v_add_u32 {V5}, {V5}, {V3}"); a(f"v_lshl_add_u32 {V5}, {V4}, 5, {V5}")
        a(f"s_lshl_b32 {T0}, {sBB}, 12"); a(f"s_add_u32 {T0}, {T0}, {R + 57344}"); a(f"v_add_u32 {MWP}, {T0}, {V5}")
        a(f"s_lshr_b32 {T0}, s2, 3"); a(f"s_and_b32 {T0}, {T0}, 3")
        ua, ub, uc = o.get('urot', (1, 2, 0))
        a(f"s_mul_i32 {T1}, {T0}, {ub}"); a(f"s_mul_i32 {T2}, {sHG}, {ua}"); a(f"s_add_u32 {T1}, {T1}, {T2}"); a(f"s_mul_i32 {T2}, {sC}, {uc}")
        a(f"s_add_u32 {T1}, {T1}, {T2}"); a(f"s_and_b32 {sU0}, {T1}, 7")
        a(f"s_mul_i32 {T2}, {T1}, 86"); a(f"s_lshr_b32 {T2}, {T2}, 8"); a(f"s_mul_i32 {T2}, {T2}, 3"); a(f"s_sub_u32 {sU1}, {T1}, {T2}")
        a(f"s_lshl_b32 {sC32}, {sC}, 5")
        a(f"s_mov_b32 {sL2E}, 0x3fb8aa3b"); a("s_mov_b32 s0, 0x3fb8aa3b"); a("s_mov_b32 s1, 0x3fb8aa3b")
        c1[2]()
        a(f"s_lshl_b32 {T0}, {sRB}, 2"); a(f"s_lshl_b32 {T1}, {sType}, 1"); a(f"s_add_u32 {T0}, {T0}, {T1}"); a(f"s_and_b32 {T1}, {sW}, 1"); a(f"s_add_u32 {T0}, {T0}, {T1}")
        a(f"s_lshr_b32 {T1}, {sW}, 1")
        a(f"v_lshrrev_b32 {V3}, 3, {vL}"); a(f"v_cmp_eq_u32 vcc, 3, {V3}")
        a(f"s_and_b32 {T2}, {T0}, 3"); a(f"s_add_u32 {T2}, {T2}, 9"); a(f"s_lshl_b32 {T2}, {T2}, 7"); a(f"v_add_u32 {V3}, {T2}, {M16}"); a(f"v_cndmask_b32 {V3}, {M16}, {V3}, vcc")
        a(f"s_lshl_b32 {T2}, {T0}, 11"); a(f"s_lshl_b32 {T3}, {T1}, 17"); a(f"s_add_u32 {T2}, {T2}, {T3}"); a(f"v_add_u32 {vHL}, {T2}, {V3}")
        a(f"s_add_u32 {T2}, {sTG}, 9"); a(f"s_lshl_b32 {T2}, {T2}, 7"); a(f"v_add_u32 {V3}, {T2}, {M16}"); a(f"v_cndmask_b32 {vHS}, {M16}, {V3}, vcc")
        a(f"s_lshl_b32 {T2}, {T0}, 7"); a(f"s_add_u32 {T2}, {T2}, {G_OFF}")
        a(f"v_lshlrev_b32 {V3}, 2, {V7}"); a(f"v_add_u32 {vG}, {T2}, {V3}")
        a(f"s_lshl_b32 {T0}, {T0}, 1"); a(f"s_lshr_b32 {T1}, {T1}, 1"); a(f"s_add_u32 {T0}, {T0}, {T1}"); a(f"s_lshl_b32 {T0}, {T0}, 6"); a(f"s_add_u32 {T0}, {T0}, {FH_OFF}")
        a(f"v_and_b32 {V3}, 15, {vL}"); a(f"v_lshlrev_b32 {V3}, 2, {V3}"); a(f"v_lshl_add_u32 {V3}, {V6}, 13, {V3}"); a(f"v_add_u32 {vFL}, {T0}, {V3}")
        a(f"s_lshl_b32 {T0}, {sRB}, 2"); a(f"s_add_u32 {T0}, {T0}, {sTG}"); a(f"s_lshl_b32 {T0}, {T0}, 11"); a(f"s_lshl_b32 {T1}, {sBB}, 18"); a(f"s_add_u32 {T0}, {T0}, {T1}")
        a(f"v_add_u32 {vHS}, {T0}, {vHS}")
        c1[3]()
        def census():
            a(f"s_getreg_b32 {sXCC}, hwreg(HW_REG_XCC_ID, 0, 4)")
            a(f"s_mul_i32 {T2}, {sXCC}, {sXCC}"); a(f"s_lshl_b32 {T2}, {T2}, 16"); a(f"s_lshl_b32 {T3}, {sXCC}, 8"); a(f"s_add_u32 {T2}, {T2}, {T3}"); a(f"s_add_u32 {T2}, {T2}, 1")
            a(f"s_lshl_b32 {T0}, {sC}, 5"); a(f"s_cmp_eq_u32 {sW}, 0"); a(f"s_cselect_b32 {T0}, {T0}, 0x1000")
            a(f"v_mov_b32 {MAT}, {T2}")
            a("s_mov_b64 exec, 1")
            a.vmem(f"buffer_atomic_add {MAT}, off, {SDBG}, {T0}", "misc")
            a("s_mov_b64 exec, -1")
        def m_wphi():
            L1 = a.label("wp"); L2 = a.label("wpd")
            a(f"s_lshl_b32 {T0}, {sHP}, 11"); a(f"s_lshl_b32 {T1}, {sBB}, 10"); a(f"s_add_u32 {T0}, {T0}, {T1}")
            a(f"s_add_u32 m0, {sW1k}, {R + 57344}")
            a(f"s_cmp_eq_u32 {sTG}, 0"); a(f"s_cbranch_scc0 {L1}")
            a.vmem(f"buffer_load_dwordx4 {M16}, {STMP}, {T0} offen lds", "misc")
            a(f"s_branch {L2}"); a(f"{L1}:")
            a(f"buffer_load_dword {MJ}, off, {STMP}, {T0}")
            a(f"{L2}:")
        def m_e():
            a(f"s_mov_b32 {T0}, {E_OFF}")
            a.vmem(f"buffer_load_dword {ME}, off, {SWS}, {T0} sc1", "misc")
        def m_code():
            a("s_getpc_b64 s[90:91]"); a("L_pc:")
            a(f"s_lshr_b32 {T0}, s2, 3"); a(f"s_lshl_b32 {T0}, {T0}, 3"); a(f"s_add_u32 {T0}, {T0}, {sW}"); a(f"s_lshl_b32 {T0}, {T0}, 7")
            a(f"s_min_u32 {T0}, {T0}, L_end-L_pc-4"); a(f"v_mov_b32 {MAT}, {T0}")
            a.vmem(f"global_load_dword {MJ}, {MAT}, s[90:91]", "misc")
        m_fl = lambda: a.vmem(f"buffer_load_dword {MJ}, {vFL}, {SWS}, 0 offen sc1", "misc")
        sk = o.get('skip', '')
        if 'c' not in sk: m_code()
        if 'a' not in sk: census()
        else: a(f"s_getreg_b32 {sXCC}, hwreg(HW_REG_XCC_ID, 0, 4)")
        self.misc = [m_e, m_wphi] + ([m_fl] if 'f' not in sk else [])
        self.stamp(1)
    def aslot(self):
        self.slot(2 if len(self.pend) > 4 else 1)
    def passA(self):
        a = self.a
        xr = [vXR0, vXR1, vXR2, vXR3]; buf = [FR, FR + 8, FR + 16, PHI]
        def reads(c, st):
            s = c % 3; b = buf[st]
            a.ds(f"ds_read_b128 {ar(16*c+4*st,4)}, {xr[st]} offset:{XS(s)}", f"r{st}")
            for u, v in ((0, vAR0), (1, vAR1)):
                for e in range(2):
                    a.ds(f"ds_read_b64_tr_b16 {vr(b+4*u+2*e,2)}, {v} offset:{s*16384 + st*4096 + e*1024}", f"r{st}")
        def mm(c, st):
            for u, acc in ((0, ACC0), (1, ACC1)):
                cc = "0" if (c == 0 and st == 0) else vr(acc, 16)
                a(f"v_mfma_f32_32x32x16_bf16 {vr(acc,16)}, {vr(buf[st]+4*u,4)}, {ar(16*c+4*st,4)}, {cc}")
        def landed(tag, n):
            assert a.vm.q.count(tag) == n, (tag, a.vm.q)
            a.wait(vm=tag)
        def m1(c, st, u):
            acc = (ACC0, ACC1)[u]
            cc = "0" if (c == 0 and st == 0) else vr(acc, 16)
            a(f"v_mfma_f32_32x32x16_bf16 {vr(acc,16)}, {vr(buf[st]+4*u,4)}, {ar(16*c+4*st,4)}, {cc}")
        def half(c, st, rd, nslot):
            pat = self.o.get('apat', 'MRMRVMVMV')
            mf = [(st, 0), (st, 1), (st+1, 0), (st+1, 1)]; rd = list(rd); left = nslot; nv = pat.count('V')
            for ch in pat:
                if ch == 'M': m1(c, *mf.pop(0))
                elif ch == 'R':
                    if rd: reads(*rd.pop(0))
                else:
                    n = -(-left // nv); self.slot(n); left -= n; nv -= 1
        self.push(*self.dmaA(2)); self.slot(2)
        be = self.o.get('bearly', 0)
        self.push(*(self.misc + (self.dmaB(0) if be else [])))
        landed("c0", 4); a("s_barrier")
        self.stamp(2)
        reads(0, 0); reads(0, 1)
        self.slot(2)
        for c in range(8):
            a.wait(lg="r1")
            half(c, 0, [(c, 2), (c, 3)], len(self.pend))
            if c == 4:
                a.ds(f"ds_read_b64_tr_b16 {vr(WP0,2)}, {MWP}", "r3"); a.ds(f"ds_read_b64_tr_b16 {vr(WP0+2,2)}, {MWP} offset:128", "r3")
                a(f"v_readfirstlane_b32 {sE}, {ME}")
                a(f"v_and_b32 {V0}, 16, {vL}"); a(f"v_cmp_eq_u32 vcc, 0, {V0}")
                a(f"s_add_u32 {sE}, {sE}, 1"); a(f"s_mul_i32 {sTAG}, {sE}, 0x9E3779B1"); a(f"s_add_u32 {sTAG}, {sTAG}, 0x7F4A7C15")
            a.wait(lg="r3")
            if c < 7: landed(f"c{c+1}", 4)
            elif be: a.wait(vm="B0")
            a("s_barrier")
            self.stamp(f"c{c+1}")
            if c + 3 <= 7: self.push(*self.dmaA(c + 3))
            if be:
                if c <= 6: self.push(*self.dmaB(c + 1))
                if c >= 5: self.push(*self.dmaW2(c - 5))
            elif c in (5, 6): self.push(*sum((self.dmaB(ci) for ci in range(4*(c-5), 4*(c-5)+4)), []))
            half(c, 2, [(c + 1, 0), (c + 1, 1)] if c < 7 else [], (len(self.pend) + 1)//2 if c < 7 else len(self.pend))
            if c == 4:
                for i in range(4):
                    a(f"v_cndmask_b32_e64 v{WP1+i}, v{WP0+i}, 0, vcc")
                    a(f"v_cndmask_b32 v{WP0+i}, 0, v{WP0+i}, vcc")
        self.stamp(3)
    def passB(self, half, fill, per, every=3):
        a = self.a
        NB = 4; D = 3
        def reads(st):
            b = FR + 4*(st % NB)
            for e in range(2):
                a.ds(f"ds_read_b64_tr_b16 {vr(b+2*e,2)}, {vBR} offset:{st*2048 + e*512}", f"b{st}")
        def emit(n):
            for _ in range(n):
                if fill:
                    x = fill.pop(0)
                    a(x) if isinstance(x, str) else x()
        lo, hi = 16*half, 16*half + 16
        for st in range(lo, lo + D): reads(st)
        for st in range(lo, hi):
            emit(per)
            a.wait(lg=f"b{st}")
            cc = "0" if st == 0 else vr(ACCB, 16)
            a(f"v_mfma_f32_32x32x16_bf16 {vr(ACCB,16)}, {vr(FR+4*(st%NB),4)}, {ar(4*st,4)}, {cc}")
            if st + D < hi: reads(st + D)
            if st % every == every - 1: self.slot()
        emit(len(fill))
    def h_pack(self, acc, dst):
        L = []
        for i in range(8):
            L += [f"v_max_f32 v{acc+2*i}, 0, v{acc+2*i}", f"v_max_f32 v{acc+2*i+1}, 0, v{acc+2*i+1}", f"v_cvt_pk_bf16_f32 v{dst+i}, v{acc+2*i}, v{acc+2*i+1}"]
        return L
    def softmax(self, acc, pq, E, kf, sink, packed, mid=None):
        L = []; a = L.append
        for i in range(8): a(f"v_cvt_pk_bf16_f32 v{kf+i}, v{acc+2*i}, v{acc+2*i+1}")
        a(f"v_mfma_f32_32x32x16_bf16 {vr(pq,16)}, {vr(WP0,4)}, {vr(kf,4)}, 0")
        a(f"v_mfma_f32_32x32x16_bf16 {vr(pq,16)}, {vr(WP1,4)}, {vr(kf+4,4)}, {vr(pq,16)}")
        hook = lambda k: a(lambda: (self.stamp(f"sm{k}"), mid(k) if mid else None))
        hook(0)
        S = ((kf, kf+2), (kf+4, kf+6))
        for k in range(4):
            for hd in range(2):
                p = pq + 8*hd; mp, mn = S[hd]
                if k == 0: a(f"v_max3_f32 v{mp}, v{p}, v{p+1}, v{p+2}"); a(f"v_max3_f32 v{mn}, -v{p}, -v{p+1}, -v{p+2}")
                elif k < 3: a(f"v_max3_f32 v{mp}, v{mp}, v{p+1+2*k}, v{p+2+2*k}"); a(f"v_max3_f32 v{mn}, v{mn}, -v{p+1+2*k}, -v{p+2+2*k}")
                else: a(f"v_max_f32 v{mp}, v{mp}, v{p+7}"); a(f"v_max_f32_e64 v{mn}, v{mn}, -v{p+7}")
        def both(f):
            for hd in range(2): f(*S[hd])
        both(lambda x, y: a(f"v_permlane32_swap_b32 v{x}, v{y}"))
        both(lambda x, y: a(f"v_max_f32 v{x}, v{x}, v{y}"))
        both(lambda x, y: a(f"v_mul_f32 v{x}, {sL2E}, v{x}"))
        both(lambda x, y: a(f"v_mov_b32 v{y}, v{x}"))
        both(lambda x, y: a(f"v_permlane32_swap_b32 v{x}, v{y}"))
        for hd in range(2):
            p = pq + 8*hd; e = E[hd]; mp, mn = S[hd]
            if packed:
                for i in range(0, 8, 2):
                    a(f"v_pk_fma_f32 {vr(e+i,2)}, {vr(p+i,2)}, {sL2P}, {vr(mp,2)} op_sel_hi:[1,1,0] neg_lo:[0,0,1] neg_hi:[0,0,1]")
                    a(f"v_pk_fma_f32 {vr(e+8+i,2)}, {vr(p+i,2)}, {sL2P}, {vr(mn,2)} op_sel_hi:[1,1,0] neg_lo:[1,0,1] neg_hi:[1,0,1]")
            else:
                for i in range(8):
                    a(f"v_fma_f32 v{e+i}, v{p+i}, {sL2E}, -v{mp}"); a(f"v_fma_f32 v{e+8+i}, -v{p+i}, {sL2E}, -v{mn}")
        a(self.slot)
        for hd in range(2):
            for i in range(16): a(f"v_exp_f32 v{E[hd]+i}, v{E[hd]+i}")
            a(self.slot)
        hook(1)
        for k in range(3):
            for hd in range(2):
                for sg in range(2):
                    b = E[hd] + 8*sg; s = S[hd][sg]
                    x = b if k == 0 else s
                    if packed: a(f"v_pk_add_f32 {vr(s,2)}, {vr(x,2)}, {vr(b+2+2*k,2)}")
                    else: a(f"v_add_f32 v{s}, v{x}, v{b+2+2*k}"); a(f"v_add_f32 v{s+1}, v{x+1}, v{b+3+2*k}")
        both(lambda x, y: (a(f"v_add_f32 v{x}, v{x}, v{x+1}"), a(f"v_add_f32 v{y}, v{y}, v{y+1}")))
        both(lambda x, y: a(f"v_permlane32_swap_b32 v{x}, v{y}"))
        both(lambda x, y: a(f"v_add_f32 v{x}, v{x}, v{y}"))
        both(lambda x, y: a(f"v_rcp_f32 v{x}, v{x}"))
        both(lambda x, y: a(f"v_mov_b32 v{y}, v{x}"))
        both(lambda x, y: a(f"v_permlane32_swap_b32 v{x}, v{y}"))
        a(self.slot)
        for hd in range(2):
            for sg in range(2):
                b = E[hd] + 8*sg
                if packed:
                    for i in range(0, 8, 2): a(f"v_pk_mul_f32 {vr(b+i,2)}, {vr(b+i,2)}, {vr(S[hd][sg],2)} op_sel_hi:[1,0]")
                else:
                    for i in range(8): a(f"v_mul_f32 v{b+i}, v{S[hd][sg]}, v{b+i}")
                L += sink(hd, sg, b)
                a(self.slot)
        hook(2)
        return L
    def run(self, L):
        for x in L: self.a(x) if isinstance(x, str) else x()
    def kv_epilogue(self):
        a = self.a; o = self.o
        a(f"v_and_b32 {V4}, 31, {vL}"); a(f"v_lshrrev_b32 {V5}, 5, {vL}"); a(f"v_lshlrev_b32 {V5}, 4, {V5}"); a(f"v_lshl_add_u32 {V4}, {V4}, 5, {V5}")
        a(f"s_lshl_b32 {T0}, {sTG}, 10"); a(f"s_lshl_b32 {T1}, {sBB}, 13"); a(f"s_add_u32 {T2}, {T0}, {T1}"); a(f"s_add_u32 {T3}, {T2}, {T1}")
        a(f"v_add_u32 {V5}, {T2}, {V4}"); a(f"v_add_u32 {V4}, {T3}, {V4}")
        def sink(hd, sg, b):
            d = WP0 + 4*sg
            return [f"v_cvt_pk_bf16_f32 v{d+i}, v{b+2*i}, v{b+2*i+1}" for i in range(4)] + \
                   [lambda: a.ds(f"ds_write_b128 {V4}, {vr(d,4)} offset:{(2*hd+sg)*4096}", "kw")]
        be = o.get('bearly', 0)
        L = self.softmax(ACC0, ACC0, (ACC1, PHI), FR + 16, sink, 0 if be else 1)
        vf = PHI
        Vv = [f"v_cvt_pk_bf16_f32 v{vf+i}, v{ACC1+2*i}, v{ACC1+2*i+1}" for i in range(8)]
        Vv += [(lambda hd=hd: a.ds(f"ds_write_b128 {V5}, {vr(vf+4*hd,4)} offset:{32768 + hd*4096}", "kw")) for hd in range(2)]
        L = L[:10] + Vv + L[10:]
        self.push(lambda: self.touch(16*UNIT, sHG, V6))
        if be: self.passB(0, L, o.get('kper', 12), 100)
        else:
            self.push(*(self.dmaW2(0) + self.dmaW2(1) + self.dmaW2(2))[:o.get('kdma', 6)])
            self.run(L)
        self.flush()
        a.wait(lg="kw"); a.wait(vm="B1" if be else "B0")
        a("s_barrier")
        self.stamp(4)
        a(f"s_lshl_b32 {T0}, {sW}, 12"); a(f"s_lshr_b32 {T1}, {sW}, 1"); a(f"s_lshl_b32 {T1}, {T1}, 12"); a(f"s_add_u32 {T1}, {T1}, 32768")
        a(f"v_lshlrev_b32 {V0}, 3, {vL}"); a(f"v_add_u32 {V1}, {T1}, {V0}"); a(f"v_add_u32 {V0}, {T0}, {V0}")
        A, B, ONE, DK, DZ = ACC0, ACC1, PHI, PHI+4, PHI+8
        for st in range(4):
            for e in range(2): a.ds(f"ds_read_b64_tr_b16 {vr(A+4*st+2*e,2)}, {V0} offset:{st*1024+e*512}", f"k{st}")
            if st == 3: a.wait(lg="k0")
            for e in range(2): a.ds(f"ds_read_b64_tr_b16 {vr(B+4*st+2*e,2)}, {V1} offset:{st*1024+e*512}", f"k{st}")
        for i in range(4): a(f"v_mov_b32 v{ONE+i}, 0x3f803f80")
        a(f"s_lshl_b32 {T0}, {sHP}, 4"); a(f"s_add_u32 {T0}, {T0}, {sRB}"); a(f"s_lshl_b32 {T0}, {T0}, 3"); a(f"s_add_u32 {T0}, {T0}, {sW}")
        a(f"s_lshl_b32 {T1}, {T0}, 10"); a(f"s_add_u32 {T1}, {T1}, {P_OFF}"); a(f"s_lshl_b32 {T2}, {T0}, 6"); a(f"s_add_u32 {T2}, {T2}, {PZ_OFF}")
        a(f"v_lshlrev_b32 {V2}, 4, {vL}"); a(f"v_and_b32 {V3}, 15, {vL}"); a(f"v_cmp_eq_u32 vcc, 0, {V3}"); a(f"v_mov_b32 {V3}, {OOB}")
        a(f"v_cndmask_b32 {V3}, {V3}, {vL}, vcc")
        a(f"s_mov_b32 {T3}, 0x07060501"); a(f"s_mov_b32 {T4}, 0x07060502"); a(f"s_mov_b32 {T5}, 0x07060503")
        for st in range(4):
            a.wait(lg=f"k{st}")
            a(f"v_mfma_f32_16x16x32_bf16 {vr(DK,4)}, {vr(A+4*st,4)}, {vr(B+4*st,4)}, {'0' if st == 0 else vr(DK,4)}")
            a(f"v_mfma_f32_16x16x32_bf16 {vr(DZ,4)}, {vr(A+4*st,4)}, {vr(ONE,4)}, {'0' if st == 0 else vr(DZ,4)}")
        for D in (DK, DZ):
            a(f"v_perm_b32 v{D}, v{D}, v{D+3}, {T3}"); a(f"v_perm_b32 v{D+1}, v{D+1}, v{D+3}, {T4}"); a(f"v_perm_b32 v{D+2}, v{D+2}, v{D+3}, {T5}")
            a(f"v_mov_b32 v{D+3}, {sTAG}")
        a.vmem(f"buffer_load_dword {V7}, off, {SDBG}, {sC32} sc1", "mode")
        a.vmem(f"buffer_store_dwordx4 {vr(DK,4)}, {V2}, {SWS}, {T1} offen sc1", "part")
        a.vmem(f"buffer_store_dwordx4 {vr(DZ,4)}, {V3}, {SWS}, {T2} offen sc1", "part")
        self.ack_store()
        self.stamp(5)
    def reducer(self, after_first, tm=None):
        a = self.a
        a(f"s_lshl_b32 {T0}, {sRB}, 1"); a(f"s_add_u32 {T0}, {T0}, {sHG}"); a(f"s_sub_u32 {T0}, {T0}, 6")
        a(f"s_lshr_b32 {T1}, {T0}, 2"); a(f"s_and_b32 {T0}, {T0}, 3"); a(f"s_lshl_b32 {T0}, {T0}, 1"); a(f"s_add_u32 {T0}, {T0}, {sBB}")
        a(f"s_lshl_b32 {T2}, {T1}, 7"); a(f"s_add_u32 {T2}, {T2}, {T0}")
        a(f"s_lshl_b32 {T3}, {T2}, 10"); a(f"s_lshl_b32 {T4}, {sTG}, 8"); a(f"s_add_u32 {T3}, {T3}, {T4}"); a(f"s_add_u32 {T3}, {T3}, {P_OFF}")
        a(f"v_lshrrev_b32 {V0}, 3, {vL}"); a(f"v_and_b32 {V1}, 7, {vL}"); a(f"v_lshlrev_b32 {V1}, 4, {V1}"); a(f"v_lshl_add_u32 {V2}, {V0}, 13, {V1}"); a(f"v_add_u32 {V2}, {T3}, {V2}")
        a(f"s_lshl_b32 {T3}, {T2}, 6"); a(f"s_add_u32 {T3}, {T3}, {PZ_OFF}")
        a(f"v_lshrrev_b32 {V0}, 2, {vL}"); a(f"v_and_b32 {V3}, 3, {vL}"); a(f"v_lshlrev_b32 {V3}, 4, {V3}"); a(f"v_lshl_add_u32 {V3}, {V0}, 9, {V3}"); a(f"v_add_u32 {V3}, {T3}, {V3}")
        a(f"s_lshl_b32 {T2}, {T1}, 3"); a(f"s_add_u32 {T2}, {T2}, {T0}")
        a(f"s_lshl_b32 {T3}, {T2}, 10"); a(f"s_add_u32 {T3}, {T3}, {T4}"); a(f"s_add_u32 {T3}, {T3}, {F_OFF}")
        a(f"v_mov_b32 {V0}, {OOB}"); a(f"v_cmp_gt_u32 vcc, 8, {vL}"); a(f"v_add_u32 {V4}, {T3}, {V1}"); a(f"v_cndmask_b32 {V4}, {V0}, {V4}, vcc")
        a(f"s_lshl_b32 {T3}, {T2}, 6"); a(f"s_add_u32 {T3}, {T3}, {FZ_OFF}"); a(f"s_cmp_eq_u32 {sTG}, 0"); a(f"s_cselect_b32 {T3}, {T3}, {OOB - 0x100}")
        a(f"v_cmp_gt_u32 vcc, 4, {vL}"); a(f"v_add_u32 {V5}, {T3}, {V1}"); a(f"v_cndmask_b32 {V5}, {V0}, {V5}, vcc")
        B = ACC0
        def loads(track):
            for i in range(4):
                s = f"buffer_load_dwordx4 {vr(B+4*i,4)}, {V2}, {SWS}, {'0' if i < 2 else T0} offen offset:{(i&1)*128} sc1"
                a.vmem(s, "h1") if track else a(s)
            s = f"buffer_load_dwordx4 {vr(B+16,4)}, {V3}, {SWS}, 0 offen sc1"
            a.vmem(s, "h1") if track else a(s)
        a(f"s_mov_b32 {T0}, 0x10000")
        L = a.label("h1"); Ld = a.label("h1d")
        loads(True)
        a.wait(vm="h1")
        after_first()
        a(f"s_mov_b32 {sSPIN}, {SPIN}")
        a(f"{L}:")
        a(f"v_cmp_ne_u32 vcc, {sTAG}, v{B+3}")
        for i in range(1, 5):
            a(f"v_cmp_ne_u32 {sM}, {sTAG}, v{B+4*i+3}"); a("s_nop 1"); a(f"s_or_b64 vcc, vcc, {sM}")
        a(f"s_cbranch_vccz {Ld}")
        a(f"s_sub_u32 {sSPIN}, {sSPIN}, 1"); a(f"s_cbranch_scc1 {Ld}")
        loads(False); a("s_waitcnt vmcnt(0)"); a(f"s_branch {L}")
        a(f"{Ld}:")
        self.stamp(7)
        a(f"s_mov_b32 {T1}, 0x04000c0c"); a(f"s_mov_b32 {T2}, 0x0706000c")
        for i in range(5):
            b = B + 4*i
            a(f"v_perm_b32 v{b+3}, v{b+2}, v{b+1}, {T1}"); a(f"v_perm_b32 v{b+3}, v{b+3}, v{b}, {T2}")
        for i in range(8): a(f"v_add_f32 v{B+i}, v{B+i}, v{B+8+i}")
        Z = B + 16; Tm = ACC1 + 8 if tm is None else tm
        for i in range(4): a(f"v_add_f32_dpp v{Z+i}, v{Z+i}, v{Z+i} row_ror:4 row_mask:0xf bank_mask:0xf")
        vals = list(range(B, B+8)) + list(range(Z, Z+4))
        for v in vals: a(f"v_add_f32_dpp v{v}, v{v}, v{v} row_ror:8 row_mask:0xf bank_mask:0xf")
        for op in ("v_permlane16_swap_b32", "v_permlane32_swap_b32"):
            for k, v in enumerate(vals): a(f"v_mov_b32 v{Tm+k}, v{v}")
            for k, v in enumerate(vals): a(f"{op} v{v}, v{Tm+k}")
            for k, v in enumerate(vals): a(f"v_add_f32 v{v}, v{v}, v{Tm+k}")
        for k, b in enumerate((B, B+4, Z)):
            d = Tm + 4*k
            a(f"v_cvt_pk_bf16_f32 v{d}, v{b}, v{b+1}"); a(f"v_cvt_pk_bf16_f32 v{d+1}, v{b+2}, v{b+3}")
            a(f"v_mov_b32 v{d+2}, {sTAG}"); a(f"v_mov_b32 v{d+3}, {sTAG}")
        return lambda: (a.vmem(f"buffer_store_dwordx4 {vr(Tm,4)}, {V4}, {SWS}, 0 offen sc1", "fin"),
                        a.vmem(f"buffer_store_dwordx4 {vr(Tm+4,4)}, {V4}, {SWS}, 0 offen offset:128 sc1", "fin"),
                        a.vmem(f"buffer_store_dwordx4 {vr(Tm+8,4)}, {V5}, {SWS}, 0 offen sc1", "fin"))
    def o_stage_fetch(self, part=3):
        a = self.a
        B = ACCA
        def loads(track):
            for s in (f"buffer_load_dwordx4 {vr(B,4)}, {V2}, {SWS}, 0 offen sc1", f"buffer_load_dwordx4 {vr(B+4,4)}, {V3}, {SWS}, 0 offen sc1"):
                a.vmem(s, "h2") if track else a(s)
        if part & 1:
            a(f"s_lshl_b32 {T0}, {sHP}, 3"); a(f"s_add_u32 {T0}, {T0}, {sW}")
            a(f"s_lshl_b32 {T1}, {T0}, 10"); a(f"s_add_u32 {T1}, {T1}, {F_OFF}"); a(f"s_lshl_b32 {T2}, {T0}, 6"); a(f"s_add_u32 {T2}, {T2}, {FZ_OFF}")
            a(f"v_lshlrev_b32 {V2}, 4, {vL}"); a(f"v_and_b32 {V3}, 0x30, {V2}"); a(f"v_add_u32 {V2}, {T1}, {V2}"); a(f"v_add_u32 {V3}, {T2}, {V3}")
            loads(True)
        if not part & 2: return
        L = a.label("h2"); Ld = a.label("h2d")
        a.wait(vm="h2")
        a(f"s_mov_b32 {sSPIN}, {SPIN}")
        a(f"{L}:")
        a(f"v_cmp_ne_u32 vcc, {sTAG}, v{B+2}"); a(f"v_cmp_ne_u32 {sM}, {sTAG}, v{B+6}"); a("s_nop 1"); a(f"s_or_b64 vcc, vcc, {sM}")
        a(f"s_cbranch_vccz {Ld}")
        a(f"s_sub_u32 {sSPIN}, {sSPIN}, 1"); a(f"s_cbranch_scc1 {Ld}")
        loads(False); a("s_waitcnt vmcnt(0)"); a(f"s_branch {L}")
        a(f"{Ld}:")
        self.stamp(9)
        a(f"s_add_u32 {T0}, {sW1k}, {KVT}")
        a(f"v_and_b32 {V2}, 15, {vL}"); a(f"v_lshrrev_b32 {V3}, 4, {vL}"); a(f"v_lshlrev_b32 {V3}, 3, {V3}"); a(f"v_lshl_add_u32 {V2}, {V2}, 5, {V3}"); a(f"v_add_u32 {V2}, {T0}, {V2}")
        a(f"v_lshlrev_b32 {V3}, 3, {vL}"); a(f"v_add_u32 {V3}, {T0}, {V3}")
        a.ds(f"ds_write_b64 {V2}, {vr(B,2)}", "kt")
        a("s_mov_b64 exec, 15")
        a.ds(f"ds_write_b64 {V3}, {vr(B+4,2)} offset:512", "kt")
        a("s_mov_b64 exec, -1")
        a.wait(lg="kt")
    def o_stage_compute(self):
        a = self.a
        a(f"v_and_b32 {V0}, 3, {vL}"); a(f"v_bfe_u32 {V1}, {vL}, 2, 1"); a(f"v_bfe_u32 {V2}, {vL}, 3, 1")
        a(f"v_lshl_add_u32 {V0}, {V1}, 3, {V0}"); a(f"v_lshl_add_u32 {V0}, {V2}, 2, {V0}")
        a(f"v_and_b32 {V1}, 16, {vL}"); a(f"v_cmp_eq_u32 vcc, 0, {V1}"); a(f"v_lshrrev_b32 {V2}, 5, {vL}"); a(f"v_lshlrev_b32 {V2}, 4, {V2}")
        a(f"v_cndmask_b32 {V0}, {V1}, {V0}, vcc"); a(f"v_lshl_add_u32 {V0}, {V0}, 5, {V2}")
        a(f"s_lshl_b32 {T0}, {sBB}, 12"); a(f"s_add_u32 {T0}, {T0}, {KVT}"); a(f"v_add_u32 {V0}, {T0}, {V0}")
        A, D, PK = ACCA, ACCA+16, FR2
        for i in range(4): a.ds(f"ds_read_b128 {vr(A+4*i,4)}, {V0} offset:{i*1024}", f"o{i>>1}")
        a(f"s_lshl_b32 {T0}, {sHP}, 19"); a(f"s_add_u32 {T0}, {T0}, {O_OFF}"); a(f"s_add_u32 {T1}, {T0}, {STEP}")
        for hd in range(2):
            a.wait(lg=f"o{hd}")
            a(f"v_mfma_f32_32x32x16_bf16 {vr(D,16)}, {vr(A+8*hd,4)}, {vr(PHI+8*hd,4)}, 0")
            a(f"v_mfma_f32_32x32x16_bf16 {vr(D,16)}, {vr(A+8*hd+4,4)}, {vr(PHI+8*hd+4,4)}, {vr(D,16)}")
            a(f"v_add_f32 {V1}, 0x358637bd, v{D+8}"); a(f"v_rcp_f32 {V1}, {V1}")
            for i in range(8): a(f"v_mul_f32 v{D+i}, {V1}, v{D+i}")
            for i in range(4): a(f"v_cvt_pk_bf16_f32 v{PK+4*hd+i}, v{D+2*i}, v{D+2*i+1}")
        self.store_mode(lambda f: (a(f"buffer_store_dwordx4 {vr(PK,4)}, {vHS}, {SWS}, {T0} offen{f}"),
                                   a(f"buffer_store_dwordx4 {vr(PK+4,4)}, {vHS}, {SWS}, {T1} offen{f}")), "ost", 2)
    def ffn(self, hooks, la, extra=[]):
        a = self.a; nr = self.nring; o = self.o
        g2i, g2c = o.get('g2i', 3), o.get('g2c', 5)
        for d in range(11):
            a.wait(vm=f"w2_{d}")
            a.wait(vm=f"h{d}")
            a("s_barrier")
            self.stamp(f"f{d}")
            if d == g2i: a.vmem(f"buffer_load_dword {V0}, {vFL}, {SWS}, 0 offen sc1", "pf")
            if d >= 1 and d + 2 <= 7: self.push(*self.dmaW2(d + 2))
            self.slot()
            base = self.ring(d)
            p0, p1, off = (vPR0, vPR1, base) if base < 65536 else (vPM0, vPM1, base - 65536)
            for u in range(2):
                for cb, v in ((0, p0), (1, p1)):
                    for e in range(2):
                        a.ds(f"ds_read_b64_tr_b16 {vr(FR2+8*u+4*cb+2*e,2)}, {v} offset:{off + u*8192 + e*512}", f"f{u}")
            if d + la <= 7: self.push(*self.ldH(d + la))
            if d == g2c:
                self.poll_flags(0x1555, "pf")
                self.push(lambda: a.vmem(f"buffer_load_dword {V6}, {vG}, {SWS}, 0 offen sc1", "g"))
            if g2c <= d < g2c + 3: self.push(*self.ldH(8 + d - g2c))
            n = -(-len(extra) // max(1, 7 - d)); n += n & 1
            self.push(*extra[:n]); extra = extra[n:]
            self.slot()
            for u in range(2):
                a.wait(lg=f"f{u}")
                for cb in range(2):
                    acc = ACCF + 16*cb
                    a(f"v_mfma_f32_32x32x16_bf16 {vr(acc,16)}, {vr(FR2+8*u+4*cb,4)}, {ar(8*d+4*u,4)}, {'0' if d == 0 and u == 0 else vr(acc,16)}")
                self.slot()
            self.flush()
            if d in hooks: hooks[d]()
    def tail(self, bump=False):
        a = self.a
        a("s_barrier")
        self.stamp(10)
        a.vmem(f"buffer_load_dword {V0}, {vFL}, {SWS}, 0 offen sc1", "pf")
        W0, W1, W2_, W3, R0, R1, OA = vX0, vX1, vWA, vWB, vXR0, vXR1, vXR2
        a(f"v_and_b32 {W0}, 31, {vL}"); a(f"v_lshrrev_b32 {V1}, 5, {vL}"); a(f"v_lshlrev_b32 {V1}, 1, {V1}"); a(f"v_and_b32 {V2}, 7, {vL}")
        a(f"v_xor_b32 {V1}, {V1}, {V2}"); a(f"v_lshlrev_b32 {V1}, 4, {V1}"); a(f"v_lshl_add_u32 {W0}, {W0}, 8, {V1}")
        a(f"s_and_b32 {T4}, {sW}, 1"); a(f"s_lshl_b32 {T4}, {T4}, 15"); a(f"s_lshr_b32 {T1}, {sW}, 1"); a(f"s_lshl_b32 {T2}, {T1}, 13"); a(f"s_add_u32 {T2}, {T2}, {T4}")
        a(f"v_add_u32 {W0}, {T2}, {W0}"); a(f"v_xor_b32 {W1}, 16, {W0}"); a(f"v_xor_b32 {W2_}, 64, {W0}"); a(f"v_xor_b32 {W3}, 0x50, {W0}")
        a(f"v_lshrrev_b32 {V5}, 3, {vL}"); a(f"v_lshlrev_b32 {R0}, 1, {V2}"); a(f"v_xor_b32 {R0}, {R0}, {V5}"); a(f"v_lshlrev_b32 {R0}, 4, {R0}")
        a(f"v_lshl_add_u32 {R0}, {V5}, 8, {R0}"); a(f"s_lshl_b32 {T2}, {T1}, 11"); a(f"s_add_u32 {T2}, {T2}, {T4}"); a(f"v_add_u32 {R0}, {T2}, {R0}"); a(f"v_xor_b32 {R1}, 16, {R0}")
        a(f"s_lshl_b32 {T2}, {sRB}, 7"); a(f"s_lshl_b32 {T3}, {sType}, 6"); a(f"s_add_u32 {T2}, {T2}, {T3}"); a(f"s_lshr_b32 {T3}, {T4}, 10"); a(f"s_add_u32 {T2}, {T2}, {T3}")
        a(f"s_lshl_b32 {T3}, {T1}, 3"); a(f"s_add_u32 {T2}, {T2}, {T3}"); a(f"s_lshl_b32 {T2}, {T2}, 10"); a(f"s_lshl_b32 {T3}, {sN}, 7"); a(f"s_add_u32 {T2}, {T2}, {T3}")
        a(f"v_lshlrev_b32 {V2}, 4, {V2}"); a(f"v_lshl_add_u32 {OA}, {V5}, 10, {V2}"); a(f"v_add_u32 {OA}, {T2}, {OA}")
        a.wait(vm="g")
        a(f"v_sub_f32 {V5}, 1.0, {V6}")
        for i in range(32): a(f"v_mul_f32 v{ACCF+i}, {V5}, v{ACCF+i}")
        def rd(i):
            b = FR2 + 8*(i % 2)
            for cb, v in ((0, vPO0), (1, vPO1)):
                for e in range(2): a.ds(f"ds_read_b64_tr_b16 {vr(b+4*cb+2*e,2)}, {v} offset:{i*8192 + e*512}", f"a{i}")
        rd(0)
        self.poll_flags(0xff0000, "pf")
        self.stamp(11)
        def ld(i):
            a(f"s_mov_b32 {T0}, {O_OFF + i*UNIT}")
            a.vmem(f"buffer_load_dwordx4 {ar(88+4*i,4)}, {vHL}, {SWS}, {T0} offen sc1", f"o{i}")
        LA = 4
        for i in range(LA): ld(i)
        for i in range(8):
            if i + 1 < 8: rd(i + 1)
            if i + LA < 8: ld(i + LA)
            a.wait(vm=f"o{i}", lg=f"a{i}")
            for cb in range(2):
                acc = ACCA + 16*cb
                a(f"v_mfma_f32_32x32x16_bf16 {vr(acc,16)}, {vr(FR2+8*(i%2)+4*cb,4)}, {ar(88+4*i,4)}, {'0' if i == 0 else vr(acc,16)}")
        self.stamp(12)
        wa = {(0, 0): W0, (0, 1): W1, (1, 0): W2_, (1, 1): W3}
        for cb in range(2):
            for gp in range(2):
                for e in range(2):
                    b = 16*cb + 8*gp + 4*e
                    for i in range(4): a(f"v_fmac_f32 v{ACCF+b+i}, {V6}, v{ACCA+b+i}")
                    a.ds(f"ds_write_b128 {wa[(gp,e)]}, {vr(ACCF+b,4)} offset:{cb*128}", "rw")
        a.wait(lg="rw")
        self.stamp("rw")
        a("s_barrier")
        B = ACCA
        for k in range(4):
            a.ds(f"ds_read_b128 {vr(B+8*k,4)}, {R0} offset:{k*8192}", f"s{k}"); a.ds(f"ds_read_b128 {vr(B+8*k+4,4)}, {R1} offset:{k*8192}", f"s{k}")
        a.wait(lg="s1")
        for i in range(8): a(f"v_add_f32 v{B+i}, v{B+i}, v{B+8+i}")
        a.wait(lg="s3")
        for i in range(8): a(f"v_add_f32 v{B+16+i}, v{B+16+i}, v{B+24+i}")
        for i in range(8): a(f"v_add_f32 v{B+i}, v{B+i}, v{B+16+i}")
        for i in range(4): a(f"v_cvt_pk_bf16_f32 v{B+8+i}, v{B+2*i}, v{B+2*i+1}")
        a.vmem(f"buffer_store_dwordx4 {vr(B+8,4)}, {OA}, {SOUT}, 0 offen", "out")
        if self.o.get('probe'): self.probe()
        if self.o.get('dbgtime'):
            a("s_waitcnt vmcnt(0)"); a("s_not_b32 s88, s26"); a("s_memrealtime s[26:27]"); a("s_waitcnt lgkmcnt(0)")
            a("v_mov_b32 v24, s88"); a("v_mov_b32 v25, s26"); a("s_mov_b64 exec, 1")
            a(f"buffer_atomic_umax v24, off, {SDBG}, 0 offset:8"); a(f"buffer_atomic_umax v25, off, {SDBG}, 0 offset:12")
            a("s_add_u32 s88, s88, s26"); a("s_add_u32 s88, s88, 1"); a("v_mov_b32 v24, s88"); a(f"buffer_atomic_umax v24, off, {SDBG}, 0 offset:16")
        if self.o.get('stamps'):
            self.stamp(13)
            a("s_waitcnt vmcnt(0)"); self.stamp(14); a("s_waitcnt lgkmcnt(0)"); self.stamp(15)
            a("s_waitcnt lgkmcnt(0)"); a("s_memrealtime s[26:27]"); a("s_waitcnt lgkmcnt(0)"); a("v_writelane_b32 v23, s26, 63")
            a(f"s_lshl_b32 {T0}, s2, 3"); a(f"s_add_u32 {T0}, {T0}, {sW}"); a(f"s_lshl_b32 {T0}, {T0}, 8"); a(f"s_add_u32 {T0}, {T0}, {ST_OFF}")
            a(f"v_lshlrev_b32 {V0}, 2, {vL}")
            a(f"buffer_store_dword v23, {V0}, {SWS}, {T0} offen")
        a("s_endpgm")
    def probe(self):
        a = self.a; L = a.label("pr")
        a("s_waitcnt vmcnt(0)"); a("s_memrealtime s[88:89]"); a("s_memtime s[90:91]"); a("s_waitcnt lgkmcnt(0)")
        if self.o['probe'] == 1: a("s_sub_u32 s92, s88, s26")
        else: a("s_sub_u32 s92, s90, s52"); a("s_lshr_b32 s92, s92, 4")
        a("s_add_u32 s92, s92, s88")
        a(f"{L}:"); a("s_memrealtime s[88:89]"); a("s_waitcnt lgkmcnt(0)"); a("s_sub_u32 s93, s88, s92"); a("s_cmp_lt_i32 s93, 0"); a(f"s_cbranch_scc1 {L}")
    def bump(self):
        a = self.a
        Lx = a.label("nb"); L = a.label("bp"); Ld = a.label("bpd")
        a("s_cmp_eq_u32 s2, 224"); a(f"s_cbranch_scc0 {Lx}"); a(f"s_cmp_eq_u32 {sW}, 0"); a(f"s_cbranch_scc0 {Lx}")
        a(f"v_lshlrev_b32 {V0}, 4, {vL}"); a(f"s_mov_b32 {T0}, {ACK_OFF}"); a(f"s_mov_b32 {sSPIN}, {SPIN}")
        a(f"{L}:")
        a(f"buffer_load_dwordx4 {vr(ACCA,4)}, {V0}, {SWS}, {T0} offen sc1"); a("s_waitcnt vmcnt(0)")
        a(f"v_cmp_ne_u32 vcc, {sTAG}, v{ACCA}")
        for i in range(1, 4):
            a(f"v_cmp_ne_u32 {sM}, {sTAG}, v{ACCA+i}"); a("s_nop 1"); a(f"s_or_b64 vcc, vcc, {sM}")
        a(f"s_cbranch_vccz {Ld}")
        a(f"s_sub_u32 {sSPIN}, {sSPIN}, 1"); a(f"s_cbranch_scc0 {L}")
        a(f"{Ld}:")
        a(f"v_mov_b32 {V0}, {sE}"); a(f"s_mov_b32 {T0}, {E_OFF}"); a("s_mov_b64 exec, 1")
        a(f"buffer_store_dword {V0}, off, {SWS}, {T0}"); a("s_mov_b64 exec, -1"); a("s_waitcnt vmcnt(0)")
        a(f"{Lx}:")
    def group1(self, la, pre=None):
        self.poll_flags(0xAAAA, pre)
        self.stamp(8)
        for d in range(min(la, 8)):
            for f in self.ldH(d): f()
    def path_q(self):
        a = self.a; o = self.o
        a(f"s_lshl_b32 {T0}, {sHG}, 20")
        L = []
        for u, acc in enumerate((ACC0, ACC1)):
            pk = PHI + 8*u
            hp = self.h_pack(acc, pk)
            for kk in range(2):
                L += hp[12*kk:12*kk+12]
                L += [f"s_add_u32 {T1}, {T0}, {u*UNIT + kk*STEP}",
                      lambda pk=pk, kk=kk: a.vmem(f"buffer_store_dwordx4 {vr(pk+4*kk,4)}, {vHS}, {SH}, {T1} offen sc1", "hst")]
        L += [self.ack_store, self.get_mode_issue, lambda: self.touch(O_OFF, sHP, V6), lambda: self.stamp(4), lambda: None]
        self.flush()
        be = o.get('bearly', 0)
        rest = ([] if be else self.dmaW2(0) + self.dmaW2(1) + self.dmaW2(2)) + self.dmaW2(8) + self.dmaW2(9) + self.dmaW2(10)
        q1, q2 = o.get('qd1', 0), o.get('qd2', 4)
        if not be:
            self.run(L); L = []
            a.wait(vm="B0"); a("s_barrier")
            self.stamp("B0")
            self.push(*rest[:q1])
        else: L.append(lambda: self.push(*rest[:q1]))
        self.passB(0, L, o.get('qper', 8), 2)
        self.flush()
        a.wait(vm="B1"); a("s_barrier")
        self.stamp("B1")
        rest = rest[q1:] + self.dmaWO(0, 4)
        self.push(*rest[:q2])
        self.passB(1, [], 0, 3)
        self.flush()
        self.stamp(5)
        a("s_barrier")
        rest = rest[q2:] + self.dmaWO(4, 8); q3 = o.get('qd3', 99)
        self.push(*rest[:q3]); rest = rest[q3:]
        sink = lambda hd, sg, b: [f"v_cvt_pk_bf16_f32 v{PHI+8*hd+4*sg+i}, v{b+2*i}, v{b+2*i+1}" for i in range(4)]
        fl = o.get('qflag', 0)
        def mid(k):
            if k == fl:
                self.get_mode_wait(); self.flag_store(FH_OFF, sJ)
        self.run(self.softmax(ACCB, ACC0, (ACC1, ACCB), FR, sink, 1, mid))
        self.flush()
        self.stamp(6)
        la = o.get('la', 3)
        self.group1(la)
        s2 = o.get('s2', 10)
        hooks = {}
        if s2 < 10:
            assert s2 >= 6
            hooks[s2 - 1] = lambda: self.o_stage_fetch(1); hooks[s2] = lambda: self.o_stage_fetch(2); hooks[s2 + 1] = self.o_stage_compute
            fo = lambda: (a.wait(vm="ost"), self.flag_store(FO_OFF, sHP))
            if s2 + 2 <= 10: hooks[s2 + 2] = fo
            self.ffn(hooks, la, rest)
            if s2 + 2 > 10: fo()
        else:
            self.ffn(hooks, la, rest)
            self.o_stage_fetch(); a("s_barrier"); self.o_stage_compute()
            a.wait(vm="ost"); self.flag_store(FO_OFF, sHP)
        self.tail()
    def path_kv(self):
        a = self.a; o = self.o
        self.kv_epilogue()
        a(f"s_cmp_ge_u32 {sHG}, 6"); a("s_cbranch_scc1 L_pathR")
        sv = (a.vm.copy(), a.lg.copy()); pend = list(self.pend)
        if not o.get('bearly', 0):
            self.push(*(self.dmaW2(0) + self.dmaW2(1) + self.dmaW2(2))[o.get('kdma', 6):])
            self.passB(0, [], 0, 3)
            self.flush()
            a.wait(vm="B1"); a("s_barrier")
            self.stamp("B1")
        rest = self.dmaW2(8) + self.dmaW2(9) + self.dmaW2(10) + self.dmaWO(0, 4); k2 = o.get('kd2', 8)
        if o.get('bearly', 0): rest = self.dmaWO(0, 4) + rest[:6]; k2 = min(k2, 4)
        self.push(*rest[:k2]); rest = rest[k2:]
        self.passB(1, [], 0, 3)
        self.flush()
        self.stamp(6)
        self.get_mode_wait()
        self.run(self.h_pack(ACCB, FR))
        a(f"s_add_u32 {T0}, {sHG}, 16"); a(f"s_lshl_b32 {T0}, {T0}, 19"); a(f"s_add_u32 {T1}, {T0}, {STEP}")
        self.store_mode(lambda f: (a(f"buffer_store_dwordx4 {vr(FR,4)}, {vHS}, {SH}, {T0} offen{f}"),
                                   a(f"buffer_store_dwordx4 {vr(FR+4,4)}, {vHS}, {SH}, {T1} offen{f}")), "hst", 2)
        a.vmem(f"buffer_load_dword {V0}, {vFL}, {SWS}, 0 offen sc1", "pf")
        a("s_barrier")
        rest = rest + self.dmaWO(4, 8)
        k3 = o.get('kd3', 99)
        for f in rest[:k3]: f()
        self.stamp(7)
        la = o.get('la', 3)
        self.group1(la, "pf")
        self.ffn({0: lambda: (a.wait(vm="hst"), self.flag_store(FH_OFF, sJ))}, la, rest[k3:])
        self.tail()
        a.vm, a.lg = sv; self.pend = pend
        a("L_pathR:")
        if not o.get('bearly', 0): self.push(*(self.dmaW2(0) + self.dmaW2(1) + self.dmaW2(2))[o.get('kdma', 6):])
        self.flush()
        a.wait(vm="B1"); a("s_barrier")
        Lng = a.label("ng")
        a(f"s_cmp_eq_u32 {sHG}, 6"); a(f"s_cbranch_scc0 {Lng}")
        self.gate_wave()
        a(f"{Lng}:")
        a("s_barrier")
        rest = self.dmaW2(8) + self.dmaW2(9) + self.dmaW2(10) + self.dmaWO(0, 8)
        r1 = o.get('rd1', 0); r2 = o.get('rd2', 0)
        for f in rest[:r1]: f()
        def gflag():
            Lx = a.label("ng")
            a(f"s_cmp_eq_u32 {sHG}, 6"); a(f"s_cbranch_scc0 {Lx}")
            sv2 = a.vm.copy()
            self.get_mode_wait(); self.flag_store(FH_OFF, sJ)
            a.vm = sv2
            a(f"{Lx}:")
            a(f"s_mov_b32 {T0}, 0x10000")
        fin = self.reducer(gflag)
        a.vmem(f"buffer_load_dword {V0}, {vFL}, {SWS}, 0 offen sc1", "pf")
        fin()
        for f in rest[r1:r1+r2]: f()
        self.group1(8, "pf")
        self.ffn({6: self.bump}, 8, rest[r1+r2:])
        self.tail()
    def gate_wave(self):
        a = self.a
        a(f"v_lshrrev_b32 {V0}, 5, {vL}"); a(f"v_lshlrev_b32 {V0}, 4, {V0}"); a(f"s_add_u32 {T0}, {sW1k}, {R + 57344}"); a(f"v_add_u32 {V0}, {T0}, {V0}")
        D = 5
        def rd(st): a.ds(f"ds_read_b128 {vr(FR+4*(st%6),4)}, {V0} offset:{st*32}", f"g{st}")
        for st in range(D): rd(st)
        for st in range(32):
            if st + D < 32: rd(st + D)
            a.wait(lg=f"g{st}")
            a(f"v_mfma_f32_32x32x16_bf16 {vr(ACCB,16)}, {vr(FR+4*(st%6),4)}, {ar(4*st,4)}, {'0' if st == 0 else vr(ACCB,16)}")
            if st % 3 == 2: self.slot()
        a(f"s_lshl_b32 {T2}, {sRB}, 2"); a(f"s_add_u32 {T2}, {T2}, {sTG}"); a(f"s_lshl_b32 {T2}, {T2}, 7"); a(f"s_add_u32 {T2}, {T2}, {G_OFF}")
        a(f"v_and_b32 {V1}, 31, {vL}"); a(f"v_lshlrev_b32 {V1}, 2, {V1}")
        a(f"v_mul_f32 {V2}, {sL2E}, v{ACCB}"); a(f"v_exp_f32_e64 {V2}, -{V2}"); a(f"v_add_f32 {V2}, 1.0, {V2}"); a(f"v_rcp_f32 {V2}, {V2}")
        a(f"buffer_store_dword {V2}, {V1}, {SWS}, {T2} offen sc1")
    def body(self):
        a = self.a
        self.prologue(); self.passA()
        a(f"s_cmp_eq_u32 {sType}, 0"); a("s_cbranch_scc1 L_pathKV")
        sv = (a.vm.copy(), a.lg.copy()); pend = list(self.pend)
        self.path_q()
        a.vm, a.lg = sv; self.pend = pend
        a("L_pathKV:")
        self.path_kv()
    def build(self):
        a = self.a
        self.body()
        a("L_end:"); a("s_endpgm")
        body = pad_hazards(a.L, verbose=True)
        head = open('cdna_kernels/' + NAME + '.s.ref').read().split('; Override')[0]
        txt = head + "; stamps: " + ",".join(self.names) + "\n" + "; @launch grid=(256,1,1) block=(512,1,1) lds=163840\n"
        txt += f".amdgcn_target \"amdgcn-amd-amdhsa--gfx950\"\n.text\n.globl {NAME}_kernel\n.p2align 8\n.type {NAME}_kernel,@function\n{NAME}_kernel:\n"
        txt += "\n".join(("" if l.endswith(':') else "    ") + l for l in body) + "\n"
        txt += f""".section .rodata,"a"
.p2align 6
.amdhsa_kernel {NAME}_kernel
  .amdhsa_next_free_vgpr 256
  .amdhsa_next_free_sgpr 102
  .amdhsa_accum_offset 128
  .amdhsa_group_segment_fixed_size 0
  .amdhsa_kernarg_size 88
  .amdhsa_user_sgpr_count 2
  .amdhsa_user_sgpr_kernarg_segment_ptr 1
  .amdhsa_system_sgpr_workgroup_id_x 1
.end_amdhsa_kernel
"""
        return txt

if __name__ == '__main__':
    out = sys.argv[1]
    opt = json.loads(sys.argv[2]) if len(sys.argv) > 2 else {}
    open(out, 'w').write(Gen(opt).build())
```

```python
import sys, json
from asmlib import *
import gen as B
from gen import *

FH_OFF = 0x1140000
FO_OFF = 0x1144000
STEP = 2048; UNIT = 8192; O_OFF = 88*STEP
X_OFF = 0x1400000
W2B = 8192
KVT = 0
sOWN, sUA, sUB, sPI, sMM, sSIDE = sHG, sU0, sU1, "s14", "s15", "s16"
sTB = sType
sR1, sR2, sH1, sH2, sW2O = "s4", "s5", "s6", "s7", "s8"
vL16 = vG
ACCP = ACCA
WP0V = V3
def nib(vals):
    v = 0
    for i, x in enumerate(vals): v |= x << (4*i)
    return v
T_A   = nib([0, 0, 0, 0, 1, 1, 1, 1, 1, 0, 0, 0, 0, 1, 1, 1])
T_B   = nib([1, 1, 1, 1, 1, 1, 1, 1, 0, 0, 0, 2, 2, 0, 0, 0])
T_OWN = nib([1, 1, 1, 1, 1, 1, 1, 1, 1, 0, 0, 0, 0, 0, 0, 0])
T_K   = nib([0, 1, 2, 3, 4, 5, 6, 7, 0, 0, 1, 2, 3, 0, 0, 0])
T_UA  = nib([0, 0, 0, 0, 0, 2, 4, 6, 8, 0, 0, 0, 0, 0, 2, 4])
T_UB  = nib([0, 0, 0, 0, 0, 0, 0, 0,10, 9,10, 0, 0, 6, 7, 8])
T_N   = nib([0, 1, 2, 4, 5, 6, 7, 3, 0, 5, 6, 7, 3, 1, 2, 4])
T_C0  = nib([0, 1, 2, 3, 4, 5, 6, 7, 0, 0, 1, 2, 3, 4, 5, 6])
T_PI  = nib([0, 0, 0, 0, 0, 1, 2, 3, 4, 4, 5, 0, 0, 0, 1, 2])
M_EARLY = 0x0007001F; M_MID = 0x07001000; M_LATE = 0x30000000

class Gen2(Gen):
    def table(self, dst, tab):
        a = self.a
        a(f"s_mov_b32 s92, {tab & 0xffffffff:#x}"); a(f"s_mov_b32 s93, {tab >> 32:#x}"); a(f"s_lshr_b64 s[92:93], s[92:93], {T0}"); a(f"s_and_b32 {dst}, s92, 15")
    def dmaW2(self, grp, k):
        a = self.a; n, lo = ((6, 5), (5, 0))[grp]
        def f():
            a(f"s_add_u32 {sA0}, {sMM}, {k}")
            if grp == 0: a(f"s_add_u32 {sA0}, {sA0}, {sMM}")
            for _ in range(2 if grp == 0 else 1):
                a(f"s_cmp_ge_u32 {sA0}, {n}"); a(f"s_cselect_b32 {sA1}, {n}, 0"); a(f"s_sub_u32 {sA0}, {sA0}, {sA1}")
            a(f"s_lshl_b32 {sA1}, {sA0}, 13"); a(f"s_add_u32 {sA1}, {sA1}, {sW1k}")
            a(f"s_lshl_b32 {sA0}, {sA0}, 16"); a(f"s_add_u32 {sA0}, {sA0}, {sW2O}")
            if lo: a(f"s_add_u32 {sA0}, {sA0}, {lo*65536}")
            self.dma(vW2, SW2, sA0, f"s_add_u32 m0, {sA1}, {W2B + lo*8192}", "w2")
        return f
    def w2x(self): return [self.dmaW2(0, k) for k in range(6)]
    def w2y(self): return [self.dmaW2(1, k) for k in range(5)]
    def dmaWO(self, half):
        a = self.a
        def mk(i):
            def f():
                a(f"s_add_u32 {sA0}, {sMM}, {i}"); a(f"s_and_b32 {sA0}, {sA0}, 3")
                a(f"s_lshl_b32 {sA1}, {sMM}, 1"); a(f"s_and_b32 {sA1}, {sA1}, 4"); a(f"s_xor_b32 {sA1}, {sA1}, {4*half}"); a(f"s_add_u32 {sA0}, {sA0}, {sA1}")
                a(f"s_lshl_b32 {sA1}, {sA0}, 13"); a(f"s_add_u32 {sA1}, {sA1}, {sW1k}"); a(f"s_lshl_b32 {sA0}, {sA0}, 16")
                self.dma(vW2, SWO, sA0, f"s_add_u32 m0, {sA1}, {R}", "wo")
            return f
        return [mk(i) for i in range(4)]
    def touch(self):
        a = self.a
        if 't' in self.o.get('skip', ''): return
        a(f"v_bfe_u32 {V6}, {vL}, 2, 1"); a(f"v_lshl_add_u32 {V6}, {V6}, 11, {vHS}")
        a(f"s_lshl_b32 {T2}, {sHP}, 13"); a(f"s_add_u32 {T2}, {T2}, {O_OFF}"); a(f"s_cmp_eq_u32 {sTB}, 1"); a(f"s_cselect_b32 {T2}, {T2}, 0x40000000")
        a.vmem(f"buffer_load_dword {V6}, {V6}, {SWS}, {T2} offen", "touch")
    def wo_touch(self, junk):
        a = self.a
        if not self.o.get('wot', 1): return
        a(f"v_lshrrev_b32 {junk}, 1, {vL}"); a(f"v_lshlrev_b32 {junk}, 10, {junk}")
        a(f"s_lshr_b32 {T2}, {sMM}, 1"); a(f"s_lshl_b32 {T2}, {T2}, 3"); a(f"s_add_u32 {T2}, {T2}, {sW}"); a(f"s_lshl_b32 {T2}, {T2}, 15"); a(f"s_lshl_b32 {T3}, {sN}, 7"); a(f"s_add_u32 {T2}, {T2}, {T3}")
        a.vmem(f"buffer_load_dword {junk}, {junk}, {SWO}, {T2} offen", "touch")
    def poll_flags(self, mask, pre_issued=None):
        a = self.a; L = a.label("pf"); Ld = a.label("pfd")
        if pre_issued is None:
            a.vmem(f"buffer_load_dword {V0}, {vFL}, {SWS}, 0 offen sc1", "pf"); pre_issued = "pf"
        a.wait(vm=pre_issued)
        a(f"s_mov_b32 {sSPIN}, {SPIN}")
        a(f"{L}:")
        a(f"v_cmp_ne_u32 vcc, {sTAG}, {V0}"); a("s_nop 1")
        if mask >> 32 and mask & 0xffffffff:
            a(f"s_and_b32 {T0}, vcc_lo, {mask & 0xffffffff:#x}"); a(f"s_and_b32 {T1}, vcc_hi, {mask >> 32:#x}"); a(f"s_or_b32 {T0}, {T0}, {T1}")
        elif mask >> 32: a(f"s_and_b32 {T0}, vcc_hi, {mask >> 32:#x}")
        else: a(f"s_and_b32 {T0}, vcc_lo, {mask:#x}")
        a(f"s_cbranch_scc0 {Ld}")
        a(f"s_sub_u32 {sSPIN}, {sSPIN}, 1"); a(f"s_cbranch_scc1 {Ld}")
        a(f"buffer_load_dword {V0}, {vFL}, {SWS}, 0 offen sc1"); a("s_waitcnt vmcnt(0)")
        a(f"s_branch {L}")
        a(f"{Ld}:")
    def pf_issue(self): self.a.vmem(f"buffer_load_dword {V0}, {vFL}, {SWS}, 0 offen sc1", "pf")
    def flag_word(self, addr):
        a = self.a
        a(f"v_mov_b32 {V1}, {sTAG}")
        a(f"s_mov_b64 exec, 1")
        self.store_mode(lambda f: a(f"buffer_store_dword {V1}, off, {SWS}, {addr}{f}"), "flag", 1)
        a(f"s_mov_b64 exec, -1")
    def flag_h(self, late):
        a = self.a
        a(f"s_add_u32 {T0}, {sPI}, {32 if late else 0}"); self.flag_word(T0)
    def flag_o(self):
        a = self.a
        a(f"s_and_b32 {T1}, {sRB}, 1"); a(f"s_lshl_b32 {T0}, {sC}, 1"); a(f"s_add_u32 {T0}, {T0}, {T1}"); a(f"s_lshl_b32 {T0}, {T0}, 2"); a(f"s_add_u32 {T0}, {T0}, {sTG}")
        a(f"s_lshl_b32 {T0}, {T0}, 1"); a(f"s_add_u32 {T0}, {T0}, {sBB}"); a(f"s_lshl_b32 {T0}, {T0}, 4"); a(f"s_add_u32 {T0}, {T0}, {sHP}")
        a(f"s_lshl_b32 {T0}, {T0}, 2"); a(f"s_add_u32 {T0}, {T0}, {FO_OFF}")
        self.flag_word(T0)
    def prologue(self):
        a = self.a; o = self.o
        a("s_cmp_ge_u32 s2, 256"); a("s_cbranch_scc1 L_end")
        a("s_load_dwordx16 s[4:19], s[0:1], 0"); a("s_load_dwordx4 s[20:23], s[0:1], 64"); a("s_load_dwordx2 s[24:25], s[0:1], 80")
        if o.get('stamps'): a("s_memtime s[26:27]"); a("s_memrealtime s[66:67]")
        if o.get('span'): a("s_memrealtime s[26:27]")
        if o.get('probe'): a("s_memrealtime s[26:27]"); a("s_memtime s[52:53]")
        if o.get('cp0', 1):
            a("s_getpc_b64 s[90:91]"); a("L_pc:")
            a(f"s_lshr_b32 {T0}, s2, 3"); a(f"s_mul_i32 {T0}, {T0}, {8*184}")
            a(f"v_lshrrev_b32 {V0}, 6, v0"); a(f"v_mul_u32_u24 {V1}, 184, {V0}"); a(f"v_and_b32 {V2}, 1, v0"); a(f"v_lshl_add_u32 {V1}, {V2}, 6, {V1}")
            a(f"v_add_u32 {V1}, {T0}, {V1}"); a(f"v_min_u32 {V1}, L_end-L_pc-4, {V1}")
            a.vmem(f"global_load_dword {MJ}, {V1}, s[90:91]", "misc")
        a(f"v_lshrrev_b32 {V0}, 6, v0"); a(f"v_and_b32 {vL}, 63, v0"); a(f"v_readfirstlane_b32 {sW}, {V0}")
        a(f"s_and_b32 {sC}, s2, 7"); a(f"s_lshr_b32 {T0}, s2, 3"); a(f"s_and_b32 {T1}, {T0}, 1"); a(f"s_lshr_b32 {sJ}, {T0}, 1")
        a(f"s_lshl_b32 {T0}, {sJ}, 2")
        self.table(sType, T_A); self.table(sOWN, T_OWN); self.table(sA2, T_K); self.table(sUA, T_UA)
        if o.get('c0tab', 1): self.table(sC0, T_C0)
        else: a(f"s_mov_b32 {sC0}, {sJ}")
        a(f"s_and_b32 {sA1}, {sC}, 1")
        a(f"s_lshl_b32 {T2}, {sA1}, 2"); a(f"s_xor_b32 {sA2}, {sA2}, {T2}")
        a(f"s_mul_i32 {T2}, {sA1}, 11"); a(f"s_add_u32 {sUA}, {sUA}, {T2}")
        a(f"s_xor_b32 {T2}, {sOWN}, 1"); a(f"s_xor_b32 {T2}, {T2}, {sC}"); a(f"s_lshl_b32 {sRB}, {T2}, 1"); a(f"s_or_b32 {sRB}, {sRB}, {T1}")
        a(f"s_mul_i32 {T2}, {sRB}, {o.get('rotr', 0)}"); a(f"s_mul_i32 {sC0}, {sC0}, {o.get('rotj', 1)}"); a(f"s_add_u32 {sC0}, {sC0}, {T2}")
        a(f"s_mul_i32 {T2}, {sC}, {o.get('rotc', 1)}"); a(f"s_add_u32 {sC0}, {sC0}, {T2}"); a(f"s_and_b32 {sC0}, {sC0}, 7")
        a(f"s_and_b32 {sTG}, {sW}, 3"); a(f"s_lshr_b32 {sBB}, {sW}, 2"); a(f"s_lshl_b32 {sW1k}, {sW}, 10"); a(f"s_lshl_b32 {sW2k}, {sW}, 11")
        a(f"s_add_u32 {T2}, {sA2}, 8")
        a(f"s_cmp_eq_u32 {sType}, 0")
        self.csel(T3, 3072, 2752); self.csel(T5, 1024, 128); a(f"s_cselect_b32 {T4}, {T2}, {sUA}"); self.csel("s34", 512*3072, 512*2752)
        a(f"s_lshl_b32 {T4}, {T4}, 7")
        a(f"s_lshl_b32 {sStrA64}, {T3}, 6"); a(f"s_lshl_b32 {sStrA4}, {T3}, 2")
        a(f"s_lshl_b32 {T0}, {sRB}, 7"); a(f"s_lshl_b32 {T1}, {sW}, 4"); a(f"s_add_u32 {T0}, {T0}, {T1}"); a(f"s_lshl_b32 {T0}, {T0}, 10")
        a(f"v_lshrrev_b32 {V0}, 3, {vL}"); a(f"v_lshrrev_b32 {V1}, 4, {vL}"); a(f"v_and_b32 {V2}, 7, {vL}")
        a(f"v_xor_b32 {V3}, {V2}, {V1}"); a(f"v_lshlrev_b32 {V3}, 4, {V3}"); a(f"v_lshl_add_u32 {vX0}, {V0}, 10, {V3}"); a(f"v_add_u32 {vX0}, {T0}, {vX0}")
        a(f"v_xor_b32 {vX1}, 64, {vX0}"); a(f"v_add_u32 {vX1}, 0x2000, {vX1}")
        a(f"s_lshl_b32 {T1}, {sW}, 3")
        a(f"v_add_u32 {V3}, {T1}, {V1}"); a(f"v_mul_lo_u32 {vWA}, {V3}, {T3}")
        a(f"v_and_b32 {V3}, 15, {vL}"); a(f"v_lshlrev_b32 {V4}, 2, {V1}"); a(f"v_xor_b32 {V3}, {V3}, {V4}")
        a(f"v_lshrrev_b32 {V4}, 3, {V3}"); a(f"v_mul_lo_u32 {V4}, {V4}, {T5}"); a(f"v_and_b32 {V3}, 7, {V3}")
        a(f"v_lshl_add_u32 {V4}, {V3}, 4, {V4}"); a(f"v_add3_u32 {vWA}, {vWA}, {V4}, {T4}")
        a("s_mov_b32 s30, 0x200000"); a("s_mov_b32 s31, 0x20000"); a("s_mov_b32 s35, 0x20000")
        a(f"s_cmp_eq_u32 {sType}, 0")
        a("s_waitcnt lgkmcnt(0)")
        if o.get('stamps'): a("v_mov_b32 v23, 0"); a(f"s_mov_b32 {sST}, 0"); a("v_writelane_b32 v23, s66, 62")
        a("s_mov_b32 s28, s4"); a("s_mov_b32 s29, s5"); a(f"s_mov_b32 {sHP}, {sA2}")
        a("s_cselect_b32 s32, s6, s14"); a("s_cselect_b32 s33, s7, s15")
        a(f"s_mov_b32 {sMODE}, {sA1}")
        for f in self.dmaA(0): f()
        c1 = self.dmaA(1)
        a(f"s_lshl_b32 {T0}, {sJ}, 2")
        self.srd(STMP, 8, 16384)
        if o.get('wsoff'): a(f"s_add_u32 s24, s24, {o['wsoff']:#x}"); a("s_addc_u32 s25, s25, 0")
        a(f"s_mov_b32 s9, {sType}")
        self.table(sTB, T_B); self.table(sUB, T_UB); self.table(T1, T_PI); self.table(sN, T_N)
        a(f"s_mul_i32 {T2}, {sMODE}, 11"); a(f"s_add_u32 {sUB}, {sUB}, {T2}"); a(f"s_lshl_b32 {sW2O}, {T2}, 16")
        a(f"s_cmp_eq_u32 {sTB}, 1")
        a("s_cselect_b32 s36, s6, s14"); a("s_cselect_b32 s37, s7, s15"); self.csel("s38", 512*3072, 512*2752); a("s_mov_b32 s39, 0x20000")
        self.csel(T3, 3072, 2752); a(f"s_cselect_b32 {T4}, {sHP}, {sUB}")
        a(f"s_lshl_b32 {sStrB64}, {T3}, 6"); a(f"s_lshl_b32 {T4}, {T4}, 7")
        a(f"s_cmp_eq_u32 {sTB}, 2"); a(f"s_cselect_b32 {T4}, 0x40000000, {T4}")
        self.srd(SW2, 16, 1376*1024); self.srd(SWO, 10, 512*1024); self.srd(SWS, 24, WS_SIZE);
        self.srd(SOUT, 20, 0x200000); self.srd(SDBG, 22, 256)
        a(f"s_mov_b32 {sSIDE}, {sMODE}")
        a(f"s_lshl_b32 {T2}, {sC}, 1"); a(f"s_xor_b32 {T5}, {sOWN}, 1"); a(f"s_add_u32 {T2}, {T2}, {T5}"); a(f"s_lshl_b32 {T2}, {T2}, 1"); a(f"s_and_b32 {T5}, {sRB}, 1")
        a(f"s_add_u32 {T2}, {T2}, {T5}"); a(f"s_lshl_b32 {T2}, {T2}, 2"); a(f"s_add_u32 {T2}, {T2}, {sTG}"); a(f"s_lshl_b32 {T2}, {T2}, 1"); a(f"s_add_u32 {T2}, {T2}, {sBB}")
        a(f"s_lshl_b32 {T2}, {T2}, 4"); a(f"s_add_u32 {T2}, {T2}, {T1}"); a(f"s_lshl_b32 {T2}, {T2}, 2"); a(f"s_add_u32 {sPI}, {T2}, {FH_OFF}")
        a(f"s_lshl_b32 {T5}, {T5}, 1"); a(f"s_add_u32 {sMM}, {T5}, s9")
        a(f"v_and_b32 {V3}, 1, {V1}"); a(f"v_lshlrev_b32 {V3}, 2, {V3}"); a(f"v_xor_b32 {V3}, {V3}, {V2}"); a(f"v_lshlrev_b32 {V3}, 4, {V3}")
        a(f"s_lshl_b32 {T1}, {sW}, 3"); a(f"v_add_u32 {V4}, {T1}, {V0}")
        a(f"v_mul_lo_u32 {vWB}, {V4}, {T3}"); a(f"v_add3_u32 {vWB}, {vWB}, {V3}, {T4}")
        a(f"s_lshl_b32 {T1}, {sN}, 7"); a(f"v_lshl_add_u32 {vW2}, {V4}, 10, {V3}"); a(f"v_add_u32 {vW2}, {T1}, {vW2}")
        a(f"v_lshlrev_b32 {vL16}, 4, {vL}")
        Lg = a.label("gsrd")
        a(f"s_cmp_eq_u32 {sJ}, 11"); a(f"s_cbranch_scc0 {Lg}")
        a("s_mov_b32 s36, s18"); a("s_mov_b32 s37, s19"); a("s_mov_b32 s38, 1024"); a(f"s_mov_b32 {sStrB64}, 0")
        a(f"v_add_u32 {V4}, {sC0}, {V0}"); a(f"v_and_b32 {V4}, 7, {V4}"); a(f"v_lshlrev_b32 {V3}, 4, {V2}"); a(f"v_lshl_add_u32 {vWB}, {V4}, 7, {V3}")
        a(f"{Lg}:")
        c1[0]()
        a(f"v_lshrrev_b32 {V0}, 5, {vL}"); a(f"v_bfe_u32 {V2}, {vL}, 2, 2")
        a(f"v_and_b32 {V3}, 1, {vL}"); a(f"v_bfe_u32 {V4}, {vL}, 1, 1"); a(f"v_lshl_add_u32 {V3}, {V3}, 1, {V4}"); a(f"v_lshlrev_b32 {V3}, 3, {V3}")
        a(f"v_and_b32 {V6}, 1, {V1}"); a(f"v_lshl_add_u32 {V3}, {V6}, 5, {V3}")
        a(f"v_lshl_add_u32 {V4}, {V0}, 3, {V2}")
        a(f"v_xor_b32 {V5}, {sBB}, {V2}"); a(f"v_lshlrev_b32 {V5}, 6, {V5}"); a(f"v_lshl_add_u32 {V5}, {V4}, 8, {V5}"); a(f"v_add_u32 {V5}, {V5}, {V3}")
        a(f"v_add_u32 {vAR0}, {WSL(0)}, {V5}"); a(f"v_xor_b32 {vAR1}, 128, {vAR0}")
        a(f"v_and_b32 {V7}, 31, {vL}"); a(f"v_bfe_u32 {V5}, {vL}, 1, 3"); a(f"v_xor_b32 {V5}, {V5}, {V0}"); a(f"v_lshlrev_b32 {V5}, 4, {V5}")
        a(f"s_lshl_b32 {T0}, {sTG}, 12"); a(f"v_lshl_add_u32 {vXR0}, {V7}, 7, {V5}"); a(f"v_add_u32 {vXR0}, {T0}, {vXR0}")
        a(f"v_xor_b32 {vXR1}, 32, {vXR0}"); a(f"v_xor_b32 {vXR2}, 64, {vXR0}"); a(f"v_xor_b32 {vXR3}, 0x60, {vXR0}")
        c1[1]()
        a(f"v_lshrrev_b32 {V5}, 1, {V2}"); a(f"v_lshlrev_b32 {V5}, 6, {V5}"); a(f"v_lshl_add_u32 {V5}, {V4}, 7, {V5}"); a(f"v_add_u32 {V5}, {V5}, {V3}")
        a(f"s_lshl_b32 {T0}, {sBB}, 6"); a(f"v_xor_b32 {vBR}, {T0}, {V5}"); a(f"v_add_u32 {vBR}, {R}, {vBR}")
        a(f"s_lshr_b32 {T0}, {sW}, 1"); a(f"s_lshl_b32 {T0}, {T0}, 11"); a(f"v_add_u32 {vPR0}, {T0}, {V5}"); a(f"v_xor_b32 {vPR1}, 64, {vPR0}")
        a(f"v_add_u32 {vPO0}, {R}, {vPR0}"); a(f"v_add_u32 {vPO1}, {R}, {vPR1}")
        a(f"v_mul_u32_u24 {V5}, {512-32}, {V6}"); a(f"v_add_u32 {V5}, {V5}, {V3}"); a(f"v_lshl_add_u32 {V5}, {V4}, 5, {V5}")
        a(f"s_lshl_b32 {T0}, {sBB}, 12"); a(f"s_add_u32 {T0}, {T0}, {R + 57344}"); a(f"v_add_u32 {MWP}, {T0}, {V5}")
        a(f"s_cmp_ge_u32 {sN}, 6"); a(f"s_cselect_b32 {T0}, 6, 0"); a(f"s_sub_u32 {sR1}, {sN}, {T0}"); a(f"s_mov_b32 {sR2}, {sN}")
        if not o.get('hrot', 1): a(f"s_mov_b32 {sR1}, 0"); a(f"s_mov_b32 {sR2}, 0")
        a(f"s_lshr_b32 {T0}, {sW2O}, 3"); a(f"s_lshl_b32 {T1}, {sSIDE}, 21"); a(f"s_add_u32 {sH2}, {T0}, {T1}"); a(f"s_xor_b32 {T1}, {T1}, 0x200000"); a(f"s_add_u32 {sH1}, {T0}, {T1}")
        a(f"s_lshl_b32 {sC32}, {sC}, 5")
        a(f"s_mov_b32 {sL2E}, 0x3fb8aa3b"); a("s_mov_b32 s0, 0x3fb8aa3b"); a("s_mov_b32 s1, 0x3fb8aa3b")
        c1[2]()
        a(f"s_lshl_b32 {T0}, {sMM}, 1"); a(f"s_and_b32 {T1}, {sW}, 1"); a(f"s_add_u32 {T0}, {T0}, {T1}")
        a(f"s_lshr_b32 {T1}, {sW}, 1")
        a(f"v_lshrrev_b32 {V3}, 3, {vL}"); a(f"v_cmp_eq_u32 vcc, 3, {V3}")
        a(f"s_and_b32 {T2}, {T0}, 3"); a(f"s_add_u32 {T2}, {T2}, 9"); a(f"s_lshl_b32 {T2}, {T2}, 7"); a(f"v_add_u32 {V3}, {T2}, {vL16}"); a(f"v_cndmask_b32 {V3}, {vL16}, {V3}, vcc")
        a(f"s_and_b32 {T3}, {sC}, 6"); a(f"s_lshl_b32 {T3}, {T3}, 3"); a(f"s_add_u32 {T3}, {T3}, {T0}")
        a(f"s_lshl_b32 {T2}, {T3}, 18"); a(f"s_lshl_b32 {T3}, {T1}, 11"); a(f"s_add_u32 {T2}, {T2}, {T3}"); a(f"v_add_u32 {vHL}, {T2}, {V3}")
        a(f"s_add_u32 {T2}, {sTG}, 9"); a(f"s_lshl_b32 {T2}, {T2}, 7"); a(f"v_add_u32 {V3}, {T2}, {vL16}"); a(f"v_cndmask_b32 {vHS}, {vL16}, {V3}, vcc")
        a(f"s_lshl_b32 {T0}, {T0}, 1"); a(f"s_lshr_b32 {T1}, {T1}, 1"); a(f"s_add_u32 {T0}, {T0}, {T1}"); a(f"s_lshl_b32 {T0}, {T0}, 6")
        a(f"s_lshl_b32 {T1}, {sC}, 11"); a(f"s_add_u32 {T1}, {T1}, {T0}"); a(f"s_add_u32 {T1}, {T1}, {FH_OFF}")
        a(f"s_lshl_b32 {T2}, {sC}, 10"); a(f"s_add_u32 {T2}, {T2}, {T0}"); a(f"s_add_u32 {T2}, {T2}, {FO_OFF}")
        a(f"s_and_b32 {T3}, {sMM}, 2"); a(f"s_add_u32 {T3}, {T3}, {sBB}"); a(f"s_lshl_b32 {T3}, {T3}, 2"); a(f"s_and_b32 {T4}, {sW}, 1"); a(f"s_lshl_b32 {T4}, {T4}, 1"); a(f"s_add_u32 {T3}, {T3}, {T4}")
        a(f"s_bfe_u32 {T4}, {sW}, 0x10001"); a(f"s_add_u32 {T3}, {T3}, {T4}"); a(f"s_lshl_b32 {T3}, {T3}, 6"); a(f"s_lshl_b32 {T4}, {sC}, 11"); a(f"s_add_u32 {T3}, {T3}, {T4}"); a(f"s_add_u32 {T3}, {T3}, {FH_OFF + 1024}")
        a(f"v_and_b32 {V3}, 15, {vL}"); a(f"v_lshlrev_b32 {V3}, 2, {V3}"); a(f"v_add_u32 {V4}, {T2}, {V3}"); a(f"v_add_u32 {V5}, {T3}, {V3}"); a(f"v_add_u32 {V3}, {T1}, {V3}")
        a(f"v_cmp_gt_u32 vcc, 32, {vL}"); a(f"v_cndmask_b32 {vFL}, {V4}, {V5}, vcc")
        a(f"v_cmp_gt_u32 vcc, 16, {vL}"); a(f"v_cndmask_b32 {vFL}, {vFL}, {V3}, vcc")
        a(f"s_lshl_b32 {T0}, {sRB}, 2"); a(f"s_add_u32 {T0}, {T0}, {sTG}"); a(f"s_lshl_b32 {T0}, {T0}, 18"); a(f"s_lshl_b32 {T1}, {sBB}, 12"); a(f"s_add_u32 {T0}, {T0}, {T1}")
        a(f"v_add_u32 {vHS}, {T0}, {vHS}")
        c1[3]()
        def census():
            a(f"s_getreg_b32 {sXCC}, hwreg(HW_REG_XCC_ID, 0, 4)")
            a(f"s_mul_i32 {T2}, {sXCC}, {sXCC}"); a(f"s_lshl_b32 {T2}, {T2}, 16"); a(f"s_lshl_b32 {T3}, {sXCC}, 8"); a(f"s_add_u32 {T2}, {T2}, {T3}"); a(f"s_add_u32 {T2}, {T2}, 1")
            a(f"s_cmp_eq_u32 {sW}, 0"); a(f"s_cselect_b32 {T0}, {sC32}, 0x1000")
            a(f"v_mov_b32 {MAT}, {T2}")
            a("s_mov_b64 exec, 1")
            a.vmem(f"buffer_atomic_add {MAT}, off, {SDBG}, {T0}", "misc")
            a("s_mov_b64 exec, -1")
        def m_wphi():
            L1 = a.label("wp"); L2 = a.label("wpd")
            a(f"s_lshl_b32 {T0}, {sHP}, 11"); a(f"s_lshl_b32 {T1}, {sBB}, 10"); a(f"s_add_u32 {T0}, {T0}, {T1}")
            a(f"s_add_u32 m0, {sW1k}, {R + 57344}")
            a(f"s_cmp_eq_u32 {sTG}, 0"); a(f"s_cbranch_scc0 {L1}")
            a.vmem(f"buffer_load_dwordx4 {vL16}, {STMP}, {T0} offen lds", "misc")
            a(f"s_branch {L2}"); a(f"{L1}:")
            a(f"buffer_load_dword {MJ}, off, {STMP}, {T0}")
            a(f"{L2}:")
        def m_e():
            a(f"s_mov_b32 {T0}, {E_OFF}")
            a.vmem(f"buffer_load_dword {ME}, off, {SWS}, {T0} sc1", "misc")
        def m_code():
            a("s_getpc_b64 s[90:91]"); a("L_pc:")
            a(f"s_lshr_b32 {T0}, s2, 3"); a(f"s_lshl_b32 {T0}, {T0}, 3"); a(f"s_add_u32 {T0}, {T0}, {sW}"); a(f"s_mul_i32 {T0}, {T0}, 184")
            a(f"s_min_u32 {T0}, {T0}, L_end-L_pc-68"); a(f"v_and_b32 {MAT}, 64, {vL16}"); a(f"v_add_u32 {MAT}, {T0}, {MAT}")
            a.vmem(f"global_load_dword {MJ}, {MAT}, s[90:91]", "misc")
        m_fl = lambda: a.vmem(f"buffer_load_dword {MJ}, {vFL}, {SWS}, 0 offen sc1", "misc")
        if not o.get('cp0', 1): m_code()
        census()
        self.misc = [m_e, m_wphi, m_fl]
        self.stamp(1)
    def passA(self):
        a = self.a; o = self.o
        xr = [vXR0, vXR1, vXR2, vXR3]; buf = [FR, FR + 8, FR + 16, PHI]
        def reads(c, st):
            s = c % 3; b = buf[st]
            a.ds(f"ds_read_b128 {ar(16*c+4*st,4)}, {xr[st]} offset:{XS(s)}", f"r{st}")
            for u, v in ((0, vAR0), (1, vAR1)):
                for e in range(2):
                    a.ds(f"ds_read_b64_tr_b16 {vr(b+4*u+2*e,2)}, {v} offset:{s*16384 + st*4096 + e*1024}", f"r{st}")
        def landed(tag, n):
            assert a.vm.q.count(tag) == n, (tag, a.vm.q)
            a.wait(vm=tag)
        def m1(c, st, u):
            acc = (ACC0, ACC1)[u]
            cc = "0" if (c == 0 and st == 0) else vr(acc, 16)
            a(f"v_mfma_f32_32x32x16_bf16 {vr(acc,16)}, {vr(buf[st]+4*u,4)}, {ar(16*c+4*st,4)}, {cc}")
        def half(c, st, rd, nslot):
            pat = o.get('apat', 'MRMRVMVMV')
            mf = [(st, 0), (st, 1), (st+1, 0), (st+1, 1)]; rd = list(rd); left = nslot; nv = pat.count('V')
            for ch in pat:
                if ch == 'M': m1(c, *mf.pop(0))
                elif ch == 'R':
                    if rd: reads(*rd.pop(0))
                else:
                    n = -(-left // nv); self.slot(n); left -= n; nv -= 1
        bsched = o.get('bsched', [0, 0, 0, 1, 1, 3, 3, 0])
        assert sum(bsched) == 8 and sum(bsched[:5]) <= 7
        bl = o.get('blate', 0); assert not (bl and o.get('kil', 1))
        nb = 0
        self.push(*self.dmaA(2)); self.slot(2)
        self.push(*self.misc)
        landed("c0", 4); a("s_barrier")
        self.stamp(2)
        reads(0, 0); reads(0, 1)
        self.slot(2)
        for c in range(8):
            a.wait(lg="r1")
            half(c, 0, [(c, 2), (c, 3)], len(self.pend))
            if c == 4:
                a.ds(f"ds_read_b64_tr_b16 {vr(WP0,2)}, {MWP}", "r3"); a.ds(f"ds_read_b64_tr_b16 {vr(WP0+2,2)}, {MWP} offset:128", "r3")
                a(f"v_readfirstlane_b32 {sE}, {ME}")
                a(f"v_and_b32 {V0}, 16, {vL}"); a(f"v_cmp_eq_u32 vcc, 0, {V0}")
                a(f"s_add_u32 {sE}, {sE}, 1"); a(f"s_mul_i32 {sTAG}, {sE}, 0x9E3779B1"); a(f"s_add_u32 {sTAG}, {sTAG}, 0x7F4A7C15")
            a.wait(lg="r3")
            if c < 7: landed(f"c{c+1}", 4)
            elif not bl:
                assert nb == 8 and not self.pend
                a.wait(vm="B0")
            a("s_barrier")
            self.stamp(f"c{c+1}")
            if c + 3 <= 7: self.push(*self.dmaA(c + 3))
            for _ in range(bsched[c]): self.push(*self.dmaB(nb)); nb += 1
            if c == 7: self.wx = self.w2x(); n = o.get('a7', 2); self.push(*self.wx[:n]); self.wx = self.wx[n:]
            half(c, 2, [(c + 1, 0), (c + 1, 1)] if c < 7 else [], (len(self.pend) + 1)//2 if c < 7 else len(self.pend))
            if c == 4:
                for i in range(4):
                    a(f"v_cndmask_b32_e64 v{WP1+i}, v{WP0+i}, 0, vcc")
                    a(f"v_cndmask_b32 v{WP0+i}, 0, v{WP0+i}, vcc")
        self.stamp(3)
    def first_kv(self):
        a = self.a; o = self.o
        a(f"v_and_b32 {V4}, 31, {vL}"); a(f"v_lshrrev_b32 {V5}, 5, {vL}"); a(f"v_lshlrev_b32 {V5}, 4, {V5}"); a(f"v_lshl_add_u32 {V4}, {V4}, 5, {V5}")
        a(f"s_lshl_b32 {T0}, {sTG}, 10"); a(f"s_lshl_b32 {T1}, {sBB}, 13"); a(f"s_add_u32 {T2}, {T0}, {T1}"); a(f"s_add_u32 {T3}, {T2}, {T1}")
        a(f"v_add_u32 {V5}, {T2}, {V4}"); a(f"v_add_u32 {V4}, {T3}, {V4}")
        def sink(hd, sg, b):
            d = ACC0 + 8*hd + 4*sg
            return [f"v_cvt_pk_bf16_f32 v{d+i}, v{b+2*i}, v{b+2*i+1}" for i in range(4)] + \
                   [lambda: a.ds(f"ds_write_b128 {V4}, {vr(d,4)} offset:{(2*hd+sg)*4096}", "kw")]
        il = o.get('kil', 1)
        L = self.softmax(ACC0, ACC0, (ACC1, PHI), FR + 16, sink, 0 if il else 1)
        vf = PHI
        Vv = [f"v_cvt_pk_bf16_f32 v{vf+i}, v{ACC1+2*i}, v{ACC1+2*i+1}" for i in range(8)]
        Vv += [(lambda hd=hd: a.ds(f"ds_write_b128 {V5}, {vr(vf+4*hd,4)} offset:{32768 + hd*4096}", "kw")) for hd in range(2)]
        L = L[:10] + Vv + L[10:]
        n = o.get('kd1', 2); self.push(*self.wx[:n]); self.wx = self.wx[n:]
        if il: self.passB(0, L, o.get('kper', 12), 100)
        else: self.run(L)
        self.flush()
        a.wait(lg="kw"); a.wait(vm="B1")
        a("s_barrier")
        self.stamp(4)
        a(f"s_lshl_b32 {T0}, {sW}, 12"); a(f"s_lshr_b32 {T1}, {sW}, 1"); a(f"s_lshl_b32 {T1}, {T1}, 12"); a(f"s_add_u32 {T1}, {T1}, 32768")
        a(f"v_lshlrev_b32 {V0}, 3, {vL}"); a(f"v_add_u32 {V1}, {T1}, {V0}"); a(f"v_add_u32 {V0}, {T0}, {V0}")
        A, Bv, ONE, DK, DZ = ACC0, ACC1, PHI, PHI+4, PHI+8
        for st in range(4):
            for e in range(2): a.ds(f"ds_read_b64_tr_b16 {vr(A+4*st+2*e,2)}, {V0} offset:{st*1024+e*512}", f"k{st}")
            if st == 3: a.wait(lg="k0")
            for e in range(2): a.ds(f"ds_read_b64_tr_b16 {vr(Bv+4*st+2*e,2)}, {V1} offset:{st*1024+e*512}", f"k{st}")
        for i in range(4): a(f"v_mov_b32 v{ONE+i}, 0x3f803f80")
        a(f"s_lshl_b32 {T0}, {sHP}, 4"); a(f"s_add_u32 {T0}, {T0}, {sRB}"); a(f"s_lshl_b32 {T0}, {T0}, 3"); a(f"s_add_u32 {T0}, {T0}, {sW}")
        a(f"s_lshl_b32 {T1}, {T0}, 10"); a(f"s_add_u32 {T1}, {T1}, {P_OFF}"); a(f"s_lshl_b32 {T2}, {T0}, 6"); a(f"s_add_u32 {T2}, {T2}, {PZ_OFF}")
        a(f"v_and_b32 {V3}, 15, {vL}"); a(f"v_cmp_eq_u32 vcc, 0, {V3}"); a(f"v_mov_b32 {V3}, {OOB}")
        a(f"v_cndmask_b32 {V3}, {V3}, {vL}, vcc")
        a(f"s_mov_b32 {T3}, 0x07060501"); a(f"s_mov_b32 {T4}, 0x07060502"); a(f"s_mov_b32 {T5}, 0x07060503")
        for st in range(4):
            a.wait(lg=f"k{st}")
            a(f"v_mfma_f32_16x16x32_bf16 {vr(DK,4)}, {vr(A+4*st,4)}, {vr(Bv+4*st,4)}, {'0' if st == 0 else vr(DK,4)}")
            a(f"v_mfma_f32_16x16x32_bf16 {vr(DZ,4)}, {vr(A+4*st,4)}, {vr(ONE,4)}, {'0' if st == 0 else vr(DZ,4)}")
        for D in (DK, DZ):
            a(f"v_perm_b32 v{D}, v{D}, v{D+3}, {T3}"); a(f"v_perm_b32 v{D+1}, v{D+1}, v{D+3}, {T4}"); a(f"v_perm_b32 v{D+2}, v{D+2}, v{D+3}, {T5}")
            a(f"v_mov_b32 v{D+3}, {sTAG}")
        a.vmem(f"buffer_load_dword {V7}, off, {SDBG}, {sC32} sc1", "mode")
        a.vmem(f"buffer_store_dwordx4 {vr(DK,4)}, {vL16}, {SWS}, {T1} offen sc1", "part")
        a.vmem(f"buffer_store_dwordx4 {vr(DZ,4)}, {V3}, {SWS}, {T2} offen sc1", "part")
        self.ack_store(); self.touch()
        self.stamp(5)
    def first_hh(self):
        a = self.a; o = self.o
        a(f"s_lshl_b32 {T0}, {sUA}, 13")
        L = []
        for u, acc in enumerate((ACC0, ACC1)):
            pk = PHI + 8*u
            hp = self.h_pack(acc, pk)
            for kk in range(2):
                L += hp[12*kk:12*kk+12]
                L += [f"s_add_u32 {T1}, {T0}, {u*UNIT + kk*STEP}",
                      lambda pk=pk, kk=kk: a.vmem(f"buffer_store_dwordx4 {vr(pk+4*kk,4)}, {vHS}, {SWS}, {T1} offen sc1", "hst")]
        n = o.get('hd1', 0)
        self.wx = self.wx + self.w2y()
        L += [self.ack_store, self.get_mode_issue, self.touch, lambda: self.stamp(4), lambda: self.push(*self.wx[:n])]
        if o.get('blate', 0):
            self.run(L); L = []
            a.wait(vm="B0"); a("s_barrier")
        self.passB(0, L, o.get('qper', 8), 2)
        self.wx = self.wx[n:]
        self.flush()
        a.wait(vm="B1"); a("s_barrier")
        self.stamp("B1")
    def softmax_q(self, acc, pq, E, kf, mid):
        L = []; a = L.append
        for i in range(8): a(f"v_cvt_pk_bf16_f32 v{kf+i}, v{acc+2*i}, v{acc+2*i+1}")
        a(f"v_mfma_f32_32x32x16_bf16 {vr(pq,16)}, {vr(WP0,4)}, {vr(kf,4)}, 0")
        a(f"v_mfma_f32_32x32x16_bf16 {vr(pq,16)}, {vr(WP1,4)}, {vr(kf+4,4)}, {vr(pq,16)}")
        hook = lambda k: a(lambda: (self.stamp(f"sm{k}"), mid(k)))
        hook(0); a(self.slot); a(self.slot)
        S = ((kf, kf+2), (kf+4, kf+6))
        for k in range(4):
            for hd in range(2):
                p = pq + 8*hd; mp, mn = S[hd]
                if k == 0: a(f"v_max3_f32 v{mp}, v{p}, v{p+1}, v{p+2}"); a(f"v_max3_f32 v{mn}, -v{p}, -v{p+1}, -v{p+2}")
                elif k < 3: a(f"v_max3_f32 v{mp}, v{mp}, v{p+1+2*k}, v{p+2+2*k}"); a(f"v_max3_f32 v{mn}, v{mn}, -v{p+1+2*k}, -v{p+2+2*k}")
                else: a(f"v_max_f32 v{mp}, v{mp}, v{p+7}"); a(f"v_max_f32_e64 v{mn}, v{mn}, -v{p+7}")
        a(self.slot)
        def both(f):
            for hd in range(2): f(*S[hd])
        both(lambda x, y: a(f"v_permlane32_swap_b32 v{x}, v{y}"))
        both(lambda x, y: a(f"v_max_f32 v{x}, v{x}, v{y}"))
        both(lambda x, y: a(f"v_mul_f32 v{x}, {sL2E}, v{x}"))
        both(lambda x, y: a(f"v_mov_b32 v{y}, v{x}"))
        both(lambda x, y: a(f"v_permlane32_swap_b32 v{x}, v{y}"))
        a(self.slot)
        for hd in range(2):
            p = pq + 8*hd; e = E[hd]
            for sg in range(2):
                m = S[hd][sg]; b = e + 8*sg
                for i in range(8): a(f"v_fma_f32 v{b+i}, {'-' if sg else ''}v{p+i}, {sL2E}, -v{m}")
                a(self.slot)
                for i in range(8): a(f"v_exp_f32 v{b+i}, v{b+i}")
                a(self.slot)
                for i in range(4): a(f"v_cvt_pk_bf16_f32 v{PHI+8*hd+4*sg+i}, v{b+2*i}, v{b+2*i+1}")
            if hd == 0: hook(1)
        return L
    def second(self, kindA, kindB):
        a = self.a; o = self.o; P = kindA + kindB
        rest = self.wx
        n = o.get('d2' + kindA, 4); self.push(*rest[:n]); rest = rest[n:]
        if kindA == 'k' and not o.get('kil', 1): self.passB(0, [], 0, 4)
        early = (lambda: (self.get_mode_wait(), self.flag_h(False))) if kindA == 'h' else self.get_mode_wait
        ef = o.get('ef', 99) if kindA == 'h' else 99
        self.passB(1, [(lambda: None)]*ef + [early] if ef < 16 else [], 1, 3)
        if ef < 16: early = lambda: None
        self.flush()
        self.stamp(6)
        a("s_barrier")
        if kindA == 'k': rest = rest + self.w2y()
        ph = Phase2(self, P)
        if kindB == 'q':
            fl = o.get('qflag', 0); qp = o.get('qp' + kindA, 0 if kindA == 'k' else 2)
            if qp == 0:
                for f in rest: f()
                self.pf_issue()
            else: self.push(*rest)
            def mid(k):
                if k == fl: early()
                if k + 1 == qp: self.flush(); self.pf_issue()
                if k == qp: ph.begin("pf", True)
                if kindA == 'h' and k == o.get('h1i', 2): self.red1_issue()
            self.run(self.softmax_q(ACCB, ACC0, (ACC1, ACCB), FR, mid))
            self.flush()
            self.stamp(7)
            fin = None
            if kindA == 'h':
                if o.get('h1i', 2) == 2: self.red1_issue()
                fin = self.red1_finish()
                if qp == 3: self.pf_issue()
            if qp >= 2: ph.begin("pf", False, fin)
            elif fin: fin()
        else:
            def stores():
                a(f"s_lshl_b32 {T2}, {sUB}, 13"); a(f"s_add_u32 {T3}, {T2}, {STEP}")
                a.vmem(f"buffer_store_dwordx4 {vr(FR,4)}, {vHS}, {SWS}, {T2} offen sc1", "hst")
                a.vmem(f"buffer_store_dwordx4 {vr(FR+4,4)}, {vHS}, {SWS}, {T3} offen sc1", "hst")
            sf = o.get('sfirst' + P, 1)
            if sf == 1:
                for f in rest: f()
                self.run(self.h_pack(ACCB, FR)); early(); stores()
                self.stamp(7)
                a.wait(vm="hst"); self.flag_h(True); ph.late = False
                ph.begin(None, False)
            else:
                for f in rest: f()
                early(); self.pf_issue()
                self.run(self.h_pack(ACCB, FR))
                ph.begin("pf", False); stores()
                self.stamp(7)
        ph.main()
    def gate_wave(self):
        a = self.a
        a(f"v_lshrrev_b32 {V0}, 5, {vL}"); a(f"v_lshlrev_b32 {V0}, 4, {V0}"); a(f"s_add_u32 {T0}, {sW1k}, {R + 57344}"); a(f"v_add_u32 {V0}, {T0}, {V0}")
        D = 5
        def rd(st): a.ds(f"ds_read_b128 {vr(FR+4*(st%6),4)}, {V0} offset:{st*32}", f"g{st}")
        for st in range(D): rd(st)
        for st in range(32):
            if st + D < 32: rd(st + D)
            a.wait(lg=f"g{st}")
            a(f"v_mfma_f32_32x32x16_bf16 {vr(ACCB,16)}, {vr(FR+4*(st%6),4)}, {ar(4*st,4)}, {'0' if st == 0 else vr(ACCB,16)}")
        a(f"s_lshl_b32 {T2}, {sRB}, 2"); a(f"s_add_u32 {T2}, {T2}, {sTG}"); a(f"s_lshl_b32 {T2}, {T2}, 8"); a(f"s_add_u32 {T2}, {T2}, {G_OFF}")
        a(f"v_and_b32 {V1}, 31, {vL}"); a(f"v_lshlrev_b32 {V1}, 3, {V1}"); a(f"v_mov_b32 {V3}, {sTAG}")
        a(f"v_mul_f32 {V2}, {sL2E}, v{ACCB}"); a(f"v_exp_f32_e64 {V2}, -{V2}"); a(f"v_add_f32 {V2}, 1.0, {V2}"); a(f"v_rcp_f32 {V2}, {V2}")
        a(f"s_cmp_eq_u32 {sBB}, 0"); a(f"s_cselect_b32 {T2}, {T2}, {OOB}")
        a(f"buffer_store_dwordx2 v[26:27], {V1}, {SWS}, {T2} offen sc1")
    def path_r(self):
        a = self.a; o = self.o
        Lng = a.label("ng")
        a(f"s_cmp_eq_u32 {sJ}, 11"); a(f"s_cbranch_scc0 {Lng}")
        self.gate_wave()
        a(f"{Lng}:")
        a("s_barrier")
        for f in self.wx + self.w2y(): f()
        ph = Phase2(self, 'r'); ph.begin(None, False); ph.main()
    def red1_issue(self):
        a = self.a
        a(f"s_and_b32 {T0}, {sRB}, 1"); a(f"s_lshl_b32 {T0}, {T0}, 2"); a(f"s_add_u32 {T0}, {T0}, {sJ}"); a(f"s_sub_u32 {T0}, {T0}, 4")
        a(f"s_lshl_b32 {T2}, {sC}, 7"); a(f"s_add_u32 {T2}, {T2}, {T0}")
        a(f"s_lshl_b32 {T3}, {T2}, 10"); a(f"s_lshl_b32 {T4}, {sW}, 7"); a(f"s_add_u32 {T3}, {T3}, {T4}"); a(f"s_add_u32 {T3}, {T3}, {P_OFF}")
        a(f"v_lshrrev_b32 {V2}, 3, {vL}"); a(f"v_and_b32 {V1}, 7, {vL}"); a(f"v_lshlrev_b32 {V1}, 4, {V1}"); a(f"v_lshl_add_u32 {V2}, {V2}, 13, {V1}"); a(f"v_add_u32 {V2}, {T3}, {V2}")
        a(f"s_lshl_b32 {T3}, {T2}, 6"); a(f"s_add_u32 {T3}, {T3}, {PZ_OFF}")
        a(f"v_lshrrev_b32 {V4}, 2, {vL}"); a(f"v_and_b32 {V3}, 3, {vL}"); a(f"v_lshlrev_b32 {V3}, 4, {V3}"); a(f"v_lshl_add_u32 {V3}, {V4}, 9, {V3}"); a(f"v_add_u32 {V3}, {T3}, {V3}")
        a(f"s_lshl_b32 {T2}, {sC}, 3"); a(f"s_add_u32 {T2}, {T2}, {T0}")
        a(f"s_lshl_b32 {T3}, {T2}, 10"); a(f"s_add_u32 {T3}, {T3}, {T4}"); a(f"s_add_u32 {T3}, {T3}, {F_OFF}")
        a(f"v_mov_b32 {V6}, {OOB}"); a(f"v_cmp_gt_u32 vcc, 8, {vL}"); a(f"v_add_u32 {V4}, {T3}, {V1}"); a(f"v_cndmask_b32 {V4}, {V6}, {V4}, vcc")
        a(f"s_lshl_b32 {T3}, {T2}, 6"); a(f"s_add_u32 {T3}, {T3}, {FZ_OFF}"); a(f"s_cmp_eq_u32 {sW}, 0"); a(f"s_cselect_b32 {T3}, {T3}, {OOB - 0x100}")
        a(f"v_cmp_gt_u32 vcc, 4, {vL}"); a(f"v_add_u32 {V5}, {T3}, {V1}"); a(f"v_cndmask_b32 {V5}, {V6}, {V5}, vcc")
        self.red1_loads(True)
    def red1_loads(self, track):
        a = self.a; Bq = FR + 8
        a(f"s_mov_b32 {T5}, 0x10000")
        for s in (f"buffer_load_dwordx4 {vr(Bq,4)}, {V2}, {SWS}, 0 offen sc1", f"buffer_load_dwordx4 {vr(Bq+4,4)}, {V2}, {SWS}, {T5} offen sc1",
                  f"buffer_load_dwordx4 {vr(Bq+8,4)}, {V3}, {SWS}, 0 offen sc1"):
            a.vmem(s, "h1") if track else a(s)
    def red1_finish(self):
        a = self.a; Bq = FR + 8; Z = Bq + 8; Tm = ACC0
        L = a.label("h1"); Ld = a.label("h1d")
        a.wait(vm="h1")
        a(f"s_mov_b32 {sSPIN}, {SPIN}")
        a(f"{L}:")
        a(f"v_cmp_ne_u32 vcc, {sTAG}, v{Bq+3}")
        for i in range(1, 3):
            a(f"v_cmp_ne_u32 {sM}, {sTAG}, v{Bq+4*i+3}"); a("s_nop 1"); a(f"s_or_b64 vcc, vcc, {sM}")
        a(f"s_cbranch_vccz {Ld}")
        a(f"s_sub_u32 {sSPIN}, {sSPIN}, 1"); a(f"s_cbranch_scc1 {Ld}")
        self.red1_loads(False); a("s_waitcnt vmcnt(0)"); a(f"s_branch {L}")
        a(f"{Ld}:")
        self.stamp("h1")
        a(f"s_mov_b32 {T1}, 0x04000c0c"); a(f"s_mov_b32 {T2}, 0x0706000c")
        for i in range(3):
            b = Bq + 4*i
            a(f"v_perm_b32 v{b+3}, v{b+2}, v{b+1}, {T1}"); a(f"v_perm_b32 v{b+3}, v{b+3}, v{b}, {T2}")
        for i in range(4): a(f"v_add_f32 v{Bq+i}, v{Bq+i}, v{Bq+4+i}")
        for i in range(4): a(f"v_add_f32_dpp v{Z+i}, v{Z+i}, v{Z+i} row_ror:4 row_mask:0xf bank_mask:0xf")
        vals = list(range(Bq, Bq+4)) + list(range(Z, Z+4))
        for v in vals: a(f"v_add_f32_dpp v{v}, v{v}, v{v} row_ror:8 row_mask:0xf bank_mask:0xf")
        for op in ("v_permlane16_swap_b32", "v_permlane32_swap_b32"):
            for k, v in enumerate(vals): a(f"v_mov_b32 v{Tm+k}, v{v}")
            for k, v in enumerate(vals): a(f"{op} v{v}, v{Tm+k}")
            for k, v in enumerate(vals): a(f"v_add_f32 v{v}, v{v}, v{Tm+k}")
        for k, b in enumerate((Bq, Z)):
            d = Tm + 4*k
            a(f"v_cvt_pk_bf16_f32 v{d}, v{b}, v{b+1}"); a(f"v_cvt_pk_bf16_f32 v{d+1}, v{b+2}, v{b+3}")
            a(f"v_mov_b32 v{d+2}, {sTAG}"); a(f"v_mov_b32 v{d+3}, {sTAG}")
        return lambda: (a.vmem(f"buffer_store_dwordx4 {vr(Tm,4)}, {V4}, {SWS}, 0 offen sc1", "fin"),
                        a.vmem(f"buffer_store_dwordx4 {vr(Tm+4,4)}, {V5}, {SWS}, 0 offen sc1", "fin"))
    def f_issue(self):
        a = self.a
        a(f"s_lshl_b32 {T0}, {sHP}, 3"); a(f"s_add_u32 {T0}, {T0}, {sW}")
        a(f"s_lshl_b32 {sR1}, {T0}, 10"); a(f"s_add_u32 {sR1}, {sR1}, {F_OFF}"); a(f"s_lshl_b32 {sH1}, {T0}, 6"); a(f"s_add_u32 {sH1}, {sH1}, {FZ_OFF}")
        self.f_loads(True)
    def f_loads(self, track):
        a = self.a
        a(f"v_and_b32 v28, 0x30, {vL16}")
        for s in (f"buffer_load_dwordx4 v[8:11], {vL16}, {SWS}, {sR1} offen sc1", f"buffer_load_dwordx4 v[28:31], v28, {SWS}, {sH1} offen sc1"):
            a.vmem(s, "h2") if track else a(s)
    def f_check(self):
        a = self.a
        L = a.label("h2"); Ld = a.label("h2d")
        a.wait(vm="h2")
        a(f"s_mov_b32 {sSPIN}, {SPIN}")
        a(f"{L}:")
        a(f"v_cmp_ne_u32 vcc, {sTAG}, v10"); a(f"v_cmp_ne_u32 {sM}, {sTAG}, v30"); a("s_nop 1"); a(f"s_or_b64 vcc, vcc, {sM}")
        a(f"s_cbranch_vccz {Ld}")
        a(f"s_sub_u32 {sSPIN}, {sSPIN}, 1"); a(f"s_cbranch_scc1 {Ld}")
        self.f_loads(False); a("s_waitcnt vmcnt(0)"); a(f"s_branch {L}")
        a(f"{Ld}:")
        self.stamp(9)
        a(f"s_add_u32 {T0}, {sW1k}, {KVT}")
        a(f"v_and_b32 {V2}, 15, {vL}"); a(f"v_lshrrev_b32 {V3}, 4, {vL}"); a(f"v_lshlrev_b32 {V3}, 3, {V3}"); a(f"v_lshl_add_u32 {V2}, {V2}, 5, {V3}"); a(f"v_add_u32 {V2}, {T0}, {V2}")
        a(f"v_lshlrev_b32 {V3}, 3, {vL}"); a(f"v_add_u32 {V3}, {T0}, {V3}")
        a.ds(f"ds_write_b64 {V2}, v[8:9]", "kt")
        a(f"v_cmp_gt_u32 vcc, 4, {vL}"); a(f"v_mov_b32 {V1}, 0x3f803f80"); a(f"v_cndmask_b32 v28, {V1}, v28, vcc"); a(f"v_cndmask_b32 v29, {V1}, v29, vcc")
        a("s_mov_b64 exec, 0xff")
        a.ds(f"ds_write_b64 {V3}, v[28:29] offset:512", "kt")
        a("s_mov_b64 exec, -1")
        self.o_addr()
        a.wait(lg="kt")
        a("s_barrier")
    def o_addr(self):
        a = self.a
        a(f"v_and_b32 {V3}, 3, {vL}"); a(f"v_bfe_u32 {V1}, {vL}, 2, 1"); a(f"v_bfe_u32 {V2}, {vL}, 3, 1")
        a(f"v_lshl_add_u32 {V3}, {V1}, 3, {V3}"); a(f"v_lshl_add_u32 {V3}, {V2}, 2, {V3}"); a(f"v_add_u32 {V2}, 16, {V2}")
        a(f"v_and_b32 {V1}, 16, {vL}"); a(f"v_cmp_eq_u32 vcc, 0, {V1}"); a(f"v_lshrrev_b32 {V1}, 5, {vL}"); a(f"v_lshlrev_b32 {V1}, 4, {V1}")
        a(f"v_cndmask_b32 {V3}, {V2}, {V3}, vcc"); a(f"v_lshl_add_u32 {V3}, {V3}, 5, {V1}")
        a(f"s_lshl_b32 {T0}, {sBB}, 12"); a(f"s_add_u32 {T0}, {T0}, {KVT}"); a(f"v_add_u32 {WP0V}, {T0}, {V3}")
    def o_compute(self):
        a = self.a
        DP, DM = ACCA, ACCA + 16
        def rd(hd):
            a.ds(f"ds_read_b128 v[8:11], {WP0V} offset:{(2*hd)*1024}", f"o{hd}"); a.ds(f"ds_read_b128 v[28:31], {WP0V} offset:{(2*hd+1)*1024}", f"o{hd}")
        rd(0)
        a(f"s_lshl_b32 {T0}, {sHP}, 13"); a(f"s_add_u32 {T0}, {T0}, {O_OFF}"); a(f"s_add_u32 {T1}, {T0}, {STEP}"); a(f"s_mov_b32 {T2}, 0x358637bd")
        for hd in range(2):
            a.wait(lg=f"o{hd}")
            a(f"v_mfma_f32_32x32x16_bf16 {vr(DM,16)}, v[28:31], {vr(PHI+8*hd+4,4)}, 0")
            a(f"v_mfma_f32_32x32x16_bf16 {vr(DP,16)}, v[8:11], {vr(PHI+8*hd,4)}, 0")
            if hd == 0: rd(1)
            a(f"v_rcp_f32 {V1}, v{DM+12}")
            a(f"v_fma_f32 {V2}, v{DP+12}, {T2}, v{DP+8}"); a(f"v_mul_f32 {V1}, v{DP+12}, {V1}")
            a(f"v_fmac_f32 {V2}, {V1}, v{DM+8}"); a(f"v_rcp_f32 {V2}, {V2}")
            for i in range(8): a(f"v_fmac_f32 v{DP+i}, {V1}, v{DM+i}")
            for i in range(8): a(f"v_mul_f32 v{DP+i}, {V2}, v{DP+i}")
            for i in range(4): a(f"v_cvt_pk_bf16_f32 v{PHI+8*hd+i}, v{DP+2*i}, v{DP+2*i+1}")
        ofl = self.o.get('osfl', '')
        self.store_mode(lambda f: (a(f"buffer_store_dwordx4 {vr(PHI,4)}, {vHS}, {SWS}, {T0} offen{f or ' ' + ofl}"),
                                   a(f"buffer_store_dwordx4 {vr(PHI+8,4)}, {vHS}, {SWS}, {T1} offen{f or ' ' + ofl}")), "ost", 2)
    def red_addr(self, base):
        a = self.a; R = base
        W0, W1, W2_, W3, R0, R1, OA = vX0, vX1, vWA, vWB, vXR0, vXR1, vXR2
        a(f"v_and_b32 {W0}, 31, {vL}"); a(f"v_lshrrev_b32 {V1}, 5, {vL}"); a(f"v_lshlrev_b32 {V1}, 1, {V1}"); a(f"v_and_b32 {V2}, 7, {vL}")
        a(f"v_xor_b32 {V1}, {V1}, {V2}"); a(f"v_lshlrev_b32 {V1}, 4, {V1}"); a(f"v_lshl_add_u32 {W0}, {W0}, 8, {V1}")
        a(f"s_and_b32 {T4}, {sW}, 1"); a(f"s_lshl_b32 {T4}, {T4}, 15"); a(f"s_lshr_b32 {T1}, {sW}, 1"); a(f"s_lshl_b32 {T2}, {T1}, 13"); a(f"s_add_u32 {T2}, {T2}, {T4}")
        a(f"s_add_u32 {T2}, {T2}, {R}")
        a(f"v_add_u32 {W0}, {T2}, {W0}"); a(f"v_xor_b32 {W1}, 16, {W0}"); a(f"v_xor_b32 {W2_}, 64, {W0}"); a(f"v_xor_b32 {W3}, 0x50, {W0}")
        a(f"v_lshrrev_b32 {V3}, 3, {vL}"); a(f"v_lshlrev_b32 {R0}, 1, {V2}"); a(f"v_xor_b32 {R0}, {R0}, {V3}"); a(f"v_lshlrev_b32 {R0}, 4, {R0}")
        a(f"v_lshl_add_u32 {R0}, {V3}, 8, {R0}"); a(f"s_lshl_b32 {T2}, {T1}, 11"); a(f"s_add_u32 {T2}, {T2}, {T4}"); a(f"s_add_u32 {T2}, {T2}, {R}")
        a(f"v_add_u32 {R0}, {T2}, {R0}"); a(f"v_xor_b32 {R1}, 16, {R0}")
        a(f"s_lshl_b32 {T2}, {sC}, 8"); a(f"s_lshl_b32 {T3}, {sMM}, 6"); a(f"s_add_u32 {T2}, {T2}, {T3}"); a(f"s_lshr_b32 {T3}, {T4}, 10"); a(f"s_add_u32 {T2}, {T2}, {T3}")
        a(f"s_lshl_b32 {sUA}, {T2}, 3"); a(f"s_add_u32 {sUA}, {sUA}, {G_OFF}")
        a(f"s_lshl_b32 {T3}, {T1}, 3"); a(f"s_add_u32 {T2}, {T2}, {T3}"); a(f"s_lshl_b32 {T2}, {T2}, 10"); a(f"s_lshl_b32 {T3}, {sN}, 7"); a(f"s_add_u32 {T2}, {T2}, {T3}")
        a(f"v_lshlrev_b32 {V2}, 4, {V2}"); a(f"v_lshl_add_u32 {OA}, {V3}, 10, {V2}"); a(f"v_add_u32 {OA}, {T2}, {OA}")
        a(f"s_lshl_b32 {T2}, {sC}, 2"); a(f"s_add_u32 {T2}, {T2}, {sMM}"); a(f"s_lshl_b32 {T2}, {T2}, 3"); a(f"s_add_u32 {T2}, {T2}, {sN}")
        a(f"s_lshl_b32 {T2}, {T2}, 14"); a(f"s_lshr_b32 {T3}, {T4}, 2"); a(f"s_add_u32 {T2}, {T2}, {T3}"); a(f"s_add_u32 {sUB}, {T2}, {X_OFF}")
    def red_write(self, src, pre=None, rf=vr):
        a = self.a
        wa = {(0, 0): vX0, (0, 1): vX1, (1, 0): vWA, (1, 1): vWB}
        for cb in range(2):
            for gp in range(2):
                for e in range(2):
                    b = 16*cb + 8*gp + 4*e
                    if pre: pre(b)
                    a.ds(f"ds_write_b128 {wa[(gp,e)]}, {rf(src+b,4)} offset:{cb*128}", "rw")
        a.wait(lg="rw")
        a("s_barrier")
    def red_read(self, Bq):
        a = self.a
        for k in range(4):
            a.ds(f"ds_read_b128 {vr(Bq+8*k,4)}, {vXR0} offset:{k*8192}", f"s{k}"); a.ds(f"ds_read_b128 {vr(Bq+8*k+4,4)}, {vXR1} offset:{k*8192}", f"s{k}")
        a.wait(lg="s1")
        for i in range(0, 8, 2): a(f"v_pk_add_f32 {vr(Bq+i,2)}, {vr(Bq+i,2)}, {vr(Bq+8+i,2)}")
        a.wait(lg="s3")
        for i in range(0, 8, 2): a(f"v_pk_add_f32 {vr(Bq+16+i,2)}, {vr(Bq+16+i,2)}, {vr(Bq+24+i,2)}")
        for i in range(0, 8, 2): a(f"v_pk_add_f32 {vr(Bq+i,2)}, {vr(Bq+i,2)}, {vr(Bq+16+i,2)}")
    def g_loads(self, track):
        a = self.a
        a(f"v_and_b32 {V2}, 31, {vL}"); a(f"v_lshlrev_b32 {V2}, 3, {V2}")
        a(f"v_and_b32 {V4}, 0x38, {vL}"); a(f"s_lshr_b32 {T1}, {sW}, 1"); a(f"s_lshl_b32 {T1}, {T1}, 6"); a(f"s_add_u32 {T1}, {T1}, {sUA}")
        for s in (f"buffer_load_dwordx2 v[26:27], {V2}, {SWS}, {sUA} offen sc1", f"buffer_load_dwordx2 v[28:29], {V4}, {SWS}, {T1} offen sc1"):
            a.vmem(s, "g") if track else a(s)
    def x_loads(self, track):
        a = self.a
        a(f"s_xor_b32 {T2}, {sUB}, {32*8*2048}"); a(f"s_lshr_b32 {T3}, {sW}, 1"); a(f"s_lshl_b32 {T3}, {T3}, 7"); a(f"s_add_u32 {T2}, {T2}, {T3}")
        a(f"v_bfe_u32 v8, {vL}, 1, 2"); a(f"v_and_b32 v9, 1, {vL}"); a(f"v_lshlrev_b32 v8, 11, v8"); a(f"v_lshl_add_u32 v8, v9, 9, v8")
        a(f"v_lshrrev_b32 v9, 3, {vL}"); a(f"v_lshl_add_u32 v8, v9, 4, v8")
        for s in (f"buffer_load_dwordx4 {vr(PHI,4)}, v8, {SWS}, {T2} offen sc1", f"buffer_load_dwordx4 {vr(PHI+4,4)}, v8, {SWS}, {T2} offen offset:1024 sc1"):
            a.vmem(s, "x") if track else a(s)
    def spin(self, regs, tag, reload):
        a = self.a; L = a.label("sp"); Ld = a.label("spd")
        a.wait(vm=tag)
        a(f"s_mov_b32 {sSPIN}, {SPIN}")
        a(f"{L}:")
        a(f"v_cmp_ne_u32 vcc, {sTAG}, {regs[0]}"); a(f"v_cmp_ne_u32 {sM}, {sTAG}, {regs[1]}"); a("s_nop 1"); a(f"s_or_b64 vcc, vcc, {sM}")
        a(f"s_cbranch_vccz {Ld}")
        a(f"s_sub_u32 {sSPIN}, {sSPIN}, 1"); a(f"s_cbranch_scc1 {Ld}")
        reload(False); a("s_waitcnt vmcnt(0)"); a(f"s_branch {L}")
        a(f"{Ld}:")
    def tail2(self):
        a = self.a
        self.g_loads(True)
        self.pf_issue()
        a.wait(vm="wo"); a("s_barrier")
        self.stamp(10)
        def rd(i):
            b = FR2 + 8*(i % 2)
            for cb, v in ((0, vPO0), (1, vPO1)):
                for e in range(2): a.ds(f"ds_read_b64_tr_b16 {vr(b+4*cb+2*e,2)}, {v} offset:{i*8192 + e*512}", f"a{i}")
        rd(0)
        self.spin(("v27", "v29"), "g", self.g_loads)
        a(f"v_sub_f32 {V3}, 1.0, {V2}"); a(f"v_sub_f32 {V4}, 1.0, {V4}")
        for i in range(0, 32, 2): a(f"v_pk_mul_f32 {vr(ACCF+i,2)}, {vr(ACCF+i,2)}, v[26:27] op_sel:[0,1] op_sel_hi:[1,1]")
        self.poll_flags(0xff << 32, "pf")
        self.stamp(11)
        def ld(i):
            a(f"s_add_u32 {T0}, {T5}, {O_OFF + i*UNIT}")
            a.vmem(f"buffer_load_dwordx4 {ar(4*i,4)}, {vHL}, {SWS}, {T0} offen sc1", f"o{i}")
        a(f"s_lshl_b32 {T5}, {sSIDE}, 21")
        LA = self.o.get('ola', 4)
        for i in range(LA): ld(i)
        for i in range(8):
            if i + 1 < 8: rd(i + 1)
            if i + LA < 8: ld(i + LA)
            if i == self.o.get('xi', 4): self.x_loads(True)
            a.wait(vm=f"o{i}", lg=f"a{i}")
            for cb in range(2):
                acc = ACCA + 16*cb
                a(f"v_mfma_f32_32x32x16_bf16 {vr(acc,16)}, {vr(FR2+8*(i%2)+4*cb,4)}, {ar(4*i,4)}, {'0' if i == 0 else vr(acc,16)}")
        self.stamp(12)
        def pre(b):
            for i in range(0, 4, 2): a(f"v_pk_fma_f32 {vr(ACCF+b+i,2)}, {vr(ACCA+b+i,2)}, v[26:27], {vr(ACCF+b+i,2)} op_sel_hi:[1,0,1]")
        self.red_write(ACCF, pre)
        self.stamp("rw")
        Bq = ACCA
        self.red_read(Bq)
        self.spin((f"v{PHI+3}", f"v{PHI+7}"), "x", self.x_loads)
        a(f"s_mov_b32 {T1}, 0x04000c0c"); a(f"s_mov_b32 {T2}, 0x0706000c")
        for b in (PHI, PHI + 4):
            a(f"v_perm_b32 v{b+3}, v{b+2}, v{b+1}, {T1}"); a(f"v_perm_b32 v{b+3}, v{b+3}, v{b}, {T2}")
        for i in range(0, 8, 2): a(f"v_pk_fma_f32 {vr(Bq+i,2)}, {vr(PHI+i,2)}, v[28:29], {vr(Bq+i,2)} op_sel_hi:[1,0,1]")
        for i in range(4): a(f"v_cvt_pk_bf16_f32 v{Bq+8+i}, v{Bq+2*i}, v{Bq+2*i+1}")
        a.vmem(f"buffer_store_dwordx4 {vr(Bq+8,4)}, {vXR2}, {SOUT}, 0 offen {self.o.get('ofl', '')}", "out")
        if self.o.get('probe'): self.probe()
        if self.o.get('span'):
            a("s_waitcnt vmcnt(0)"); a("v_mov_b32 v24, s26"); a("s_memrealtime s[26:27]"); a("s_waitcnt lgkmcnt(0)"); a("v_mov_b32 v25, s26")
            a(f"s_lshl_b32 {T0}, s2, 3"); a(f"s_add_u32 {T0}, {T0}, {sW}"); a(f"s_lshl_b32 {T0}, {T0}, 8"); a(f"s_add_u32 {T0}, {T0}, {ST_OFF + 248}")
            a("s_mov_b64 exec, 1"); a(f"buffer_store_dwordx2 v[24:25], off, {SWS}, {T0}")
        if self.o.get('stamps'):
            self.stamp(13)
            a("s_waitcnt vmcnt(0)"); self.stamp(14); a("s_waitcnt lgkmcnt(0)"); self.stamp(15)
            a("s_waitcnt lgkmcnt(0)"); a("s_memrealtime s[26:27]"); a("s_waitcnt lgkmcnt(0)"); a("v_writelane_b32 v23, s26, 63")
            a(f"s_lshl_b32 {T0}, s2, 3"); a(f"s_add_u32 {T0}, {T0}, {sW}"); a(f"s_lshl_b32 {T0}, {T0}, 8"); a(f"s_add_u32 {T0}, {T0}, {ST_OFF}")
            a(f"v_lshlrev_b32 {V0}, 2, {vL}")
            a(f"buffer_store_dword v23, {V0}, {SWS}, {T0} offen")
        a("s_endpgm")
    def bump(self):
        a = self.a
        Lx = a.label("nb"); L = a.label("bp"); Ld = a.label("bpd")
        a("s_cmp_eq_u32 s2, 192"); a(f"s_cbranch_scc0 {Lx}"); a(f"s_cmp_eq_u32 {sW}, 0"); a(f"s_cbranch_scc0 {Lx}")
        a(f"s_mov_b32 {T0}, {ACK_OFF}"); a(f"s_mov_b32 {sSPIN}, {SPIN}")
        a(f"{L}:")
        a(f"buffer_load_dwordx4 v[8:11], {vL16}, {SWS}, {T0} offen sc1"); a("s_waitcnt vmcnt(0)")
        a(f"v_cmp_ne_u32 vcc, {sTAG}, v8")
        for i in range(1, 4):
            a(f"v_cmp_ne_u32 {sM}, {sTAG}, v{8+i}"); a("s_nop 1"); a(f"s_or_b64 vcc, vcc, {sM}")
        a(f"s_cbranch_vccz {Ld}")
        a(f"s_sub_u32 {sSPIN}, {sSPIN}, 1"); a(f"s_cbranch_scc0 {L}")
        a(f"{Ld}:")
        a(f"v_mov_b32 {V1}, {sE}"); a(f"s_mov_b32 {T0}, {E_OFF}"); a("s_mov_b64 exec, 1")
        a(f"buffer_store_dword {V1}, off, {SWS}, {T0}"); a("s_mov_b64 exec, -1"); a("s_waitcnt vmcnt(0)")
        a(f"{Lx}:")
    def save(self): return (self.a.vm.copy(), self.a.lg.copy(), list(self.pend), list(self.wx))
    def restore(self, s): self.a.vm, self.a.lg, self.pend, self.wx = s[0].copy(), s[1].copy(), list(s[2]), list(s[3])
    def body(self):
        a = self.a
        self.prologue(); self.passA()
        s0 = self.save()
        a("s_cmp_eq_u32 s9, 0"); a("s_cbranch_scc1 L_kv")
        self.first_hh(); s1 = self.save()
        a(f"s_cmp_eq_u32 {sTB}, 1"); a("s_cbranch_scc1 L_hq")
        self.second('h', 'h')
        a("L_hq:"); self.restore(s1); self.second('h', 'q')
        a("L_kv:"); self.restore(s0)
        self.first_kv(); s1 = self.save()
        a(f"s_cmp_eq_u32 {sTB}, 1"); a("s_cbranch_scc1 L_kq")
        a(f"s_cmp_eq_u32 {sTB}, 2"); a("s_cbranch_scc1 L_r")
        self.second('k', 'h')
        a("L_kq:"); self.restore(s1); self.second('k', 'q')
        a("L_r:"); self.restore(s1); self.path_r()

class Phase2:
    NS = 30
    def __init__(self, g, P):
        self.g = g; self.P = P; o = g.o
        self.hasq = P[-1] == 'q'; self.r1 = not self.hasq; self.late = P in ('hh', 'kh')
        self.opt = lambda k, d: o.get(k + P, o.get(k, d))
        k1 = self.opt('k1', 2)
        E1 = [(1, 'r', k, s) for k in range(6) for s in range(2)]; E2 = [(2, 'r', k, 0) for k in range(10)]
        if self.r1: self.seq = E1 + E2[:k1] + [(1, 's', u, s) for u in range(6, 11) for s in range(2)] + E2[k1:] + [(2, 's', 10, 0)]; self.i_send = 22 + k1
        else: self.seq = E2 + [(2, 's', 10, 0)]; self.i_send = None
        m = lambda x: x if self.r1 else x & 0xffff
        self.masks = (m(M_EARLY), m(M_MID), m(M_LATE))
        self.issued = {}; self.done = -1; self.nslot = 0; self.owner = {}
        self.ok = {'mid': False, 'late': False}
        self.bufs = [vr(FR2, 8), vr(FR2 + 8, 8), ar(120, 8)]
    def sub(self, b, lo, n):
        kind = b[0]; base = int(b[2:b.index(':')]); return f"{kind}[{base+lo}:{base+lo+n-1}]"
    def idx(self, e, dst):
        a = self.g.a; rnd, kind, k, s = e
        if kind == 's': a(f"s_mov_b32 {dst}, {k}"); return
        n, r = ((6, sR1), (10, sR2))[rnd - 1]
        a(f"s_add_u32 {dst}, {r}, {k}"); a(f"s_cmp_ge_u32 {dst}, {n}"); a(f"s_cselect_b32 {sA2}, {n}, 0"); a(f"s_sub_u32 {dst}, {dst}, {sA2}")
    def can(self, i):
        e = self.seq[i]
        if self.owner.get(self.nslot % self.NS, -1) > self.done: return False
        if e[1] == 'r': return True
        return self.ok['late'] if (e[0] == 1 and e[2] >= 9) else self.ok['mid']
    def ld(self, i):
        a = self.g.a; e = self.seq[i]
        sl = self.nslot % self.NS; self.nslot += 1; self.owner[sl] = i; self.issued[i] = sl
        def f():
            self.idx(e, sStrB64); a(f"s_lshl_b32 {sStrB64}, {sStrB64}, 13"); a(f"s_add_u32 {sStrB64}, {sStrB64}, {sH1 if e[0] == 1 else sH2}")
            if e[1] == 's' and e[2] == 10:
                if e[0] == 1: a(f"s_lshr_b32 {sA2}, {sW}, 1"); a(f"s_and_b32 {sA2}, {sA2}, {sSIDE}")
                else: a(f"s_and_b32 {sA2}, {sSIDE}, {sBB}")
                a(f"s_cselect_b32 {sStrB64}, 0x40000000, {sStrB64}")
            a.vmem(f"buffer_load_dwordx4 {ar(4*sl,4)}, {'v9' if e[0] == 1 else vHL}, {SWS}, {sStrB64} offen offset:{e[3]*2048} sc1", f"h{i}")
        return f
    def issue(self, upto, n, defer=False):
        for i in range(len(self.seq)):
            if n <= 0: break
            if i not in self.issued and i <= upto and self.can(i):
                f = self.ld(i); n -= 1
                self.g.push(f) if defer else f()
    def rd(self, i):
        a = self.g.a; b = self.bufs[i % 3]; e = self.seq[i]
        if e[3] == 0:
            self.idx(e, sA0); a(f"s_lshl_b32 {sA0}, {sA0}, 13")
            a(f"v_add_u32 {vPM0}, {sA0}, {'v10' if e[0] == 1 else vPR0}"); a(f"v_add_u32 {vPM1}, {sA0}, {'v11' if e[0] == 1 else vPR1}")
        for cb, v in ((0, vPM0), (1, vPM1)):
            for k in range(2): a.ds(f"ds_read_b64_tr_b16 {self.sub(b, 4*cb+2*k, 2)}, {v} offset:{W2B + e[3]*2048 + k*512}", f"u{i}")
    def begin(self, pre, defer, fin=None):
        g = self.g; a = g.a
        if self.r1:
            a(f"s_bfe_u32 {T1}, {sW}, 0x10001"); a(f"s_lshl_b32 {T2}, {sBB}, 1"); a(f"s_sub_u32 {T2}, {T1}, {T2}"); a(f"s_lshl_b32 {T2}, {T2}, 11")
            a(f"s_lshl_b32 {T1}, {T1}, 6"); a(f"v_add_u32 v10, {T2}, {vPR0}"); a(f"v_xor_b32 v10, {T1}, v10"); a("v_xor_b32 v11, 64, v10")
            a(f"s_xor_b32 {T1}, {sMM}, {sBB}"); a(f"s_and_b32 {T1}, {T1}, 1"); a(f"s_lshl_b32 {T3}, {T1}, 19"); a(f"s_lshl_b32 {T1}, {T1}, 8")
            a(f"v_add_u32 v9, {T2}, {vHL}"); a(f"v_xor_b32 v9, {T3}, v9")
            a(f"v_lshrrev_b32 {V1}, 3, {vL}"); a(f"v_cmp_eq_u32 vcc, 3, {V1}"); a(f"v_xor_b32 {V1}, {T1}, v9"); a(f"v_cndmask_b32 v9, v9, {V1}, vcc")
        nb = self.opt('rfin', 0)
        if fin and nb == 0: fin()
        g.poll_flags(self.masks[0], pre)
        g.stamp(8)
        if fin and nb: self.issue(99, nb); fin()
        self.issue(99, self.opt('la0', 12 if defer else 6), defer)
        if self.hasq and self.opt('wo_at', 0) < 0:
            g.push(*(g.dmaWO(1) + g.dmaWO(0)))
            if not defer: g.flush()
    def send(self):
        g = self.g; a = g.a
        a(f"s_lshl_b32 {T0}, {sW}, 12"); a(f"s_and_b32 {T1}, {sMM}, 2"); a(f"s_lshl_b32 {T1}, {T1}, 14"); a(f"s_add_u32 {T0}, {T0}, {T1}")
        a(f"s_add_u32 {T1}, {T0}, {R}"); a(f"s_xor_b32 {T0}, {T0}, 0x2000"); a(f"s_add_u32 {T0}, {T0}, {R}")
        a(f"v_add_u32 {V1}, {T1}, {vL16}"); a(f"v_add_u32 {V2}, {T0}, {vL16}")
        for k in range(4): a.ds(f"ds_write_b128 {V1}, {vr(ACCP+16+4*k,4)} offset:{k*1024}", "rw")
        a(f"s_xor_b32 {T1}, {sMM}, {sBB}"); a(f"s_and_b32 {T1}, {T1}, 1"); a(f"s_lshl_b32 {T1}, {T1}, 17"); a(f"s_xor_b32 {T2}, {sUB}, {T1}")
        a(f"s_bfe_u32 {T1}, {sW}, 0x10001"); a(f"s_lshl_b32 {T1}, {T1}, 12"); a(f"s_add_u32 {T2}, {T2}, {T1}")
        a(f"s_mov_b32 {T3}, 0x07060501"); a(f"s_mov_b32 {T4}, 0x07060502"); a(f"s_mov_b32 {T5}, 0x07060503")
        a.wait(lg="rw"); a("s_barrier")
        for k in range(4): a.ds(f"ds_read_b128 {vr(ACCP+16+4*k,4)}, {V2} offset:{k*1024}", f"x{k}")
        for k in range(4):
            D = ACCP + 4*k
            a.wait(lg=f"x{k}")
            for i in range(4): a(f"v_add_f32 v{D+i}, v{D+i}, v{D+16+i}")
            a(f"v_perm_b32 v{D}, v{D}, v{D+3}, {T3}"); a(f"v_perm_b32 v{D+1}, v{D+1}, v{D+3}, {T4}"); a(f"v_perm_b32 v{D+2}, v{D+2}, v{D+3}, {T5}")
            a(f"v_mov_b32 v{D+3}, {sTAG}")
            a.vmem(f"buffer_store_dwordx4 {vr(D,4)}, {vL16}, {SWS}, {T2} offen offset:{k*1024} sc1", "xst")
        a("s_barrier")
    def main(self):
        g = self.g; a = g.a; seq = self.seq; N = len(seq); i_send = self.i_send
        g.red_addr(W2B)
        a.wait(vm="w2"); a("s_barrier")
        g.stamp("f0")
        LA = self.opt('la', 6)
        if self.r1:
            i_mid = i_send - 10
            cm = i_mid - self.opt('cmb', 4); pm = cm - self.opt('pmb', 3); cl = i_mid + 6 - self.opt('clb', 4); pl = max(cm, cl - self.opt('plb', 3))
        else:
            pm, cm = self.opt('pm0', 3), self.opt('cm0', 6); pl = cl = -1
        wo_at = self.opt('wo_at', 0); fi = self.opt('fi', 4)
        i_o = min(N - 1, self.opt('so', 99)); i_f = min(N - 1, i_o + self.opt('sf', 2))
        first = {1: True, 2: True}
        self.rd(0); self.rd(1)
        for i in range(N):
            if i == cm: g.poll_flags(self.masks[1], "pf"); self.ok['mid'] = True
            if i == cl: g.poll_flags(self.masks[2], "pf"); self.ok['late'] = True
            if i == pm or i == pl: g.pf_issue()
            if self.hasq and i == wo_at: g.push(*(g.dmaWO(1) + g.dmaWO(0)))
            if self.r1 and i == self.opt('wo1_at', 12): g.push(*g.dmaWO(1))
            self.issue(i + LA, 2)
            assert i in self.issued, (self.P, i, self.issued)
            if i + 2 < N: self.rd(i + 2)
            rnd = seq[i][0]
            a.wait(vm=f"h{i}", lg=f"u{i}")
            for cb in range(2):
                acc = vr((ACCP if rnd == 1 else ACCF) + 16*cb, 16)
                a(f"v_mfma_f32_32x32x16_bf16 {acc}, {self.sub(self.bufs[i % 3], 4*cb, 4)}, {ar(4*self.issued[i],4)}, {'0' if first[rnd] else acc}")
            first[rnd] = False; self.done = i
            g.slot(self.opt('wo_per', 1))
            if self.late and i == self.opt('hf', 3): a.wait(vm="hst"); g.flag_h(True)
            if g.o.get('stamps', 0) >= 3 and i % 2 == 0 or i in (0, N - 1) or i + 1 == i_send: g.stamp(f"u{i}")
            if i + 1 == i_send:
                self.issue(99, 99)
                assert len(self.issued) == N
                a.wait(lg=f"u{i+2}")
                self.send()
                g.stamp("xs")
                g.push(*g.dmaWO(0))
            if self.hasq and i == fi: g.f_issue()
            if self.hasq and i == i_o: a.wait(lg=f"u{min(N-1, i+2)}"); g.f_check(); g.o_compute()
            if self.hasq and i == i_f: a.wait(vm="ost"); g.flag_o()
            if self.P == 'r' and i == i_send + 1: g.bump()
        g.flush()
        g.tail2()
    def hop1(self, i):
        g = self.g
        assert all(e[0] == 1 for e in self.seq[:i+1])
        fin = g.reducer(lambda: None, PHI)
        self.issue(99, self.opt('rla', 99))
        fin()

if __name__ == '__main__':
    out = sys.argv[1]
    opt = json.loads(sys.argv[2]) if len(sys.argv) > 2 else {}
    open(out, 'w').write(Gen2(opt).build())
```

```python
import sys, json
from asmlib import *
import gen as B
from gen import *

FH_OFF = 0x1140000
FO_OFF = 0x1144000
STEP = 2048; UNIT = 8192; O_OFF = 88*STEP
X_OFF = 0x1400000
W2B = 8192
KVT = 0
SCR = 49152
sOWN, sUA, sUB, sPI, sMM, sSIDE = sHG, sU0, sU1, "s14", "s15", "s16"
sTB = sType
sR1, sR2, sH1, sH2, sW2O = "s4", "s5", "s6", "s7", "s8"
sFO, sFP = "s10", "s11"
vL16 = vG
ACCP = ACCA
WP0V = V3
def nib(vals):
    v = 0
    for i, x in enumerate(vals): v |= x << (4*i)
    return v
T_A   = nib([0, 0, 0, 0, 1, 1, 1, 1, 1, 0, 0, 0, 0, 1, 1, 1])
T_B   = nib([1, 1, 1, 1, 1, 1, 1, 1, 0, 0, 0, 2, 2, 0, 0, 0])
T_OWN = nib([1, 1, 1, 1, 1, 1, 1, 1, 1, 0, 0, 0, 0, 0, 0, 0])
T_K   = nib([0, 1, 2, 3, 4, 5, 6, 7, 0, 0, 1, 2, 3, 0, 0, 0])
T_UA  = nib([0, 0, 0, 0, 0, 2, 4, 6, 8, 0, 0, 0, 0, 0, 2, 4])
T_UB  = nib([0, 0, 0, 0, 0, 0, 0, 0,10, 9,10, 0, 0, 6, 7, 8])
T_N   = nib([0, 1, 2, 4, 5, 6, 7, 3, 0, 5, 6, 7, 3, 1, 2, 4])
T_C0  = nib([0, 1, 2, 3, 4, 5, 6, 7, 0, 0, 1, 2, 3, 4, 5, 6])
T_COL = nib([8, 9,10,11, 0, 2, 4, 6, 8, 8, 9,10,11, 0, 2, 4])
MASK_A = sum(1 << j for j in range(16) if (T_A >> (4*j)) & 1)
T_PI  = nib([0, 0, 0, 0, 0, 1, 2, 3, 4, 4, 5, 0, 0, 0, 1, 2])
M_EARLY = 0x0007001F; M_MID = 0x07001000; M_LATE = 0x30000000

class Gen2(Gen):
    def table(self, dst, tab):
        a = self.a
        a(f"s_mov_b32 s92, {tab & 0xffffffff:#x}"); a(f"s_mov_b32 s93, {tab >> 32:#x}"); a(f"s_lshr_b64 s[92:93], s[92:93], {T0}"); a(f"s_and_b32 {dst}, s92, 15")
    def dmaW2(self, grp, k):
        a = self.a; n, lo = ((5, 0), (6, 5))[grp]
        def f():
            a(f"s_add_u32 {sA0}, {sMM}, {k}")
            if grp == 1: a(f"s_add_u32 {sA0}, {sA0}, {sMM}")
            for _ in range(2 if grp == 1 else 1):
                a(f"s_cmp_ge_u32 {sA0}, {n}"); a(f"s_cselect_b32 {sA1}, {n}, 0"); a(f"s_sub_u32 {sA0}, {sA0}, {sA1}")
            a(f"s_lshl_b32 {sA1}, {sA0}, 13"); a(f"s_add_u32 {sA1}, {sA1}, {sW1k}")
            a(f"s_lshl_b32 {sA0}, {sA0}, 16"); a(f"s_add_u32 {sA0}, {sA0}, {sW2O}")
            if lo: a(f"s_add_u32 {sA0}, {sA0}, {lo*65536}")
            self.dma(vW2, SW2, sA0, f"s_add_u32 m0, {sA1}, {W2B + lo*8192}", "w2" + "ab"[grp])
        return f
    def nonq(self, f):
        a = self.a
        def g():
            L1 = a.label("nq"); L2 = a.label("nqd")
            a(f"s_cmp_eq_u32 {sTB}, 1"); a(f"s_cbranch_scc1 {L1}")
            f(); a(f"s_branch {L2}"); a(f"{L1}:")
            a(f"buffer_load_dword {V7}, off, {SDBG}, {sC32} sc1"); a(f"{L2}:")
        return g
    def take(self, n):
        fs = self.wx[:n]; self.wx = self.wx[n:]
        if self.o.get('w2nq', 0): self.wq = self.wq + fs; fs = [self.nonq(f) for f in fs]
        return fs
    def w2x(self): return [self.dmaW2(0, k) for k in range(5)]
    def w2y(self): return [self.dmaW2(1, k) for k in range(6)]
    def dmaWO(self, half):
        a = self.a
        def mk(i):
            def f():
                a(f"s_add_u32 {sA0}, {sMM}, {i}"); a(f"s_and_b32 {sA0}, {sA0}, 3")
                a(f"s_lshl_b32 {sA1}, {sMM}, 1"); a(f"s_and_b32 {sA1}, {sA1}, 4"); a(f"s_xor_b32 {sA1}, {sA1}, {4*half}"); a(f"s_add_u32 {sA0}, {sA0}, {sA1}")
                a(f"s_lshl_b32 {sA1}, {sA0}, 13"); a(f"s_add_u32 {sA1}, {sA1}, {sW1k}"); a(f"s_lshl_b32 {sA0}, {sA0}, 16")
                self.dma(vW2, SWO, sA0, f"s_add_u32 m0, {sA1}, {R}", "wo")
            return f
        return [mk(i) for i in range(4)]
    def touch(self):
        a = self.a
        if 't' in self.o.get('skip', ''): return
        a(f"v_bfe_u32 {V6}, {vL}, 2, 1"); a(f"v_lshl_add_u32 {V6}, {V6}, 11, {vHS}")
        a(f"s_lshl_b32 {T2}, {sHP}, 13"); a(f"s_add_u32 {T2}, {T2}, {O_OFF}"); a(f"s_cmp_eq_u32 {sTB}, 1"); a(f"s_cselect_b32 {T2}, {T2}, 0x40000000")
        a.vmem(f"buffer_load_dword {V6}, {V6}, {SWS}, {T2} offen", "touch")
    def mall_touch(self):
        a = self.a
        a(f"s_lshl_b32 {T0}, s2, 3"); a(f"s_add_u32 {T0}, {T0}, {sW}"); a(f"s_sub_u32 {T1}, {T0}, 1376"); a(f"s_cmp_lt_u32 {T0}, 1376")
        a(f"s_cselect_b32 {T0}, {T0}, {T1}"); a("s_cselect_b32 s60, s40, s44"); a("s_cselect_b32 s61, s41, s45"); a("s_cselect_b32 s62, s42, s46"); a(f"s_lshl_b32 {T0}, {T0}, 10")
        a.vmem(f"buffer_load_dword {V6}, {vL16}, {STMP}, {T0} offen", "touch")
    def wo_touch(self, junk):
        a = self.a
        if not self.o.get('wot', 1): return
        a(f"v_lshrrev_b32 {junk}, 1, {vL}"); a(f"v_lshlrev_b32 {junk}, 10, {junk}")
        a(f"s_lshr_b32 {T2}, {sMM}, 1"); a(f"s_lshl_b32 {T2}, {T2}, 3"); a(f"s_add_u32 {T2}, {T2}, {sW}"); a(f"s_lshl_b32 {T2}, {T2}, 15"); a(f"s_lshl_b32 {T3}, {sN}, 7"); a(f"s_add_u32 {T2}, {T2}, {T3}")
        a.vmem(f"buffer_load_dword {junk}, {junk}, {SWO}, {T2} offen", "touch")
    def poll_flags(self, mask, pre_issued=None):
        a = self.a; L = a.label("pf"); Ld = a.label("pfd")
        if pre_issued is None:
            a.vmem(f"buffer_load_dword {V0}, {vFL}, {SWS}, 0 offen sc1", "pf"); pre_issued = "pf"
        a.wait(vm=pre_issued)
        a(f"s_mov_b32 {sSPIN}, {SPIN}")
        a(f"{L}:")
        a(f"v_cmp_ne_u32 vcc, {sTAG}, {V0}"); a("s_nop 1")
        if mask >> 32 and mask & 0xffffffff:
            a(f"s_and_b32 {T0}, vcc_lo, {mask & 0xffffffff:#x}"); a(f"s_and_b32 {T1}, vcc_hi, {mask >> 32:#x}"); a(f"s_or_b32 {T0}, {T0}, {T1}")
        elif mask >> 32: a(f"s_and_b32 {T0}, vcc_hi, {mask >> 32:#x}")
        else: a(f"s_and_b32 {T0}, vcc_lo, {mask:#x}")
        a(f"s_cbranch_scc0 {Ld}")
        a(f"s_sub_u32 {sSPIN}, {sSPIN}, 1"); a(f"s_cbranch_scc1 {Ld}")
        a(f"buffer_load_dword {V0}, {vFL}, {SWS}, 0 offen sc1"); a("s_waitcnt vmcnt(0)")
        a(f"s_branch {L}")
        a(f"{Ld}:")
    def pf_issue(self, kind=None, r1=True):
        if kind is None or not self.o.get('sp', 0):
            self.a.vmem(f"buffer_load_dword {V0}, {vFL}, {SWS}, 0 offen sc1", "pf"); return
        self.sp_loads(kind, r1)
    def sp_loads(self, kind, r1):
        a = self.a
        if kind == 0:
            a(f"s_load_dwordx8 s[52:59], s[24:25], {sFO} glc")
            if r1: a(f"s_load_dwordx4 s[60:63], s[24:25], {sFP} glc")
            return [52, 53, 54, 55, 56] + ([60, 61, 62] if r1 else [])
        if kind == 1:
            a(f"s_add_u32 s53, {sFO}, 48"); a("s_load_dword s52, s[24:25], s53 glc")
            if r1: a(f"s_add_u32 s53, {sFP}, 32"); a("s_load_dwordx4 s[60:63], s[24:25], s53 glc")
            return [52] + ([60, 61, 62] if r1 else [])
        a(f"s_add_u32 s53, {sFP}, 48"); a("s_load_dwordx2 s[60:61], s[24:25], s53 glc")
        return [60, 61]
    def poll_h(self, kind, r1, mask, pre):
        a = self.a
        if not self.o.get('sp', 0): self.poll_flags(mask, pre); return
        L = a.label("sp"); Ld = a.label("spd")
        if pre is None: self.sp_loads(kind, r1)
        regs = {0: [52, 53, 54, 55, 56] + ([60, 61, 62] if r1 else []), 1: [52] + ([60, 61, 62] if r1 else []), 2: [60, 61]}[kind]
        a(f"s_mov_b32 {sSPIN}, {SPIN}")
        a(f"{L}:")
        a("s_waitcnt lgkmcnt(0)"); a.lg.q = []
        a(f"s_xor_b32 {T0}, s{regs[0]}, {sTAG}")
        for r in regs[1:]: a(f"s_xor_b32 {T1}, s{r}, {sTAG}"); a(f"s_or_b32 {T0}, {T0}, {T1}")
        a(f"s_cbranch_scc0 {Ld}")
        a(f"s_sub_u32 {sSPIN}, {sSPIN}, 1"); a(f"s_cbranch_scc1 {Ld}")
        self.sp_loads(kind, r1); a(f"s_branch {L}")
        a(f"{Ld}:")
    def flag_word(self, addr):
        a = self.a
        a(f"v_mov_b32 {V1}, {sTAG}")
        a(f"s_mov_b64 exec, 1")
        self.store_mode(lambda f: a(f"buffer_store_dword {V1}, off, {SWS}, {addr}{f}"), "flag", 1)
        a(f"s_mov_b64 exec, -1")
    def flag_h(self, late):
        a = self.a
        a(f"s_add_u32 {T0}, {sPI}, {32 if late else 0}"); self.flag_word(T0)
        self.stamp("fL" if late else "fE")
    def flag_o(self):
        a = self.a
        a(f"s_and_b32 {T1}, {sRB}, 1"); a(f"s_lshl_b32 {T0}, {sC}, 1"); a(f"s_add_u32 {T0}, {T0}, {T1}"); a(f"s_lshl_b32 {T0}, {T0}, 2"); a(f"s_add_u32 {T0}, {T0}, {sTG}")
        a(f"s_lshl_b32 {T0}, {T0}, 1"); a(f"s_add_u32 {T0}, {T0}, {sBB}"); a(f"s_lshl_b32 {T0}, {T0}, 4"); a(f"s_add_u32 {T0}, {T0}, {sHP}")
        a(f"s_lshl_b32 {T0}, {T0}, 2"); a(f"s_add_u32 {T0}, {T0}, {FO_OFF}")
        self.flag_word(T0)
        self.stamp("fO")
    def prologue(self):
        a = self.a; o = self.o
        a("s_cmp_ge_u32 s2, 256"); a("s_cbranch_scc1 L_end")
        a("s_load_dwordx16 s[4:19], s[0:1], 0")
        if not o.get('ka2', 1): a("s_load_dwordx4 s[20:23], s[0:1], 64"); a("s_load_dwordx2 s[24:25], s[0:1], 80")
        if o.get('stamps'): a("s_memtime s[26:27]"); a("s_memrealtime s[66:67]")
        if o.get('span'): a("s_memrealtime s[26:27]")
        if o.get('probe'): a("s_memrealtime s[26:27]"); a("s_memtime s[52:53]")
        a(f"v_lshrrev_b32 {V7}, 6, v0"); a(f"s_and_b32 {sC}, s2, 7"); a(f"s_lshr_b32 {sJ}, s2, 4"); a(f"v_readfirstlane_b32 {sW}, {V7}")
        a(f"s_bfe_u32 {T1}, s2, 0x10003"); a(f"s_cmp_lt_u32 {sJ}, 9"); a(f"s_cselect_b32 {sOWN}, 1, 0"); a(f"s_cselect_b32 {T2}, 0, 1")
        a(f"v_bfe_u32 {V0}, v0, 3, 3"); a(f"v_bfe_u32 {V1}, v0, 4, 2"); a(f"v_and_b32 {V2}, 7, v0")
        a(f"s_xor_b32 {T2}, {T2}, {sC}"); a(f"s_lshl_b32 {sRB}, {T2}, 1"); a(f"s_or_b32 {sRB}, {sRB}, {T1}")
        a(f"v_lshl_add_u32 {V4}, {V7}, 4, {V0}"); a(f"v_xor_b32 {V3}, {V2}, {V1}"); a(f"v_lshlrev_b32 {V3}, 4, {V3}"); a(f"v_lshl_add_u32 {vX0}, {V4}, 10, {V3}")
        a(f"s_mul_i32 {sC0}, {sC}, {o.get('rotc', 1)}")
        if o.get('rotr', 0): a(f"s_mul_i32 {T2}, {sRB}, {o['rotr']}"); a(f"s_add_u32 {sC0}, {sC0}, {T2}")
        a(f"s_lshl_b32 {T0}, {sJ}, 2")
        if o.get('rotj', 1): self.table(T2, T_C0); a(f"s_mul_i32 {T2}, {T2}, {o.get('rotj', 1)}"); a(f"s_add_u32 {sC0}, {sC0}, {T2}")
        a(f"s_and_b32 {sC0}, {sC0}, 7"); a(f"s_lshl_b32 {sW2k}, {sW}, 11"); a(f"s_lshl_b32 {sA2}, {sRB}, 17")
        a(f"v_xor_b32 {vX1}, 64, {vX0}"); a(f"v_add_u32 {vX1}, 0x2000, {vX1}")
        self.table(T1, T_COL)
        a(f"s_and_b32 {sMODE}, {sC}, 1")
        a(f"s_bitcmp0_b32 {MASK_A:#x}, {sJ}")
        self.csel(T3, 3072, 2752); self.csel(T5, 1024, 128); a(f"s_cselect_b32 {T2}, 4, 11"); self.csel("s34", 512*3072, 512*2752); a(f"s_cselect_b32 {sType}, 0, 1")
        a(f"s_mul_i32 {T2}, {T2}, {sMODE}"); a(f"s_add_u32 {sUA}, {T1}, {T2}"); a(f"s_lshl_b32 {T4}, {sUA}, 7"); a(f"s_sub_u32 s34, s34, {T4}")
        a(f"v_lshl_add_u32 {V3}, {V7}, 3, {V1}"); a(f"v_mul_lo_u32 {vWA}, {V3}, {T3}")
        a(f"v_and_b32 {V3}, 15, v0"); a(f"v_lshlrev_b32 {V4}, 2, {V1}"); a(f"v_xor_b32 {V3}, {V3}, {V4}")
        a(f"v_lshrrev_b32 {V4}, 3, {V3}"); a(f"v_mul_lo_u32 {V4}, {V4}, {T5}"); a(f"v_and_b32 {V3}, 7, {V3}")
        a(f"v_lshl_add_u32 {V4}, {V3}, 4, {V4}"); a(f"v_add_u32 {vWA}, {vWA}, {V4}")
        a(f"s_lshl_b32 {sStrA64}, {T3}, 6"); a(f"s_lshl_b32 {sStrA4}, {T3}, 2")
        a("s_mov_b32 s30, 0x20000"); a("s_mov_b32 s31, 0x20000"); a("s_mov_b32 s35, 0x20000")
        a(f"s_cmp_eq_u32 {sType}, 0")
        a("s_waitcnt lgkmcnt(0)")
        if o.get('stamps'): a("v_mov_b32 v23, 0"); a(f"s_mov_b32 {sST}, 0"); a("v_writelane_b32 v23, s66, 62")
        a("s_cselect_b32 s32, s6, s14"); a("s_cselect_b32 s33, s7, s15")
        a(f"s_add_u32 s28, s4, {sA2}"); a("s_addc_u32 s29, s5, 0"); a(f"s_add_u32 s32, s32, {T4}"); a("s_addc_u32 s33, s33, 0")
        self.stamp("ka")
        if o.get('ka2', 1): a("s_load_dwordx4 s[20:23], s[0:1], 64"); a("s_load_dwordx2 s[24:25], s[0:1], 80")
        for f in self.dmaA(0): f()
        self.stamp("d0")
        a("s_getpc_b64 s[90:91]"); a("L_pc:")
        a(f"s_lshr_b32 {T0}, s2, 3"); a(f"s_lshl_b32 {T0}, {T0}, 3"); a(f"s_add_u32 {T0}, {T0}, {sW}"); a(f"s_mul_i32 {T0}, {T0}, 184"); a(f"s_min_u32 {T0}, {T0}, L_end-L_pc-68")
        a(f"v_and_b32 {V3}, 1, v0"); a(f"v_lshlrev_b32 {V3}, 6, {V3}"); a(f"v_add_u32 {V3}, {T0}, {V3}")
        a.vmem(f"global_load_dword {MJ}, {V3}, s[90:91]", "misc")
        a(f"v_and_b32 {vL}, 63, v0")
        a(f"s_and_b32 {sTG}, {sW}, 3"); a(f"s_lshr_b32 {sBB}, {sW}, 2"); a(f"s_lshl_b32 {sW1k}, {sW}, 10")
        a(f"s_lshl_b32 {T0}, {sJ}, 2"); self.table(T1, T_K); a(f"s_lshl_b32 {T2}, {sMODE}, 2"); a(f"s_xor_b32 {sHP}, {T1}, {T2}")
        c1 = self.dmaA(1)
        a(f"s_lshl_b32 {T0}, {sJ}, 2")
        self.srd(STMP, 8, 16384)
        a("s_waitcnt lgkmcnt(0)")
        if o.get('wsoff'): a(f"s_add_u32 s24, s24, {o['wsoff']:#x}"); a("s_addc_u32 s25, s25, 0")
        a(f"s_mov_b32 s9, {sType}")
        self.table(sTB, T_B); self.table(sUB, T_UB); self.table(T1, T_PI); self.table(sN, T_N)
        a(f"s_mul_i32 {T2}, {sMODE}, 11"); a(f"s_add_u32 {sUB}, {sUB}, {T2}"); a(f"s_lshl_b32 {sW2O}, {T2}, 16")
        a(f"s_cmp_eq_u32 {sTB}, 1")
        a("s_cselect_b32 s36, s6, s14"); a("s_cselect_b32 s37, s7, s15"); self.csel("s38", 512*3072, 512*2752); a("s_mov_b32 s39, 0x20000")
        self.csel(T3, 3072, 2752); a(f"s_cselect_b32 {T4}, {sHP}, {sUB}")
        a(f"s_lshl_b32 {sStrB64}, {T3}, 6"); a(f"s_lshl_b32 {T4}, {T4}, 7")
        a(f"s_cmp_eq_u32 {sTB}, 2"); a(f"s_cselect_b32 {T4}, 0x40000000, {T4}")
        self.srd(SW2, 16, 1376*1024); self.srd(SWO, 10, 512*1024); self.srd(SWS, 24, WS_SIZE);
        self.srd(SDBG, 22, 256)
        a(f"s_mov_b32 {sSIDE}, {sMODE}")
        a(f"s_lshl_b32 {T2}, {sC}, 1"); a(f"s_xor_b32 {T5}, {sOWN}, 1"); a(f"s_add_u32 {T2}, {T2}, {T5}"); a(f"s_lshl_b32 {T2}, {T2}, 1"); a(f"s_and_b32 {T5}, {sRB}, 1")
        a(f"s_add_u32 {T2}, {T2}, {T5}"); a(f"s_lshl_b32 {T2}, {T2}, 2"); a(f"s_add_u32 {T2}, {T2}, {sTG}"); a(f"s_lshl_b32 {T2}, {T2}, 1"); a(f"s_add_u32 {T2}, {T2}, {sBB}")
        a(f"s_lshl_b32 {T2}, {T2}, 4"); a(f"s_add_u32 {T2}, {T2}, {T1}"); a(f"s_lshl_b32 {T2}, {T2}, 2"); a(f"s_add_u32 {sPI}, {T2}, {FH_OFF}")
        a(f"s_lshl_b32 {T5}, {T5}, 1"); a(f"s_add_u32 {sMM}, {T5}, s9")
        a(f"v_and_b32 {V3}, 1, {V1}"); a(f"v_lshlrev_b32 {V3}, 2, {V3}"); a(f"v_xor_b32 {V3}, {V3}, {V2}"); a(f"v_lshlrev_b32 {V3}, 4, {V3}")
        a(f"s_lshl_b32 {T1}, {sW}, 3"); a(f"v_add_u32 {V4}, {T1}, {V0}")
        a(f"v_mul_lo_u32 {vWB}, {V4}, {T3}"); a(f"v_add3_u32 {vWB}, {vWB}, {V3}, {T4}")
        a(f"s_lshl_b32 {T1}, {sN}, 7"); a(f"v_lshl_add_u32 {vW2}, {V4}, 10, {V3}"); a(f"v_add_u32 {vW2}, {T1}, {vW2}")
        a(f"v_lshlrev_b32 {vL16}, 4, {vL}")
        Lg = a.label("gsrd")
        a(f"s_cmp_eq_u32 {sJ}, 11"); a(f"s_cbranch_scc0 {Lg}")
        a("s_mov_b32 s36, s18"); a("s_mov_b32 s37, s19"); a("s_mov_b32 s38, 1024"); a(f"s_mov_b32 {sStrB64}, 0")
        a(f"v_add_u32 {V4}, {sC0}, {V0}"); a(f"v_and_b32 {V4}, 7, {V4}"); a(f"v_lshlrev_b32 {V3}, 4, {V2}"); a(f"v_lshl_add_u32 {vWB}, {V4}, 7, {V3}")
        a(f"{Lg}:")
        c1[0]()
        a(f"v_lshrrev_b32 {V0}, 5, {vL}"); a(f"v_bfe_u32 {V2}, {vL}, 2, 2")
        a(f"v_and_b32 {V3}, 1, {vL}"); a(f"v_bfe_u32 {V4}, {vL}, 1, 1"); a(f"v_lshl_add_u32 {V3}, {V3}, 1, {V4}"); a(f"v_lshlrev_b32 {V3}, 3, {V3}")
        a(f"v_and_b32 {V6}, 1, {V1}"); a(f"v_lshl_add_u32 {V3}, {V6}, 5, {V3}")
        a(f"v_lshl_add_u32 {V4}, {V0}, 3, {V2}")
        a(f"v_xor_b32 {V5}, {sBB}, {V2}"); a(f"v_lshlrev_b32 {V5}, 6, {V5}"); a(f"v_lshl_add_u32 {V5}, {V4}, 8, {V5}"); a(f"v_add_u32 {V5}, {V5}, {V3}")
        a(f"v_add_u32 {vAR0}, {WSL(0)}, {V5}"); a(f"v_xor_b32 {vAR1}, 128, {vAR0}")
        a(f"v_and_b32 {V7}, 31, {vL}"); a(f"v_bfe_u32 {V5}, {vL}, 1, 3"); a(f"v_xor_b32 {V5}, {V5}, {V0}"); a(f"v_lshlrev_b32 {V5}, 4, {V5}")
        a(f"s_lshl_b32 {T0}, {sTG}, 12"); a(f"v_lshl_add_u32 {vXR0}, {V7}, 7, {V5}"); a(f"v_add_u32 {vXR0}, {T0}, {vXR0}")
        a(f"v_xor_b32 {vXR1}, 32, {vXR0}"); a(f"v_xor_b32 {vXR2}, 64, {vXR0}"); a(f"v_xor_b32 {vXR3}, 0x60, {vXR0}")
        c1[1]()
        a(f"v_lshrrev_b32 {V5}, 1, {V2}"); a(f"v_lshlrev_b32 {V5}, 6, {V5}"); a(f"v_lshl_add_u32 {V5}, {V4}, 7, {V5}"); a(f"v_add_u32 {V5}, {V5}, {V3}")
        a(f"s_lshl_b32 {T0}, {sBB}, 6"); a(f"v_xor_b32 {vBR}, {T0}, {V5}"); a(f"v_add_u32 {vBR}, {R}, {vBR}")
        a(f"s_lshr_b32 {T0}, {sW}, 1"); a(f"s_lshl_b32 {T0}, {T0}, 11"); a(f"v_add_u32 {vPR0}, {T0}, {V5}"); a(f"v_xor_b32 {vPR1}, 64, {vPR0}")
        a(f"v_add_u32 {vPO0}, {R}, {vPR0}"); a(f"v_add_u32 {vPO1}, {R}, {vPR1}")
        a(f"v_mul_u32_u24 {V5}, {512-32}, {V6}"); a(f"v_add_u32 {V5}, {V5}, {V3}"); a(f"v_lshl_add_u32 {V5}, {V4}, 5, {V5}")
        a(f"s_lshl_b32 {T0}, {sBB}, 12"); a(f"s_add_u32 {T0}, {T0}, {R + 57344}"); a(f"v_add_u32 {MWP}, {T0}, {V5}")
        a(f"s_cmp_ge_u32 {sN}, 5"); a(f"s_cselect_b32 {T0}, 5, 0"); a(f"s_sub_u32 {sR2}, {sN}, {T0}")
        if not o.get('hrot', 1): a(f"s_mov_b32 {sR2}, 0")
        a(f"s_lshr_b32 {T0}, {sW2O}, 3"); a(f"s_lshl_b32 {T1}, {sSIDE}, 21"); a(f"s_add_u32 {sH2}, {T0}, {T1}"); a(f"s_xor_b32 {T1}, {T1}, 0x200000"); a(f"s_add_u32 {sH1}, {T0}, {T1}")
        a(f"s_lshl_b32 {sC32}, {sC}, 5")
        a(f"s_mov_b32 {sL2E}, 0x3fb8aa3b"); a("s_mov_b32 s0, 0x3fb8aa3b"); a("s_mov_b32 s1, 0x3fb8aa3b")
        c1[2]()
        a(f"s_lshl_b32 {T0}, {sMM}, 1"); a(f"s_and_b32 {T1}, {sW}, 1"); a(f"s_add_u32 {T0}, {T0}, {T1}")
        a(f"s_lshr_b32 {T1}, {sW}, 1")
        a(f"v_lshrrev_b32 {V3}, 3, {vL}"); a(f"v_cmp_eq_u32 vcc, 3, {V3}")
        a(f"s_and_b32 {T2}, {T0}, 3"); a(f"s_add_u32 {T2}, {T2}, 9"); a(f"s_lshl_b32 {T2}, {T2}, 7"); a(f"v_add_u32 {V3}, {T2}, {vL16}"); a(f"v_cndmask_b32 {V3}, {vL16}, {V3}, vcc")
        a(f"s_and_b32 {T3}, {sC}, 6"); a(f"s_lshl_b32 {T3}, {T3}, 3"); a(f"s_add_u32 {T3}, {T3}, {T0}")
        a(f"s_lshl_b32 {T2}, {T3}, 18"); a(f"s_lshl_b32 {T3}, {T1}, 11"); a(f"s_add_u32 {T2}, {T2}, {T3}"); a(f"v_add_u32 {vHL}, {T2}, {V3}")
        a(f"s_add_u32 {T2}, {sTG}, 9"); a(f"s_lshl_b32 {T2}, {T2}, 7"); a(f"v_add_u32 {V3}, {T2}, {vL16}"); a(f"v_cndmask_b32 {vHS}, {vL16}, {V3}, vcc")
        a(f"s_lshl_b32 {T0}, {T0}, 1"); a(f"s_lshr_b32 {T1}, {T1}, 1"); a(f"s_add_u32 {T0}, {T0}, {T1}"); a(f"s_lshl_b32 {T0}, {T0}, 6")
        a(f"s_lshl_b32 {T1}, {sC}, 11"); a(f"s_add_u32 {T1}, {T1}, {T0}"); a(f"s_add_u32 {T1}, {T1}, {FH_OFF}")
        a(f"s_lshl_b32 {T2}, {sC}, 10"); a(f"s_add_u32 {T2}, {T2}, {T0}"); a(f"s_add_u32 {T2}, {T2}, {FO_OFF}")
        a(f"s_and_b32 {T3}, {sMM}, 2"); a(f"s_add_u32 {T3}, {T3}, {sBB}"); a(f"s_lshl_b32 {T3}, {T3}, 2"); a(f"s_and_b32 {T4}, {sW}, 1"); a(f"s_lshl_b32 {T4}, {T4}, 1"); a(f"s_add_u32 {T3}, {T3}, {T4}")
        a(f"s_bfe_u32 {T4}, {sW}, 0x10001"); a(f"s_add_u32 {T3}, {T3}, {T4}"); a(f"s_lshl_b32 {T3}, {T3}, 6"); a(f"s_lshl_b32 {T4}, {sC}, 11"); a(f"s_add_u32 {T3}, {T3}, {T4}"); a(f"s_add_u32 {T3}, {T3}, {FH_OFF + 1024}")
        a(f"s_mov_b32 {sFO}, {T1}"); a(f"s_mov_b32 {sFP}, {T3}")
        a(f"v_and_b32 {V3}, 15, {vL}"); a(f"v_lshlrev_b32 {V3}, 2, {V3}"); a(f"v_add_u32 {V4}, {T2}, {V3}"); a(f"v_add_u32 {V5}, {T3}, {V3}"); a(f"v_add_u32 {V3}, {T1}, {V3}")
        a(f"v_cmp_gt_u32 vcc, 32, {vL}"); a(f"v_cndmask_b32 {vFL}, {V4}, {V5}, vcc")
        a(f"v_cmp_gt_u32 vcc, 16, {vL}"); a(f"v_cndmask_b32 {vFL}, {vFL}, {V3}, vcc")
        a(f"s_lshl_b32 {T0}, {sRB}, 2"); a(f"s_add_u32 {T0}, {T0}, {sTG}"); a(f"s_lshl_b32 {T0}, {T0}, 18"); a(f"s_lshl_b32 {T1}, {sBB}, 12"); a(f"s_add_u32 {T0}, {T0}, {T1}")
        a(f"v_add_u32 {vHS}, {T0}, {vHS}")
        c1[3]()
        def census():
            a(f"s_getreg_b32 {sXCC}, hwreg(HW_REG_XCC_ID, 0, 4)")
            a(f"s_mul_i32 {T2}, {sXCC}, {sXCC}"); a(f"s_lshl_b32 {T2}, {T2}, 16"); a(f"s_lshl_b32 {T3}, {sXCC}, 8"); a(f"s_add_u32 {T2}, {T2}, {T3}"); a(f"s_add_u32 {T2}, {T2}, 1")
            a(f"s_cmp_eq_u32 {sW}, 0"); a(f"s_cselect_b32 {T0}, {sC32}, 0x1000")
            a(f"v_mov_b32 {MAT}, {T2}")
            a("s_mov_b64 exec, 1")
            a.vmem(f"buffer_atomic_add {MAT}, off, {SDBG}, {T0}", "misc")
            a("s_mov_b64 exec, -1")
        def m_wphi():
            L1 = a.label("wp"); L2 = a.label("wpd")
            a(f"s_lshl_b32 {T0}, {sHP}, 11"); a(f"s_lshl_b32 {T1}, {sBB}, 10"); a(f"s_add_u32 {T0}, {T0}, {T1}")
            a(f"s_add_u32 m0, {sW1k}, {R + 57344}")
            a(f"s_cmp_eq_u32 {sTG}, 0"); a(f"s_cbranch_scc0 {L1}")
            a.vmem(f"buffer_load_dwordx4 {vL16}, {STMP}, {T0} offen lds", "misc")
            a(f"s_branch {L2}"); a(f"{L1}:")
            a(f"buffer_load_dword {MJ}, off, {STMP}, {T0}")
            a(f"{L2}:")
        def m_e():
            a(f"s_mov_b32 {T0}, {E_OFF}")
            a.vmem(f"buffer_load_dword {ME}, off, {SWS}, {T0} sc1", "misc")
        m_fl = lambda: a.vmem(f"buffer_load_dword {MJ}, {vFL}, {SWS}, 0 offen sc1", "misc")
        census()
        self.misc = [m_e, m_wphi, m_fl]
        self.stamp(1)
    def passA(self):
        a = self.a; o = self.o
        xr = [vXR0, vXR1, vXR2, vXR3]; buf = [FR, FR + 8, FR + 16, PHI]
        def reads(c, st):
            s = c % 3; b = buf[st]
            a.ds(f"ds_read_b128 {ar(16*c+4*st,4)}, {xr[st]} offset:{XS(s)}", f"r{st}")
            for u, v in ((0, vAR0), (1, vAR1)):
                for e in range(2):
                    a.ds(f"ds_read_b64_tr_b16 {vr(b+4*u+2*e,2)}, {v} offset:{s*16384 + st*4096 + e*1024}", f"r{st}")
        def landed(tag, n):
            assert a.vm.q.count(tag) == n, (tag, a.vm.q)
            a.wait(vm=tag)
        def m1(c, st, u):
            acc = (ACC0, ACC1)[u]
            cc = "0" if (c == 0 and st == 0) else vr(acc, 16)
            a(f"v_mfma_f32_32x32x16_bf16 {vr(acc,16)}, {vr(buf[st]+4*u,4)}, {ar(16*c+4*st,4)}, {cc}")
        def half(c, st, rd, nslot):
            pat = o.get('apat', 'MRMRVMVMV')
            mf = [(st, 0), (st, 1), (st+1, 0), (st+1, 1)]; rd = list(rd); left = nslot; nv = pat.count('V')
            for ch in pat:
                if ch == 'M': m1(c, *mf.pop(0))
                elif ch == 'R':
                    if rd: reads(*rd.pop(0))
                else:
                    n = -(-left // nv); self.slot(n); left -= n; nv -= 1
        bsched = o.get('bsched', [0, 0, 0, 1, 1, 3, 3, 0])
        assert sum(bsched) == 8 and sum(bsched[:5]) <= 7
        bl = o.get('blate', 0); assert not (bl and o.get('kil', 1))
        nb = 0
        self.push(*self.dmaA(2)); self.slot(2)
        self.push(*self.misc)
        landed("c0", 4); a("s_barrier")
        self.stamp(2)
        reads(0, 0); reads(0, 1)
        self.slot(2)
        for c in range(8):
            a.wait(lg="r1")
            half(c, 0, [(c, 2), (c, 3)], len(self.pend))
            if c == 4:
                a.ds(f"ds_read_b64_tr_b16 {vr(WP0,2)}, {MWP}", "r3"); a.ds(f"ds_read_b64_tr_b16 {vr(WP0+2,2)}, {MWP} offset:128", "r3")
                a(f"v_readfirstlane_b32 {sE}, {ME}")
                a(f"v_and_b32 {V0}, 16, {vL}"); a(f"v_cmp_eq_u32 vcc, 0, {V0}")
                a(f"s_add_u32 {sE}, {sE}, 1"); a(f"s_mul_i32 {sTAG}, {sE}, 0x9E3779B1"); a(f"s_add_u32 {sTAG}, {sTAG}, 0x7F4A7C15")
            a.wait(lg="r3")
            if c < 7: landed(f"c{c+1}", 4)
            elif not bl:
                assert nb == 8 and not self.pend
                a.wait(vm="B0")
            a("s_barrier")
            self.stamp(f"c{c+1}")
            if c + 3 <= 7: self.push(*self.dmaA(c + 3))
            for _ in range(bsched[c]): self.push(*self.dmaB(nb)); nb += 1
            if c == o.get('mt', -1): self.push(self.mall_touch)
            if c == 7: self.wx = self.w2x(); self.wq = []; self.push(*self.take(o.get('a7', 2)))
            half(c, 2, [(c + 1, 0), (c + 1, 1)] if c < 7 else [], (len(self.pend) + 1)//2 if c < 7 else len(self.pend))
            if c == 4:
                for i in range(4):
                    a(f"v_cndmask_b32_e64 v{WP1+i}, v{WP0+i}, 0, vcc")
                    a(f"v_cndmask_b32 v{WP0+i}, 0, v{WP0+i}, vcc")
        self.stamp(3)
    def first_kv(self):
        a = self.a; o = self.o
        a(f"v_and_b32 {V4}, 31, {vL}"); a(f"v_lshrrev_b32 {V5}, 5, {vL}"); a(f"v_lshlrev_b32 {V5}, 4, {V5}"); a(f"v_lshl_add_u32 {V4}, {V4}, 5, {V5}")
        a(f"s_lshl_b32 {T0}, {sTG}, 10"); a(f"s_add_u32 {T0}, {T0}, {SCR}"); a(f"s_lshl_b32 {T1}, {sBB}, 13"); a(f"s_add_u32 {T2}, {T0}, {T1}"); a(f"s_add_u32 {T3}, {T2}, {T1}")
        a(f"v_add_u32 {V5}, {T2}, {V4}"); a(f"v_add_u32 {V4}, {T3}, {V4}")
        def sink(hd, sg, b):
            d = ACC0 + 8*hd + 4*sg
            return [f"v_cvt_pk_bf16_f32 v{d+i}, v{b+2*i}, v{b+2*i+1}" for i in range(4)] + \
                   [lambda: a.ds(f"ds_write_b128 {V4}, {vr(d,4)} offset:{(2*hd+sg)*4096}", "kw")]
        il = o.get('kil', 1)
        L = self.softmax(ACC0, ACC0, (ACC1, PHI), FR + 16, sink, 0 if il else 1)
        vf = PHI
        Vv = [f"v_cvt_pk_bf16_f32 v{vf+i}, v{ACC1+2*i}, v{ACC1+2*i+1}" for i in range(8)]
        Vv += [(lambda hd=hd: a.ds(f"ds_write_b128 {V5}, {vr(vf+4*hd,4)} offset:{32768 + hd*4096}", "kw")) for hd in range(2)]
        L = L[:10] + Vv + L[10:]
        self.push(*self.take(o.get('kd1', 2)))
        if il: self.passB(0, L, o.get('kper', 12), 100)
        else: self.run(L)
        self.flush()
        a.wait(lg="kw"); a.wait(vm="B1")
        a("s_barrier")
        self.stamp(4)
        a(f"s_lshl_b32 {T0}, {sW}, 12"); a(f"s_add_u32 {T0}, {T0}, {SCR}"); a(f"s_lshr_b32 {T1}, {sW}, 1"); a(f"s_lshl_b32 {T1}, {T1}, 12"); a(f"s_add_u32 {T1}, {T1}, {SCR + 32768}")
        a(f"v_lshlrev_b32 {V0}, 3, {vL}"); a(f"v_add_u32 {V1}, {T1}, {V0}"); a(f"v_add_u32 {V0}, {T0}, {V0}")
        A, Bv, ONE, DK, DZ = ACC0, ACC1, PHI, PHI+4, PHI+8
        for st in range(4):
            for e in range(2): a.ds(f"ds_read_b64_tr_b16 {vr(A+4*st+2*e,2)}, {V0} offset:{st*1024+e*512}", f"k{st}")
            if st == 3: a.wait(lg="k0")
            for e in range(2): a.ds(f"ds_read_b64_tr_b16 {vr(Bv+4*st+2*e,2)}, {V1} offset:{st*1024+e*512}", f"k{st}")
        for i in range(4): a(f"v_mov_b32 v{ONE+i}, 0x3f803f80")
        a(f"s_lshl_b32 {T0}, {sHP}, 4"); a(f"s_add_u32 {T0}, {T0}, {sRB}"); a(f"s_lshl_b32 {T0}, {T0}, 3"); a(f"s_add_u32 {T0}, {T0}, {sW}")
        a(f"s_lshl_b32 {T1}, {T0}, 10"); a(f"s_add_u32 {T1}, {T1}, {P_OFF}"); a(f"s_lshl_b32 {T2}, {T0}, 6"); a(f"s_add_u32 {T2}, {T2}, {PZ_OFF}")
        a(f"v_and_b32 {V3}, 15, {vL}"); a(f"v_cmp_eq_u32 vcc, 0, {V3}"); a(f"v_mov_b32 {V3}, {OOB}")
        a(f"v_cndmask_b32 {V3}, {V3}, {vL}, vcc")
        a(f"s_mov_b32 {T3}, 0x07060501"); a(f"s_mov_b32 {T4}, 0x07060502"); a(f"s_mov_b32 {T5}, 0x07060503")
        for st in range(4):
            a.wait(lg=f"k{st}")
            a(f"v_mfma_f32_16x16x32_bf16 {vr(DK,4)}, {vr(A+4*st,4)}, {vr(Bv+4*st,4)}, {'0' if st == 0 else vr(DK,4)}")
            a(f"v_mfma_f32_16x16x32_bf16 {vr(DZ,4)}, {vr(A+4*st,4)}, {vr(ONE,4)}, {'0' if st == 0 else vr(DZ,4)}")
        for D in (DK, DZ):
            a(f"v_perm_b32 v{D}, v{D}, v{D+3}, {T3}"); a(f"v_perm_b32 v{D+1}, v{D+1}, v{D+3}, {T4}"); a(f"v_perm_b32 v{D+2}, v{D+2}, v{D+3}, {T5}")
            a(f"v_mov_b32 v{D+3}, {sTAG}")
        a.vmem(f"buffer_load_dword {V7}, off, {SDBG}, {sC32} sc1", "mode")
        a.vmem(f"buffer_store_dwordx4 {vr(DK,4)}, {vL16}, {SWS}, {T1} offen sc1", "part")
        a.vmem(f"buffer_store_dwordx4 {vr(DZ,4)}, {V3}, {SWS}, {T2} offen sc1", "part")
        self.ack_store(); self.touch()
        self.stamp(5)
    def first_hh(self):
        a = self.a; o = self.o
        a(f"s_lshl_b32 {T0}, {sUA}, 13")
        L = []
        for u, acc in enumerate((ACC0, ACC1)):
            pk = PHI + 8*u
            hp = self.h_pack(acc, pk)
            for kk in range(2):
                L += hp[12*kk:12*kk+12]
                L += [f"s_add_u32 {T1}, {T0}, {u*UNIT + kk*STEP}",
                      lambda pk=pk, kk=kk: a.vmem(f"buffer_store_dwordx4 {vr(pk+4*kk,4)}, {vHS}, {SWS}, {T1} offen sc1", "hst")]
        n = o.get('hd1', 0)
        self.wx = self.wx + self.w2y()
        L += [self.ack_store, self.get_mode_issue, self.touch, lambda: self.stamp(4), lambda: self.push(*self.take(n))]
        if o.get('blate', 0):
            self.run(L); L = []
            a.wait(vm="B0"); a("s_barrier")
        self.passB(0, L, o.get('qper', 8), 2)
        self.flush()
        a.wait(vm="B1"); a("s_barrier")
        self.stamp("B1")
    def softmax_q(self, acc, pq, E, kf, mid):
        L = []; a = L.append
        for i in range(8): a(f"v_cvt_pk_bf16_f32 v{kf+i}, v{acc+2*i}, v{acc+2*i+1}")
        a(f"v_mfma_f32_32x32x16_bf16 {vr(pq,16)}, {vr(WP0,4)}, {vr(kf,4)}, 0")
        a(f"v_mfma_f32_32x32x16_bf16 {vr(pq,16)}, {vr(WP1,4)}, {vr(kf+4,4)}, {vr(pq,16)}")
        hook = lambda k: a(lambda: (self.stamp(f"sm{k}"), mid(k)))
        hook(0); a(self.slot); a(self.slot)
        S = ((kf, kf+2), (kf+4, kf+6))
        for k in range(4):
            for hd in range(2):
                p = pq + 8*hd; mp, mn = S[hd]
                if k == 0: a(f"v_max3_f32 v{mp}, v{p}, v{p+1}, v{p+2}"); a(f"v_max3_f32 v{mn}, -v{p}, -v{p+1}, -v{p+2}")
                elif k < 3: a(f"v_max3_f32 v{mp}, v{mp}, v{p+1+2*k}, v{p+2+2*k}"); a(f"v_max3_f32 v{mn}, v{mn}, -v{p+1+2*k}, -v{p+2+2*k}")
                else: a(f"v_max_f32 v{mp}, v{mp}, v{p+7}"); a(f"v_max_f32_e64 v{mn}, v{mn}, -v{p+7}")
        a(self.slot)
        def both(f):
            for hd in range(2): f(*S[hd])
        both(lambda x, y: a(f"v_permlane32_swap_b32 v{x}, v{y}"))
        both(lambda x, y: a(f"v_max_f32 v{x}, v{x}, v{y}"))
        both(lambda x, y: a(f"v_mul_f32 v{x}, {sL2E}, v{x}"))
        both(lambda x, y: a(f"v_mov_b32 v{y}, v{x}"))
        both(lambda x, y: a(f"v_permlane32_swap_b32 v{x}, v{y}"))
        a(self.slot)
        for hd in range(2):
            p = pq + 8*hd; e = E[hd]
            for sg in range(2):
                m = S[hd][sg]; b = e + 8*sg
                for i in range(8): a(f"v_fma_f32 v{b+i}, {'-' if sg else ''}v{p+i}, {sL2E}, -v{m}")
                a(self.slot)
                for i in range(8): a(f"v_exp_f32 v{b+i}, v{b+i}")
                a(self.slot)
                for i in range(4): a(f"v_cvt_pk_bf16_f32 v{PHI+8*hd+4*sg+i}, v{b+2*i}, v{b+2*i+1}")
            if hd == 0: hook(1)
        return L
    def second(self, kindA, kindB):
        a = self.a; o = self.o; P = kindA + kindB
        rest = (self.wq if kindB == 'q' else []) + self.wx
        yb = kindA == 'k' and o.get('ybar', 1)
        if yb: a("s_barrier"); rest = rest + self.w2y()
        n = o.get('d2' + P, o.get('d2' + kindA, 4)); now = rest[:n]; rest = rest[n:]
        aft = kindA == 'h' and o.get('ef', 99) < 16 and o.get('efp', 0)
        if not aft: self.push(*now)
        if kindA == 'k' and not o.get('kil', 1): self.passB(0, [], 0, o.get('kev', 3))
        early = (lambda: (self.get_mode_wait(), self.flag_h(False))) if kindA == 'h' else self.get_mode_wait
        if P == 'hh' and o.get('ytouch', 1):
            a(f"s_lshl_b32 {T0}, {sN}, 2"); a(f"s_lshr_b32 {T0}, 0x30765, {T0}"); a(f"s_and_b32 {T0}, {T0}, 7"); a(f"s_lshl_b32 {T0}, {T0}, 7"); a(f"s_add_u32 {T0}, {T0}, {sW2O}")
            a(f"s_lshr_b32 {T1}, {sMM}, 1"); a(f"s_mul_i32 {T1}, {T1}, 192"); a(f"s_mul_i32 {T2}, {sW}, 24"); a(f"s_add_u32 {T1}, {T1}, {T2}"); a(f"s_add_u32 {T1}, {T1}, 320"); a(f"s_lshl_b32 {T1}, {T1}, 10"); a(f"s_add_u32 {T0}, {T0}, {T1}")
            a(f"v_min_u32 {V6}, 23, {vL}"); a(f"v_lshlrev_b32 {V6}, 10, {V6}")
            a.vmem(f"buffer_load_dword {V6}, {V6}, {SW2}, {T0} offen", "touch")
        ef = o.get('ef', 99) if kindA == 'h' else 99
        self.passB(1, [(lambda: None)]*ef + [lambda: (early(), self.push(*now) if aft else None)] if ef < 16 else [], 1, 1 if aft else 3)
        if ef < 16: early = lambda: None
        self.flush()
        self.stamp(6)
        a("s_barrier")
        if kindA == 'k' and not yb: rest = rest + self.w2y()
        ph = Phase2(self, P)
        if kindB == 'q':
            fl = o.get('qflag', 0); qp = o.get('qp' + kindA, 0 if kindA == 'k' else 2)
            later = []
            if kindA == 'h' and o.get('w2late', 0): later = rest; rest = []
            if qp == 0:
                self.pf_issue(0, False) if o.get('sp', 0) else None
                for f in rest: f()
                self.pf_issue() if not o.get('sp', 0) else None
            else: self.push(*rest)
            def mid(k):
                if k == fl: early()
                if k + 1 == qp: self.flush(); self.pf_issue(0, False)
                if k == qp: ph.begin("pf", True)
                if kindA == 'h' and k == o.get('h1i', 2): self.red1_issue()
            self.run(self.softmax_q(ACCB, ACC0, (ACC1, ACCB), FR, mid))
            self.flush()
            self.stamp(7)
            fin = None
            if kindA == 'h':
                if o.get('h1i', 2) == 2: self.red1_issue()
                fin0 = self.red1_finish()
                fin = lambda: (fin0(), [f() for f in later])
                if qp == 3: self.pf_issue(0, False)
            if qp >= 2: ph.begin("pf", False, fin)
            elif fin: fin()
        else:
            def stores():
                a(f"s_lshl_b32 {T2}, {sUB}, 13"); a(f"s_add_u32 {T3}, {T2}, {STEP}")
                a.vmem(f"buffer_store_dwordx4 {vr(FR,4)}, {vHS}, {SWS}, {T2} offen sc1", "hst")
                a.vmem(f"buffer_store_dwordx4 {vr(FR+4,4)}, {vHS}, {SWS}, {T3} offen sc1", "hst")
            sf = o.get('sfirst' + P, 1)
            if sf == 1:
                for f in rest: f()
                self.run(self.h_pack(ACCB, FR)); early(); stores()
                self.stamp(7)
                a.wait(vm="hst"); self.flag_h(True); ph.late = False
                ph.begin(None, False)
            else:
                for f in rest: f()
                early(); self.pf_issue(0, True)
                self.run(self.h_pack(ACCB, FR))
                ph.begin("pf", False); stores()
                self.stamp(7)
        ph.main()
    def gate_wave(self):
        a = self.a
        a(f"v_lshrrev_b32 {V0}, 5, {vL}"); a(f"v_lshlrev_b32 {V0}, 4, {V0}"); a(f"s_add_u32 {T0}, {sW1k}, {R + 57344}"); a(f"v_add_u32 {V0}, {T0}, {V0}")
        D = 5
        def rd(st): a.ds(f"ds_read_b128 {vr(FR+4*(st%6),4)}, {V0} offset:{st*32}", f"g{st}")
        for st in range(D): rd(st)
        for st in range(32):
            if st + D < 32: rd(st + D)
            a.wait(lg=f"g{st}")
            a(f"v_mfma_f32_32x32x16_bf16 {vr(ACCB,16)}, {vr(FR+4*(st%6),4)}, {ar(4*st,4)}, {'0' if st == 0 else vr(ACCB,16)}")
        a(f"s_lshl_b32 {T2}, {sRB}, 2"); a(f"s_add_u32 {T2}, {T2}, {sTG}"); a(f"s_lshl_b32 {T2}, {T2}, 8"); a(f"s_add_u32 {T2}, {T2}, {G_OFF}")
        a(f"v_and_b32 {V1}, 31, {vL}"); a(f"v_lshlrev_b32 {V1}, 3, {V1}"); a(f"v_mov_b32 {V3}, {sTAG}")
        a(f"v_mul_f32 {V2}, {sL2E}, v{ACCB}"); a(f"v_exp_f32_e64 {V2}, -{V2}"); a(f"v_add_f32 {V2}, 1.0, {V2}"); a(f"v_rcp_f32 {V2}, {V2}")
        a(f"s_cmp_eq_u32 {sBB}, 0"); a(f"s_cselect_b32 {T2}, {T2}, {OOB}")
        a(f"buffer_store_dwordx2 v[26:27], {V1}, {SWS}, {T2} offen sc1")
    def path_r(self):
        a = self.a; o = self.o
        def wom():
            a(f"s_lshl_b32 {T0}, {sRB}, 1"); a(f"s_add_u32 {T0}, {T0}, {sJ}"); a(f"s_sub_u32 {T0}, {T0}, 11"); a(f"s_lshl_b32 {T0}, {T0}, 3"); a(f"s_add_u32 {T0}, {T0}, {sW}"); a(f"s_lshl_b32 {T0}, {T0}, 11")
            a(f"v_lshlrev_b32 {V6}, 5, {vL}")
            a.vmem(f"buffer_load_dword {V6}, {V6}, {SWO}, {T0} offen", "touch")
        if o.get('wom', 1) == 1: wom()
        Lng = a.label("ng")
        a(f"s_cmp_eq_u32 {sJ}, 11"); a(f"s_cbranch_scc0 {Lng}")
        self.gate_wave()
        a(f"{Lng}:")
        a("s_barrier")
        for f in self.wx + self.w2y(): f()
        ph = Phase2(self, 'r'); ph.begin(None, False)
        if o.get('wom', 1) == 2: wom()
        ph.main()
    def red1_issue(self):
        a = self.a
        a(f"s_and_b32 {T0}, {sRB}, 1"); a(f"s_lshl_b32 {T0}, {T0}, 2"); a(f"s_add_u32 {T0}, {T0}, {sJ}"); a(f"s_sub_u32 {T0}, {T0}, 4")
        a(f"s_lshl_b32 {T2}, {sC}, 7"); a(f"s_add_u32 {T2}, {T2}, {T0}")
        a(f"s_lshl_b32 {T3}, {T2}, 10"); a(f"s_lshl_b32 {T4}, {sW}, 7"); a(f"s_add_u32 {T3}, {T3}, {T4}"); a(f"s_add_u32 {T3}, {T3}, {P_OFF}")
        a(f"v_lshrrev_b32 {V2}, 3, {vL}"); a(f"v_and_b32 {V1}, 7, {vL}"); a(f"v_lshlrev_b32 {V1}, 4, {V1}"); a(f"v_lshl_add_u32 {V2}, {V2}, 13, {V1}"); a(f"v_add_u32 {V2}, {T3}, {V2}")
        a(f"s_lshl_b32 {T3}, {T2}, 6"); a(f"s_add_u32 {T3}, {T3}, {PZ_OFF}")
        a(f"v_lshrrev_b32 {V4}, 2, {vL}"); a(f"v_and_b32 {V3}, 3, {vL}"); a(f"v_lshlrev_b32 {V3}, 4, {V3}"); a(f"v_lshl_add_u32 {V3}, {V4}, 9, {V3}"); a(f"v_add_u32 {V3}, {T3}, {V3}")
        a(f"s_lshl_b32 {T2}, {sC}, 3"); a(f"s_add_u32 {T2}, {T2}, {T0}")
        a(f"s_lshl_b32 {T3}, {T2}, 10"); a(f"s_add_u32 {T3}, {T3}, {T4}"); a(f"s_add_u32 {T3}, {T3}, {F_OFF}")
        a(f"v_mov_b32 {V6}, {OOB}"); a(f"v_cmp_gt_u32 vcc, 8, {vL}"); a(f"v_add_u32 {V4}, {T3}, {V1}"); a(f"v_cndmask_b32 {V4}, {V6}, {V4}, vcc")
        a(f"s_lshl_b32 {T3}, {T2}, 6"); a(f"s_add_u32 {T3}, {T3}, {FZ_OFF}"); a(f"s_cmp_eq_u32 {sW}, 0"); a(f"s_cselect_b32 {T3}, {T3}, {OOB - 0x100}")
        a(f"v_cmp_gt_u32 vcc, 4, {vL}"); a(f"v_add_u32 {V5}, {T3}, {V1}"); a(f"v_cndmask_b32 {V5}, {V6}, {V5}, vcc")
        self.red1_loads(True)
    def red1_loads(self, track):
        a = self.a; Bq = FR + 8
        a(f"s_mov_b32 {T5}, 0x10000")
        for s in (f"buffer_load_dwordx4 {vr(Bq,4)}, {V2}, {SWS}, 0 offen sc1", f"buffer_load_dwordx4 {vr(Bq+4,4)}, {V2}, {SWS}, {T5} offen sc1",
                  f"buffer_load_dwordx4 {vr(Bq+8,4)}, {V3}, {SWS}, 0 offen sc1"):
            a.vmem(s, "h1") if track else a(s)
    def red1_finish(self):
        a = self.a; Bq = FR + 8; Z = Bq + 8; Tm = ACC0
        L = a.label("h1"); Ld = a.label("h1d")
        a.wait(vm="h1")
        a(f"s_mov_b32 {sSPIN}, {SPIN}")
        a(f"{L}:")
        a(f"v_cmp_ne_u32 vcc, {sTAG}, v{Bq+3}")
        for i in range(1, 3):
            a(f"v_cmp_ne_u32 {sM}, {sTAG}, v{Bq+4*i+3}"); a("s_nop 1"); a(f"s_or_b64 vcc, vcc, {sM}")
        a(f"s_cbranch_vccz {Ld}")
        a(f"s_sub_u32 {sSPIN}, {sSPIN}, 1"); a(f"s_cbranch_scc1 {Ld}")
        self.red1_loads(False); a("s_waitcnt vmcnt(0)"); a(f"s_branch {L}")
        a(f"{Ld}:")
        self.stamp("h1")
        a(f"s_mov_b32 {T1}, 0x04000c0c"); a(f"s_mov_b32 {T2}, 0x0706000c")
        for i in range(3):
            b = Bq + 4*i
            a(f"v_perm_b32 v{b+3}, v{b+2}, v{b+1}, {T1}"); a(f"v_perm_b32 v{b+3}, v{b+3}, v{b}, {T2}")
        for i in range(4): a(f"v_add_f32 v{Bq+i}, v{Bq+i}, v{Bq+4+i}")
        for i in range(4): a(f"v_add_f32_dpp v{Z+i}, v{Z+i}, v{Z+i} row_ror:4 row_mask:0xf bank_mask:0xf")
        vals = list(range(Bq, Bq+4)) + list(range(Z, Z+4))
        for v in vals: a(f"v_add_f32_dpp v{v}, v{v}, v{v} row_ror:8 row_mask:0xf bank_mask:0xf")
        for op in ("v_permlane16_swap_b32", "v_permlane32_swap_b32"):
            for k, v in enumerate(vals): a(f"v_mov_b32 v{Tm+k}, v{v}")
            for k, v in enumerate(vals): a(f"{op} v{v}, v{Tm+k}")
            for k, v in enumerate(vals): a(f"v_add_f32 v{v}, v{v}, v{Tm+k}")
        for k, b in enumerate((Bq, Z)):
            d = Tm + 4*k
            a(f"v_cvt_pk_bf16_f32 v{d}, v{b}, v{b+1}"); a(f"v_cvt_pk_bf16_f32 v{d+1}, v{b+2}, v{b+3}")
            a(f"v_mov_b32 v{d+2}, {sTAG}"); a(f"v_mov_b32 v{d+3}, {sTAG}")
        return lambda: (a.vmem(f"buffer_store_dwordx4 {vr(Tm,4)}, {V4}, {SWS}, 0 offen sc1", "fin"),
                        a.vmem(f"buffer_store_dwordx4 {vr(Tm+4,4)}, {V5}, {SWS}, 0 offen sc1", "fin"))
    def f_issue(self):
        a = self.a
        a(f"s_lshl_b32 {T0}, {sHP}, 3"); a(f"s_add_u32 {T0}, {T0}, {sW}")
        a(f"s_lshl_b32 {sR1}, {T0}, 10"); a(f"s_add_u32 {sR1}, {sR1}, {F_OFF}"); a(f"s_lshl_b32 {sH1}, {T0}, 6"); a(f"s_add_u32 {sH1}, {sH1}, {FZ_OFF}")
        self.f_loads(True)
    def f_loads(self, track):
        a = self.a
        a(f"v_and_b32 v28, 0x30, {vL16}")
        for s in (f"buffer_load_dwordx4 v[8:11], {vL16}, {SWS}, {sR1} offen sc1", f"buffer_load_dwordx4 v[28:31], v28, {SWS}, {sH1} offen sc1"):
            a.vmem(s, "h2") if track else a(s)
    def f_check(self):
        a = self.a
        L = a.label("h2"); Ld = a.label("h2d")
        a.wait(vm="h2")
        a(f"s_mov_b32 {sSPIN}, {SPIN}")
        a(f"{L}:")
        a(f"v_cmp_ne_u32 vcc, {sTAG}, v10"); a(f"v_cmp_ne_u32 {sM}, {sTAG}, v30"); a("s_nop 1"); a(f"s_or_b64 vcc, vcc, {sM}")
        a(f"s_cbranch_vccz {Ld}")
        a(f"s_sub_u32 {sSPIN}, {sSPIN}, 1"); a(f"s_cbranch_scc1 {Ld}")
        self.f_loads(False); a("s_waitcnt vmcnt(0)"); a(f"s_branch {L}")
        a(f"{Ld}:")
        self.stamp(9)
        a(f"s_add_u32 {T0}, {sW1k}, {KVT}")
        a(f"v_and_b32 {V2}, 15, {vL}"); a(f"v_lshrrev_b32 {V3}, 4, {vL}"); a(f"v_lshlrev_b32 {V3}, 3, {V3}"); a(f"v_lshl_add_u32 {V2}, {V2}, 5, {V3}"); a(f"v_add_u32 {V2}, {T0}, {V2}")
        a(f"v_lshlrev_b32 {V3}, 3, {vL}"); a(f"v_add_u32 {V3}, {T0}, {V3}")
        a.ds(f"ds_write_b64 {V2}, v[8:9]", "kt")
        a(f"v_cmp_gt_u32 vcc, 4, {vL}"); a(f"v_mov_b32 {V1}, 0x3f803f80"); a(f"v_cndmask_b32 v28, {V1}, v28, vcc"); a(f"v_cndmask_b32 v29, {V1}, v29, vcc")
        a("s_mov_b64 exec, 0xff")
        a.ds(f"ds_write_b64 {V3}, v[28:29] offset:512", "kt")
        a("s_mov_b64 exec, -1")
        self.o_addr()
        a.wait(lg="kt")
        a("s_barrier")
    def o_addr(self):
        a = self.a
        a(f"v_and_b32 {V3}, 3, {vL}"); a(f"v_bfe_u32 {V1}, {vL}, 2, 1"); a(f"v_bfe_u32 {V2}, {vL}, 3, 1")
        a(f"v_lshl_add_u32 {V3}, {V1}, 3, {V3}"); a(f"v_lshl_add_u32 {V3}, {V2}, 2, {V3}"); a(f"v_add_u32 {V2}, 16, {V2}")
        a(f"v_and_b32 {V1}, 16, {vL}"); a(f"v_cmp_eq_u32 vcc, 0, {V1}"); a(f"v_lshrrev_b32 {V1}, 5, {vL}"); a(f"v_lshlrev_b32 {V1}, 4, {V1}")
        a(f"v_cndmask_b32 {V3}, {V2}, {V3}, vcc"); a(f"v_lshl_add_u32 {V3}, {V3}, 5, {V1}")
        a(f"s_lshl_b32 {T0}, {sBB}, 12"); a(f"s_add_u32 {T0}, {T0}, {KVT}"); a(f"v_add_u32 {WP0V}, {T0}, {V3}")
    def o_compute(self):
        a = self.a
        DP, DM = ACCA, ACCA + 16
        def rd(hd):
            a.ds(f"ds_read_b128 v[8:11], {WP0V} offset:{(2*hd)*1024}", f"o{hd}"); a.ds(f"ds_read_b128 v[28:31], {WP0V} offset:{(2*hd+1)*1024}", f"o{hd}")
        rd(0)
        a(f"s_lshl_b32 {T0}, {sHP}, 13"); a(f"s_add_u32 {T0}, {T0}, {O_OFF}"); a(f"s_add_u32 {T1}, {T0}, {STEP}"); a(f"s_mov_b32 {T2}, 0x358637bd")
        for hd in range(2):
            a.wait(lg=f"o{hd}")
            a(f"v_mfma_f32_32x32x16_bf16 {vr(DM,16)}, v[28:31], {vr(PHI+8*hd+4,4)}, 0")
            a(f"v_mfma_f32_32x32x16_bf16 {vr(DP,16)}, v[8:11], {vr(PHI+8*hd,4)}, 0")
            if hd == 0: rd(1)
            a(f"v_rcp_f32 {V1}, v{DM+12}")
            a(f"v_fma_f32 {V2}, v{DP+12}, {T2}, v{DP+8}"); a(f"v_mul_f32 {V1}, v{DP+12}, {V1}")
            a(f"v_fmac_f32 {V2}, {V1}, v{DM+8}"); a(f"v_rcp_f32 {V2}, {V2}")
            for i in range(8): a(f"v_fmac_f32 v{DP+i}, {V1}, v{DM+i}")
            for i in range(8): a(f"v_mul_f32 v{DP+i}, {V2}, v{DP+i}")
            for i in range(4): a(f"v_cvt_pk_bf16_f32 v{PHI+8*hd+i}, v{DP+2*i}, v{DP+2*i+1}")
        ofl = self.o.get('osfl', '')
        self.store_mode(lambda f: (a(f"buffer_store_dwordx4 {vr(PHI,4)}, {vHS}, {SWS}, {T0} offen{f or ' ' + ofl}"),
                                   a(f"buffer_store_dwordx4 {vr(PHI+8,4)}, {vHS}, {SWS}, {T1} offen{f or ' ' + ofl}")), "ost", 2)
    def red_addr(self, base):
        a = self.a; R = base
        W0, W1, W2_, W3, R0, R1, OA = vX0, vX1, vWA, vWB, vXR0, vXR1, vXR2
        a(f"v_and_b32 {W0}, 31, {vL}"); a(f"v_lshrrev_b32 {V1}, 5, {vL}"); a(f"v_lshlrev_b32 {V1}, 1, {V1}"); a(f"v_and_b32 {V2}, 7, {vL}")
        a(f"v_xor_b32 {V1}, {V1}, {V2}"); a(f"v_lshlrev_b32 {V1}, 4, {V1}"); a(f"v_lshl_add_u32 {W0}, {W0}, 8, {V1}")
        a(f"s_and_b32 {T4}, {sW}, 1"); a(f"s_lshl_b32 {T4}, {T4}, 15"); a(f"s_lshr_b32 {T1}, {sW}, 1"); a(f"s_lshl_b32 {T2}, {T1}, 13"); a(f"s_add_u32 {T2}, {T2}, {T4}")
        a(f"s_add_u32 {T2}, {T2}, {R}")
        a(f"v_add_u32 {W0}, {T2}, {W0}"); a(f"v_xor_b32 {W1}, 16, {W0}"); a(f"v_xor_b32 {W2_}, 64, {W0}"); a(f"v_xor_b32 {W3}, 0x50, {W0}")
        a(f"v_lshrrev_b32 {V3}, 3, {vL}"); a(f"v_lshlrev_b32 {R0}, 1, {V2}"); a(f"v_xor_b32 {R0}, {R0}, {V3}"); a(f"v_lshlrev_b32 {R0}, 4, {R0}")
        a(f"v_lshl_add_u32 {R0}, {V3}, 8, {R0}"); a(f"s_lshl_b32 {T2}, {T1}, 11"); a(f"s_add_u32 {T2}, {T2}, {T4}"); a(f"s_add_u32 {T2}, {T2}, {R}")
        a(f"v_add_u32 {R0}, {T2}, {R0}"); a(f"v_xor_b32 {R1}, 16, {R0}")
        a(f"s_lshl_b32 {T2}, {sC}, 8"); a(f"s_lshl_b32 {T3}, {sMM}, 6"); a(f"s_add_u32 {T2}, {T2}, {T3}"); a(f"s_lshr_b32 {T3}, {T4}, 10"); a(f"s_add_u32 {T2}, {T2}, {T3}")
        a(f"s_lshl_b32 {sUA}, {T2}, 3"); a(f"s_add_u32 {sUA}, {sUA}, {G_OFF}")
        a(f"s_lshl_b32 {T3}, {T1}, 3"); a(f"s_add_u32 {T2}, {T2}, {T3}"); a(f"s_lshl_b32 {T2}, {T2}, 10"); a(f"s_lshl_b32 {T3}, {sN}, 7"); a(f"s_add_u32 {T2}, {T2}, {T3}")
        a(f"v_lshlrev_b32 {V2}, 4, {V2}"); a(f"v_lshl_add_u32 {OA}, {V3}, 10, {V2}"); a(f"v_add_u32 {OA}, {T2}, {OA}")
        a(f"s_lshl_b32 {T2}, {sC}, 2"); a(f"s_add_u32 {T2}, {T2}, {sMM}"); a(f"s_lshl_b32 {T2}, {T2}, 3"); a(f"s_add_u32 {T2}, {T2}, {sN}")
        a(f"s_lshl_b32 {T2}, {T2}, 14"); a(f"s_lshr_b32 {T3}, {T4}, 2"); a(f"s_add_u32 {T2}, {T2}, {T3}"); a(f"s_add_u32 {sUB}, {T2}, {X_OFF}")
    def red_write(self, src, pre=None, rf=vr):
        a = self.a
        wa = {(0, 0): vX0, (0, 1): vX1, (1, 0): vWA, (1, 1): vWB}
        for cb in range(2):
            for gp in range(2):
                for e in range(2):
                    b = 16*cb + 8*gp + 4*e
                    if pre: pre(b)
                    a.ds(f"ds_write_b128 {wa[(gp,e)]}, {rf(src+b,4)} offset:{cb*128}", "rw")
        a.wait(lg="rw")
        a("s_barrier")
    def red_read(self, Bq):
        a = self.a
        for k in range(4):
            a.ds(f"ds_read_b128 {vr(Bq+8*k,4)}, {vXR0} offset:{k*8192}", f"s{k}"); a.ds(f"ds_read_b128 {vr(Bq+8*k+4,4)}, {vXR1} offset:{k*8192}", f"s{k}")
        a.wait(lg="s1")
        for i in range(0, 8, 2): a(f"v_pk_add_f32 {vr(Bq+i,2)}, {vr(Bq+i,2)}, {vr(Bq+8+i,2)}")
        a.wait(lg="s3")
        for i in range(0, 8, 2): a(f"v_pk_add_f32 {vr(Bq+16+i,2)}, {vr(Bq+16+i,2)}, {vr(Bq+24+i,2)}")
        for i in range(0, 8, 2): a(f"v_pk_add_f32 {vr(Bq+i,2)}, {vr(Bq+i,2)}, {vr(Bq+16+i,2)}")
    def g_loads(self, track):
        a = self.a
        a(f"v_and_b32 {V2}, 31, {vL}"); a(f"v_lshlrev_b32 {V2}, 3, {V2}")
        a(f"v_and_b32 {V4}, 0x38, {vL}"); a(f"s_lshr_b32 {T1}, {sW}, 1"); a(f"s_lshl_b32 {T1}, {T1}, 6"); a(f"s_add_u32 {T1}, {T1}, {sUA}")
        for s in (f"buffer_load_dwordx2 v[26:27], {V2}, {SWS}, {sUA} offen sc1", f"buffer_load_dwordx2 v[28:29], {V4}, {SWS}, {T1} offen sc1"):
            a.vmem(s, "g") if track else a(s)
    def x_loads(self, track):
        a = self.a
        a(f"s_xor_b32 {T2}, {sUB}, {32*8*2048}"); a(f"s_lshr_b32 {T3}, {sW}, 1"); a(f"s_lshl_b32 {T3}, {T3}, 7"); a(f"s_add_u32 {T2}, {T2}, {T3}")
        a(f"v_bfe_u32 v8, {vL}, 1, 2"); a(f"v_and_b32 v9, 1, {vL}"); a(f"v_lshlrev_b32 v8, 11, v8"); a(f"v_lshl_add_u32 v8, v9, 9, v8")
        a(f"v_lshrrev_b32 v9, 3, {vL}"); a(f"v_lshl_add_u32 v8, v9, 4, v8")
        for s in (f"buffer_load_dwordx4 {vr(PHI,4)}, v8, {SWS}, {T2} offen sc1", f"buffer_load_dwordx4 {vr(PHI+4,4)}, v8, {SWS}, {T2} offen offset:1024 sc1"):
            a.vmem(s, "x") if track else a(s)
    def spin(self, regs, tag, reload):
        a = self.a; L = a.label("sp"); Ld = a.label("spd")
        a.wait(vm=tag)
        a(f"s_mov_b32 {sSPIN}, {SPIN}")
        a(f"{L}:")
        a(f"v_cmp_ne_u32 vcc, {sTAG}, {regs[0]}"); a(f"v_cmp_ne_u32 {sM}, {sTAG}, {regs[1]}"); a("s_nop 1"); a(f"s_or_b64 vcc, vcc, {sM}")
        a(f"s_cbranch_vccz {Ld}")
        a(f"s_sub_u32 {sSPIN}, {sSPIN}, 1"); a(f"s_cbranch_scc1 {Ld}")
        reload(False); a("s_waitcnt vmcnt(0)"); a(f"s_branch {L}")
        a(f"{Ld}:")
    def tail2(self):
        a = self.a
        self.srd(SOUT, 20, 0x200000)
        self.g_loads(True)
        self.pf_issue()
        a.wait(vm="wo"); a("s_barrier")
        self.stamp(10)
        def rd(i):
            b = FR2 + 8*(i % 2)
            for cb, v in ((0, vPO0), (1, vPO1)):
                for e in range(2): a.ds(f"ds_read_b64_tr_b16 {vr(b+4*cb+2*e,2)}, {v} offset:{i*8192 + e*512}", f"a{i}")
        rd(0)
        self.spin(("v27", "v29"), "g", self.g_loads)
        a(f"v_sub_f32 {V3}, 1.0, {V2}"); a(f"v_sub_f32 {V4}, 1.0, {V4}")
        for i in range(0, 32, 2): a(f"v_pk_mul_f32 {vr(ACCF+i,2)}, {vr(ACCF+i,2)}, v[26:27] op_sel:[0,1] op_sel_hi:[1,1]")
        self.poll_flags(0xff << 32, "pf")
        self.stamp(11)
        def ld(i):
            a(f"s_add_u32 {T0}, {T5}, {O_OFF + i*UNIT}")
            a.vmem(f"buffer_load_dwordx4 {ar(4*i,4)}, {vHL}, {SWS}, {T0} offen sc1", f"o{i}")
        a(f"s_lshl_b32 {T5}, {sSIDE}, 21")
        LA = self.o.get('ola', 4)
        for i in range(LA): ld(i)
        for i in range(8):
            if i + 1 < 8: rd(i + 1)
            if i + LA < 8: ld(i + LA)
            if i == self.o.get('xi', 4): self.x_loads(True)
            a.wait(vm=f"o{i}", lg=f"a{i}")
            for cb in range(2):
                acc = ACCA + 16*cb
                a(f"v_mfma_f32_32x32x16_bf16 {vr(acc,16)}, {vr(FR2+8*(i%2)+4*cb,4)}, {ar(4*i,4)}, {'0' if i == 0 else vr(acc,16)}")
        self.stamp(12)
        def pre(b):
            for i in range(0, 4, 2): a(f"v_pk_fma_f32 {vr(ACCF+b+i,2)}, {vr(ACCA+b+i,2)}, v[26:27], {vr(ACCF+b+i,2)} op_sel_hi:[1,0,1]")
        self.red_write(ACCF, pre)
        self.stamp("rw")
        Bq = ACCA
        self.red_read(Bq)
        self.spin((f"v{PHI+3}", f"v{PHI+7}"), "x", self.x_loads)
        a(f"s_mov_b32 {T1}, 0x04000c0c"); a(f"s_mov_b32 {T2}, 0x0706000c")
        for b in (PHI, PHI + 4):
            a(f"v_perm_b32 v{b+3}, v{b+2}, v{b+1}, {T1}"); a(f"v_perm_b32 v{b+3}, v{b+3}, v{b}, {T2}")
        for i in range(0, 8, 2): a(f"v_pk_fma_f32 {vr(Bq+i,2)}, {vr(PHI+i,2)}, v[28:29], {vr(Bq+i,2)} op_sel_hi:[1,0,1]")
        for i in range(4): a(f"v_cvt_pk_bf16_f32 v{Bq+8+i}, v{Bq+2*i}, v{Bq+2*i+1}")
        a.vmem(f"buffer_store_dwordx4 {vr(Bq+8,4)}, {vXR2}, {SOUT}, 0 offen {self.o.get('ofl', '')}", "out")
        if self.o.get('probe'): self.probe()
        if self.o.get('span'):
            a("s_waitcnt vmcnt(0)"); a("v_mov_b32 v24, s26"); a("s_memrealtime s[26:27]"); a("s_waitcnt lgkmcnt(0)"); a("v_mov_b32 v25, s26")
            a(f"s_lshl_b32 {T0}, s2, 3"); a(f"s_add_u32 {T0}, {T0}, {sW}"); a(f"s_lshl_b32 {T0}, {T0}, 8"); a(f"s_add_u32 {T0}, {T0}, {ST_OFF + 248}")
            a("s_mov_b64 exec, 1"); a(f"buffer_store_dwordx2 v[24:25], off, {SWS}, {T0}")
        if self.o.get('stamps'):
            self.stamp(13)
            a("s_waitcnt vmcnt(0)"); self.stamp(14); a("s_waitcnt lgkmcnt(0)"); self.stamp(15)
            a("s_waitcnt lgkmcnt(0)"); a("s_memrealtime s[26:27]"); a("s_waitcnt lgkmcnt(0)"); a("v_writelane_b32 v23, s26, 63")
            a(f"s_lshl_b32 {T0}, s2, 3"); a(f"s_add_u32 {T0}, {T0}, {sW}"); a(f"s_lshl_b32 {T0}, {T0}, 8"); a(f"s_add_u32 {T0}, {T0}, {ST_OFF}")
            a(f"v_lshlrev_b32 {V0}, 2, {vL}")
            a(f"buffer_store_dword v23, {V0}, {SWS}, {T0} offen")
        a("s_endpgm")
    def bump(self):
        a = self.a
        Lx = a.label("nb"); L = a.label("bp"); Ld = a.label("bpd")
        a("s_cmp_eq_u32 s2, 192"); a(f"s_cbranch_scc0 {Lx}"); a(f"s_cmp_eq_u32 {sW}, 0"); a(f"s_cbranch_scc0 {Lx}")
        a(f"s_mov_b32 {T0}, {ACK_OFF}"); a(f"s_mov_b32 {sSPIN}, {SPIN}")
        a(f"{L}:")
        a(f"buffer_load_dwordx4 v[8:11], {vL16}, {SWS}, {T0} offen sc1"); a("s_waitcnt vmcnt(0)")
        a(f"v_cmp_ne_u32 vcc, {sTAG}, v8")
        for i in range(1, 4):
            a(f"v_cmp_ne_u32 {sM}, {sTAG}, v{8+i}"); a("s_nop 1"); a(f"s_or_b64 vcc, vcc, {sM}")
        a(f"s_cbranch_vccz {Ld}")
        a(f"s_sub_u32 {sSPIN}, {sSPIN}, 1"); a(f"s_cbranch_scc0 {L}")
        a(f"{Ld}:")
        a(f"v_mov_b32 {V1}, {sE}"); a(f"s_mov_b32 {T0}, {E_OFF}"); a("s_mov_b64 exec, 1")
        a(f"buffer_store_dword {V1}, off, {SWS}, {T0}"); a("s_mov_b64 exec, -1"); a("s_waitcnt vmcnt(0)")
        a(f"{Lx}:")
    def save(self): return (self.a.vm.copy(), self.a.lg.copy(), list(self.pend), list(self.wx), list(self.wq))
    def restore(self, s): self.a.vm, self.a.lg, self.pend, self.wx, self.wq = s[0].copy(), s[1].copy(), list(s[2]), list(s[3]), list(s[4])
    def body(self):
        a = self.a
        self.prologue(); self.passA()
        s0 = self.save()
        a("s_cmp_eq_u32 s9, 0"); a("s_cbranch_scc1 L_kv")
        self.first_hh(); s1 = self.save()
        a(f"s_cmp_eq_u32 {sTB}, 1"); a("s_cbranch_scc1 L_hq")
        self.second('h', 'h')
        a("L_hq:"); self.restore(s1); self.second('h', 'q')
        a("L_kv:"); self.restore(s0)
        self.first_kv(); s1 = self.save()
        a(f"s_cmp_eq_u32 {sTB}, 1"); a("s_cbranch_scc1 L_kq")
        a(f"s_cmp_eq_u32 {sTB}, 2"); a("s_cbranch_scc1 L_r")
        self.second('k', 'h')
        a("L_kq:"); self.restore(s1); self.second('k', 'q')
        a("L_r:"); self.restore(s1); self.path_r()

class Phase2:
    NS = 30
    def __init__(self, g, P):
        self.g = g; self.P = P; o = g.o
        self.hasq = P[-1] == 'q'; self.r1 = not self.hasq; self.late = P in ('hh', 'kh')
        self.opt = lambda k, d: o.get(k + P, o.get(k, d))
        k1 = self.opt('k1', 2)
        assert k1 <= 5
        E1 = [(1, 'r', k, s) for k in range(5) for s in range(2)]; E2 = [(2, 'r', k, 0) for k in range(5)] + [(2, 'R', k, 0) for k in range(5)]
        if self.r1:
            self.seq = E1 + E2[:k1] + [(1, 's', u, s) for u in range(5, 11) for s in range(2)] + E2[k1:] + [(2, 's', 10, 0)]
            self.i_send = 22 + k1; self.i_b = 10 + k1
        else: self.seq = E2 + [(2, 's', 10, 0)]; self.i_send = None; self.i_b = 5
        m = lambda x: x if self.r1 else x & 0xffff
        self.masks = (m(M_EARLY), m(M_MID), m(M_LATE))
        self.issued = {}; self.done = -1; self.nslot = 0; self.owner = {}
        self.ok = {'mid': False, 'late': False}
        self.bufs = [vr(FR2, 8), vr(FR2 + 8, 8), ar(120, 8)]
    def sub(self, b, lo, n):
        kind = b[0]; base = int(b[2:b.index(':')]); return f"{kind}[{base+lo}:{base+lo+n-1}]"
    def idx(self, e, dst):
        a = self.g.a; rnd, kind, k, s = e
        if kind == 's': a(f"s_mov_b32 {dst}, {k}"); return
        lo = 5 if kind == 'R' else 0
        a(f"s_add_u32 {dst}, {sR2}, {k + lo}"); a(f"s_cmp_ge_u32 {dst}, {5 + lo}"); a(f"s_cselect_b32 {sA2}, 5, 0"); a(f"s_sub_u32 {dst}, {dst}, {sA2}")
    def can(self, i):
        e = self.seq[i]
        if self.owner.get(self.nslot % self.NS, -1) > self.done: return False
        if e[1] in 'rR' or (e[0] == 1 and e[2] == 5): return True
        return self.ok['late'] if (e[0] == 1 and e[2] >= 9) else self.ok['mid']
    def ld(self, i):
        a = self.g.a; e = self.seq[i]
        sl = self.nslot % self.NS; self.nslot += 1; self.owner[sl] = i; self.issued[i] = sl
        def f():
            self.idx(e, sStrB64); a(f"s_lshl_b32 {sStrB64}, {sStrB64}, 13"); a(f"s_add_u32 {sStrB64}, {sStrB64}, {sH1 if e[0] == 1 else sH2}")
            if e[1] == 's' and e[2] == 10:
                if e[0] == 1: a(f"s_lshr_b32 {sA2}, {sW}, 1"); a(f"s_and_b32 {sA2}, {sA2}, {sSIDE}")
                else: a(f"s_and_b32 {sA2}, {sSIDE}, {sBB}")
                a(f"s_cselect_b32 {sStrB64}, 0x40000000, {sStrB64}")
            a.vmem(f"buffer_load_dwordx4 {ar(4*sl,4)}, {'v9' if e[0] == 1 else vHL}, {SWS}, {sStrB64} offen offset:{e[3]*2048} sc1", f"h{i}")
        return f
    def issue(self, upto, n, defer=False):
        for i in range(len(self.seq)):
            if n <= 0: break
            if i not in self.issued and i <= upto and self.can(i):
                f = self.ld(i); n -= 1
                self.g.push(f) if defer else f()
    def rd(self, i):
        a = self.g.a; b = self.bufs[i % 3]; e = self.seq[i]
        if e[3] == 0:
            self.idx(e, sA0); a(f"s_lshl_b32 {sA0}, {sA0}, 13")
            a(f"v_add_u32 {vPM0}, {sA0}, {'v10' if e[0] == 1 else vPR0}"); a(f"v_add_u32 {vPM1}, {sA0}, {'v11' if e[0] == 1 else vPR1}")
        for cb, v in ((0, vPM0), (1, vPM1)):
            for k in range(2): a.ds(f"ds_read_b64_tr_b16 {self.sub(b, 4*cb+2*k, 2)}, {v} offset:{W2B + e[3]*2048 + k*512}", f"u{i}")
    def begin(self, pre, defer, fin=None):
        g = self.g; a = g.a
        if self.r1:
            a(f"s_bfe_u32 {T1}, {sW}, 0x10001"); a(f"s_lshl_b32 {T2}, {sBB}, 1"); a(f"s_sub_u32 {T2}, {T1}, {T2}"); a(f"s_lshl_b32 {T2}, {T2}, 11")
            a(f"s_lshl_b32 {T1}, {T1}, 6"); a(f"v_add_u32 v10, {T2}, {vPR0}"); a(f"v_xor_b32 v10, {T1}, v10"); a("v_xor_b32 v11, 64, v10")
            a(f"s_xor_b32 {T1}, {sMM}, {sBB}"); a(f"s_and_b32 {T1}, {T1}, 1"); a(f"s_lshl_b32 {T3}, {T1}, 19"); a(f"s_lshl_b32 {T1}, {T1}, 8")
            a(f"v_add_u32 v9, {T2}, {vHL}"); a(f"v_xor_b32 v9, {T3}, v9")
            a(f"v_lshrrev_b32 {V1}, 3, {vL}"); a(f"v_cmp_eq_u32 vcc, 3, {V1}"); a(f"v_xor_b32 {V1}, {T1}, v9"); a(f"v_cndmask_b32 v9, v9, {V1}, vcc")
        nb = self.opt('rfin', 0)
        if fin and nb == 0: fin()
        g.poll_h(0, self.r1, self.masks[0], pre)
        g.stamp(8)
        if fin and nb: self.issue(99, nb); fin()
        self.issue(99, self.opt('la0', 12 if defer else 6), defer)
        if self.r1 and self.opt('wo1_at', 12) < 0:
            for f in g.dmaWO(1): f()
        if self.hasq and self.opt('wo_at', 0) < 0:
            g.push(*(g.dmaWO(1) + g.dmaWO(0)))
            if not defer: g.flush()
    def send(self):
        g = self.g; a = g.a
        a(f"s_lshl_b32 {T0}, {sW}, 12"); a(f"s_and_b32 {T1}, {sMM}, 2"); a(f"s_lshl_b32 {T1}, {T1}, 14"); a(f"s_add_u32 {T0}, {T0}, {T1}")
        a(f"s_add_u32 {T1}, {T0}, {R}"); a(f"s_xor_b32 {T0}, {T0}, 0x2000"); a(f"s_add_u32 {T0}, {T0}, {R}")
        a(f"v_add_u32 {V1}, {T1}, {vL16}"); a(f"v_add_u32 {V2}, {T0}, {vL16}")
        for k in range(4): a.ds(f"ds_write_b128 {V1}, {vr(ACCP+16+4*k,4)} offset:{k*1024}", "rw")
        a(f"s_xor_b32 {T1}, {sMM}, {sBB}"); a(f"s_and_b32 {T1}, {T1}, 1"); a(f"s_lshl_b32 {T1}, {T1}, 17"); a(f"s_xor_b32 {T2}, {sUB}, {T1}")
        a(f"s_bfe_u32 {T1}, {sW}, 0x10001"); a(f"s_lshl_b32 {T1}, {T1}, 12"); a(f"s_add_u32 {T2}, {T2}, {T1}")
        a(f"s_mov_b32 {T3}, 0x07060501"); a(f"s_mov_b32 {T4}, 0x07060502"); a(f"s_mov_b32 {T5}, 0x07060503")
        a.wait(lg="rw"); a("s_barrier")
        for k in range(4): a.ds(f"ds_read_b128 {vr(ACCP+16+4*k,4)}, {V2} offset:{k*1024}", f"x{k}")
        for k in range(4):
            D = ACCP + 4*k
            a.wait(lg=f"x{k}")
            for i in range(4): a(f"v_add_f32 v{D+i}, v{D+i}, v{D+16+i}")
            a(f"v_perm_b32 v{D}, v{D}, v{D+3}, {T3}"); a(f"v_perm_b32 v{D+1}, v{D+1}, v{D+3}, {T4}"); a(f"v_perm_b32 v{D+2}, v{D+2}, v{D+3}, {T5}")
            a(f"v_mov_b32 v{D+3}, {sTAG}")
            a.vmem(f"buffer_store_dwordx4 {vr(D,4)}, {vL16}, {SWS}, {T2} offen offset:{k*1024} sc1", "xst")
        a("s_barrier")
    def main(self):
        g = self.g; a = g.a; seq = self.seq; N = len(seq); i_send = self.i_send
        g.red_addr(W2B)
        ofirst = self.hasq and self.opt('so', 99) < 0
        if ofirst:
            g.f_issue(); g.f_check(); g.o_compute()
            self.issue(99, self.opt('la1', 10))
            a.wait(vm="ost"); g.flag_o()
            self.issue(99, self.opt('la2', 0))
        a.wait(vm="w2a"); a("s_barrier")
        g.stamp("f0")
        LA = self.opt('la', 6)
        if self.r1:
            i_mid = i_send - 10
            cm = i_mid - self.opt('cmb', 4); pm = cm - self.opt('pmb', 3); cl = i_mid + 6 - self.opt('clb', 4); pl = max(cm, cl - self.opt('plb', 3))
        else:
            pm, cm = self.opt('pm0', 3), self.opt('cm0', 6); pl = cl = -1
        wo_at = self.opt('wo_at', 0); fi = self.opt('fi', 4)
        i_o = min(N - 1, self.opt('so', 99)); i_f = min(N - 1, i_o + self.opt('sf', 2))
        first = {1: True, 2: True}
        self.rd(0); self.rd(1)
        for i in range(N):
            if i == cm: g.poll_h(1, self.r1, self.masks[1], "pf"); self.ok['mid'] = True
            if i == cl: g.poll_h(2, self.r1, self.masks[2], "pf"); self.ok['late'] = True
            if i == pm or i == pl: g.pf_issue(1 if i == pm else 2, self.r1)
            if self.hasq and i == wo_at: g.push(*(g.dmaWO(1) + g.dmaWO(0)))
            if self.r1 and i == self.opt('wo1_at', 12): g.push(*g.dmaWO(1))
            self.issue(i + LA, 2)
            assert i in self.issued, (self.P, i, self.issued)
            if i + 1 == self.i_b:
                a.wait(vm="w2b"); a("s_barrier"); g.stamp("fb")
                self.rd(i + 1)
            if i + 2 < N and i + 2 != self.i_b: self.rd(i + 2)
            rnd = seq[i][0]
            a.wait(vm=f"h{i}", lg=f"u{i}")
            for cb in range(2):
                acc = vr((ACCP if rnd == 1 else ACCF) + 16*cb, 16)
                a(f"v_mfma_f32_32x32x16_bf16 {acc}, {self.sub(self.bufs[i % 3], 4*cb, 4)}, {ar(4*self.issued[i],4)}, {'0' if first[rnd] else acc}")
            first[rnd] = False; self.done = i
            g.slot(self.opt('wo_per', 1))
            if self.late and i == self.opt('hf', 3): a.wait(vm="hst"); g.flag_h(True)
            if g.o.get('stamps', 0) >= 3 and i % 2 == 0 or i in (0, N - 1) or i + 1 == i_send: g.stamp(f"u{i}")
            if i + 1 == i_send:
                self.issue(99, 99)
                assert len(self.issued) == N
                a.wait(lg=f"u{i+2}")
                self.send()
                g.stamp("xs")
                g.push(*g.dmaWO(0))
            if self.hasq and not ofirst:
                if i == fi: g.f_issue()
                if i == i_o:
                    a.wait(lg=f"u{min(N-1, i+2)}"); g.f_check(); g.o_compute()
                    if wo_at == 99:
                        w = g.dmaWO(1) + g.dmaWO(0); nw = self.opt('wpre', 8)
                        for f in w[:nw]: f()
                        wrest = w[nw:]
                if i == i_f:
                    a.wait(vm="ost"); g.flag_o()
                    if wo_at == 99: g.push(*wrest)
            if self.P == 'r' and i == i_send + 1: g.bump()
        g.flush()
        g.tail2()
    def hop1(self, i):
        g = self.g
        assert all(e[0] == 1 for e in self.seq[:i+1])
        fin = g.reducer(lambda: None, PHI)
        self.issue(99, self.opt('rla', 99))
        fin()

if __name__ == '__main__':
    out = sys.argv[1]
    opt = json.loads(sys.argv[2]) if len(sys.argv) > 2 else {}
    open(out, 'w').write(Gen2(opt).build())
```

```python
import sys, json
from asmlib import *

NAME = "gated_mix__linear_kernel_hedgehog__dense_activation_relu__prompt"
STEP = 131072; UNIT = 4*STEP
H_OFF = 0; H_SIZE = 86*STEP
O_OFF = 0xC00000; P_OFF = 0x1000000; PZ_OFF = 0x1100000; G_OFF = 0x1110000
F_OFF = 0x1120000; FZ_OFF = 0x1130000; FH_OFF = 0x1140000; FO_OFF = 0x1142000; ACK_OFF = 0x1148000
E_OFF = 0x1150000; ST_OFF = 0x1200000; WS_SIZE = 0x2000000
OOB = 0x7ffffff0
XS = lambda s: s*16384
WSL = lambda s: 49152 + s*16384
R = 98304
RING = lambda d: ((d + 3) % 5)*16384
KVT = 65536
SPIN = 40000
SX, SWA, SWB, SW2, SWO, SWS, SH, SOUT, STMP, SDBG = [f"s[{28+4*i}:{31+4*i}]" for i in range(10)]
sC, sRB, sJ, sHG, sW, sTG, sBB, sC0, sTAG, sMODE, sStrA64, sStrA4, sStrB64, sType, sW1k, sW2k, sL2E, sU0, sU1, sE = [f"s{68+i}" for i in range(20)]
T0, T1, T2, T3, T4, T5 = [f"s{88+i}" for i in range(6)]
sSPIN = "s94"; sXCC = "s95"; sA0 = "s96"; sA1 = "s97"; sM = "s[98:99]"; sA2 = "s100"; sL2P = "s[0:1]"; sC32 = "s101"; sST = "s12"; sHP = "s13"; sN = "s3"
vL = "v0"
vX0, vX1, vWA, vWB, vXR0, vXR1, vXR2, vXR3, vAR0, vAR1, vBR = [f"v{1+i}" for i in range(11)]
vW2, vPR0, vPR1, vPM0, vPM1, vPO0, vPO1, vHL, vHS, vFL, vG = [f"v{12+i}" for i in range(11)]
V0, V1, V2, V3, V4, V5, V6, V7 = [f"v{24+i}" for i in range(8)]
ACC0, ACC1, ACCB, FR, WP0, WP1, PHI = 32, 48, 64, 80, 104, 108, 112
ACCF, ACCA, FR2 = 32, 64, 96
M16, MTO, MAT, MWP, ME, MJ = [f"v{64+i}" for i in range(6)]
vr = lambda b, n: f"v[{b}:{b+n-1}]"
ar = lambda b, n: f"a[{b}:{b+n-1}]"

class Gen:
    def __init__(self, opt):
        self.o = opt; self.a = Asm(); self.nst = 0; self.pend = []; self.nring = 6; self.names = ['0']
    def ring(self, d):
        return (81920, 49152, 65536)[d % 3] if d < 8 else (d - 8)*16384
    def push(self, *fs): self.pend += list(fs)
    def slot(self, n=1):
        for _ in range(n):
            if self.pend: self.pend.pop(0)()
    def flush(self): self.slot(len(self.pend))
    def stamp(self, name):
        if self.o.get('probe_at') == str(name): self.a("s_memtime s[54:55]")
        if not self.o.get('stamps'): return
        a = self.a
        name = str(name)
        if self.o['stamps'] == 1 and not name.isdigit(): return
        if name not in self.names: self.names.append(name)
        i = self.names.index(name); assert i < 63
        a("s_mov_b32 s27, m0"); a(f"s_mov_b32 m0, {sST}"); a("s_nop 0"); a("v_writelane_b32 v23, s26, m0"); a("s_mov_b32 m0, s27")
        a(f"s_mov_b32 {sST}, {i}")
        a("s_memtime s[26:27]")
    def csel(self, dst, x, y):
        self.a(f"s_mov_b32 {dst}, {y}"); self.a(f"s_cmov_b32 {dst}, {x}")
    def srd(self, s, base, size):
        a = self.a; b = int(s[2:s.index(':')])
        a(f"s_mov_b32 s{b}, s{base}"); a(f"s_mov_b32 s{b+1}, s{base+1}")
        a(f"s_mov_b32 s{b+2}, {size}"); a(f"s_mov_b32 s{b+3}, 0x20000")
    def dma(self, voff, srd, soff, m0expr, tag):
        a = self.a
        if 'offen' not in soff: soff += " offen"
        a(m0expr); a.vmem(f"buffer_load_dwordx4 {voff}, {srd}, {soff} lds", tag)
    def dmaA(self, c):
        a = self.a; s = c % 3
        def first():
            a(f"s_add_u32 {sA0}, {sC0}, {c}"); a(f"s_and_b32 {sA0}, {sA0}, 7")
            a(f"s_mul_i32 {sA1}, {sA0}, {sStrA64}"); a(f"s_lshl_b32 {sA0}, {sA0}, 7")
            self.dma(vX0, SX, sA0 + " offen " + self.o.get('xfl', ''), f"s_add_u32 m0, {sW2k}, {XS(s)}", f"c{c}")
        def fourth():
            a(f"s_add_u32 {sA1}, {sA1}, {sStrA4}")
            self.dma(vWA, SWA, sA1, f"s_add_u32 m0, {sW2k}, {WSL(s)+1024}", f"c{c}")
        return [first,
                lambda: self.dma(vWA, SWA, sA1, f"s_add_u32 m0, {sW2k}, {WSL(s)}", f"c{c}"),
                lambda: self.dma(vX1, SX, sA0 + " offen " + self.o.get('xfl', ''), f"s_add_u32 m0, {sW2k}, {XS(s)+1024}", f"c{c}"),
                fourth]
    def dmaB(self, ci):
        a = self.a
        def f():
            a(f"s_add_u32 {sA2}, {sC0}, {ci}"); a(f"s_and_b32 {sA2}, {sA2}, 7"); a(f"s_mul_i32 {sA2}, {sA2}, {sStrB64}")
            self.dma(vWB, SWB, sA2, f"s_add_u32 m0, {sW1k}, {R + ci*8192}", f"B{ci>>2}")
        return [f]
    def unit_of(self, d, dst):
        a = self.a
        if d < 8:
            a(f"s_add_u32 {dst}, {sU0}, {d}"); a(f"s_and_b32 {dst}, {dst}, 7"); a(f"s_lshl_b32 {dst}, {dst}, 1")
        else:
            a(f"s_add_u32 {dst}, {sU1}, {d-8}"); a(f"s_cmp_ge_u32 {dst}, 3"); a(f"s_cselect_b32 {sA2}, 3, 0")
            a(f"s_sub_u32 {dst}, {dst}, {sA2}"); a(f"s_lshl_b32 {dst}, {dst}, 1"); a(f"s_add_u32 {dst}, {dst}, 16")
    def dmaW2(self, d):
        a = self.a
        def f0():
            self.unit_of(d, sA0); a(f"s_lshl_b32 {sA0}, {sA0}, 16")
            self.dma(vW2, SW2, sA0, f"s_add_u32 m0, {sW1k}, {self.ring(d)}", f"w2_{d}")
        def f1():
            a(f"s_add_u32 {sA0}, {sA0}, 0x10000")
            self.dma(vW2, SW2, sA0, f"s_add_u32 m0, {sW1k}, {self.ring(d)+8192}", f"w2_{d}")
        return [f0, f1]
    def dmaWO(self, lo=0, hi=8):
        a = self.a
        def mk(i):
            def f():
                a(f"s_mov_b32 {sA2}, {i*65536}")
                self.dma(vW2, SWO, sA2, f"s_add_u32 m0, {sW1k}, {R + i*8192}", "wo")
            return f
        return [mk(i) for i in range(lo, hi)]
    def ldH(self, d):
        a = self.a
        def f0():
            self.unit_of(d, sA1); a(f"s_lshl_b32 {sA1}, {sA1}, 19")
            a.vmem(f"buffer_load_dwordx4 {ar(8*d,4)}, {vHL}, {SH}, {sA1} offen sc1", f"h{d}")
        def f1():
            a(f"s_add_u32 {sA1}, {sA1}, {UNIT}")
            a.vmem(f"buffer_load_dwordx4 {ar(8*d+4,4)}, {vHL}, {SH}, {sA1} offen sc1", f"h{d}")
        return [f0, f1]
    def poll_flags(self, mask, pre_issued=None):
        a = self.a; L = a.label("pf"); Ld = a.label("pfd")
        if pre_issued is None:
            a.vmem(f"buffer_load_dword {V0}, {vFL}, {SWS}, 0 offen sc1", "pf"); pre_issued = "pf"
        a.wait(vm=pre_issued)
        a(f"s_mov_b32 {sSPIN}, {SPIN}")
        a(f"{L}:")
        a(f"v_cmp_ne_u32 vcc, {sTAG}, {V0}"); a("s_nop 1")
        a(f"s_and_b32 {T0}, vcc_lo, {mask:#x}"); a(f"s_cbranch_scc0 {Ld}")
        a(f"s_sub_u32 {sSPIN}, {sSPIN}, 1"); a(f"s_cbranch_scc1 {Ld}")
        a(f"buffer_load_dword {V0}, {vFL}, {SWS}, 0 offen sc1"); a("s_waitcnt vmcnt(0)")
        a(f"s_branch {L}")
        a(f"{Ld}:")
    def get_mode_issue(self):
        a = self.a
        a(f"s_lshl_b32 {T0}, {sC}, 5")
        a.vmem(f"buffer_load_dword {V7}, off, {SDBG}, {T0} sc1", "mode")
    def get_mode_wait(self):
        a = self.a; L = a.label("gm"); Ld = a.label("gmd")
        a.wait(vm="mode")
        a(f"s_mov_b32 {sSPIN}, {0 if 'a' in self.o.get('skip', '') else SPIN}")
        a(f"{L}:")
        a(f"v_readfirstlane_b32 {T1}, {V7}"); a("s_nop 1")
        a(f"s_and_b32 {T2}, {T1}, 31"); a(f"s_cselect_b32 {T2}, 0, {T1}"); a(f"s_cmp_lg_u32 {T2}, 0"); a(f"s_cbranch_scc1 {Ld}")
        a(f"s_sub_u32 {sSPIN}, {sSPIN}, 1"); a(f"s_cbranch_scc1 {Ld}")
        a(f"s_lshl_b32 {T0}, {sC}, 5")
        a(f"buffer_load_dword {V7}, off, {SDBG}, {T0} sc1"); a("s_waitcnt vmcnt(0)")
        a(f"s_branch {L}")
        a(f"{Ld}:")
        a(f"s_mul_i32 {T2}, {sXCC}, {sXCC}"); a(f"s_lshl_b32 {T2}, {T2}, 16"); a(f"s_lshl_b32 {T3}, {sXCC}, 8")
        a(f"s_add_u32 {T2}, {T2}, {T3}"); a(f"s_add_u32 {T2}, {T2}, 1"); a(f"s_lshl_b32 {T2}, {T2}, 5")
        a(f"s_cmp_eq_u32 {T1}, {T2}"); a(f"s_cselect_b32 {sMODE}, 1, 0")
        if self.o.get('force_slow'): a(f"s_mov_b32 {sMODE}, 0")
        if 'a' in self.o.get('skip', ''): a(f"s_mov_b32 {sMODE}, 1")
    def store_mode(self, fn, tag, n):
        a = self.a; Ls = a.label("sl"); Ld = a.label("sd")
        a(f"s_cmp_eq_u32 {sMODE}, 1"); a(f"s_cbranch_scc0 {Ls}")
        fn(""); a(f"s_branch {Ld}")
        a(f"{Ls}:"); fn(" sc1"); a(f"{Ld}:")
        for _ in range(n): a.vm.issue(tag)
    def flag_store(self, base, idx):
        a = self.a
        a(f"s_lshl_b32 {T0}, {sRB}, 2"); a(f"s_add_u32 {T0}, {T0}, {sTG}"); a(f"s_lshl_b32 {T0}, {T0}, 1"); a(f"s_add_u32 {T0}, {T0}, {sBB}")
        a(f"s_lshl_b32 {T0}, {T0}, 6"); a(f"s_lshl_b32 {T1}, {idx}, 2"); a(f"s_add_u32 {T0}, {T0}, {T1}"); a(f"s_add_u32 {T0}, {T0}, {base}")
        a(f"v_mov_b32 {V1}, {sTAG}")
        a(f"s_mov_b64 exec, 1")
        self.store_mode(lambda f: a(f"buffer_store_dword {V1}, off, {SWS}, {T0}{f}"), "flag", 1)
        a(f"s_mov_b64 exec, -1")
    def touch(self, base, idx, junk):
        a = self.a
        if 't' in self.o.get('skip', ''): return
        a(f"v_bfe_u32 {junk}, {vL}, 2, 1"); a(f"v_lshl_add_u32 {junk}, {junk}, 17, {vHS}")
        a(f"s_lshl_b32 {T2}, {idx}, 19"); a(f"s_add_u32 {T2}, {T2}, {base}")
        a.vmem(f"buffer_load_dword {junk}, {junk}, {SWS}, {T2} offen", "touch")
    def ack_store(self):
        a = self.a
        a(f"s_lshl_b32 {T0}, s2, 2"); a(f"s_add_u32 {T0}, {T0}, {ACK_OFF}")
        a(f"s_cmp_eq_u32 {sW}, 0"); a(f"s_cselect_b32 {T0}, {T0}, {OOB}")
        a(f"v_mov_b32 {V1}, {sTAG}")
        a(f"s_mov_b64 exec, 1")
        a.vmem(f"buffer_store_dword {V1}, off, {SWS}, {T0} sc1", "ack")
        a(f"s_mov_b64 exec, -1")
    def prologue(self):
        a = self.a; o = self.o
        a("s_cmp_ge_u32 s2, 256"); a("s_cbranch_scc1 L_end")
        a("s_load_dwordx16 s[4:19], s[0:1], 0"); a("s_load_dwordx4 s[20:23], s[0:1], 64"); a("s_load_dwordx2 s[24:25], s[0:1], 80")
        if o.get('stamps'):
            a("s_memtime s[26:27]")
        if o.get('probe'): a("s_memrealtime s[26:27]")
        a(f"v_lshrrev_b32 {V0}, 6, v0"); a(f"v_and_b32 {vL}, 63, v0"); a(f"v_readfirstlane_b32 {sW}, {V0}")
        a(f"s_and_b32 {sC}, s2, 7"); a(f"s_lshr_b32 {T0}, s2, 3"); a(f"s_and_b32 {T1}, {T0}, 1"); a(f"s_lshr_b32 {sJ}, {T0}, 1")
        a(f"s_lshl_b32 {sRB}, {sC}, 1"); a(f"s_or_b32 {sRB}, {sRB}, {T1}")
        a(f"s_and_b32 {sType}, {sJ}, 1"); a(f"s_lshr_b32 {sHG}, {sJ}, 1")
        a(f"s_lshl_b32 {sA2}, {sHG}, 2"); a(f"s_lshr_b32 {sA2}, 0x37654210, {sA2}"); a(f"s_and_b32 {sA2}, {sA2}, 7")
        a(f"s_add_u32 {sN}, {sHG}, 5"); a(f"s_and_b32 {sN}, {sN}, 7")
        a(f"s_mul_i32 {T2}, {T1}, {o.get('rotr', 4)}"); a(f"s_mul_i32 {sC0}, {sJ}, {o.get('rotj', 1)}"); a(f"s_add_u32 {sC0}, {sC0}, {T2}")
        if o.get('rotc', 0): a(f"s_mul_i32 {T2}, {sC}, {o.get('rotc')}"); a(f"s_add_u32 {sC0}, {sC0}, {T2}")
        a(f"s_and_b32 {sC0}, {sC0}, 7")
        a(f"s_and_b32 {sTG}, {sW}, 3"); a(f"s_lshr_b32 {sBB}, {sW}, 2"); a(f"s_lshl_b32 {sW1k}, {sW}, 10"); a(f"s_lshl_b32 {sW2k}, {sW}, 11")
        a(f"s_cmp_eq_u32 {sType}, 0")
        self.csel(T3, 3072, 2752); self.csel(T5, 1024, 128); a(f"s_cselect_b32 {T2}, 7, 8")
        a(f"s_cselect_b32 {T1}, 1024, 0"); a(f"s_cselect_b32 {T4}, {sA2}, {sHG}"); a(f"s_lshl_b32 {T4}, {T4}, {T2}"); a(f"s_add_u32 {T4}, {T4}, {T1}")
        a(f"s_lshl_b32 {sStrA64}, {T3}, 6"); a(f"s_lshl_b32 {sStrA4}, {T3}, 2")
        a(f"s_lshl_b32 {T0}, {sRB}, 7"); a(f"s_lshl_b32 {T1}, {sW}, 4"); a(f"s_add_u32 {T0}, {T0}, {T1}"); a(f"s_lshl_b32 {T0}, {T0}, 10")
        a(f"v_lshrrev_b32 {V0}, 3, {vL}"); a(f"v_lshrrev_b32 {V1}, 4, {vL}"); a(f"v_and_b32 {V2}, 7, {vL}")
        a(f"v_xor_b32 {V3}, {V2}, {V1}"); a(f"v_lshlrev_b32 {V3}, 4, {V3}"); a(f"v_lshl_add_u32 {vX0}, {V0}, 10, {V3}"); a(f"v_add_u32 {vX0}, {T0}, {vX0}")
        a(f"v_xor_b32 {vX1}, 64, {vX0}"); a(f"v_add_u32 {vX1}, 0x2000, {vX1}")
        a(f"s_lshl_b32 {T1}, {sW}, 3")
        a(f"v_add_u32 {V3}, {T1}, {V1}"); a(f"v_mul_lo_u32 {vWA}, {V3}, {T3}")
        a(f"v_and_b32 {V3}, 15, {vL}"); a(f"v_lshlrev_b32 {V4}, 2, {V1}"); a(f"v_xor_b32 {V3}, {V3}, {V4}")
        a(f"v_lshrrev_b32 {V4}, 3, {V3}"); a(f"v_mul_lo_u32 {V4}, {V4}, {T5}"); a(f"v_and_b32 {V3}, 7, {V3}")
        a(f"v_lshl_add_u32 {V4}, {V3}, 4, {V4}"); a(f"v_add3_u32 {vWA}, {vWA}, {V4}, {T4}")
        a("s_mov_b32 s30, 0x200000"); a("s_mov_b32 s31, 0x20000"); a("s_mov_b32 s35, 0x20000")
        a(f"s_cmp_eq_u32 {sType}, 0"); self.csel("s34", 512*3072, 512*2752)
        a("s_waitcnt lgkmcnt(0)")
        if o.get('stamps'): a("v_mov_b32 v23, 0"); a(f"s_mov_b32 {sST}, 0")
        a("s_mov_b32 s28, s4"); a("s_mov_b32 s29, s5"); a(f"s_mov_b32 {sHP}, {sA2}")
        a("s_cselect_b32 s32, s6, s14"); a("s_cselect_b32 s33, s7, s15")
        for f in self.dmaA(0): f()
        c1 = self.dmaA(1)
        a(f"s_cmp_eq_u32 {sType}, 0")
        a("s_cselect_b32 s36, s14, s6"); a("s_cselect_b32 s37, s15, s7"); self.csel("s38", 512*2752, 512*3072); a("s_mov_b32 s39, 0x20000")
        self.csel(T3, 2752, 3072); a(f"s_cselect_b32 {T4}, 16, 0"); a(f"s_cselect_b32 {T5}, {sHG}, {sHP}")
        a(f"s_lshl_b32 {sStrB64}, {T3}, 6"); a(f"s_add_u32 {T4}, {T4}, {T5}"); a(f"s_lshl_b32 {T4}, {T4}, 7")
        a(f"s_cmp_ge_u32 {T4}, 2752"); a(f"s_cselect_b32 {T4}, 0x40000000, {T4}")
        self.srd(SW2, 16, 1376*1024); self.srd(SWO, 10, 512*1024); self.srd(SWS, 24, WS_SIZE); self.srd(SH, 24, H_SIZE)
        self.srd(SOUT, 20, 0x200000); self.srd(SDBG, 22, 256); self.srd(STMP, 8, 16384)
        a(f"v_and_b32 {V3}, 1, {V1}"); a(f"v_lshlrev_b32 {V3}, 2, {V3}"); a(f"v_xor_b32 {V3}, {V3}, {V2}"); a(f"v_lshlrev_b32 {V3}, 4, {V3}")
        a(f"s_lshl_b32 {T1}, {sW}, 3"); a(f"v_add_u32 {V4}, {T1}, {V0}")
        a(f"v_mul_lo_u32 {vWB}, {V4}, {T3}"); a(f"v_add3_u32 {vWB}, {vWB}, {V3}, {T4}")
        a(f"s_lshl_b32 {T1}, {sN}, 7"); a(f"v_lshl_add_u32 {vW2}, {V4}, 10, {V3}"); a(f"v_add_u32 {vW2}, {T1}, {vW2}")
        a(f"v_lshlrev_b32 {M16}, 4, {vL}")
        Lg = a.label("gsrd")
        a(f"s_cmp_eq_u32 {sJ}, 12"); a(f"s_cbranch_scc0 {Lg}")
        a("s_mov_b32 s36, s18"); a("s_mov_b32 s37, s19"); a("s_mov_b32 s38, 1024"); a(f"s_mov_b32 {sStrB64}, 0")
        a(f"v_add_u32 {V4}, {sC0}, {V0}"); a(f"v_and_b32 {V4}, 7, {V4}"); a(f"v_lshlrev_b32 {V3}, 4, {V2}"); a(f"v_lshl_add_u32 {vWB}, {V4}, 7, {V3}")
        a(f"{Lg}:")
        c1[0]()
        a(f"v_lshrrev_b32 {V0}, 5, {vL}"); a(f"v_bfe_u32 {V2}, {vL}, 2, 2")
        a(f"v_and_b32 {V3}, 1, {vL}"); a(f"v_bfe_u32 {V4}, {vL}, 1, 1"); a(f"v_lshl_add_u32 {V3}, {V3}, 1, {V4}"); a(f"v_lshlrev_b32 {V3}, 3, {V3}")
        a(f"v_and_b32 {V6}, 1, {V1}"); a(f"v_lshl_add_u32 {V3}, {V6}, 5, {V3}")
        a(f"v_lshl_add_u32 {V4}, {V0}, 3, {V2}")
        a(f"v_xor_b32 {V5}, {sBB}, {V2}"); a(f"v_lshlrev_b32 {V5}, 6, {V5}"); a(f"v_lshl_add_u32 {V5}, {V4}, 8, {V5}"); a(f"v_add_u32 {V5}, {V5}, {V3}")
        a(f"v_add_u32 {vAR0}, {WSL(0)}, {V5}"); a(f"v_xor_b32 {vAR1}, 128, {vAR0}")
        a(f"v_and_b32 {V7}, 31, {vL}"); a(f"v_bfe_u32 {V5}, {vL}, 1, 3"); a(f"v_xor_b32 {V5}, {V5}, {V0}"); a(f"v_lshlrev_b32 {V5}, 4, {V5}")
        a(f"s_lshl_b32 {T0}, {sTG}, 12"); a(f"v_lshl_add_u32 {vXR0}, {V7}, 7, {V5}"); a(f"v_add_u32 {vXR0}, {T0}, {vXR0}")
        a(f"v_xor_b32 {vXR1}, 32, {vXR0}"); a(f"v_xor_b32 {vXR2}, 64, {vXR0}"); a(f"v_xor_b32 {vXR3}, 0x60, {vXR0}")
        c1[1]()
        a(f"v_lshrrev_b32 {V5}, 1, {V2}"); a(f"v_lshlrev_b32 {V5}, 6, {V5}"); a(f"v_lshl_add_u32 {V5}, {V4}, 7, {V5}"); a(f"v_add_u32 {V5}, {V5}, {V3}")
        a(f"s_lshl_b32 {T0}, {sBB}, 6"); a(f"v_xor_b32 {vBR}, {T0}, {V5}"); a(f"v_add_u32 {vBR}, {R}, {vBR}")
        a(f"s_lshr_b32 {T0}, {sW}, 1"); a(f"s_lshl_b32 {T0}, {T0}, 11"); a(f"v_add_u32 {vPR0}, {T0}, {V5}"); a(f"v_xor_b32 {vPR1}, 64, {vPR0}")
        a(f"v_add_u32 {vPM0}, 0x10000, {vPR0}"); a(f"v_add_u32 {vPM1}, 0x10000, {vPR1}"); a(f"v_add_u32 {vPO0}, {R}, {vPR0}"); a(f"v_add_u32 {vPO1}, {R}, {vPR1}")
        a(f"v_mul_u32_u24 {V5}, {512-32}, {V6}"); a(f"v_add_u32 {V5}, {V5}, {V3}"); a(f"v_lshl_add_u32 {V5}, {V4}, 5, {V5}")
        a(f"s_lshl_b32 {T0}, {sBB}, 12"); a(f"s_add_u32 {T0}, {T0}, {R + 57344}"); a(f"v_add_u32 {MWP}, {T0}, {V5}")
        a(f"s_lshr_b32 {T0}, s2, 3"); a(f"s_and_b32 {T0}, {T0}, 3")
        ua, ub, uc = o.get('urot', (1, 2, 0))
        a(f"s_mul_i32 {T1}, {T0}, {ub}"); a(f"s_mul_i32 {T2}, {sHG}, {ua}"); a(f"s_add_u32 {T1}, {T1}, {T2}"); a(f"s_mul_i32 {T2}, {sC}, {uc}")
        a(f"s_add_u32 {T1}, {T1}, {T2}"); a(f"s_and_b32 {sU0}, {T1}, 7")
        a(f"s_mul_i32 {T2}, {T1}, 86"); a(f"s_lshr_b32 {T2}, {T2}, 8"); a(f"s_mul_i32 {T2}, {T2}, 3"); a(f"s_sub_u32 {sU1}, {T1}, {T2}")
        a(f"s_lshl_b32 {sC32}, {sC}, 5")
        a(f"s_mov_b32 {sL2E}, 0x3fb8aa3b"); a("s_mov_b32 s0, 0x3fb8aa3b"); a("s_mov_b32 s1, 0x3fb8aa3b")
        c1[2]()
        a(f"s_lshl_b32 {T0}, {sRB}, 2"); a(f"s_lshl_b32 {T1}, {sType}, 1"); a(f"s_add_u32 {T0}, {T0}, {T1}"); a(f"s_and_b32 {T1}, {sW}, 1"); a(f"s_add_u32 {T0}, {T0}, {T1}")
        a(f"s_lshr_b32 {T1}, {sW}, 1")
        a(f"v_lshrrev_b32 {V3}, 3, {vL}"); a(f"v_cmp_eq_u32 vcc, 3, {V3}")
        a(f"s_and_b32 {T2}, {T0}, 3"); a(f"s_add_u32 {T2}, {T2}, 9"); a(f"s_lshl_b32 {T2}, {T2}, 7"); a(f"v_add_u32 {V3}, {T2}, {M16}"); a(f"v_cndmask_b32 {V3}, {M16}, {V3}, vcc")
        a(f"s_lshl_b32 {T2}, {T0}, 11"); a(f"s_lshl_b32 {T3}, {T1}, 17"); a(f"s_add_u32 {T2}, {T2}, {T3}"); a(f"v_add_u32 {vHL}, {T2}, {V3}")
        a(f"s_add_u32 {T2}, {sTG}, 9"); a(f"s_lshl_b32 {T2}, {T2}, 7"); a(f"v_add_u32 {V3}, {T2}, {M16}"); a(f"v_cndmask_b32 {vHS}, {M16}, {V3}, vcc")
        a(f"s_lshl_b32 {T2}, {T0}, 7"); a(f"s_add_u32 {T2}, {T2}, {G_OFF}")
        a(f"v_lshlrev_b32 {V3}, 2, {V7}"); a(f"v_add_u32 {vG}, {T2}, {V3}")
        a(f"s_lshl_b32 {T0}, {T0}, 1"); a(f"s_lshr_b32 {T1}, {T1}, 1"); a(f"s_add_u32 {T0}, {T0}, {T1}"); a(f"s_lshl_b32 {T0}, {T0}, 6"); a(f"s_add_u32 {T0}, {T0}, {FH_OFF}")
        a(f"v_and_b32 {V3}, 15, {vL}"); a(f"v_lshlrev_b32 {V3}, 2, {V3}"); a(f"v_lshl_add_u32 {V3}, {V6}, 13, {V3}"); a(f"v_add_u32 {vFL}, {T0}, {V3}")
        a(f"s_lshl_b32 {T0}, {sRB}, 2"); a(f"s_add_u32 {T0}, {T0}, {sTG}"); a(f"s_lshl_b32 {T0}, {T0}, 11"); a(f"s_lshl_b32 {T1}, {sBB}, 18"); a(f"s_add_u32 {T0}, {T0}, {T1}")
        a(f"v_add_u32 {vHS}, {T0}, {vHS}")
        c1[3]()
        def census():
            a(f"s_getreg_b32 {sXCC}, hwreg(HW_REG_XCC_ID, 0, 4)")
            a(f"s_mul_i32 {T2}, {sXCC}, {sXCC}"); a(f"s_lshl_b32 {T2}, {T2}, 16"); a(f"s_lshl_b32 {T3}, {sXCC}, 8"); a(f"s_add_u32 {T2}, {T2}, {T3}"); a(f"s_add_u32 {T2}, {T2}, 1")
            a(f"s_lshl_b32 {T0}, {sC}, 5"); a(f"s_cmp_eq_u32 {sW}, 0"); a(f"s_cselect_b32 {T0}, {T0}, 0x1000")
            a(f"v_mov_b32 {MAT}, {T2}")
            a("s_mov_b64 exec, 1")
            a.vmem(f"buffer_atomic_add {MAT}, off, {SDBG}, {T0}", "misc")
            a("s_mov_b64 exec, -1")
        def m_wphi():
            L1 = a.label("wp"); L2 = a.label("wpd")
            a(f"s_lshl_b32 {T0}, {sHP}, 11"); a(f"s_lshl_b32 {T1}, {sBB}, 10"); a(f"s_add_u32 {T0}, {T0}, {T1}")
            a(f"s_add_u32 m0, {sW1k}, {R + 57344}")
            a(f"s_cmp_eq_u32 {sTG}, 0"); a(f"s_cbranch_scc0 {L1}")
            a.vmem(f"buffer_load_dwordx4 {M16}, {STMP}, {T0} offen lds", "misc")
            a(f"s_branch {L2}"); a(f"{L1}:")
            a(f"buffer_load_dword {MJ}, off, {STMP}, {T0}")
            a(f"{L2}:")
        def m_e():
            a(f"s_mov_b32 {T0}, {E_OFF}")
            a.vmem(f"buffer_load_dword {ME}, off, {SWS}, {T0} sc1", "misc")
        def m_code():
            a("s_getpc_b64 s[90:91]"); a("L_pc:")
            a(f"s_lshr_b32 {T0}, s2, 3"); a(f"s_lshl_b32 {T0}, {T0}, 3"); a(f"s_add_u32 {T0}, {T0}, {sW}"); a(f"s_lshl_b32 {T0}, {T0}, 7")
            a(f"s_min_u32 {T0}, {T0}, L_end-L_pc-4"); a(f"v_mov_b32 {MAT}, {T0}")
            a.vmem(f"global_load_dword {MJ}, {MAT}, s[90:91]", "misc")
        m_fl = lambda: a.vmem(f"buffer_load_dword {MJ}, {vFL}, {SWS}, 0 offen sc1", "misc")
        sk = o.get('skip', '')
        if 'c' not in sk: m_code()
        if 'a' not in sk: census()
        else: a(f"s_getreg_b32 {sXCC}, hwreg(HW_REG_XCC_ID, 0, 4)")
        self.misc = [m_e, m_wphi] + ([m_fl] if 'f' not in sk else [])
        self.stamp(1)
    def aslot(self):
        self.slot(2 if len(self.pend) > 4 else 1)
    def passA(self):
        a = self.a
        xr = [vXR0, vXR1, vXR2, vXR3]; buf = [FR, FR + 8, FR + 16, PHI]
        def reads(c, st):
            s = c % 3; b = buf[st]
            a.ds(f"ds_read_b128 {ar(16*c+4*st,4)}, {xr[st]} offset:{XS(s)}", f"r{st}")
            for u, v in ((0, vAR0), (1, vAR1)):
                for e in range(2):
                    a.ds(f"ds_read_b64_tr_b16 {vr(b+4*u+2*e,2)}, {v} offset:{s*16384 + st*4096 + e*1024}", f"r{st}")
        def mm(c, st):
            for u, acc in ((0, ACC0), (1, ACC1)):
                cc = "0" if (c == 0 and st == 0) else vr(acc, 16)
                a(f"v_mfma_f32_32x32x16_bf16 {vr(acc,16)}, {vr(buf[st]+4*u,4)}, {ar(16*c+4*st,4)}, {cc}")
        def landed(tag, n):
            assert a.vm.q.count(tag) == n, (tag, a.vm.q)
            a.wait(vm=tag)
        def m1(c, st, u):
            acc = (ACC0, ACC1)[u]
            cc = "0" if (c == 0 and st == 0) else vr(acc, 16)
            a(f"v_mfma_f32_32x32x16_bf16 {vr(acc,16)}, {vr(buf[st]+4*u,4)}, {ar(16*c+4*st,4)}, {cc}")
        def half(c, st, rd, nslot):
            pat = self.o.get('apat', 'MRMRVMVMV')
            mf = [(st, 0), (st, 1), (st+1, 0), (st+1, 1)]; rd = list(rd); left = nslot; nv = pat.count('V')
            for ch in pat:
                if ch == 'M': m1(c, *mf.pop(0))
                elif ch == 'R':
                    if rd: reads(*rd.pop(0))
                else:
                    n = -(-left // nv); self.slot(n); left -= n; nv -= 1
        self.push(*self.dmaA(2)); self.slot(2)
        be = self.o.get('bearly', 0)
        self.push(*(self.misc + (self.dmaB(0) if be else [])))
        landed("c0", 4); a("s_barrier")
        self.stamp(2)
        reads(0, 0); reads(0, 1)
        self.slot(2)
        for c in range(8):
            a.wait(lg="r1")
            half(c, 0, [(c, 2), (c, 3)], len(self.pend))
            if c == 4:
                a.ds(f"ds_read_b64_tr_b16 {vr(WP0,2)}, {MWP}", "r3"); a.ds(f"ds_read_b64_tr_b16 {vr(WP0+2,2)}, {MWP} offset:128", "r3")
                a(f"v_readfirstlane_b32 {sE}, {ME}")
                a(f"v_and_b32 {V0}, 16, {vL}"); a(f"v_cmp_eq_u32 vcc, 0, {V0}")
                a(f"s_add_u32 {sE}, {sE}, 1"); a(f"s_mul_i32 {sTAG}, {sE}, 0x9E3779B1"); a(f"s_add_u32 {sTAG}, {sTAG}, 0x7F4A7C15")
            a.wait(lg="r3")
            if c < 7: landed(f"c{c+1}", 4)
            elif be: a.wait(vm="B0")
            a("s_barrier")
            self.stamp(f"c{c+1}")
            if c + 3 <= 7: self.push(*self.dmaA(c + 3))
            if be:
                if c <= 6: self.push(*self.dmaB(c + 1))
                if c >= 5: self.push(*self.dmaW2(c - 5))
            elif c in (5, 6): self.push(*sum((self.dmaB(ci) for ci in range(4*(c-5), 4*(c-5)+4)), []))
            half(c, 2, [(c + 1, 0), (c + 1, 1)] if c < 7 else [], (len(self.pend) + 1)//2 if c < 7 else len(self.pend))
            if c == 4:
                for i in range(4):
                    a(f"v_cndmask_b32_e64 v{WP1+i}, v{WP0+i}, 0, vcc")
                    a(f"v_cndmask_b32 v{WP0+i}, 0, v{WP0+i}, vcc")
        self.stamp(3)
    def passB(self, half, fill, per, every=3):
        a = self.a
        NB = 4; D = 3
        def reads(st):
            b = FR + 4*(st % NB)
            for e in range(2):
                a.ds(f"ds_read_b64_tr_b16 {vr(b+2*e,2)}, {vBR} offset:{st*2048 + e*512}", f"b{st}")
        def emit(n):
            for _ in range(n):
                if fill:
                    x = fill.pop(0)
                    a(x) if isinstance(x, str) else x()
        lo, hi = 16*half, 16*half + 16
        for st in range(lo, lo + D): reads(st)
        for st in range(lo, hi):
            emit(per)
            a.wait(lg=f"b{st}")
            cc = "0" if st == 0 else vr(ACCB, 16)
            a(f"v_mfma_f32_32x32x16_bf16 {vr(ACCB,16)}, {vr(FR+4*(st%NB),4)}, {ar(4*st,4)}, {cc}")
            if st + D < hi: reads(st + D)
            if st % every == every - 1: self.slot()
        emit(len(fill))
    def h_pack(self, acc, dst):
        L = []
        for i in range(8):
            L += [f"v_max_f32 v{acc+2*i}, 0, v{acc+2*i}", f"v_max_f32 v{acc+2*i+1}, 0, v{acc+2*i+1}", f"v_cvt_pk_bf16_f32 v{dst+i}, v{acc+2*i}, v{acc+2*i+1}"]
        return L
    def softmax(self, acc, pq, E, kf, sink, packed, mid=None):
        L = []; a = L.append
        for i in range(8): a(f"v_cvt_pk_bf16_f32 v{kf+i}, v{acc+2*i}, v{acc+2*i+1}")
        a(f"v_mfma_f32_32x32x16_bf16 {vr(pq,16)}, {vr(WP0,4)}, {vr(kf,4)}, 0")
        a(f"v_mfma_f32_32x32x16_bf16 {vr(pq,16)}, {vr(WP1,4)}, {vr(kf+4,4)}, {vr(pq,16)}")
        hook = lambda k: a(lambda: (self.stamp(f"sm{k}"), mid(k) if mid else None))
        hook(0)
        S = ((kf, kf+2), (kf+4, kf+6))
        for k in range(4):
            for hd in range(2):
                p = pq + 8*hd; mp, mn = S[hd]
                if k == 0: a(f"v_max3_f32 v{mp}, v{p}, v{p+1}, v{p+2}"); a(f"v_max3_f32 v{mn}, -v{p}, -v{p+1}, -v{p+2}")
                elif k < 3: a(f"v_max3_f32 v{mp}, v{mp}, v{p+1+2*k}, v{p+2+2*k}"); a(f"v_max3_f32 v{mn}, v{mn}, -v{p+1+2*k}, -v{p+2+2*k}")
                else: a(f"v_max_f32 v{mp}, v{mp}, v{p+7}"); a(f"v_max_f32_e64 v{mn}, v{mn}, -v{p+7}")
        def both(f):
            for hd in range(2): f(*S[hd])
        both(lambda x, y: a(f"v_permlane32_swap_b32 v{x}, v{y}"))
        both(lambda x, y: a(f"v_max_f32 v{x}, v{x}, v{y}"))
        both(lambda x, y: a(f"v_mul_f32 v{x}, {sL2E}, v{x}"))
        both(lambda x, y: a(f"v_mov_b32 v{y}, v{x}"))
        both(lambda x, y: a(f"v_permlane32_swap_b32 v{x}, v{y}"))
        for hd in range(2):
            p = pq + 8*hd; e = E[hd]; mp, mn = S[hd]
            if packed:
                for i in range(0, 8, 2):
                    a(f"v_pk_fma_f32 {vr(e+i,2)}, {vr(p+i,2)}, {sL2P}, {vr(mp,2)} op_sel_hi:[1,1,0] neg_lo:[0,0,1] neg_hi:[0,0,1]")
                    a(f"v_pk_fma_f32 {vr(e+8+i,2)}, {vr(p+i,2)}, {sL2P}, {vr(mn,2)} op_sel_hi:[1,1,0] neg_lo:[1,0,1] neg_hi:[1,0,1]")
            else:
                for i in range(8):
                    a(f"v_fma_f32 v{e+i}, v{p+i}, {sL2E}, -v{mp}"); a(f"v_fma_f32 v{e+8+i}, -v{p+i}, {sL2E}, -v{mn}")
        a(self.slot)
        for hd in range(2):
            for i in range(16): a(f"v_exp_f32 v{E[hd]+i}, v{E[hd]+i}")
            a(self.slot)
        hook(1)
        for k in range(3):
            for hd in range(2):
                for sg in range(2):
                    b = E[hd] + 8*sg; s = S[hd][sg]
                    x = b if k == 0 else s
                    if packed: a(f"v_pk_add_f32 {vr(s,2)}, {vr(x,2)}, {vr(b+2+2*k,2)}")
                    else: a(f"v_add_f32 v{s}, v{x}, v{b+2+2*k}"); a(f"v_add_f32 v{s+1}, v{x+1}, v{b+3+2*k}")
        both(lambda x, y: (a(f"v_add_f32 v{x}, v{x}, v{x+1}"), a(f"v_add_f32 v{y}, v{y}, v{y+1}")))
        both(lambda x, y: a(f"v_permlane32_swap_b32 v{x}, v{y}"))
        both(lambda x, y: a(f"v_add_f32 v{x}, v{x}, v{y}"))
        both(lambda x, y: a(f"v_rcp_f32 v{x}, v{x}"))
        both(lambda x, y: a(f"v_mov_b32 v{y}, v{x}"))
        both(lambda x, y: a(f"v_permlane32_swap_b32 v{x}, v{y}"))
        a(self.slot)
        for hd in range(2):
            for sg in range(2):
                b = E[hd] + 8*sg
                if packed:
                    for i in range(0, 8, 2): a(f"v_pk_mul_f32 {vr(b+i,2)}, {vr(b+i,2)}, {vr(S[hd][sg],2)} op_sel_hi:[1,0]")
                else:
                    for i in range(8): a(f"v_mul_f32 v{b+i}, v{S[hd][sg]}, v{b+i}")
                L += sink(hd, sg, b)
                a(self.slot)
        hook(2)
        return L
    def run(self, L):
        for x in L: self.a(x) if isinstance(x, str) else x()
    def kv_epilogue(self):
        a = self.a; o = self.o
        a(f"v_and_b32 {V4}, 31, {vL}"); a(f"v_lshrrev_b32 {V5}, 5, {vL}"); a(f"v_lshlrev_b32 {V5}, 4, {V5}"); a(f"v_lshl_add_u32 {V4}, {V4}, 5, {V5}")
        a(f"s_lshl_b32 {T0}, {sTG}, 10"); a(f"s_lshl_b32 {T1}, {sBB}, 13"); a(f"s_add_u32 {T2}, {T0}, {T1}"); a(f"s_add_u32 {T3}, {T2}, {T1}")
        a(f"v_add_u32 {V5}, {T2}, {V4}"); a(f"v_add_u32 {V4}, {T3}, {V4}")
        def sink(hd, sg, b):
            d = WP0 + 4*sg
            return [f"v_cvt_pk_bf16_f32 v{d+i}, v{b+2*i}, v{b+2*i+1}" for i in range(4)] + \
                   [lambda: a.ds(f"ds_write_b128 {V4}, {vr(d,4)} offset:{(2*hd+sg)*4096}", "kw")]
        be = o.get('bearly', 0)
        L = self.softmax(ACC0, ACC0, (ACC1, PHI), FR + 16, sink, 0 if be else 1)
        vf = PHI
        Vv = [f"v_cvt_pk_bf16_f32 v{vf+i}, v{ACC1+2*i}, v{ACC1+2*i+1}" for i in range(8)]
        Vv += [(lambda hd=hd: a.ds(f"ds_write_b128 {V5}, {vr(vf+4*hd,4)} offset:{32768 + hd*4096}", "kw")) for hd in range(2)]
        L = L[:10] + Vv + L[10:]
        self.push(lambda: self.touch(16*UNIT, sHG, V6))
        if be: self.passB(0, L, o.get('kper', 12), 100)
        else:
            self.push(*(self.dmaW2(0) + self.dmaW2(1) + self.dmaW2(2))[:o.get('kdma', 6)])
            self.run(L)
        self.flush()
        a.wait(lg="kw"); a.wait(vm="B1" if be else "B0")
        a("s_barrier")
        self.stamp(4)
        a(f"s_lshl_b32 {T0}, {sW}, 12"); a(f"s_lshr_b32 {T1}, {sW}, 1"); a(f"s_lshl_b32 {T1}, {T1}, 12"); a(f"s_add_u32 {T1}, {T1}, 32768")
        a(f"v_lshlrev_b32 {V0}, 3, {vL}"); a(f"v_add_u32 {V1}, {T1}, {V0}"); a(f"v_add_u32 {V0}, {T0}, {V0}")
        A, B, ONE, DK, DZ = ACC0, ACC1, PHI, PHI+4, PHI+8
        for st in range(4):
            for e in range(2): a.ds(f"ds_read_b64_tr_b16 {vr(A+4*st+2*e,2)}, {V0} offset:{st*1024+e*512}", f"k{st}")
            if st == 3: a.wait(lg="k0")
            for e in range(2): a.ds(f"ds_read_b64_tr_b16 {vr(B+4*st+2*e,2)}, {V1} offset:{st*1024+e*512}", f"k{st}")
        for i in range(4): a(f"v_mov_b32 v{ONE+i}, 0x3f803f80")
        a(f"s_lshl_b32 {T0}, {sHP}, 4"); a(f"s_add_u32 {T0}, {T0}, {sRB}"); a(f"s_lshl_b32 {T0}, {T0}, 3"); a(f"s_add_u32 {T0}, {T0}, {sW}")
        a(f"s_lshl_b32 {T1}, {T0}, 10"); a(f"s_add_u32 {T1}, {T1}, {P_OFF}"); a(f"s_lshl_b32 {T2}, {T0}, 6"); a(f"s_add_u32 {T2}, {T2}, {PZ_OFF}")
        a(f"v_lshlrev_b32 {V2}, 4, {vL}"); a(f"v_and_b32 {V3}, 15, {vL}"); a(f"v_cmp_eq_u32 vcc, 0, {V3}"); a(f"v_mov_b32 {V3}, {OOB}")
        a(f"v_cndmask_b32 {V3}, {V3}, {vL}, vcc")
        a(f"s_mov_b32 {T3}, 0x07060501"); a(f"s_mov_b32 {T4}, 0x07060502"); a(f"s_mov_b32 {T5}, 0x07060503")
        for st in range(4):
            a.wait(lg=f"k{st}")
            a(f"v_mfma_f32_16x16x32_bf16 {vr(DK,4)}, {vr(A+4*st,4)}, {vr(B+4*st,4)}, {'0' if st == 0 else vr(DK,4)}")
            a(f"v_mfma_f32_16x16x32_bf16 {vr(DZ,4)}, {vr(A+4*st,4)}, {vr(ONE,4)}, {'0' if st == 0 else vr(DZ,4)}")
        for D in (DK, DZ):
            a(f"v_perm_b32 v{D}, v{D}, v{D+3}, {T3}"); a(f"v_perm_b32 v{D+1}, v{D+1}, v{D+3}, {T4}"); a(f"v_perm_b32 v{D+2}, v{D+2}, v{D+3}, {T5}")
            a(f"v_mov_b32 v{D+3}, {sTAG}")
        a.vmem(f"buffer_load_dword {V7}, off, {SDBG}, {sC32} sc1", "mode")
        a.vmem(f"buffer_store_dwordx4 {vr(DK,4)}, {V2}, {SWS}, {T1} offen sc1", "part")
        a.vmem(f"buffer_store_dwordx4 {vr(DZ,4)}, {V3}, {SWS}, {T2} offen sc1", "part")
        self.ack_store()
        self.stamp(5)
    def reducer(self, after_first, tm=None):
        a = self.a
        a(f"s_lshl_b32 {T0}, {sRB}, 1"); a(f"s_add_u32 {T0}, {T0}, {sHG}"); a(f"s_sub_u32 {T0}, {T0}, 6")
        a(f"s_lshr_b32 {T1}, {T0}, 2"); a(f"s_and_b32 {T0}, {T0}, 3"); a(f"s_lshl_b32 {T0}, {T0}, 1"); a(f"s_add_u32 {T0}, {T0}, {sBB}")
        a(f"s_lshl_b32 {T2}, {T1}, 7"); a(f"s_add_u32 {T2}, {T2}, {T0}")
        a(f"s_lshl_b32 {T3}, {T2}, 10"); a(f"s_lshl_b32 {T4}, {sTG}, 8"); a(f"s_add_u32 {T3}, {T3}, {T4}"); a(f"s_add_u32 {T3}, {T3}, {P_OFF}")
        a(f"v_lshrrev_b32 {V0}, 3, {vL}"); a(f"v_and_b32 {V1}, 7, {vL}"); a(f"v_lshlrev_b32 {V1}, 4, {V1}"); a(f"v_lshl_add_u32 {V2}, {V0}, 13, {V1}"); a(f"v_add_u32 {V2}, {T3}, {V2}")
        a(f"s_lshl_b32 {T3}, {T2}, 6"); a(f"s_add_u32 {T3}, {T3}, {PZ_OFF}")
        a(f"v_lshrrev_b32 {V0}, 2, {vL}"); a(f"v_and_b32 {V3}, 3, {vL}"); a(f"v_lshlrev_b32 {V3}, 4, {V3}"); a(f"v_lshl_add_u32 {V3}, {V0}, 9, {V3}"); a(f"v_add_u32 {V3}, {T3}, {V3}")
        a(f"s_lshl_b32 {T2}, {T1}, 3"); a(f"s_add_u32 {T2}, {T2}, {T0}")
        a(f"s_lshl_b32 {T3}, {T2}, 10"); a(f"s_add_u32 {T3}, {T3}, {T4}"); a(f"s_add_u32 {T3}, {T3}, {F_OFF}")
        a(f"v_mov_b32 {V0}, {OOB}"); a(f"v_cmp_gt_u32 vcc, 8, {vL}"); a(f"v_add_u32 {V4}, {T3}, {V1}"); a(f"v_cndmask_b32 {V4}, {V0}, {V4}, vcc")
        a(f"s_lshl_b32 {T3}, {T2}, 6"); a(f"s_add_u32 {T3}, {T3}, {FZ_OFF}"); a(f"s_cmp_eq_u32 {sTG}, 0"); a(f"s_cselect_b32 {T3}, {T3}, {OOB - 0x100}")
        a(f"v_cmp_gt_u32 vcc, 4, {vL}"); a(f"v_add_u32 {V5}, {T3}, {V1}"); a(f"v_cndmask_b32 {V5}, {V0}, {V5}, vcc")
        B = ACC0
        def loads(track):
            for i in range(4):
                s = f"buffer_load_dwordx4 {vr(B+4*i,4)}, {V2}, {SWS}, {'0' if i < 2 else T0} offen offset:{(i&1)*128} sc1"
                a.vmem(s, "h1") if track else a(s)
            s = f"buffer_load_dwordx4 {vr(B+16,4)}, {V3}, {SWS}, 0 offen sc1"
            a.vmem(s, "h1") if track else a(s)
        a(f"s_mov_b32 {T0}, 0x10000")
        L = a.label("h1"); Ld = a.label("h1d")
        if self.o.get('zprobe', 0):
            Lz = a.label("zp"); Lzd = a.label("zpd")
            a(f"s_mov_b32 {sSPIN}, {SPIN}")
            a(f"{Lz}:")
            a(f"buffer_load_dword v{B+19}, {V3}, {SWS}, 0 offen offset:12 sc1"); a("s_waitcnt vmcnt(0)"); a.vm.q = []
            a(f"v_cmp_ne_u32 vcc, {sTAG}, v{B+19}"); a("s_nop 1"); a(f"s_cbranch_vccz {Lzd}")
            a(f"s_sub_u32 {sSPIN}, {sSPIN}, 1"); a(f"s_cbranch_scc1 {Lzd}")
            if self.o.get('zsl', 0): a(f"s_sleep {self.o['zsl']}")
            a(f"s_branch {Lz}")
            a(f"{Lzd}:")
        for _ in range(self.o.get('rsl', 0)): a("s_sleep 8")
        loads(True)
        a.wait(vm="h1")
        after_first()
        a(f"s_mov_b32 {sSPIN}, {SPIN}")
        a(f"{L}:")
        a(f"v_cmp_ne_u32 vcc, {sTAG}, v{B+3}")
        for i in range(1, 5):
            a(f"v_cmp_ne_u32 {sM}, {sTAG}, v{B+4*i+3}"); a("s_nop 1"); a(f"s_or_b64 vcc, vcc, {sM}")
        a(f"s_cbranch_vccz {Ld}")
        a(f"s_sub_u32 {sSPIN}, {sSPIN}, 1"); a(f"s_cbranch_scc1 {Ld}")
        if self.o.get('psl', 0): a(f"s_sleep {self.o['psl']}")
        loads(False); a("s_waitcnt vmcnt(0)"); a(f"s_branch {L}")
        a(f"{Ld}:")
        self.stamp(7)
        a(f"s_mov_b32 {T1}, 0x04000c0c"); a(f"s_mov_b32 {T2}, 0x0706000c")
        for i in range(5):
            b = B + 4*i
            a(f"v_perm_b32 v{b+3}, v{b+2}, v{b+1}, {T1}"); a(f"v_perm_b32 v{b+3}, v{b+3}, v{b}, {T2}")
        for i in range(8): a(f"v_add_f32 v{B+i}, v{B+i}, v{B+8+i}")
        Z = B + 16; Tm = ACC1 + 8 if tm is None else tm
        for i in range(4): a(f"v_add_f32_dpp v{Z+i}, v{Z+i}, v{Z+i} row_ror:4 row_mask:0xf bank_mask:0xf")
        vals = list(range(B, B+8)) + list(range(Z, Z+4))
        for v in vals: a(f"v_add_f32_dpp v{v}, v{v}, v{v} row_ror:8 row_mask:0xf bank_mask:0xf")
        for op in ("v_permlane16_swap_b32", "v_permlane32_swap_b32"):
            for k, v in enumerate(vals): a(f"v_mov_b32 v{Tm+k}, v{v}")
            for k, v in enumerate(vals): a(f"{op} v{v}, v{Tm+k}")
            for k, v in enumerate(vals): a(f"v_add_f32 v{v}, v{v}, v{Tm+k}")
        for k, b in enumerate((B, B+4, Z)):
            d = Tm + 4*k
            a(f"v_cvt_pk_bf16_f32 v{d}, v{b}, v{b+1}"); a(f"v_cvt_pk_bf16_f32 v{d+1}, v{b+2}, v{b+3}")
            a(f"v_mov_b32 v{d+2}, {sTAG}"); a(f"v_mov_b32 v{d+3}, {sTAG}")
        return lambda: (a.vmem(f"buffer_store_dwordx4 {vr(Tm,4)}, {V4}, {SWS}, 0 offen sc1", "fin"),
                        a.vmem(f"buffer_store_dwordx4 {vr(Tm+4,4)}, {V4}, {SWS}, 0 offen offset:128 sc1", "fin"),
                        a.vmem(f"buffer_store_dwordx4 {vr(Tm+8,4)}, {V5}, {SWS}, 0 offen sc1", "fin"))
    def o_stage_fetch(self, part=3):
        a = self.a
        B = ACCA
        def loads(track):
            for s in (f"buffer_load_dwordx4 {vr(B,4)}, {V2}, {SWS}, 0 offen sc1", f"buffer_load_dwordx4 {vr(B+4,4)}, {V3}, {SWS}, 0 offen sc1"):
                a.vmem(s, "h2") if track else a(s)
        if part & 1:
            a(f"s_lshl_b32 {T0}, {sHP}, 3"); a(f"s_add_u32 {T0}, {T0}, {sW}")
            a(f"s_lshl_b32 {T1}, {T0}, 10"); a(f"s_add_u32 {T1}, {T1}, {F_OFF}"); a(f"s_lshl_b32 {T2}, {T0}, 6"); a(f"s_add_u32 {T2}, {T2}, {FZ_OFF}")
            a(f"v_lshlrev_b32 {V2}, 4, {vL}"); a(f"v_and_b32 {V3}, 0x30, {V2}"); a(f"v_add_u32 {V2}, {T1}, {V2}"); a(f"v_add_u32 {V3}, {T2}, {V3}")
            loads(True)
        if not part & 2: return
        L = a.label("h2"); Ld = a.label("h2d")
        a.wait(vm="h2")
        a(f"s_mov_b32 {sSPIN}, {SPIN}")
        a(f"{L}:")
        a(f"v_cmp_ne_u32 vcc, {sTAG}, v{B+2}"); a(f"v_cmp_ne_u32 {sM}, {sTAG}, v{B+6}"); a("s_nop 1"); a(f"s_or_b64 vcc, vcc, {sM}")
        a(f"s_cbranch_vccz {Ld}")
        a(f"s_sub_u32 {sSPIN}, {sSPIN}, 1"); a(f"s_cbranch_scc1 {Ld}")
        loads(False); a("s_waitcnt vmcnt(0)"); a(f"s_branch {L}")
        a(f"{Ld}:")
        self.stamp(9)
        a(f"s_add_u32 {T0}, {sW1k}, {KVT}")
        a(f"v_and_b32 {V2}, 15, {vL}"); a(f"v_lshrrev_b32 {V3}, 4, {vL}"); a(f"v_lshlrev_b32 {V3}, 3, {V3}"); a(f"v_lshl_add_u32 {V2}, {V2}, 5, {V3}"); a(f"v_add_u32 {V2}, {T0}, {V2}")
        a(f"v_lshlrev_b32 {V3}, 3, {vL}"); a(f"v_add_u32 {V3}, {T0}, {V3}")
        a.ds(f"ds_write_b64 {V2}, {vr(B,2)}", "kt")
        a("s_mov_b64 exec, 15")
        a.ds(f"ds_write_b64 {V3}, {vr(B+4,2)} offset:512", "kt")
        a("s_mov_b64 exec, -1")
        a.wait(lg="kt")
    def o_stage_compute(self):
        a = self.a
        a(f"v_and_b32 {V0}, 3, {vL}"); a(f"v_bfe_u32 {V1}, {vL}, 2, 1"); a(f"v_bfe_u32 {V2}, {vL}, 3, 1")
        a(f"v_lshl_add_u32 {V0}, {V1}, 3, {V0}"); a(f"v_lshl_add_u32 {V0}, {V2}, 2, {V0}")
        a(f"v_and_b32 {V1}, 16, {vL}"); a(f"v_cmp_eq_u32 vcc, 0, {V1}"); a(f"v_lshrrev_b32 {V2}, 5, {vL}"); a(f"v_lshlrev_b32 {V2}, 4, {V2}")
        a(f"v_cndmask_b32 {V0}, {V1}, {V0}, vcc"); a(f"v_lshl_add_u32 {V0}, {V0}, 5, {V2}")
        a(f"s_lshl_b32 {T0}, {sBB}, 12"); a(f"s_add_u32 {T0}, {T0}, {KVT}"); a(f"v_add_u32 {V0}, {T0}, {V0}")
        A, D, PK = ACCA, ACCA+16, FR2
        for i in range(4): a.ds(f"ds_read_b128 {vr(A+4*i,4)}, {V0} offset:{i*1024}", f"o{i>>1}")
        a(f"s_lshl_b32 {T0}, {sHP}, 19"); a(f"s_add_u32 {T0}, {T0}, {O_OFF}"); a(f"s_add_u32 {T1}, {T0}, {STEP}")
        for hd in range(2):
            a.wait(lg=f"o{hd}")
            a(f"v_mfma_f32_32x32x16_bf16 {vr(D,16)}, {vr(A+8*hd,4)}, {vr(PHI+8*hd,4)}, 0")
            a(f"v_mfma_f32_32x32x16_bf16 {vr(D,16)}, {vr(A+8*hd+4,4)}, {vr(PHI+8*hd+4,4)}, {vr(D,16)}")
            a(f"v_add_f32 {V1}, 0x358637bd, v{D+8}"); a(f"v_rcp_f32 {V1}, {V1}")
            for i in range(8): a(f"v_mul_f32 v{D+i}, {V1}, v{D+i}")
            for i in range(4): a(f"v_cvt_pk_bf16_f32 v{PK+4*hd+i}, v{D+2*i}, v{D+2*i+1}")
        self.store_mode(lambda f: (a(f"buffer_store_dwordx4 {vr(PK,4)}, {vHS}, {SWS}, {T0} offen{f}"),
                                   a(f"buffer_store_dwordx4 {vr(PK+4,4)}, {vHS}, {SWS}, {T1} offen{f}")), "ost", 2)
    def ffn(self, hooks, la, extra=[]):
        a = self.a; nr = self.nring; o = self.o
        g2i, g2c = o.get('g2i', 3), o.get('g2c', 5)
        for d in range(11):
            a.wait(vm=f"w2_{d}")
            a.wait(vm=f"h{d}")
            a("s_barrier")
            self.stamp(f"f{d}")
            if d == g2i: a.vmem(f"buffer_load_dword {V0}, {vFL}, {SWS}, 0 offen sc1", "pf")
            if d >= 1 and d + 2 <= 7: self.push(*self.dmaW2(d + 2))
            self.slot()
            base = self.ring(d)
            p0, p1, off = (vPR0, vPR1, base) if base < 65536 else (vPM0, vPM1, base - 65536)
            for u in range(2):
                for cb, v in ((0, p0), (1, p1)):
                    for e in range(2):
                        a.ds(f"ds_read_b64_tr_b16 {vr(FR2+8*u+4*cb+2*e,2)}, {v} offset:{off + u*8192 + e*512}", f"f{u}")
            if d + la <= 7: self.push(*self.ldH(d + la))
            if d == g2c:
                self.poll_flags(0x1555, "pf")
                self.push(lambda: a.vmem(f"buffer_load_dword {V6}, {vG}, {SWS}, 0 offen sc1", "g"))
            if g2c <= d < g2c + 3: self.push(*self.ldH(8 + d - g2c))
            n = -(-len(extra) // max(1, 7 - d)); n += n & 1
            self.push(*extra[:n]); extra = extra[n:]
            self.slot()
            for u in range(2):
                a.wait(lg=f"f{u}")
                for cb in range(2):
                    acc = ACCF + 16*cb
                    a(f"v_mfma_f32_32x32x16_bf16 {vr(acc,16)}, {vr(FR2+8*u+4*cb,4)}, {ar(8*d+4*u,4)}, {'0' if d == 0 and u == 0 else vr(acc,16)}")
                self.slot()
            self.flush()
            if d in hooks: hooks[d]()
    def tail(self, bump=False):
        a = self.a
        a("s_barrier")
        self.stamp(10)
        a.vmem(f"buffer_load_dword {V0}, {vFL}, {SWS}, 0 offen sc1", "pf")
        W0, W1, W2_, W3, R0, R1, OA = vX0, vX1, vWA, vWB, vXR0, vXR1, vXR2
        a(f"v_and_b32 {W0}, 31, {vL}"); a(f"v_lshrrev_b32 {V1}, 5, {vL}"); a(f"v_lshlrev_b32 {V1}, 1, {V1}"); a(f"v_and_b32 {V2}, 7, {vL}")
        a(f"v_xor_b32 {V1}, {V1}, {V2}"); a(f"v_lshlrev_b32 {V1}, 4, {V1}"); a(f"v_lshl_add_u32 {W0}, {W0}, 8, {V1}")
        a(f"s_and_b32 {T4}, {sW}, 1"); a(f"s_lshl_b32 {T4}, {T4}, 15"); a(f"s_lshr_b32 {T1}, {sW}, 1"); a(f"s_lshl_b32 {T2}, {T1}, 13"); a(f"s_add_u32 {T2}, {T2}, {T4}")
        a(f"v_add_u32 {W0}, {T2}, {W0}"); a(f"v_xor_b32 {W1}, 16, {W0}"); a(f"v_xor_b32 {W2_}, 64, {W0}"); a(f"v_xor_b32 {W3}, 0x50, {W0}")
        a(f"v_lshrrev_b32 {V5}, 3, {vL}"); a(f"v_lshlrev_b32 {R0}, 1, {V2}"); a(f"v_xor_b32 {R0}, {R0}, {V5}"); a(f"v_lshlrev_b32 {R0}, 4, {R0}")
        a(f"v_lshl_add_u32 {R0}, {V5}, 8, {R0}"); a(f"s_lshl_b32 {T2}, {T1}, 11"); a(f"s_add_u32 {T2}, {T2}, {T4}"); a(f"v_add_u32 {R0}, {T2}, {R0}"); a(f"v_xor_b32 {R1}, 16, {R0}")
        a(f"s_lshl_b32 {T2}, {sRB}, 7"); a(f"s_lshl_b32 {T3}, {sType}, 6"); a(f"s_add_u32 {T2}, {T2}, {T3}"); a(f"s_lshr_b32 {T3}, {T4}, 10"); a(f"s_add_u32 {T2}, {T2}, {T3}")
        a(f"s_lshl_b32 {T3}, {T1}, 3"); a(f"s_add_u32 {T2}, {T2}, {T3}"); a(f"s_lshl_b32 {T2}, {T2}, 10"); a(f"s_lshl_b32 {T3}, {sN}, 7"); a(f"s_add_u32 {T2}, {T2}, {T3}")
        a(f"v_lshlrev_b32 {V2}, 4, {V2}"); a(f"v_lshl_add_u32 {OA}, {V5}, 10, {V2}"); a(f"v_add_u32 {OA}, {T2}, {OA}")
        a.wait(vm="g")
        a(f"v_sub_f32 {V5}, 1.0, {V6}")
        for i in range(32): a(f"v_mul_f32 v{ACCF+i}, {V5}, v{ACCF+i}")
        def rd(i):
            b = FR2 + 8*(i % 2)
            for cb, v in ((0, vPO0), (1, vPO1)):
                for e in range(2): a.ds(f"ds_read_b64_tr_b16 {vr(b+4*cb+2*e,2)}, {v} offset:{i*8192 + e*512}", f"a{i}")
        rd(0)
        self.poll_flags(0xff0000, "pf")
        self.stamp(11)
        def ld(i):
            a(f"s_mov_b32 {T0}, {O_OFF + i*UNIT}")
            a.vmem(f"buffer_load_dwordx4 {ar(88+4*i,4)}, {vHL}, {SWS}, {T0} offen sc1", f"o{i}")
        LA = 4
        for i in range(LA): ld(i)
        for i in range(8):
            if i + 1 < 8: rd(i + 1)
            if i + LA < 8: ld(i + LA)
            a.wait(vm=f"o{i}", lg=f"a{i}")
            for cb in range(2):
                acc = ACCA + 16*cb
                a(f"v_mfma_f32_32x32x16_bf16 {vr(acc,16)}, {vr(FR2+8*(i%2)+4*cb,4)}, {ar(88+4*i,4)}, {'0' if i == 0 else vr(acc,16)}")
        self.stamp(12)
        wa = {(0, 0): W0, (0, 1): W1, (1, 0): W2_, (1, 1): W3}
        for cb in range(2):
            for gp in range(2):
                for e in range(2):
                    b = 16*cb + 8*gp + 4*e
                    for i in range(4): a(f"v_fmac_f32 v{ACCF+b+i}, {V6}, v{ACCA+b+i}")
                    a.ds(f"ds_write_b128 {wa[(gp,e)]}, {vr(ACCF+b,4)} offset:{cb*128}", "rw")
        a.wait(lg="rw")
        self.stamp("rw")
        a("s_barrier")
        B = ACCA
        for k in range(4):
            a.ds(f"ds_read_b128 {vr(B+8*k,4)}, {R0} offset:{k*8192}", f"s{k}"); a.ds(f"ds_read_b128 {vr(B+8*k+4,4)}, {R1} offset:{k*8192}", f"s{k}")
        a.wait(lg="s1")
        for i in range(8): a(f"v_add_f32 v{B+i}, v{B+i}, v{B+8+i}")
        a.wait(lg="s3")
        for i in range(8): a(f"v_add_f32 v{B+16+i}, v{B+16+i}, v{B+24+i}")
        for i in range(8): a(f"v_add_f32 v{B+i}, v{B+i}, v{B+16+i}")
        for i in range(4): a(f"v_cvt_pk_bf16_f32 v{B+8+i}, v{B+2*i}, v{B+2*i+1}")
        a.vmem(f"buffer_store_dwordx4 {vr(B+8,4)}, {OA}, {SOUT}, 0 offen", "out")
        if self.o.get('probe'): self.probe()
        if self.o.get('dbgtime'):
            a("s_waitcnt vmcnt(0)"); a("s_not_b32 s88, s26"); a("s_memrealtime s[26:27]"); a("s_waitcnt lgkmcnt(0)")
            a("v_mov_b32 v24, s88"); a("v_mov_b32 v25, s26"); a("s_mov_b64 exec, 1")
            a(f"buffer_atomic_umax v24, off, {SDBG}, 0 offset:8"); a(f"buffer_atomic_umax v25, off, {SDBG}, 0 offset:12")
            a("s_add_u32 s88, s88, s26"); a("s_add_u32 s88, s88, 1"); a("v_mov_b32 v24, s88"); a(f"buffer_atomic_umax v24, off, {SDBG}, 0 offset:16")
        if self.o.get('stamps'):
            self.stamp(13)
            a("s_waitcnt vmcnt(0)"); self.stamp(14); a("s_waitcnt lgkmcnt(0)"); self.stamp(15)
            a("s_waitcnt lgkmcnt(0)"); a("s_memrealtime s[26:27]"); a("s_waitcnt lgkmcnt(0)"); a("v_writelane_b32 v23, s26, 63")
            a(f"s_lshl_b32 {T0}, s2, 3"); a(f"s_add_u32 {T0}, {T0}, {sW}"); a(f"s_lshl_b32 {T0}, {T0}, 8"); a(f"s_add_u32 {T0}, {T0}, {ST_OFF}")
            a(f"v_lshlrev_b32 {V0}, 2, {vL}")
            a(f"buffer_store_dword v23, {V0}, {SWS}, {T0} offen")
        a("s_endpgm")
    def probe(self):
        a = self.a; L = a.label("pr")
        a("s_waitcnt vmcnt(0)"); a("s_memrealtime s[88:89]"); a("s_memtime s[90:91]"); a("s_waitcnt lgkmcnt(0)")
        if self.o['probe'] == 1: a("s_sub_u32 s92, s88, s26")
        elif self.o['probe'] == 3: a("s_sub_u32 s92, s54, s52"); a("s_lshr_b32 s92, s92, 3")
        else: a("s_sub_u32 s92, s90, s52"); a("s_lshr_b32 s92, s92, 4")
        a("s_add_u32 s92, s92, s88")
        a(f"{L}:"); a("s_memrealtime s[88:89]"); a("s_waitcnt lgkmcnt(0)"); a("s_sub_u32 s93, s88, s92"); a("s_cmp_lt_i32 s93, 0"); a(f"s_cbranch_scc1 {L}")
    def bump(self):
        a = self.a
        Lx = a.label("nb"); L = a.label("bp"); Ld = a.label("bpd")
        a("s_cmp_eq_u32 s2, 224"); a(f"s_cbranch_scc0 {Lx}"); a(f"s_cmp_eq_u32 {sW}, 0"); a(f"s_cbranch_scc0 {Lx}")
        a(f"v_lshlrev_b32 {V0}, 4, {vL}"); a(f"s_mov_b32 {T0}, {ACK_OFF}"); a(f"s_mov_b32 {sSPIN}, {SPIN}")
        a(f"{L}:")
        a(f"buffer_load_dwordx4 {vr(ACCA,4)}, {V0}, {SWS}, {T0} offen sc1"); a("s_waitcnt vmcnt(0)")
        a(f"v_cmp_ne_u32 vcc, {sTAG}, v{ACCA}")
        for i in range(1, 4):
            a(f"v_cmp_ne_u32 {sM}, {sTAG}, v{ACCA+i}"); a("s_nop 1"); a(f"s_or_b64 vcc, vcc, {sM}")
        a(f"s_cbranch_vccz {Ld}")
        a(f"s_sub_u32 {sSPIN}, {sSPIN}, 1"); a(f"s_cbranch_scc0 {L}")
        a(f"{Ld}:")
        a(f"v_mov_b32 {V0}, {sE}"); a(f"s_mov_b32 {T0}, {E_OFF}"); a("s_mov_b64 exec, 1")
        a(f"buffer_store_dword {V0}, off, {SWS}, {T0}"); a("s_mov_b64 exec, -1"); a("s_waitcnt vmcnt(0)")
        a(f"{Lx}:")
    def group1(self, la, pre=None):
        self.poll_flags(0xAAAA, pre)
        self.stamp(8)
        for d in range(min(la, 8)):
            for f in self.ldH(d): f()
    def path_q(self):
        a = self.a; o = self.o
        a(f"s_lshl_b32 {T0}, {sHG}, 20")
        L = []
        for u, acc in enumerate((ACC0, ACC1)):
            pk = PHI + 8*u
            hp = self.h_pack(acc, pk)
            for kk in range(2):
                L += hp[12*kk:12*kk+12]
                L += [f"s_add_u32 {T1}, {T0}, {u*UNIT + kk*STEP}",
                      lambda pk=pk, kk=kk: a.vmem(f"buffer_store_dwordx4 {vr(pk+4*kk,4)}, {vHS}, {SH}, {T1} offen sc1", "hst")]
        L += [self.ack_store, self.get_mode_issue, lambda: self.touch(O_OFF, sHP, V6), lambda: self.stamp(4), lambda: None]
        self.flush()
        be = o.get('bearly', 0)
        rest = ([] if be else self.dmaW2(0) + self.dmaW2(1) + self.dmaW2(2)) + self.dmaW2(8) + self.dmaW2(9) + self.dmaW2(10)
        q1, q2 = o.get('qd1', 0), o.get('qd2', 4)
        if not be:
            self.run(L); L = []
            a.wait(vm="B0"); a("s_barrier")
            self.stamp("B0")
            self.push(*rest[:q1])
        else: L.append(lambda: self.push(*rest[:q1]))
        self.passB(0, L, o.get('qper', 8), 2)
        self.flush()
        a.wait(vm="B1"); a("s_barrier")
        self.stamp("B1")
        rest = rest[q1:] + self.dmaWO(0, 4)
        self.push(*rest[:q2])
        self.passB(1, [], 0, 3)
        self.flush()
        self.stamp(5)
        a("s_barrier")
        rest = rest[q2:] + self.dmaWO(4, 8); q3 = o.get('qd3', 99)
        self.push(*rest[:q3]); rest = rest[q3:]
        sink = lambda hd, sg, b: [f"v_cvt_pk_bf16_f32 v{PHI+8*hd+4*sg+i}, v{b+2*i}, v{b+2*i+1}" for i in range(4)]
        fl = o.get('qflag', 0)
        def mid(k):
            if k == fl:
                self.get_mode_wait(); self.flag_store(FH_OFF, sJ)
        self.run(self.softmax(ACCB, ACC0, (ACC1, ACCB), FR, sink, 1, mid))
        self.flush()
        self.stamp(6)
        la = o.get('la', 3)
        self.group1(la)
        s2 = o.get('s2', 10)
        hooks = {}
        if s2 < 10:
            assert s2 >= 6
            hooks[s2 - 1] = lambda: self.o_stage_fetch(1); hooks[s2] = lambda: self.o_stage_fetch(2); hooks[s2 + 1] = self.o_stage_compute
            fo = lambda: (a.wait(vm="ost"), self.flag_store(FO_OFF, sHP))
            if s2 + 2 <= 10: hooks[s2 + 2] = fo
            self.ffn(hooks, la, rest)
            if s2 + 2 > 10: fo()
        else:
            self.ffn(hooks, la, rest)
            self.o_stage_fetch(); a("s_barrier"); self.o_stage_compute()
            a.wait(vm="ost"); self.flag_store(FO_OFF, sHP)
        self.tail()
    def path_kv(self):
        a = self.a; o = self.o
        self.kv_epilogue()
        a(f"s_cmp_ge_u32 {sHG}, 6"); a("s_cbranch_scc1 L_pathR")
        sv = (a.vm.copy(), a.lg.copy()); pend = list(self.pend)
        if not o.get('bearly', 0):
            self.push(*(self.dmaW2(0) + self.dmaW2(1) + self.dmaW2(2))[o.get('kdma', 6):])
            self.passB(0, [], 0, 3)
            self.flush()
            a.wait(vm="B1"); a("s_barrier")
            self.stamp("B1")
        rest = self.dmaW2(8) + self.dmaW2(9) + self.dmaW2(10) + self.dmaWO(0, 4); k2 = o.get('kd2', 8)
        if o.get('bearly', 0): rest = self.dmaWO(0, 4) + rest[:6]; k2 = min(k2, 4)
        self.push(*rest[:k2]); rest = rest[k2:]
        self.passB(1, [], 0, 3)
        self.flush()
        self.stamp(6)
        self.get_mode_wait()
        self.run(self.h_pack(ACCB, FR))
        a(f"s_add_u32 {T0}, {sHG}, 16"); a(f"s_lshl_b32 {T0}, {T0}, 19"); a(f"s_add_u32 {T1}, {T0}, {STEP}")
        self.store_mode(lambda f: (a(f"buffer_store_dwordx4 {vr(FR,4)}, {vHS}, {SH}, {T0} offen{f}"),
                                   a(f"buffer_store_dwordx4 {vr(FR+4,4)}, {vHS}, {SH}, {T1} offen{f}")), "hst", 2)
        a.vmem(f"buffer_load_dword {V0}, {vFL}, {SWS}, 0 offen sc1", "pf")
        a("s_barrier")
        rest = rest + self.dmaWO(4, 8)
        k3 = o.get('kd3', 99)
        for f in rest[:k3]: f()
        self.stamp(7)
        la = o.get('la', 3)
        self.group1(la, "pf")
        self.ffn({0: lambda: (a.wait(vm="hst"), self.flag_store(FH_OFF, sJ))}, la, rest[k3:])
        self.tail()
        a.vm, a.lg = sv; self.pend = pend
        a("L_pathR:")
        if not o.get('bearly', 0): self.push(*(self.dmaW2(0) + self.dmaW2(1) + self.dmaW2(2))[o.get('kdma', 6):])
        self.flush()
        a.wait(vm="B1"); a("s_barrier")
        Lng = a.label("ng")
        a(f"s_cmp_eq_u32 {sHG}, 6"); a(f"s_cbranch_scc0 {Lng}")
        self.gate_wave()
        a(f"{Lng}:")
        a("s_barrier")
        rest = self.dmaW2(8) + self.dmaW2(9) + self.dmaW2(10) + self.dmaWO(0, 8)
        r1 = o.get('rd1', 0); r2 = o.get('rd2', 0)
        for f in rest[:r1]: f()
        def gflag():
            Lx = a.label("ng")
            a(f"s_cmp_eq_u32 {sHG}, 6"); a(f"s_cbranch_scc0 {Lx}")
            sv2 = a.vm.copy()
            self.get_mode_wait(); self.flag_store(FH_OFF, sJ)
            a.vm = sv2
            a(f"{Lx}:")
            a(f"s_mov_b32 {T0}, 0x10000")
        fin = self.reducer(gflag)
        a.vmem(f"buffer_load_dword {V0}, {vFL}, {SWS}, 0 offen sc1", "pf")
        fin()
        for f in rest[r1:r1+r2]: f()
        self.group1(8, "pf")
        self.ffn({6: self.bump}, 8, rest[r1+r2:])
        self.tail()
    def gate_wave(self):
        a = self.a
        a(f"v_lshrrev_b32 {V0}, 5, {vL}"); a(f"v_lshlrev_b32 {V0}, 4, {V0}"); a(f"s_add_u32 {T0}, {sW1k}, {R + 57344}"); a(f"v_add_u32 {V0}, {T0}, {V0}")
        D = 5
        def rd(st): a.ds(f"ds_read_b128 {vr(FR+4*(st%6),4)}, {V0} offset:{st*32}", f"g{st}")
        for st in range(D): rd(st)
        for st in range(32):
            if st + D < 32: rd(st + D)
            a.wait(lg=f"g{st}")
            a(f"v_mfma_f32_32x32x16_bf16 {vr(ACCB,16)}, {vr(FR+4*(st%6),4)}, {ar(4*st,4)}, {'0' if st == 0 else vr(ACCB,16)}")
            if st % 3 == 2: self.slot()
        a(f"s_lshl_b32 {T2}, {sRB}, 2"); a(f"s_add_u32 {T2}, {T2}, {sTG}"); a(f"s_lshl_b32 {T2}, {T2}, 7"); a(f"s_add_u32 {T2}, {T2}, {G_OFF}")
        a(f"v_and_b32 {V1}, 31, {vL}"); a(f"v_lshlrev_b32 {V1}, 2, {V1}")
        a(f"v_mul_f32 {V2}, {sL2E}, v{ACCB}"); a(f"v_exp_f32_e64 {V2}, -{V2}"); a(f"v_add_f32 {V2}, 1.0, {V2}"); a(f"v_rcp_f32 {V2}, {V2}")
        a(f"buffer_store_dword {V2}, {V1}, {SWS}, {T2} offen sc1")
    def body(self):
        a = self.a
        self.prologue(); self.passA()
        a(f"s_cmp_eq_u32 {sType}, 0"); a("s_cbranch_scc1 L_pathKV")
        sv = (a.vm.copy(), a.lg.copy()); pend = list(self.pend)
        self.path_q()
        a.vm, a.lg = sv; self.pend = pend
        a("L_pathKV:")
        self.path_kv()
    def build(self):
        a = self.a
        self.body()
        a("L_end:"); a("s_endpgm")
        body = pad_hazards(a.L, verbose=True)
        head = open('cdna_kernels/' + NAME + '.s.ref').read().split('; Override')[0]
        txt = head + "; stamps: " + ",".join(self.names) + "\n" + "; @launch grid=(256,1,1) block=(512,1,1) lds=163840\n"
        txt += f".amdgcn_target \"amdgcn-amd-amdhsa--gfx950\"\n.text\n.globl {NAME}_kernel\n.p2align 8\n.type {NAME}_kernel,@function\n{NAME}_kernel:\n"
        txt += "\n".join(("" if l.endswith(':') else "    ") + l for l in body) + "\n"
        txt += f""".section .rodata,"a"
.p2align 6
.amdhsa_kernel {NAME}_kernel
  .amdhsa_next_free_vgpr 256
  .amdhsa_next_free_sgpr 102
  .amdhsa_accum_offset 128
  .amdhsa_group_segment_fixed_size 0
  .amdhsa_kernarg_size 88
  .amdhsa_user_sgpr_count 2
  .amdhsa_user_sgpr_kernarg_segment_ptr 1
  .amdhsa_system_sgpr_workgroup_id_x 1
.end_amdhsa_kernel
"""
        return txt

if __name__ == '__main__':
    out = sys.argv[1]
    opt = json.loads(sys.argv[2]) if len(sys.argv) > 2 else {}
    open(out, 'w').write(Gen(opt).build())
```

```python
import sys, json
from asmlib import *
import gen as B
from gen import *

FH_OFF = 0x1140000
FO_OFF = 0x1144000
STEP = 2048; UNIT = 8192; O_OFF = 88*STEP
X_OFF = 0x1400000
W2B = 8192
KVT = 0
SCR = 49152
sOWN, sUA, sUB, sPI, sMM, sSIDE = sHG, sU0, sU1, "s14", "s15", "s16"
sTB = sType
sR1, sR2, sH1, sH2, sW2O = "s4", "s5", "s6", "s7", "s8"
sTG2, sXR = "s10", "s11"
vL16 = vG
ACCP = ACCA
WP0V = V3
def nib(vals):
    v = 0
    for i, x in enumerate(vals): v |= x << (4*i)
    return v
T_A   = nib([0, 0, 0, 0, 1, 1, 1, 1, 1, 0, 0, 0, 0, 1, 1, 1])
T_B   = nib([1, 1, 1, 1, 1, 1, 1, 1, 0, 0, 0, 2, 2, 0, 0, 0])
T_OWN = nib([1, 1, 1, 1, 1, 1, 1, 1, 1, 0, 0, 0, 0, 0, 0, 0])
T_K   = nib([0, 1, 2, 3, 4, 5, 6, 7, 0, 0, 1, 2, 3, 0, 0, 0])
T_UA  = nib([0, 0, 0, 0, 0, 2, 4, 6, 8, 0, 0, 0, 0, 0, 2, 4])
T_UB  = nib([0, 0, 0, 0, 0, 0, 0, 0,10, 9,10, 0, 0, 6, 7, 8])
T_N   = nib([0, 1, 2, 4, 5, 6, 7, 3, 0, 5, 6, 7, 3, 1, 2, 4])
T_C0  = nib([0, 1, 2, 3, 4, 5, 6, 7, 0, 0, 1, 2, 3, 4, 5, 6])
T_COL = nib([8, 9,10,11, 0, 2, 4, 6, 8, 8, 9,10,11, 0, 2, 4])
MASK_A = sum(1 << j for j in range(16) if (T_A >> (4*j)) & 1)
T_PI  = nib([0, 0, 0, 0, 0, 1, 2, 3, 4, 4, 5, 0, 0, 0, 1, 2])
M_EARLY = 0x0007001F; M_MID = 0x07001000; M_LATE = 0x30000000

class Gen2(Gen):
    def table(self, dst, tab):
        a = self.a
        a(f"s_mov_b32 s92, {tab & 0xffffffff:#x}"); a(f"s_mov_b32 s93, {tab >> 32:#x}"); a(f"s_lshr_b64 s[92:93], s[92:93], {T0}"); a(f"s_and_b32 {dst}, s92, 15")
    def dmaW2(self, grp, k):
        a = self.a; n, lo = ((5, 0), (6, 5))[grp]
        def f():
            a(f"s_add_u32 {sA0}, {sMM}, {k}")
            if grp == 1: a(f"s_add_u32 {sA0}, {sA0}, {sMM}")
            for _ in range(2 if grp == 1 else 1):
                a(f"s_cmp_ge_u32 {sA0}, {n}"); a(f"s_cselect_b32 {sA1}, {n}, 0"); a(f"s_sub_u32 {sA0}, {sA0}, {sA1}")
            a(f"s_lshl_b32 {sA1}, {sA0}, 13"); a(f"s_add_u32 {sA1}, {sA1}, {sW1k}")
            a(f"s_lshl_b32 {sA0}, {sA0}, 16"); a(f"s_add_u32 {sA0}, {sA0}, {sW2O}")
            if lo: a(f"s_add_u32 {sA0}, {sA0}, {lo*65536}")
            self.dma(vW2, SW2, sA0, f"s_add_u32 m0, {sA1}, {W2B + lo*8192}", "w2" + "ab"[grp])
        return f
    def nonq(self, f):
        a = self.a
        def g():
            L1 = a.label("nq"); L2 = a.label("nqd")
            a(f"s_cmp_eq_u32 {sTB}, 1"); a(f"s_cbranch_scc1 {L1}")
            f(); a(f"s_branch {L2}"); a(f"{L1}:")
            a(f"buffer_load_dword {V7}, off, {SDBG}, {sC32} sc1"); a(f"{L2}:")
        return g
    def take(self, n):
        fs = self.wx[:n]; self.wx = self.wx[n:]
        if self.o.get('w2nq', 0): self.wq = self.wq + fs; fs = [self.nonq(f) for f in fs]
        return fs
    def w2x(self): return [self.dmaW2(0, k) for k in range(5)]
    def w2y(self): return [self.dmaW2(1, k) for k in range(6)]
    def dmaWO(self, half):
        a = self.a
        def mk(i):
            def f():
                a(f"s_add_u32 {sA0}, {sMM}, {i}"); a(f"s_and_b32 {sA0}, {sA0}, 3")
                a(f"s_lshl_b32 {sA1}, {sMM}, 1"); a(f"s_and_b32 {sA1}, {sA1}, 4"); a(f"s_xor_b32 {sA1}, {sA1}, {4*half}"); a(f"s_add_u32 {sA0}, {sA0}, {sA1}")
                a(f"s_lshl_b32 {sA1}, {sA0}, 13"); a(f"s_add_u32 {sA1}, {sA1}, {sW1k}"); a(f"s_lshl_b32 {sA0}, {sA0}, 16")
                self.dma(vW2, SWO, sA0, f"s_add_u32 m0, {sA1}, {R}", "wo")
            return f
        return [mk(i) for i in range(4)]
    def touch(self):
        a = self.a
        if 't' in self.o.get('skip', ''): return
        a(f"v_bfe_u32 {V6}, {vL}, 2, 1"); a(f"v_lshl_add_u32 {V6}, {V6}, 11, {vHS}")
        a(f"s_lshl_b32 {T2}, {sHP}, 13"); a(f"s_add_u32 {T2}, {T2}, {O_OFF}"); a(f"s_cmp_eq_u32 {sTB}, 1"); a(f"s_cselect_b32 {T2}, {T2}, 0x40000000")
        a.vmem(f"buffer_load_dword {V6}, {V6}, {SWS}, {T2} offen", "touch")
    def mall_touch(self):
        a = self.a
        a(f"s_lshl_b32 {T0}, s2, 3"); a(f"s_add_u32 {T0}, {T0}, {sW}"); a(f"s_sub_u32 {T1}, {T0}, 1376"); a(f"s_cmp_lt_u32 {T0}, 1376")
        a(f"s_cselect_b32 {T0}, {T0}, {T1}"); a("s_cselect_b32 s60, s40, s44"); a("s_cselect_b32 s61, s41, s45"); a("s_cselect_b32 s62, s42, s46"); a(f"s_lshl_b32 {T0}, {T0}, 10")
        a.vmem(f"buffer_load_dword {V6}, {vL16}, {STMP}, {T0} offen", "touch")
    def wo_touch(self, junk):
        a = self.a
        if not self.o.get('wot', 1): return
        a(f"v_lshrrev_b32 {junk}, 1, {vL}"); a(f"v_lshlrev_b32 {junk}, 10, {junk}")
        a(f"s_lshr_b32 {T2}, {sMM}, 1"); a(f"s_lshl_b32 {T2}, {T2}, 3"); a(f"s_add_u32 {T2}, {T2}, {sW}"); a(f"s_lshl_b32 {T2}, {T2}, 15"); a(f"s_lshl_b32 {T3}, {sN}, 7"); a(f"s_add_u32 {T2}, {T2}, {T3}")
        a.vmem(f"buffer_load_dword {junk}, {junk}, {SWO}, {T2} offen", "touch")
    def poll_flags(self, mask, pre_issued=None):
        a = self.a; L = a.label("pf"); Ld = a.label("pfd")
        if pre_issued is None:
            a.vmem(f"buffer_load_dword {V0}, {vFL}, {SWS}, 0 offen sc1", "pf"); pre_issued = "pf"
        a.wait(vm=pre_issued)
        a(f"s_mov_b32 {sSPIN}, {SPIN}")
        a(f"{L}:")
        a(f"v_cmp_ne_u32 vcc, {sTAG}, {V0}"); a("s_nop 1")
        if mask >> 32 and mask & 0xffffffff:
            a(f"s_and_b32 {T0}, vcc_lo, {mask & 0xffffffff:#x}"); a(f"s_and_b32 {T1}, vcc_hi, {mask >> 32:#x}"); a(f"s_or_b32 {T0}, {T0}, {T1}")
        elif mask >> 32: a(f"s_and_b32 {T0}, vcc_hi, {mask >> 32:#x}")
        else: a(f"s_and_b32 {T0}, vcc_lo, {mask:#x}")
        a(f"s_cbranch_scc0 {Ld}")
        a(f"s_sub_u32 {sSPIN}, {sSPIN}, 1"); a(f"s_cbranch_scc1 {Ld}")
        a(f"buffer_load_dword {V0}, {vFL}, {SWS}, 0 offen sc1"); a("s_waitcnt vmcnt(0)")
        a(f"s_branch {L}")
        a(f"{Ld}:")
    def pf_issue(self): self.a.vmem(f"buffer_load_dword {V0}, {vFL}, {SWS}, 0 offen sc1", "pf")
    def flag_word(self, addr):
        a = self.a
        a(f"v_mov_b32 {V1}, {sTAG}")
        a(f"s_mov_b64 exec, 1")
        self.store_mode(lambda f: a(f"buffer_store_dword {V1}, off, {SWS}, {addr}{f}"), "flag", 1)
        a(f"s_mov_b64 exec, -1")
    def flag_h(self, late):
        a = self.a
        a(f"s_add_u32 {T0}, {sPI}, {32 if late else 0}"); self.flag_word(T0)
        self.stamp("fL" if late else "fE")
    def flag_o(self):
        a = self.a
        a(f"s_and_b32 {T1}, {sRB}, 1"); a(f"s_lshl_b32 {T0}, {sC}, 1"); a(f"s_add_u32 {T0}, {T0}, {T1}"); a(f"s_lshl_b32 {T0}, {T0}, 2"); a(f"s_add_u32 {T0}, {T0}, {sTG}")
        a(f"s_lshl_b32 {T0}, {T0}, 1"); a(f"s_add_u32 {T0}, {T0}, {sBB}"); a(f"s_lshl_b32 {T0}, {T0}, 4"); a(f"s_add_u32 {T0}, {T0}, {sHP}")
        a(f"s_lshl_b32 {T0}, {T0}, 2"); a(f"s_add_u32 {T0}, {T0}, {FO_OFF}")
        self.flag_word(T0)
        self.stamp("fO")
    def prologue(self):
        a = self.a; o = self.o
        a("s_cmp_ge_u32 s2, 256"); a("s_cbranch_scc1 L_end")
        a("s_load_dwordx16 s[4:19], s[0:1], 0")
        if not o.get('ka2', 1): a("s_load_dwordx4 s[20:23], s[0:1], 64"); a("s_load_dwordx2 s[24:25], s[0:1], 80")
        if o.get('stamps'): a("s_memtime s[26:27]"); a("s_memrealtime s[66:67]")
        if o.get('span'): a("s_memrealtime s[26:27]")
        if o.get('probe'): a("s_memrealtime s[26:27]"); a("s_memtime s[52:53]")
        a(f"v_lshrrev_b32 {V7}, 6, v0"); a(f"s_and_b32 {sC}, s2, 7"); a(f"s_lshr_b32 {sJ}, s2, 4"); a(f"v_readfirstlane_b32 {sW}, {V7}")
        a(f"s_bfe_u32 {T1}, s2, 0x10003"); a(f"s_cmp_lt_u32 {sJ}, 9"); a(f"s_cselect_b32 {sOWN}, 1, 0"); a(f"s_cselect_b32 {T2}, 0, 1")
        a(f"v_bfe_u32 {V0}, v0, 3, 3"); a(f"v_bfe_u32 {V1}, v0, 4, 2"); a(f"v_and_b32 {V2}, 7, v0")
        a(f"s_xor_b32 {T2}, {T2}, {sC}"); a(f"s_lshl_b32 {sRB}, {T2}, 1"); a(f"s_or_b32 {sRB}, {sRB}, {T1}")
        a(f"v_lshl_add_u32 {V4}, {V7}, 4, {V0}"); a(f"v_xor_b32 {V3}, {V2}, {V1}"); a(f"v_lshlrev_b32 {V3}, 4, {V3}"); a(f"v_lshl_add_u32 {vX0}, {V4}, 10, {V3}")
        a(f"s_mul_i32 {sC0}, {sC}, {o.get('rotc', 1)}")
        if o.get('rotr', 0): a(f"s_mul_i32 {T2}, {sRB}, {o['rotr']}"); a(f"s_add_u32 {sC0}, {sC0}, {T2}")
        a(f"s_lshl_b32 {T0}, {sJ}, 2")
        if o.get('rotj', 1): self.table(T2, T_C0); a(f"s_mul_i32 {T2}, {T2}, {o.get('rotj', 1)}"); a(f"s_add_u32 {sC0}, {sC0}, {T2}")
        a(f"s_and_b32 {sC0}, {sC0}, 7"); a(f"s_lshl_b32 {sW2k}, {sW}, 11"); a(f"s_lshl_b32 {sA2}, {sRB}, 17")
        a(f"v_xor_b32 {vX1}, 64, {vX0}"); a(f"v_add_u32 {vX1}, 0x2000, {vX1}")
        self.table(T1, T_COL)
        a(f"s_and_b32 {sMODE}, {sC}, 1")
        a(f"s_bitcmp0_b32 {MASK_A:#x}, {sJ}")
        self.csel(T3, 3072, 2752); self.csel(T5, 1024, 128); a(f"s_cselect_b32 {T2}, 4, 11"); self.csel("s34", 512*3072, 512*2752); a(f"s_cselect_b32 {sType}, 0, 1")
        a(f"s_mul_i32 {T2}, {T2}, {sMODE}"); a(f"s_add_u32 {sUA}, {T1}, {T2}"); a(f"s_lshl_b32 {T4}, {sUA}, 7"); a(f"s_sub_u32 s34, s34, {T4}")
        a(f"v_lshl_add_u32 {V3}, {V7}, 3, {V1}"); a(f"v_mul_lo_u32 {vWA}, {V3}, {T3}")
        a(f"v_and_b32 {V3}, 15, v0"); a(f"v_lshlrev_b32 {V4}, 2, {V1}"); a(f"v_xor_b32 {V3}, {V3}, {V4}")
        a(f"v_lshrrev_b32 {V4}, 3, {V3}"); a(f"v_mul_lo_u32 {V4}, {V4}, {T5}"); a(f"v_and_b32 {V3}, 7, {V3}")
        a(f"v_lshl_add_u32 {V4}, {V3}, 4, {V4}"); a(f"v_add_u32 {vWA}, {vWA}, {V4}")
        a(f"s_lshl_b32 {sStrA64}, {T3}, 6"); a(f"s_lshl_b32 {sStrA4}, {T3}, 2")
        a("s_mov_b32 s30, 0x20000"); a("s_mov_b32 s31, 0x20000"); a("s_mov_b32 s35, 0x20000")
        a(f"s_cmp_eq_u32 {sType}, 0")
        a("s_waitcnt lgkmcnt(0)")
        if o.get('stamps'): a("v_mov_b32 v23, 0"); a(f"s_mov_b32 {sST}, 0"); a("v_writelane_b32 v23, s66, 62")
        a("s_cselect_b32 s32, s6, s14"); a("s_cselect_b32 s33, s7, s15")
        a(f"s_add_u32 s28, s4, {sA2}"); a("s_addc_u32 s29, s5, 0"); a(f"s_add_u32 s32, s32, {T4}"); a("s_addc_u32 s33, s33, 0")
        self.stamp("ka")
        if o.get('ka2', 1): a("s_load_dwordx4 s[20:23], s[0:1], 64"); a("s_load_dwordx2 s[24:25], s[0:1], 80")
        for f in self.dmaA(0): f()
        self.stamp("d0")
        a("s_getpc_b64 s[90:91]"); a("L_pc:")
        a(f"s_lshr_b32 {T0}, s2, 3"); a(f"s_lshl_b32 {T0}, {T0}, 3"); a(f"s_add_u32 {T0}, {T0}, {sW}"); a(f"s_mul_i32 {T0}, {T0}, 184"); a(f"s_min_u32 {T0}, {T0}, L_end-L_pc-68")
        a(f"v_and_b32 {V3}, 1, v0"); a(f"v_lshlrev_b32 {V3}, 6, {V3}"); a(f"v_add_u32 {V3}, {T0}, {V3}")
        a.vmem(f"global_load_dword {MJ}, {V3}, s[90:91]", "misc")
        a(f"v_and_b32 {vL}, 63, v0")
        a(f"s_and_b32 {sTG}, {sW}, 3"); a(f"s_lshr_b32 {sBB}, {sW}, 2"); a(f"s_lshl_b32 {sW1k}, {sW}, 10")
        a(f"s_lshl_b32 {T0}, {sJ}, 2"); self.table(T1, T_K); a(f"s_lshl_b32 {T2}, {sMODE}, 2"); a(f"s_xor_b32 {sHP}, {T1}, {T2}")
        c1 = self.dmaA(1)
        a(f"s_lshl_b32 {T0}, {sJ}, 2")
        self.srd(STMP, 8, 16384)
        a("s_waitcnt lgkmcnt(0)")
        if o.get('wsoff'): a(f"s_add_u32 s24, s24, {o['wsoff']:#x}"); a("s_addc_u32 s25, s25, 0")
        a(f"s_mov_b32 s9, {sType}")
        self.table(sTB, T_B); self.table(sUB, T_UB); self.table(T1, T_PI); self.table(sN, T_N)
        a(f"s_mul_i32 {T2}, {sMODE}, 11"); a(f"s_add_u32 {sUB}, {sUB}, {T2}"); a(f"s_lshl_b32 {sW2O}, {T2}, 16")
        a(f"s_cmp_eq_u32 {sTB}, 1")
        a("s_cselect_b32 s36, s6, s14"); a("s_cselect_b32 s37, s7, s15"); self.csel("s38", 512*3072, 512*2752); a("s_mov_b32 s39, 0x20000")
        self.csel(T3, 3072, 2752); a(f"s_cselect_b32 {T4}, {sHP}, {sUB}")
        a(f"s_lshl_b32 {sStrB64}, {T3}, 6"); a(f"s_lshl_b32 {T4}, {T4}, 7")
        a(f"s_cmp_eq_u32 {sTB}, 2"); a(f"s_cselect_b32 {T4}, 0x40000000, {T4}")
        self.srd(SW2, 16, 1376*1024); self.srd(SWO, 10, 512*1024); self.srd(SWS, 24, WS_SIZE);
        self.srd(SDBG, 22, 256)
        a(f"s_mov_b32 {sSIDE}, {sMODE}")
        a(f"s_lshl_b32 {T2}, {sC}, 1"); a(f"s_xor_b32 {T5}, {sOWN}, 1"); a(f"s_add_u32 {T2}, {T2}, {T5}"); a(f"s_lshl_b32 {T2}, {T2}, 1"); a(f"s_and_b32 {T5}, {sRB}, 1")
        a(f"s_add_u32 {T2}, {T2}, {T5}"); a(f"s_lshl_b32 {T2}, {T2}, 2"); a(f"s_add_u32 {T2}, {T2}, {sTG}"); a(f"s_lshl_b32 {T2}, {T2}, 1"); a(f"s_add_u32 {T2}, {T2}, {sBB}")
        a(f"s_lshl_b32 {T2}, {T2}, 4"); a(f"s_add_u32 {T2}, {T2}, {T1}"); a(f"s_lshl_b32 {T2}, {T2}, 2"); a(f"s_add_u32 {sPI}, {T2}, {FH_OFF}")
        a(f"s_lshl_b32 {T5}, {T5}, 1"); a(f"s_add_u32 {sMM}, {T5}, s9")
        a(f"v_and_b32 {V3}, 1, {V1}"); a(f"v_lshlrev_b32 {V3}, 2, {V3}"); a(f"v_xor_b32 {V3}, {V3}, {V2}"); a(f"v_lshlrev_b32 {V3}, 4, {V3}")
        a(f"s_lshl_b32 {T1}, {sW}, 3"); a(f"v_add_u32 {V4}, {T1}, {V0}")
        a(f"v_mul_lo_u32 {vWB}, {V4}, {T3}"); a(f"v_add3_u32 {vWB}, {vWB}, {V3}, {T4}")
        a(f"s_lshl_b32 {T1}, {sN}, 7"); a(f"v_lshl_add_u32 {vW2}, {V4}, 10, {V3}"); a(f"v_add_u32 {vW2}, {T1}, {vW2}")
        a(f"v_lshlrev_b32 {vL16}, 4, {vL}")
        Lg = a.label("gsrd")
        a(f"s_cmp_eq_u32 {sJ}, 11"); a(f"s_cbranch_scc0 {Lg}")
        a("s_mov_b32 s36, s18"); a("s_mov_b32 s37, s19"); a("s_mov_b32 s38, 1024"); a(f"s_mov_b32 {sStrB64}, 0")
        a(f"v_add_u32 {V4}, {sC0}, {V0}"); a(f"v_and_b32 {V4}, 7, {V4}"); a(f"v_lshlrev_b32 {V3}, 4, {V2}"); a(f"v_lshl_add_u32 {vWB}, {V4}, 7, {V3}")
        a(f"{Lg}:")
        c1[0]()
        a(f"v_lshrrev_b32 {V0}, 5, {vL}"); a(f"v_bfe_u32 {V2}, {vL}, 2, 2")
        a(f"v_and_b32 {V3}, 1, {vL}"); a(f"v_bfe_u32 {V4}, {vL}, 1, 1"); a(f"v_lshl_add_u32 {V3}, {V3}, 1, {V4}"); a(f"v_lshlrev_b32 {V3}, 3, {V3}")
        a(f"v_and_b32 {V6}, 1, {V1}"); a(f"v_lshl_add_u32 {V3}, {V6}, 5, {V3}")
        a(f"v_lshl_add_u32 {V4}, {V0}, 3, {V2}")
        a(f"v_xor_b32 {V5}, {sBB}, {V2}"); a(f"v_lshlrev_b32 {V5}, 6, {V5}"); a(f"v_lshl_add_u32 {V5}, {V4}, 8, {V5}"); a(f"v_add_u32 {V5}, {V5}, {V3}")
        a(f"v_add_u32 {vAR0}, {WSL(0)}, {V5}"); a(f"v_xor_b32 {vAR1}, 128, {vAR0}")
        a(f"v_and_b32 {V7}, 31, {vL}"); a(f"v_bfe_u32 {V5}, {vL}, 1, 3"); a(f"v_xor_b32 {V5}, {V5}, {V0}"); a(f"v_lshlrev_b32 {V5}, 4, {V5}")
        a(f"s_lshl_b32 {T0}, {sTG}, 12"); a(f"v_lshl_add_u32 {vXR0}, {V7}, 7, {V5}"); a(f"v_add_u32 {vXR0}, {T0}, {vXR0}")
        a(f"v_xor_b32 {vXR1}, 32, {vXR0}"); a(f"v_xor_b32 {vXR2}, 64, {vXR0}"); a(f"v_xor_b32 {vXR3}, 0x60, {vXR0}")
        c1[1]()
        a(f"v_lshrrev_b32 {V5}, 1, {V2}"); a(f"v_lshlrev_b32 {V5}, 6, {V5}"); a(f"v_lshl_add_u32 {V5}, {V4}, 7, {V5}"); a(f"v_add_u32 {V5}, {V5}, {V3}")
        a(f"s_lshl_b32 {T0}, {sBB}, 6"); a(f"v_xor_b32 {vBR}, {T0}, {V5}"); a(f"v_add_u32 {vBR}, {R}, {vBR}")
        a(f"s_bfe_u32 {T0}, {sW}, 0x10001"); a(f"s_lshl_b32 {T1}, {T0}, 12"); a(f"s_lshl_b32 {T0}, {T0}, 6")
        a(f"v_xor_b32 {vPR0}, {T0}, {V5}"); a(f"v_add_u32 {vPR0}, {T1}, {vPR0}"); a(f"v_xor_b32 {vPR1}, 64, {vPR0}")
        a(f"v_add_u32 {vPO0}, {R}, {vPR0}"); a(f"v_add_u32 {vPO1}, {R}, {vPR1}")
        a(f"v_mul_u32_u24 {V5}, {512-32}, {V6}"); a(f"v_add_u32 {V5}, {V5}, {V3}"); a(f"v_lshl_add_u32 {V5}, {V4}, 5, {V5}")
        a(f"s_lshl_b32 {T0}, {sBB}, 12"); a(f"s_add_u32 {T0}, {T0}, {R + 57344}"); a(f"v_add_u32 {MWP}, {T0}, {V5}")
        a(f"s_cmp_ge_u32 {sN}, 5"); a(f"s_cselect_b32 {T0}, 5, 0"); a(f"s_sub_u32 {sR2}, {sN}, {T0}")
        if not o.get('hrot', 1): a(f"s_mov_b32 {sR2}, 0")
        a(f"s_lshr_b32 {T0}, {sW2O}, 3"); a(f"s_lshl_b32 {T1}, {sSIDE}, 21"); a(f"s_cmp_eq_u32 {sTB}, 1"); a(f"s_cselect_b32 {T2}, 0, 0x200000"); a(f"s_xor_b32 {T1}, {T1}, {T2}"); a(f"s_add_u32 {sH2}, {T0}, {T1}")
        a(f"s_lshl_b32 {sC32}, {sC}, 5")
        a(f"s_mov_b32 {sL2E}, 0x3fb8aa3b"); a("s_mov_b32 s0, 0x3fb8aa3b"); a("s_mov_b32 s1, 0x3fb8aa3b")
        c1[2]()
        a(f"s_and_b32 {T0}, {sMM}, 2"); a(f"s_add_u32 {T0}, {T0}, {sBB}"); a(f"s_lshl_b32 {T0}, {T0}, 1"); a(f"s_and_b32 {T1}, {sW}, 1"); a(f"s_add_u32 {sTG2}, {T0}, {T1}")
        a(f"s_bfe_u32 {T1}, {sW}, 0x10001")
        a(f"v_lshrrev_b32 {V3}, 3, {vL}"); a(f"v_cmp_eq_u32 vcc, 3, {V3}")
        a(f"s_and_b32 {T2}, {sTG2}, 3"); a(f"s_add_u32 {T2}, {T2}, 9"); a(f"s_lshl_b32 {T2}, {T2}, 7"); a(f"v_add_u32 {V3}, {T2}, {vL16}"); a(f"v_cndmask_b32 {V3}, {vL16}, {V3}, vcc")
        a(f"s_and_b32 {T3}, {sC}, 6"); a(f"s_lshl_b32 {T3}, {T3}, 3"); a(f"s_add_u32 {T3}, {T3}, {sTG2}")
        a(f"s_lshl_b32 {T2}, {T3}, 18"); a(f"s_lshl_b32 {T3}, {T1}, 12"); a(f"s_add_u32 {T2}, {T2}, {T3}"); a(f"v_add_u32 {vHL}, {T2}, {V3}")
        a(f"s_add_u32 {T2}, {sTG}, 9"); a(f"s_lshl_b32 {T2}, {T2}, 7"); a(f"v_add_u32 {V3}, {T2}, {vL16}"); a(f"v_cndmask_b32 {vHS}, {vL16}, {V3}, vcc")
        a(f"s_lshl_b32 {T0}, {sTG2}, 1"); a(f"s_add_u32 {T0}, {T0}, {T1}"); a(f"s_lshl_b32 {T0}, {T0}, 6")
        a(f"s_lshl_b32 {T1}, {sC}, 11"); a(f"s_add_u32 {T1}, {T1}, {T0}"); a(f"s_cmp_eq_u32 {sTB}, 1"); self.csel(T3, FH_OFF, FH_OFF + 1024); a(f"s_add_u32 {T1}, {T1}, {T3}")
        a(f"s_lshl_b32 {T2}, {sC}, 10"); a(f"s_add_u32 {T2}, {T2}, {T0}"); a(f"s_add_u32 {T2}, {T2}, {FO_OFF}")
        a(f"v_and_b32 {V3}, 15, {vL}"); a(f"v_lshlrev_b32 {V3}, 2, {V3}"); a(f"v_add_u32 {V4}, {T2}, {V3}"); a(f"v_add_u32 {V3}, {T1}, {V3}")
        a(f"v_cmp_gt_u32 vcc, 16, {vL}"); a(f"v_cndmask_b32 {vFL}, {V4}, {V3}, vcc")
        a(f"s_lshr_b32 {T2}, {sTG2}, 1"); a(f"s_lshl_b32 {T3}, {sC}, 2"); a(f"s_add_u32 {T2}, {T2}, {T3}"); a(f"s_lshl_b32 {T2}, {T2}, 3"); a(f"s_add_u32 {T2}, {T2}, {sN}"); a(f"s_lshl_b32 {T2}, {T2}, 14")
        a(f"s_and_b32 {T3}, {sW}, 1"); a(f"s_lshl_b32 {T3}, {T3}, 13"); a(f"s_add_u32 {T2}, {T2}, {T3}"); a(f"s_bfe_u32 {T3}, {sW}, 0x10001"); a(f"s_lshl_b32 {T3}, {T3}, 12"); a(f"s_add_u32 {T2}, {T2}, {T3}")
        a(f"s_add_u32 {sXR}, {T2}, {X_OFF}")
        a(f"s_lshl_b32 {T0}, {sRB}, 2"); a(f"s_add_u32 {T0}, {T0}, {sTG}"); a(f"s_lshl_b32 {T0}, {T0}, 18"); a(f"s_lshl_b32 {T1}, {sBB}, 12"); a(f"s_add_u32 {T0}, {T0}, {T1}")
        a(f"v_add_u32 {vHS}, {T0}, {vHS}")
        c1[3]()
        def census():
            a(f"s_getreg_b32 {sXCC}, hwreg(HW_REG_XCC_ID, 0, 4)")
            a(f"s_mul_i32 {T2}, {sXCC}, {sXCC}"); a(f"s_lshl_b32 {T2}, {T2}, 16"); a(f"s_lshl_b32 {T3}, {sXCC}, 8"); a(f"s_add_u32 {T2}, {T2}, {T3}"); a(f"s_add_u32 {T2}, {T2}, 1")
            a(f"s_cmp_eq_u32 {sW}, 0"); a(f"s_cselect_b32 {T0}, {sC32}, 0x1000")
            a(f"v_mov_b32 {MAT}, {T2}")
            a("s_mov_b64 exec, 1")
            a.vmem(f"buffer_atomic_add {MAT}, off, {SDBG}, {T0}", "misc")
            a("s_mov_b64 exec, -1")
        def m_wphi():
            L1 = a.label("wp"); L2 = a.label("wpd")
            a(f"s_lshl_b32 {T0}, {sHP}, 11"); a(f"s_lshl_b32 {T1}, {sBB}, 10"); a(f"s_add_u32 {T0}, {T0}, {T1}")
            a(f"s_add_u32 m0, {sW1k}, {R + 57344}")
            a(f"s_cmp_eq_u32 {sTG}, 0"); a(f"s_cbranch_scc0 {L1}")
            a.vmem(f"buffer_load_dwordx4 {vL16}, {STMP}, {T0} offen lds", "misc")
            a(f"s_branch {L2}"); a(f"{L1}:")
            a(f"buffer_load_dword {MJ}, off, {STMP}, {T0}")
            a(f"{L2}:")
        def m_e():
            a(f"s_mov_b32 {T0}, {E_OFF}")
            a.vmem(f"buffer_load_dword {ME}, off, {SWS}, {T0} sc1", "misc")
        m_fl = lambda: a.vmem(f"buffer_load_dword {MJ}, {vFL}, {SWS}, 0 offen sc1", "misc")
        census()
        self.misc = [m_e, m_wphi, m_fl]
        self.stamp(1)
    def passA(self):
        a = self.a; o = self.o
        xr = [vXR0, vXR1, vXR2, vXR3]; buf = [FR, FR + 8, FR + 16, PHI]
        def reads(c, st):
            s = c % 3; b = buf[st]
            a.ds(f"ds_read_b128 {ar(16*c+4*st,4)}, {xr[st]} offset:{XS(s)}", f"r{st}")
            for u, v in ((0, vAR0), (1, vAR1)):
                for e in range(2):
                    a.ds(f"ds_read_b64_tr_b16 {vr(b+4*u+2*e,2)}, {v} offset:{s*16384 + st*4096 + e*1024}", f"r{st}")
        def landed(tag, n):
            assert a.vm.q.count(tag) == n, (tag, a.vm.q)
            a.wait(vm=tag)
        def m1(c, st, u):
            acc = (ACC0, ACC1)[u]
            cc = "0" if (c == 0 and st == 0) else vr(acc, 16)
            a(f"v_mfma_f32_32x32x16_bf16 {vr(acc,16)}, {vr(buf[st]+4*u,4)}, {ar(16*c+4*st,4)}, {cc}")
        def half(c, st, rd, nslot):
            pat = o.get('apat', 'MRMRVMVMV')
            mf = [(st, 0), (st, 1), (st+1, 0), (st+1, 1)]; rd = list(rd); left = nslot; nv = pat.count('V')
            for ch in pat:
                if ch == 'M': m1(c, *mf.pop(0))
                elif ch == 'R':
                    if rd: reads(*rd.pop(0))
                else:
                    n = -(-left // nv); self.slot(n); left -= n; nv -= 1
        bsched = o.get('bsched', [0, 0, 0, 1, 1, 3, 3, 0])
        assert sum(bsched) == 8 and sum(bsched[:5]) <= 7
        bl = o.get('blate', 0); assert not (bl and o.get('kil', 1))
        nb = 0
        self.push(*self.dmaA(2)); self.slot(2)
        self.push(*self.misc)
        landed("c0", 4); a("s_barrier")
        self.stamp(2)
        reads(0, 0); reads(0, 1)
        self.slot(2)
        for c in range(8):
            a.wait(lg="r1")
            half(c, 0, [(c, 2), (c, 3)], len(self.pend))
            if c == 4:
                a.ds(f"ds_read_b64_tr_b16 {vr(WP0,2)}, {MWP}", "r3"); a.ds(f"ds_read_b64_tr_b16 {vr(WP0+2,2)}, {MWP} offset:128", "r3")
                a(f"v_readfirstlane_b32 {sE}, {ME}")
                a(f"v_and_b32 {V0}, 16, {vL}"); a(f"v_cmp_eq_u32 vcc, 0, {V0}")
                a(f"s_add_u32 {sE}, {sE}, 1"); a(f"s_mul_i32 {sTAG}, {sE}, 0x9E3779B1"); a(f"s_add_u32 {sTAG}, {sTAG}, 0x7F4A7C15")
            a.wait(lg="r3")
            if c < 7: landed(f"c{c+1}", 4)
            elif not bl:
                assert nb == 8 and not self.pend
                a.wait(vm="B0")
            a("s_barrier")
            self.stamp(f"c{c+1}")
            if c + 3 <= 7: self.push(*self.dmaA(c + 3))
            for _ in range(bsched[c]): self.push(*self.dmaB(nb)); nb += 1
            if c == o.get('mt', -1): self.push(self.mall_touch)
            if c == 7: self.wx = self.w2x(); self.wq = []; self.push(*self.take(o.get('a7', 2)))
            half(c, 2, [(c + 1, 0), (c + 1, 1)] if c < 7 else [], (len(self.pend) + 1)//2 if c < 7 else len(self.pend))
            if c == 4:
                for i in range(4):
                    a(f"v_cndmask_b32_e64 v{WP1+i}, v{WP0+i}, 0, vcc")
                    a(f"v_cndmask_b32 v{WP0+i}, 0, v{WP0+i}, vcc")
        self.stamp(3)
    def first_kv(self):
        a = self.a; o = self.o
        a(f"v_and_b32 {V4}, 31, {vL}"); a(f"v_lshrrev_b32 {V5}, 5, {vL}"); a(f"v_lshlrev_b32 {V5}, 4, {V5}"); a(f"v_lshl_add_u32 {V4}, {V4}, 5, {V5}")
        a(f"s_lshl_b32 {T0}, {sTG}, 10"); a(f"s_add_u32 {T0}, {T0}, {SCR}"); a(f"s_lshl_b32 {T1}, {sBB}, 13"); a(f"s_add_u32 {T2}, {T0}, {T1}"); a(f"s_add_u32 {T3}, {T2}, {T1}")
        a(f"v_add_u32 {V5}, {T2}, {V4}"); a(f"v_add_u32 {V4}, {T3}, {V4}")
        def sink(hd, sg, b):
            d = ACC0 + 8*hd + 4*sg
            return [f"v_cvt_pk_bf16_f32 v{d+i}, v{b+2*i}, v{b+2*i+1}" for i in range(4)] + \
                   [lambda: a.ds(f"ds_write_b128 {V4}, {vr(d,4)} offset:{(2*hd+sg)*4096}", "kw")]
        il = o.get('kil', 1)
        L = self.softmax(ACC0, ACC0, (ACC1, PHI), FR + 16, sink, 0 if il else 1)
        vf = PHI
        Vv = [f"v_cvt_pk_bf16_f32 v{vf+i}, v{ACC1+2*i}, v{ACC1+2*i+1}" for i in range(8)]
        Vv += [(lambda hd=hd: a.ds(f"ds_write_b128 {V5}, {vr(vf+4*hd,4)} offset:{32768 + hd*4096}", "kw")) for hd in range(2)]
        L = L[:10] + Vv + L[10:]
        self.push(*self.take(o.get('kd1', 2)))
        if il: self.passB(0, L, o.get('kper', 12), 100)
        else: self.run(L)
        self.flush()
        a.wait(lg="kw"); a.wait(vm="B1")
        a("s_barrier")
        self.stamp(4)
        a(f"s_lshl_b32 {T0}, {sW}, 12"); a(f"s_add_u32 {T0}, {T0}, {SCR}"); a(f"s_lshr_b32 {T1}, {sW}, 1"); a(f"s_lshl_b32 {T1}, {T1}, 12"); a(f"s_add_u32 {T1}, {T1}, {SCR + 32768}")
        a(f"v_lshlrev_b32 {V0}, 3, {vL}"); a(f"v_add_u32 {V1}, {T1}, {V0}"); a(f"v_add_u32 {V0}, {T0}, {V0}")
        A, Bv, ONE, DK, DZ = ACC0, ACC1, PHI, PHI+4, PHI+8
        for st in range(4):
            for e in range(2): a.ds(f"ds_read_b64_tr_b16 {vr(A+4*st+2*e,2)}, {V0} offset:{st*1024+e*512}", f"k{st}")
            if st == 3: a.wait(lg="k0")
            for e in range(2): a.ds(f"ds_read_b64_tr_b16 {vr(Bv+4*st+2*e,2)}, {V1} offset:{st*1024+e*512}", f"k{st}")
        for i in range(4): a(f"v_mov_b32 v{ONE+i}, 0x3f803f80")
        a(f"s_lshl_b32 {T0}, {sHP}, 4"); a(f"s_add_u32 {T0}, {T0}, {sRB}"); a(f"s_lshl_b32 {T0}, {T0}, 3"); a(f"s_add_u32 {T0}, {T0}, {sW}")
        a(f"s_lshl_b32 {T1}, {T0}, 10"); a(f"s_add_u32 {T1}, {T1}, {P_OFF}"); a(f"s_lshl_b32 {T2}, {T0}, 6"); a(f"s_add_u32 {T2}, {T2}, {PZ_OFF}")
        a(f"v_and_b32 {V3}, 15, {vL}"); a(f"v_cmp_eq_u32 vcc, 0, {V3}"); a(f"v_mov_b32 {V3}, {OOB}")
        a(f"v_cndmask_b32 {V3}, {V3}, {vL}, vcc")
        a(f"s_mov_b32 {T3}, 0x07060501"); a(f"s_mov_b32 {T4}, 0x07060502"); a(f"s_mov_b32 {T5}, 0x07060503")
        for st in range(4):
            a.wait(lg=f"k{st}")
            a(f"v_mfma_f32_16x16x32_bf16 {vr(DK,4)}, {vr(A+4*st,4)}, {vr(Bv+4*st,4)}, {'0' if st == 0 else vr(DK,4)}")
            a(f"v_mfma_f32_16x16x32_bf16 {vr(DZ,4)}, {vr(A+4*st,4)}, {vr(ONE,4)}, {'0' if st == 0 else vr(DZ,4)}")
        for D in (DK, DZ):
            a(f"v_perm_b32 v{D}, v{D}, v{D+3}, {T3}"); a(f"v_perm_b32 v{D+1}, v{D+1}, v{D+3}, {T4}"); a(f"v_perm_b32 v{D+2}, v{D+2}, v{D+3}, {T5}")
            a(f"v_mov_b32 v{D+3}, {sTAG}")
        a.vmem(f"buffer_load_dword {V7}, off, {SDBG}, {sC32} sc1", "mode")
        a.vmem(f"buffer_store_dwordx4 {vr(DK,4)}, {vL16}, {SWS}, {T1} offen sc1", "part")
        a.vmem(f"buffer_store_dwordx4 {vr(DZ,4)}, {V3}, {SWS}, {T2} offen sc1", "part")
        self.ack_store(); self.touch()
        self.stamp(5)
    def first_hh(self):
        a = self.a; o = self.o
        a(f"s_lshl_b32 {T0}, {sUA}, 13")
        L = []
        for u, acc in enumerate((ACC0, ACC1)):
            pk = PHI + 8*u
            hp = self.h_pack(acc, pk)
            for kk in range(2):
                L += hp[12*kk:12*kk+12]
                L += [f"s_add_u32 {T1}, {T0}, {u*UNIT + kk*STEP}",
                      lambda pk=pk, kk=kk: a.vmem(f"buffer_store_dwordx4 {vr(pk+4*kk,4)}, {vHS}, {SWS}, {T1} offen sc1", "hst")]
        n = o.get('hd1', 0)
        self.wx = self.wx + self.w2y()
        L += [self.ack_store, self.get_mode_issue, self.touch, lambda: self.stamp(4), lambda: self.push(*self.take(n))]
        if o.get('blate', 0):
            self.run(L); L = []
            a.wait(vm="B0"); a("s_barrier")
        self.passB(0, L, o.get('qper', 8), 2)
        self.flush()
        a.wait(vm="B1"); a("s_barrier")
        self.stamp("B1")
    def softmax_q(self, acc, pq, E, kf, mid):
        L = []; a = L.append
        for i in range(8): a(f"v_cvt_pk_bf16_f32 v{kf+i}, v{acc+2*i}, v{acc+2*i+1}")
        a(f"v_mfma_f32_32x32x16_bf16 {vr(pq,16)}, {vr(WP0,4)}, {vr(kf,4)}, 0")
        a(f"v_mfma_f32_32x32x16_bf16 {vr(pq,16)}, {vr(WP1,4)}, {vr(kf+4,4)}, {vr(pq,16)}")
        hook = lambda k: a(lambda: (self.stamp(f"sm{k}"), mid(k)))
        hook(0); a(self.slot); a(self.slot)
        S = ((kf, kf+2), (kf+4, kf+6))
        for k in range(4):
            for hd in range(2):
                p = pq + 8*hd; mp, mn = S[hd]
                if k == 0: a(f"v_max3_f32 v{mp}, v{p}, v{p+1}, v{p+2}"); a(f"v_max3_f32 v{mn}, -v{p}, -v{p+1}, -v{p+2}")
                elif k < 3: a(f"v_max3_f32 v{mp}, v{mp}, v{p+1+2*k}, v{p+2+2*k}"); a(f"v_max3_f32 v{mn}, v{mn}, -v{p+1+2*k}, -v{p+2+2*k}")
                else: a(f"v_max_f32 v{mp}, v{mp}, v{p+7}"); a(f"v_max_f32_e64 v{mn}, v{mn}, -v{p+7}")
        a(self.slot)
        def both(f):
            for hd in range(2): f(*S[hd])
        both(lambda x, y: a(f"v_permlane32_swap_b32 v{x}, v{y}"))
        both(lambda x, y: a(f"v_max_f32 v{x}, v{x}, v{y}"))
        both(lambda x, y: a(f"v_mul_f32 v{x}, {sL2E}, v{x}"))
        both(lambda x, y: a(f"v_mov_b32 v{y}, v{x}"))
        both(lambda x, y: a(f"v_permlane32_swap_b32 v{x}, v{y}"))
        a(self.slot)
        for hd in range(2):
            p = pq + 8*hd; e = E[hd]
            for sg in range(2):
                m = S[hd][sg]; b = e + 8*sg
                for i in range(8): a(f"v_fma_f32 v{b+i}, {'-' if sg else ''}v{p+i}, {sL2E}, -v{m}")
                a(self.slot)
                for i in range(8): a(f"v_exp_f32 v{b+i}, v{b+i}")
                a(self.slot)
                for i in range(4): a(f"v_cvt_pk_bf16_f32 v{PHI+8*hd+4*sg+i}, v{b+2*i}, v{b+2*i+1}")
            if hd == 0: hook(1)
        return L
    def second(self, kindA, kindB):
        a = self.a; o = self.o; P = kindA + kindB
        rest = (self.wq if kindB == 'q' else []) + self.wx
        yb = kindA == 'k' and o.get('ybar', 1)
        if yb: a("s_barrier"); rest = rest + self.w2y()
        n = o.get('d2' + P, o.get('d2' + kindA, 4)); now = rest[:n]; rest = rest[n:]
        aft = kindA == 'h' and o.get('ef', 99) < 16 and o.get('efp', 0)
        if not aft: self.push(*now)
        if kindA == 'k' and not o.get('kil', 1): self.passB(0, [], 0, o.get('kev', 3))
        early = (lambda: (self.get_mode_wait(), self.flag_h(False))) if kindA == 'h' else self.get_mode_wait
        if P == 'hh' and o.get('ytouch', 1):
            a(f"s_lshl_b32 {T0}, {sN}, 2"); a(f"s_lshr_b32 {T0}, 0x30765, {T0}"); a(f"s_and_b32 {T0}, {T0}, 7"); a(f"s_lshl_b32 {T0}, {T0}, 7"); a(f"s_add_u32 {T0}, {T0}, {sW2O}")
            a(f"s_lshr_b32 {T1}, {sMM}, 1"); a(f"s_mul_i32 {T1}, {T1}, 192"); a(f"s_mul_i32 {T2}, {sW}, 24"); a(f"s_add_u32 {T1}, {T1}, {T2}"); a(f"s_add_u32 {T1}, {T1}, 320"); a(f"s_lshl_b32 {T1}, {T1}, 10"); a(f"s_add_u32 {T0}, {T0}, {T1}")
            a(f"v_min_u32 {V6}, 23, {vL}"); a(f"v_lshlrev_b32 {V6}, 10, {V6}")
            a.vmem(f"buffer_load_dword {V6}, {V6}, {SW2}, {T0} offen", "touch")
        ef = o.get('ef', 99) if kindA == 'h' else 99
        self.passB(1, [(lambda: None)]*ef + [lambda: (early(), self.push(*now) if aft else None)] if ef < 16 else [], 1, 1 if aft else 3)
        if ef < 16: early = lambda: None
        self.flush()
        self.stamp(6)
        a("s_barrier")
        if kindA == 'k' and not yb: rest = rest + self.w2y()
        ph = Phase2(self, P)
        if kindB == 'q':
            fl = o.get('qflag', 0); qp = o.get('qp' + kindA, 0 if kindA == 'k' else 2)
            later = []
            if kindA == 'h' and o.get('w2late', 0): later = rest; rest = []
            if qp == 0:
                for f in rest: f()
                self.pf_issue()
            else: self.push(*rest)
            def mid(k):
                if k == fl: early()
                if k + 1 == qp: self.flush(); self.pf_issue()
                if k == qp: ph.begin("pf", True)
                if kindA == 'h' and o.get('hop', 'r') == 'hq' and k == o.get('h1i', 2): self.red1_issue()
            self.run(self.softmax_q(ACCB, ACC0, (ACC1, ACCB), FR, mid))
            self.flush()
            self.stamp(7)
            fin = None
            if kindA == 'h' and o.get('hop', 'r') != 'hq':
                for f in later: f()
                if qp == 3: self.pf_issue()
            elif kindA == 'h':
                if o.get('h1i', 2) == 2: self.red1_issue()
                fin0 = self.red1_finish()
                fin = lambda: (fin0(), [f() for f in later])
                if qp == 3: self.pf_issue()
            if qp >= 2: ph.begin("pf", False, fin)
            elif fin: fin()
        else:
            def stores():
                a(f"s_lshl_b32 {T2}, {sUB}, 13"); a(f"s_add_u32 {T3}, {T2}, {STEP}")
                a.vmem(f"buffer_store_dwordx4 {vr(FR,4)}, {vHS}, {SWS}, {T2} offen sc1", "hst")
                a.vmem(f"buffer_store_dwordx4 {vr(FR+4,4)}, {vHS}, {SWS}, {T3} offen sc1", "hst")
            sf = o.get('sfirst' + P, 1)
            if sf == 1:
                for f in rest: f()
                self.run(self.h_pack(ACCB, FR)); early(); stores()
                self.stamp(7)
                a.wait(vm="hst"); self.flag_h(True); ph.late = False
                ph.begin(None, False)
            else:
                for f in rest: f()
                early(); self.pf_issue()
                self.run(self.h_pack(ACCB, FR))
                ph.begin("pf", False); stores()
                self.stamp(7)
        ph.main()
    def gate_wave(self):
        a = self.a
        a(f"v_lshrrev_b32 {V0}, 5, {vL}"); a(f"v_lshlrev_b32 {V0}, 4, {V0}"); a(f"s_add_u32 {T0}, {sW1k}, {R + 57344}"); a(f"v_add_u32 {V0}, {T0}, {V0}")
        D = 5
        def rd(st): a.ds(f"ds_read_b128 {vr(FR+4*(st%6),4)}, {V0} offset:{st*32}", f"g{st}")
        for st in range(D): rd(st)
        for st in range(32):
            if st + D < 32: rd(st + D)
            a.wait(lg=f"g{st}")
            a(f"v_mfma_f32_32x32x16_bf16 {vr(ACCB,16)}, {vr(FR+4*(st%6),4)}, {ar(4*st,4)}, {'0' if st == 0 else vr(ACCB,16)}")
        a(f"s_lshl_b32 {T2}, {sRB}, 2"); a(f"s_add_u32 {T2}, {T2}, {sTG}"); a(f"s_lshl_b32 {T2}, {T2}, 8"); a(f"s_add_u32 {T2}, {T2}, {G_OFF}")
        a(f"v_and_b32 {V1}, 31, {vL}"); a(f"v_lshlrev_b32 {V1}, 3, {V1}"); a(f"v_mov_b32 {V3}, {sTAG}")
        a(f"v_mul_f32 {V2}, {sL2E}, v{ACCB}"); a(f"v_exp_f32_e64 {V2}, -{V2}"); a(f"v_add_f32 {V2}, 1.0, {V2}"); a(f"v_rcp_f32 {V2}, {V2}")
        a(f"s_cmp_eq_u32 {sBB}, 0"); a(f"s_cselect_b32 {T2}, {T2}, {OOB}")
        a(f"buffer_store_dwordx2 v[26:27], {V1}, {SWS}, {T2} offen sc1")
    def path_r(self):
        a = self.a; o = self.o
        def wom():
            a(f"s_lshl_b32 {T0}, {sRB}, 1"); a(f"s_add_u32 {T0}, {T0}, {sJ}"); a(f"s_sub_u32 {T0}, {T0}, 11"); a(f"s_lshl_b32 {T0}, {T0}, 3"); a(f"s_add_u32 {T0}, {T0}, {sW}"); a(f"s_lshl_b32 {T0}, {T0}, 11")
            a(f"v_lshlrev_b32 {V6}, 5, {vL}")
            a.vmem(f"buffer_load_dword {V6}, {V6}, {SWO}, {T0} offen", "touch")
        if o.get('wom', 1) == 1: wom()
        Lng = a.label("ng")
        a(f"s_cmp_eq_u32 {sJ}, 11"); a(f"s_cbranch_scc0 {Lng}")
        self.gate_wave()
        a(f"{Lng}:")
        a("s_barrier")
        rest = self.wx + self.w2y(); ph = Phase2(self, 'r')
        if o.get('hop', 'r') == 'r':
            n = o.get('rpre', 0)
            for f in rest[:n]: f()
            a(f"s_lshl_b32 {sRB}, {sC}, 1"); a(f"s_lshr_b32 {T0}, {sMM}, 1"); a(f"s_add_u32 {sRB}, {sRB}, {T0}"); a(f"s_sub_u32 {sOWN}, {sJ}, 5")
            fin = self.reducer(lambda: None); self.stamp("h1"); self.pf_issue(); fin()
            for f in rest[n:]: f()
            ph.begin("pf", False)
        else:
            for f in rest: f()
            ph.begin(None, False)
        if o.get('wom', 1) == 2: wom()
        ph.main()
    def red1_issue(self):
        a = self.a
        a(f"s_and_b32 {T0}, {sRB}, 1"); a(f"s_lshl_b32 {T0}, {T0}, 2"); a(f"s_add_u32 {T0}, {T0}, {sJ}"); a(f"s_sub_u32 {T0}, {T0}, 4")
        a(f"s_lshl_b32 {T2}, {sC}, 7"); a(f"s_add_u32 {T2}, {T2}, {T0}")
        a(f"s_lshl_b32 {T3}, {T2}, 10"); a(f"s_lshl_b32 {T4}, {sW}, 7"); a(f"s_add_u32 {T3}, {T3}, {T4}"); a(f"s_add_u32 {T3}, {T3}, {P_OFF}")
        a(f"v_lshrrev_b32 {V2}, 3, {vL}"); a(f"v_and_b32 {V1}, 7, {vL}"); a(f"v_lshlrev_b32 {V1}, 4, {V1}"); a(f"v_lshl_add_u32 {V2}, {V2}, 13, {V1}"); a(f"v_add_u32 {V2}, {T3}, {V2}")
        a(f"s_lshl_b32 {T3}, {T2}, 6"); a(f"s_add_u32 {T3}, {T3}, {PZ_OFF}")
        a(f"v_lshrrev_b32 {V4}, 2, {vL}"); a(f"v_and_b32 {V3}, 3, {vL}"); a(f"v_lshlrev_b32 {V3}, 4, {V3}"); a(f"v_lshl_add_u32 {V3}, {V4}, 9, {V3}"); a(f"v_add_u32 {V3}, {T3}, {V3}")
        a(f"s_lshl_b32 {T2}, {sC}, 3"); a(f"s_add_u32 {T2}, {T2}, {T0}")
        a(f"s_lshl_b32 {T3}, {T2}, 10"); a(f"s_add_u32 {T3}, {T3}, {T4}"); a(f"s_add_u32 {T3}, {T3}, {F_OFF}")
        a(f"v_mov_b32 {V6}, {OOB}"); a(f"v_cmp_gt_u32 vcc, 8, {vL}"); a(f"v_add_u32 {V4}, {T3}, {V1}"); a(f"v_cndmask_b32 {V4}, {V6}, {V4}, vcc")
        a(f"s_lshl_b32 {T3}, {T2}, 6"); a(f"s_add_u32 {T3}, {T3}, {FZ_OFF}"); a(f"s_cmp_eq_u32 {sW}, 0"); a(f"s_cselect_b32 {T3}, {T3}, {OOB - 0x100}")
        a(f"v_cmp_gt_u32 vcc, 4, {vL}"); a(f"v_add_u32 {V5}, {T3}, {V1}"); a(f"v_cndmask_b32 {V5}, {V6}, {V5}, vcc")
        self.red1_loads(True)
    def red1_loads(self, track):
        a = self.a; Bq = FR + 8
        a(f"s_mov_b32 {T5}, 0x10000")
        for s in (f"buffer_load_dwordx4 {vr(Bq,4)}, {V2}, {SWS}, 0 offen sc1", f"buffer_load_dwordx4 {vr(Bq+4,4)}, {V2}, {SWS}, {T5} offen sc1",
                  f"buffer_load_dwordx4 {vr(Bq+8,4)}, {V3}, {SWS}, 0 offen sc1"):
            a.vmem(s, "h1") if track else a(s)
    def red1_finish(self):
        a = self.a; Bq = FR + 8; Z = Bq + 8; Tm = ACC0
        L = a.label("h1"); Ld = a.label("h1d")
        a.wait(vm="h1")
        a(f"s_mov_b32 {sSPIN}, {SPIN}")
        a(f"{L}:")
        a(f"v_cmp_ne_u32 vcc, {sTAG}, v{Bq+3}")
        for i in range(1, 3):
            a(f"v_cmp_ne_u32 {sM}, {sTAG}, v{Bq+4*i+3}"); a("s_nop 1"); a(f"s_or_b64 vcc, vcc, {sM}")
        a(f"s_cbranch_vccz {Ld}")
        a(f"s_sub_u32 {sSPIN}, {sSPIN}, 1"); a(f"s_cbranch_scc1 {Ld}")
        self.red1_loads(False); a("s_waitcnt vmcnt(0)"); a(f"s_branch {L}")
        a(f"{Ld}:")
        self.stamp("h1")
        a(f"s_mov_b32 {T1}, 0x04000c0c"); a(f"s_mov_b32 {T2}, 0x0706000c")
        for i in range(3):
            b = Bq + 4*i
            a(f"v_perm_b32 v{b+3}, v{b+2}, v{b+1}, {T1}"); a(f"v_perm_b32 v{b+3}, v{b+3}, v{b}, {T2}")
        for i in range(4): a(f"v_add_f32 v{Bq+i}, v{Bq+i}, v{Bq+4+i}")
        for i in range(4): a(f"v_add_f32_dpp v{Z+i}, v{Z+i}, v{Z+i} row_ror:4 row_mask:0xf bank_mask:0xf")
        vals = list(range(Bq, Bq+4)) + list(range(Z, Z+4))
        for v in vals: a(f"v_add_f32_dpp v{v}, v{v}, v{v} row_ror:8 row_mask:0xf bank_mask:0xf")
        for op in ("v_permlane16_swap_b32", "v_permlane32_swap_b32"):
            for k, v in enumerate(vals): a(f"v_mov_b32 v{Tm+k}, v{v}")
            for k, v in enumerate(vals): a(f"{op} v{v}, v{Tm+k}")
            for k, v in enumerate(vals): a(f"v_add_f32 v{v}, v{v}, v{Tm+k}")
        for k, b in enumerate((Bq, Z)):
            d = Tm + 4*k
            a(f"v_cvt_pk_bf16_f32 v{d}, v{b}, v{b+1}"); a(f"v_cvt_pk_bf16_f32 v{d+1}, v{b+2}, v{b+3}")
            a(f"v_mov_b32 v{d+2}, {sTAG}"); a(f"v_mov_b32 v{d+3}, {sTAG}")
        return lambda: (a.vmem(f"buffer_store_dwordx4 {vr(Tm,4)}, {V4}, {SWS}, 0 offen sc1", "fin"),
                        a.vmem(f"buffer_store_dwordx4 {vr(Tm+4,4)}, {V5}, {SWS}, 0 offen sc1", "fin"))
    def f_issue(self):
        a = self.a
        a(f"s_lshl_b32 {T0}, {sHP}, 3"); a(f"s_add_u32 {T0}, {T0}, {sW}")
        a(f"s_lshl_b32 {sR1}, {T0}, 10"); a(f"s_add_u32 {sR1}, {sR1}, {F_OFF}"); a(f"s_lshl_b32 {sH1}, {T0}, 6"); a(f"s_add_u32 {sH1}, {sH1}, {FZ_OFF}")
        a(f"s_lshl_b32 {T0}, {sRB}, 2"); a(f"s_add_u32 {T0}, {T0}, {sTG}"); a(f"s_lshl_b32 {T0}, {T0}, 8"); a(f"s_add_u32 {sUA}, {T0}, {G_OFF}")
        self.f_loads(True)
    def f_loads(self, track):
        a = self.a
        a(f"v_and_b32 v28, 0x30, {vL16}")
        a(f"v_and_b32 v6, 31, {vL}"); a("v_lshlrev_b32 v6, 3, v6")
        for s in (f"buffer_load_dwordx4 v[8:11], {vL16}, {SWS}, {sR1} offen sc1", f"buffer_load_dwordx4 v[28:31], v28, {SWS}, {sH1} offen sc1",
                  f"buffer_load_dwordx2 v[6:7], v6, {SWS}, {sUA} offen sc1"):
            a.vmem(s, "h2") if track else a(s)
    def f_check(self):
        a = self.a
        L = a.label("h2"); Ld = a.label("h2d")
        a.wait(vm="h2")
        a(f"s_mov_b32 {sSPIN}, {SPIN}")
        a(f"{L}:")
        a(f"v_cmp_ne_u32 vcc, {sTAG}, v10"); a(f"v_cmp_ne_u32 {sM}, {sTAG}, v30"); a("s_nop 1"); a(f"s_or_b64 vcc, vcc, {sM}")
        a(f"v_cmp_ne_u32 {sM}, {sTAG}, v7"); a("s_nop 1"); a(f"s_or_b64 vcc, vcc, {sM}")
        a(f"s_cbranch_vccz {Ld}")
        a(f"s_sub_u32 {sSPIN}, {sSPIN}, 1"); a(f"s_cbranch_scc1 {Ld}")
        self.f_loads(False); a("s_waitcnt vmcnt(0)"); a(f"s_branch {L}")
        a(f"{Ld}:")
        self.stamp(9)
        a(f"s_add_u32 {T0}, {sW1k}, {KVT}")
        a(f"v_and_b32 {V2}, 15, {vL}"); a(f"v_lshrrev_b32 {V3}, 4, {vL}"); a(f"v_lshlrev_b32 {V3}, 3, {V3}"); a(f"v_lshl_add_u32 {V2}, {V2}, 5, {V3}"); a(f"v_add_u32 {V2}, {T0}, {V2}")
        a(f"v_lshlrev_b32 {V3}, 3, {vL}"); a(f"v_add_u32 {V3}, {T0}, {V3}")
        a.ds(f"ds_write_b64 {V2}, v[8:9]", "kt")
        a(f"v_cmp_gt_u32 vcc, 4, {vL}"); a(f"v_mov_b32 {V1}, 0x3f803f80"); a(f"v_cndmask_b32 v28, {V1}, v28, vcc"); a(f"v_cndmask_b32 v29, {V1}, v29, vcc")
        a("s_mov_b64 exec, 0xff")
        a.ds(f"ds_write_b64 {V3}, v[28:29] offset:512", "kt")
        a("s_mov_b64 exec, -1")
        self.o_addr()
        a.wait(lg="kt")
        a("s_barrier")
    def o_addr(self):
        a = self.a
        a(f"v_and_b32 {V3}, 3, {vL}"); a(f"v_bfe_u32 {V1}, {vL}, 2, 1"); a(f"v_bfe_u32 {V2}, {vL}, 3, 1")
        a(f"v_lshl_add_u32 {V3}, {V1}, 3, {V3}"); a(f"v_lshl_add_u32 {V3}, {V2}, 2, {V3}"); a(f"v_add_u32 {V2}, 16, {V2}")
        a(f"v_and_b32 {V1}, 16, {vL}"); a(f"v_cmp_eq_u32 vcc, 0, {V1}"); a(f"v_lshrrev_b32 {V1}, 5, {vL}"); a(f"v_lshlrev_b32 {V1}, 4, {V1}")
        a(f"v_cndmask_b32 {V3}, {V2}, {V3}, vcc"); a(f"v_lshl_add_u32 {V3}, {V3}, 5, {V1}")
        a(f"s_lshl_b32 {T0}, {sBB}, 12"); a(f"s_add_u32 {T0}, {T0}, {KVT}"); a(f"v_add_u32 {WP0V}, {T0}, {V3}")
    def o_compute(self):
        a = self.a
        DP, DM = ACCA, ACCA + 16
        def rd(hd):
            a.ds(f"ds_read_b128 v[8:11], {WP0V} offset:{(2*hd)*1024}", f"o{hd}"); a.ds(f"ds_read_b128 v[28:31], {WP0V} offset:{(2*hd+1)*1024}", f"o{hd}")
        rd(0)
        a(f"s_lshl_b32 {T0}, {sHP}, 13"); a(f"s_add_u32 {T0}, {T0}, {O_OFF}"); a(f"s_add_u32 {T1}, {T0}, {STEP}"); a(f"s_mov_b32 {T2}, 0x358637bd")
        for hd in range(2):
            a.wait(lg=f"o{hd}")
            a(f"v_mfma_f32_32x32x16_bf16 {vr(DM,16)}, v[28:31], {vr(PHI+8*hd+4,4)}, 0")
            a(f"v_mfma_f32_32x32x16_bf16 {vr(DP,16)}, v[8:11], {vr(PHI+8*hd,4)}, 0")
            if hd == 0: rd(1)
            self.slot(3)
            a(f"v_rcp_f32 {V1}, v{DM+12}")
            a(f"v_fma_f32 {V2}, v{DP+12}, {T2}, v{DP+8}"); a(f"v_mul_f32 {V1}, v{DP+12}, {V1}")
            a(f"v_fmac_f32 {V2}, {V1}, v{DM+8}"); a(f"v_rcp_f32 {V2}, {V2}")
            for i in range(8): a(f"v_fmac_f32 v{DP+i}, {V1}, v{DM+i}")
            a(f"v_mul_f32 {V2}, v6, {V2}")
            for i in range(8): a(f"v_mul_f32 v{DP+i}, {V2}, v{DP+i}")
            for i in range(4): a(f"v_cvt_pk_bf16_f32 v{PHI+8*hd+i}, v{DP+2*i}, v{DP+2*i+1}")
        ofl = self.o.get('osfl', '')
        self.store_mode(lambda f: (a(f"buffer_store_dwordx4 {vr(PHI,4)}, {vHS}, {SWS}, {T0} offen{f or ' ' + ofl}"),
                                   a(f"buffer_store_dwordx4 {vr(PHI+8,4)}, {vHS}, {SWS}, {T1} offen{f or ' ' + ofl}")), "ost", 2)
    def g_loads(self, track):
        a = self.a
        a(f"s_lshl_b32 {T1}, {sC}, 3"); a(f"s_add_u32 {T1}, {T1}, {sTG2}"); a(f"s_lshl_b32 {T1}, {T1}, 8"); a(f"s_add_u32 {T1}, {T1}, {G_OFF}")
        a(f"v_and_b32 {V2}, 31, {vL}"); a(f"v_lshlrev_b32 {V2}, 3, {V2}")
        s = f"buffer_load_dwordx2 v[26:27], {V2}, {SWS}, {T1} offen sc1"
        a.vmem(s, "g") if track else a(s)
    def x_loads(self, track):
        a = self.a
        a(f"s_xor_b32 {T2}, {sXR}, {32*16384}")
        for s in [f"buffer_load_dwordx4 {vr(ACCA+4*k,4)}, {vL16}, {SWS}, {T2} offen offset:{k*1024} sc1" for k in range(4)]:
            a.vmem(s, "x") if track else a(s)
    def spin(self, regs, tag, reload):
        a = self.a; L = a.label("sp"); Ld = a.label("spd")
        a.wait(vm=tag)
        a(f"s_mov_b32 {sSPIN}, {SPIN}")
        a(f"{L}:")
        a(f"v_cmp_ne_u32 vcc, {sTAG}, {regs[0]}")
        for r in regs[1:]: a(f"v_cmp_ne_u32 {sM}, {sTAG}, {r}"); a("s_nop 1"); a(f"s_or_b64 vcc, vcc, {sM}")
        a(f"s_cbranch_vccz {Ld}")
        a(f"s_sub_u32 {sSPIN}, {sSPIN}, 1"); a(f"s_cbranch_scc1 {Ld}")
        reload(False); a("s_waitcnt vmcnt(0)"); a(f"s_branch {L}")
        a(f"{Ld}:")
    def x_fold(self):
        a = self.a
        self.spin([f"v{ACCA+4*k+3}" for k in range(4)], "x", self.x_loads)
        a(f"s_mov_b32 {T1}, 0x04000c0c"); a(f"s_mov_b32 {T2}, 0x0706000c")
        for k in range(4):
            b = ACCA + 4*k
            a(f"v_perm_b32 v{b+3}, v{b+2}, v{b+1}, {T1}"); a(f"v_perm_b32 v{b+3}, v{b+3}, v{b}, {T2}")
    def tail2(self):
        a = self.a; o = self.o
        xi = o.get('xi', -1)
        self.srd(SOUT, 20, 0x200000)
        self.g_loads(True)
        if xi < 0: self.x_loads(True)
        self.pf_issue()
        W = [vX0, vX1, vWA, vWB]; R0, R1, OA = vXR0, vXR3, vAR0
        a(f"v_and_b32 {W[0]}, 31, {vL}"); a(f"v_lshrrev_b32 {V1}, 5, {vL}"); a(f"v_lshlrev_b32 {V1}, 1, {V1}"); a(f"v_and_b32 {V4}, 7, {vL}")
        a(f"v_xor_b32 {V1}, {V1}, {V4}"); a(f"v_lshlrev_b32 {V1}, 4, {V1}"); a(f"v_lshl_add_u32 {W[0]}, {W[0]}, 8, {V1}")
        a(f"s_bfe_u32 {T4}, {sW}, 0x10001"); a(f"s_lshl_b32 {T2}, {sW}, 13"); a(f"s_lshl_b32 {T3}, {T4}, 7"); a(f"s_add_u32 {T2}, {T2}, {T3}"); a(f"s_add_u32 {T2}, {T2}, {W2B}")
        a(f"v_add_u32 {W[0]}, {T2}, {W[0]}"); a(f"v_xor_b32 {W[1]}, 16, {W[0]}"); a(f"v_xor_b32 {W[2]}, 64, {W[0]}"); a(f"v_xor_b32 {W[3]}, 0x50, {W[0]}")
        a(f"v_lshrrev_b32 {V5}, 3, {vL}"); a(f"v_lshlrev_b32 {R0}, 1, {V4}"); a(f"v_xor_b32 {R0}, {R0}, {V5}"); a(f"v_lshlrev_b32 {R0}, 4, {R0}"); a(f"v_lshl_add_u32 {R0}, {V5}, 8, {R0}")
        a(f"s_and_b32 {T2}, {sW}, 5"); a(f"s_lshl_b32 {T2}, {T2}, 13"); a(f"s_lshl_b32 {T3}, {T4}, 12"); a(f"s_add_u32 {T2}, {T2}, {T3}"); a(f"s_add_u32 {T2}, {T2}, {W2B}")
        a(f"v_add_u32 {R0}, {T2}, {R0}"); a(f"v_xor_b32 {R1}, 16, {R0}")
        a(f"s_lshl_b32 {T2}, {sC}, 3"); a(f"s_add_u32 {T2}, {T2}, {sTG2}"); a(f"s_lshl_b32 {T2}, {T2}, 1"); a(f"s_add_u32 {T2}, {T2}, {T4}"); a(f"s_lshl_b32 {T2}, {T2}, 14"); a(f"s_lshl_b32 {T3}, {sN}, 7"); a(f"s_add_u32 {T2}, {T2}, {T3}")
        a(f"v_lshlrev_b32 {V4}, 4, {V4}"); a(f"v_lshl_add_u32 {OA}, {V5}, 10, {V4}"); a(f"v_add_u32 {OA}, {T2}, {OA}")
        a.wait(vm="wo"); a("s_barrier")
        self.stamp(10)
        bufs = [vr(FR2, 8), vr(FR2 + 8, 8), vr(PHI, 8)]
        def rd(i):
            b = (FR2, FR2 + 8, PHI)[i % 3]
            for cb, v in ((0, vPO0), (1, vPO1)):
                for e in range(2): a.ds(f"ds_read_b64_tr_b16 {vr(b+4*cb+2*e,2)}, {v} offset:{(i>>1)*8192 + (i&1)*2048 + e*512}", f"a{i}")
        rd(0); rd(1)
        self.spin(["v27"], "g", self.g_loads)
        a(f"v_sub_f32 {V2}, 1.0, {V2}")
        for i in range(32): a(f"v_mul_f32 v{ACCF+i}, {V2}, v{ACCF+i}")
        self.stamp("gx")
        self.poll_flags(0xff0000, "pf")
        self.stamp(11)
        def ld(i):
            if not i & 1: a(f"s_add_u32 {T0}, {T5}, {O_OFF + (i>>1)*UNIT}")
            a.vmem(f"buffer_load_dwordx4 {ar(4*i,4)}, {vHL}, {SWS}, {T0} offen offset:{(i&1)*2048} sc1", f"o{i}")
        a(f"s_lshl_b32 {T5}, {sSIDE}, 21")
        LA = o.get('ola', 6)
        for i in range(LA): ld(i)
        for i in range(16):
            if i + 2 < 16: rd(i + 2)
            if i + LA < 16: ld(i + LA)
            if i == xi: self.x_loads(True)
            if i == 15: self.x_fold()
            a.wait(vm=f"o{i}", lg=f"a{i}")
            for cb in range(2):
                acc = vr(ACCF + 16*cb, 16)
                a(f"v_mfma_f32_32x32x16_bf16 {acc}, {vr((FR2, FR2 + 8, PHI)[i % 3]+4*cb,4)}, {ar(4*i,4)}, {acc}")
        self.stamp(12)
        for cb in range(2):
            for k in range(4):
                if cb == 0:
                    for i in range(4): a(f"v_fmac_f32 v{ACCF+4*k+i}, {V2}, v{ACCA+4*k+i}")
                a.ds(f"ds_write_b128 {W[k]}, {vr(ACCF+16*cb+4*k,4)}", "rw")
                if cb == 0: a(f"v_xor_b32 {W[k]}, 0x80, {W[k]}")
        a.wait(lg="rw")
        a("s_barrier")
        self.stamp("rw")
        Bq = ACCA
        for ep in range(2):
            for src in range(2):
                b = Bq + 16*ep + 8*src
                a.ds(f"ds_read_b128 {vr(b,4)}, {R0} offset:{src*16384 + ep*2048}", f"s{ep}"); a.ds(f"ds_read_b128 {vr(b+4,4)}, {R1} offset:{src*16384 + ep*2048}", f"s{ep}")
        a(f"s_mov_b32 {T0}, 8192")
        for ep in range(2):
            b = Bq + 16*ep
            a.wait(lg=f"s{ep}")
            for i in range(8): a(f"v_add_f32 v{b+i}, v{b+i}, v{b+8+i}")
            for i in range(4): a(f"v_cvt_pk_bf16_f32 v{b+8+i}, v{b+2*i}, v{b+2*i+1}")
            a.vmem(f"buffer_store_dwordx4 {vr(b+8,4)}, {OA}, {SOUT}, {T0 if ep else 0} offen {o.get('ofl', '')}", "out")
        self.finish()
    def finish(self):
        a = self.a
        if self.o.get('probe'): self.probe()
        if self.o.get('span'):
            a("s_waitcnt vmcnt(0)"); a("v_mov_b32 v24, s26"); a("s_memrealtime s[26:27]"); a("s_waitcnt lgkmcnt(0)"); a("v_mov_b32 v25, s26")
            a(f"s_lshl_b32 {T0}, s2, 3"); a(f"s_add_u32 {T0}, {T0}, {sW}"); a(f"s_lshl_b32 {T0}, {T0}, 8"); a(f"s_add_u32 {T0}, {T0}, {ST_OFF + 248}")
            a("s_mov_b64 exec, 1"); a(f"buffer_store_dwordx2 v[24:25], off, {SWS}, {T0}")
        if self.o.get('stamps'):
            self.stamp(13)
            a("s_waitcnt vmcnt(0)"); self.stamp(14); a("s_waitcnt lgkmcnt(0)"); self.stamp(15)
            a("s_waitcnt lgkmcnt(0)"); a("s_memrealtime s[26:27]"); a("s_waitcnt lgkmcnt(0)"); a("v_writelane_b32 v23, s26, 63")
            a(f"s_lshl_b32 {T0}, s2, 3"); a(f"s_add_u32 {T0}, {T0}, {sW}"); a(f"s_lshl_b32 {T0}, {T0}, 8"); a(f"s_add_u32 {T0}, {T0}, {ST_OFF}")
            a(f"v_lshlrev_b32 {V0}, 2, {vL}")
            a(f"buffer_store_dword v23, {V0}, {SWS}, {T0} offen")
        a("s_endpgm")
    def bump(self):
        a = self.a
        Lx = a.label("nb"); L = a.label("bp"); Ld = a.label("bpd")
        a("s_cmp_eq_u32 s2, 192"); a(f"s_cbranch_scc0 {Lx}"); a(f"s_cmp_eq_u32 {sW}, 0"); a(f"s_cbranch_scc0 {Lx}")
        a(f"s_mov_b32 {T0}, {ACK_OFF}"); a(f"s_mov_b32 {sSPIN}, {SPIN}")
        a(f"{L}:")
        a(f"buffer_load_dwordx4 v[8:11], {vL16}, {SWS}, {T0} offen sc1"); a("s_waitcnt vmcnt(0)")
        a(f"v_cmp_ne_u32 vcc, {sTAG}, v8")
        for i in range(1, 4):
            a(f"v_cmp_ne_u32 {sM}, {sTAG}, v{8+i}"); a("s_nop 1"); a(f"s_or_b64 vcc, vcc, {sM}")
        a(f"s_cbranch_vccz {Ld}")
        a(f"s_sub_u32 {sSPIN}, {sSPIN}, 1"); a(f"s_cbranch_scc0 {L}")
        a(f"{Ld}:")
        a(f"v_mov_b32 {V1}, {sE}"); a(f"s_mov_b32 {T0}, {E_OFF}"); a("s_mov_b64 exec, 1")
        a(f"buffer_store_dword {V1}, off, {SWS}, {T0}"); a("s_mov_b64 exec, -1"); a("s_waitcnt vmcnt(0)")
        a(f"{Lx}:")
    def save(self): return (self.a.vm.copy(), self.a.lg.copy(), list(self.pend), list(self.wx), list(self.wq))
    def restore(self, s): self.a.vm, self.a.lg, self.pend, self.wx, self.wq = s[0].copy(), s[1].copy(), list(s[2]), list(s[3]), list(s[4])
    def body(self):
        a = self.a
        self.prologue(); self.passA()
        s0 = self.save()
        a("s_cmp_eq_u32 s9, 0"); a("s_cbranch_scc1 L_kv")
        self.first_hh(); s1 = self.save()
        a(f"s_cmp_eq_u32 {sTB}, 1"); a("s_cbranch_scc1 L_hq")
        self.second('h', 'h')
        a("L_hq:"); self.restore(s1); self.second('h', 'q')
        a("L_kv:"); self.restore(s0)
        self.first_kv(); s1 = self.save()
        a(f"s_cmp_eq_u32 {sTB}, 1"); a("s_cbranch_scc1 L_kq")
        a(f"s_cmp_eq_u32 {sTB}, 2"); a("s_cbranch_scc1 L_r")
        self.second('k', 'h')
        a("L_kq:"); self.restore(s1); self.second('k', 'q')
        a("L_r:"); self.restore(s1); self.path_r()

class Phase2:
    def __init__(self, g, P):
        self.g = g; self.P = P; o = g.o
        self.hasq = P[-1] == 'q'; self.late = P in ('hh', 'kh')
        self.opt = lambda k, d: o.get(k + P, o.get(k, d))
        two = lambda L: [(kind, k, s) for kind, k in L for s in range(2)]
        if self.hasq: self.seq = two([('r', k) for k in range(5)] + [('R', k) for k in range(5)] + [('s', 10)]); self.masks = (0x1f, 0x1000, 0); self.i_mid, self.i_late = 20, 99
        else: self.seq = two([('r', k) for k in range(5)] + [('s', u) for u in range(5, 11)]); self.masks = (0x7, 0x700, 0x3000); self.i_mid, self.i_late = 12, 18
        self.issued = set(); self.lim = self.i_mid
        self.bufs = [vr(FR2, 8), vr(FR2 + 8, 8), ar(120, 8)]
    def sub(self, b, lo, n):
        kind = b[0]; base = int(b[2:b.index(':')]); return f"{kind}[{base+lo}:{base+lo+n-1}]"
    def idx(self, e, dst):
        a = self.g.a; kind, k, s = e
        if kind == 's': a(f"s_mov_b32 {dst}, {k}"); return
        lo = 5 if kind == 'R' else 0
        a(f"s_add_u32 {dst}, {sR2}, {k + lo}"); a(f"s_cmp_ge_u32 {dst}, {5 + lo}"); a(f"s_cselect_b32 {sA2}, 5, 0"); a(f"s_sub_u32 {dst}, {dst}, {sA2}")
    def ld(self, i):
        a = self.g.a; e = self.seq[i]; self.issued.add(i)
        def f():
            if e[2] == 0:
                self.idx(e, sStrB64); a(f"s_lshl_b32 {sStrB64}, {sStrB64}, 13"); a(f"s_add_u32 {sStrB64}, {sStrB64}, {sH2}")
                if e[0] == 's' and e[1] == 10:
                    a(f"s_lshr_b32 {sA2}, {sW}, 1"); a(f"s_and_b32 {sA2}, {sA2}, {sSIDE}"); a(f"s_cselect_b32 {sStrB64}, 0x40000000, {sStrB64}")
            a.vmem(f"buffer_load_dwordx4 {ar(4*i,4)}, {vHL}, {SWS}, {sStrB64} offen offset:{e[2]*2048} sc1", f"h{i}")
        return f
    def issue(self, upto, n, defer=False):
        for i in range(min(len(self.seq), self.lim, upto + 1)):
            if n <= 0: break
            if i not in self.issued:
                f = self.ld(i); n -= 1
                self.g.push(f) if defer else f()
    def rd(self, i):
        a = self.g.a; b = self.bufs[i % 3]; e = self.seq[i]
        if e[2] == 0:
            self.idx(e, sA0); a(f"s_lshl_b32 {sA0}, {sA0}, 13")
            a(f"v_add_u32 {vPM0}, {sA0}, {vPR0}"); a(f"v_add_u32 {vPM1}, {sA0}, {vPR1}")
        for cb, v in ((0, vPM0), (1, vPM1)):
            for k in range(2): a.ds(f"ds_read_b64_tr_b16 {self.sub(b, 4*cb+2*k, 2)}, {v} offset:{W2B + e[2]*2048 + k*512}", f"u{i}")
    def begin(self, pre, defer, fin=None):
        g = self.g
        if fin: fin()
        if not self.hasq and self.opt('wt', -1) == -2: g.wo_touch(V6)
        g.poll_flags(self.masks[0], pre)
        g.stamp(8)
        self.issue(99, self.opt('la0', 12 if defer else 6), defer)
        if not self.hasq and self.opt('wt', -1) == -1: g.wo_touch(V6)
        if self.hasq and self.opt('wo_at', 0) < 0:
            g.push(*(g.dmaWO(1) + g.dmaWO(0)))
            if not defer: g.flush()
    def send(self):
        g = self.g; a = g.a
        a(f"s_lshl_b32 {T0}, {sW}, 12"); a(f"s_add_u32 {T1}, {T0}, {R}"); a(f"s_xor_b32 {T0}, {T0}, 0x2000"); a(f"s_add_u32 {T0}, {T0}, {R}")
        a(f"v_add_u32 {V1}, {T1}, {vL16}"); a(f"v_add_u32 {V2}, {T0}, {vL16}")
        for k in range(4): a.ds(f"ds_write_b128 {V1}, {vr(ACCF+16+4*k,4)} offset:{k*1024}", "rw")
        a(f"s_mov_b32 {T3}, 0x07060501"); a(f"s_mov_b32 {T4}, 0x07060502"); a(f"s_mov_b32 {T5}, 0x07060503")
        a.wait(lg="rw"); a("s_barrier")
        for k in range(4): a.ds(f"ds_read_b128 {vr(ACCF+16+4*k,4)}, {V2} offset:{k*1024}", f"x{k}")
        for k in range(4):
            D = ACCF + 4*k
            a.wait(lg=f"x{k}")
            for i in range(4): a(f"v_add_f32 v{D+i}, v{D+i}, v{D+16+i}")
            a(f"v_perm_b32 v{D}, v{D}, v{D+3}, {T3}"); a(f"v_perm_b32 v{D+1}, v{D+1}, v{D+3}, {T4}"); a(f"v_perm_b32 v{D+2}, v{D+2}, v{D+3}, {T5}")
            a(f"v_mov_b32 v{D+3}, {sTAG}")
            a.vmem(f"buffer_store_dwordx4 {vr(D,4)}, {vL16}, {SWS}, {sXR} offen offset:{k*1024} sc1", "xst")
    def main(self):
        g = self.g; a = g.a; seq = self.seq; N = len(seq)
        a.wait(vm="w2a"); a("s_barrier")
        g.stamp("f0")
        LA = self.opt('la', 6)
        cm = self.i_mid - self.opt('cmb', 4); pm = cm - self.opt('pmb', 3); cl = self.i_late - self.opt('clb', 4); pl = max(cm, cl - self.opt('plb', 3))
        wo_at = self.opt('wo_at', 0); fi = self.opt('fi', 8)
        i_o = min(N - 1, self.opt('so', 99)); i_f = min(N - 1, i_o + self.opt('sf', 4))
        self.rd(0); self.rd(1)
        for i in range(N):
            if i == cm: g.poll_flags(self.masks[1], "pf"); self.lim = self.i_late
            if i == cl: g.poll_flags(self.masks[2], "pf"); self.lim = 99
            if i == pm or i == pl: g.pf_issue()
            if self.hasq and i == wo_at: g.push(*(g.dmaWO(1) + g.dmaWO(0)))
            self.issue(i + LA, 2)
            if not self.hasq and self.opt('wt', -1) == i: g.wo_touch(V6)
            assert i in self.issued, (self.P, i, self.issued)
            if i == 9:
                a.wait(vm="w2b"); a("s_barrier"); g.stamp("fb")
                self.rd(10)
            if i + 2 < N and i != 8: self.rd(i + 2)
            a.wait(vm=f"h{i}", lg=f"u{i}")
            for cb in range(2):
                acc = vr(ACCF + 16*cb, 16)
                a(f"v_mfma_f32_32x32x16_bf16 {acc}, {self.sub(self.bufs[i % 3], 4*cb, 4)}, {ar(4*i,4)}, {'0' if i == 0 else acc}")
            g.slot(self.opt('wo_per', 1))
            if self.late and i == self.opt('hf', 3): a.wait(vm="hst"); g.flag_h(True)
            if g.o.get('stamps', 0) >= 3 and i % 2 == 0 or i in (0, N - 1): g.stamp(f"u{i}")
            if self.hasq:
                if i == fi: g.f_issue()
                if i == i_o:
                    a.wait(lg=f"u{min(N-1, i+2)}"); g.f_check()
                    self.issue(99, self.opt('lao', 6), True); g.o_compute(); g.flush()
                    if wo_at == 99:
                        w = g.dmaWO(1) + g.dmaWO(0); nw = self.opt('wpre', 4)
                        for f in w[:nw]: f()
                        wrest = w[nw:]
                if i == i_f:
                    a.wait(vm="ost"); g.flag_o()
                    if wo_at == 99: g.push(*wrest)
        g.flush()
        if self.hasq: g.tail2()
        else:
            self.send(); g.stamp("xs")
            if self.P == 'r': g.bump()
            g.finish()

if __name__ == '__main__':
    out = sys.argv[1]
    opt = json.loads(sys.argv[2]) if len(sys.argv) > 2 else {}
    open(out, 'w').write(Gen2(opt).build())
```

```python
import sys, json
from asmlib import *
import gen as B
from gen import *

FH_OFF = 0x1140000
FO_OFF = 0x1144000
STEP = 2048; UNIT = 8192; O_OFF = 88*STEP
X_OFF = 0x1400000
XF_OFF = 0x1160000
W2B = 8192
KVT = 0
SCR = 49152
sOWN, sUA, sUB, sPI, sMM, sSIDE = sHG, sU0, sU1, "s14", "s15", "s16"
sTB = sType
sR1, sR2, sH1, sH2, sW2O = "s4", "s5", "s6", "s7", "s8"
sFO, sFP = "s10", "s11"
sLB = "s17"
vL16 = vG
ACCP = ACCA
WP0V = V3
def nib(vals):
    v = 0
    for i, x in enumerate(vals): v |= x << (4*i)
    return v
T_A   = nib([0, 0, 0, 0, 1, 1, 1, 1, 1, 0, 0, 0, 0, 1, 1, 1])
T_B   = nib([1, 1, 1, 1, 1, 1, 1, 1, 0, 0, 0, 0, 0, 0, 0, 0])
T_OWN = nib([1, 1, 1, 1, 1, 1, 1, 1, 1, 0, 0, 0, 0, 0, 0, 0])
T_K   = nib([0, 1, 2, 3, 4, 5, 6, 7, 0, 0, 1, 2, 3, 0, 0, 0])
T_UA  = nib([0, 0, 0, 0, 0, 2, 4, 6, 8, 0, 0, 0, 0, 0, 2, 4])
T_UB  = nib([0, 0, 0, 0, 0, 0, 0, 0,10, 9, 9,10,10, 6, 7, 8])
T_N   = nib([0, 3, 2, 4, 5, 6, 7, 1, 0, 5, 6, 7, 1, 3, 2, 4])
T_C0  = nib([0, 1, 2, 3, 4, 5, 6, 7, 0, 0, 1, 2, 3, 4, 5, 6])
T_COL = nib([8, 9,10,11, 0, 2, 4, 6, 8, 8, 9,10,11, 0, 2, 4])
MASK_A = sum(1 << j for j in range(16) if (T_A >> (4*j)) & 1)
T_PI  = nib([0, 0, 0, 0, 0, 1, 2, 3, 4, 4, 4, 5, 5, 0, 1, 2])
M_EARLY = 0x0007001F; M_MID = 0x07001000; M_LATE = 0x30000000

class Gen2(Gen):
    def table(self, dst, tab):
        a = self.a
        a(f"s_mov_b32 s92, {tab & 0xffffffff:#x}"); a(f"s_mov_b32 s93, {tab >> 32:#x}"); a(f"s_lshr_b64 s[92:93], s[92:93], {T0}"); a(f"s_and_b32 {dst}, s92, 15")
    def dmaW2(self, grp, k):
        a = self.a; n, lo = ((5, 0), (6, 5))[grp]
        def f():
            a(f"s_add_u32 {sA0}, {sMM}, {k}")
            if grp == 1: a(f"s_add_u32 {sA0}, {sA0}, {sMM}")
            for _ in range(2 if grp == 1 else 1):
                a(f"s_cmp_ge_u32 {sA0}, {n}"); a(f"s_cselect_b32 {sA1}, {n}, 0"); a(f"s_sub_u32 {sA0}, {sA0}, {sA1}")
            a(f"s_lshl_b32 {sA1}, {sA0}, 13"); a(f"s_add_u32 {sA1}, {sA1}, {sW1k}")
            a(f"s_lshl_b32 {sA0}, {sA0}, 16"); a(f"s_add_u32 {sA0}, {sA0}, {sW2O}")
            if lo: a(f"s_add_u32 {sA0}, {sA0}, {lo*65536}")
            self.dma(vW2, SW2, sA0, f"s_add_u32 m0, {sA1}, {W2B + lo*8192}", "w2" + "ab"[grp])
        return f
    def nonq(self, f):
        a = self.a
        def g():
            L1 = a.label("nq"); L2 = a.label("nqd")
            a(f"s_cmp_eq_u32 {sTB}, 1"); a(f"s_cbranch_scc1 {L1}")
            f(); a(f"s_branch {L2}"); a(f"{L1}:")
            a(f"buffer_load_dword {V7}, off, {SDBG}, {sC32} sc1"); a(f"{L2}:")
        return g
    def take(self, n):
        fs = self.wx[:n]; self.wx = self.wx[n:]
        if self.o.get('w2nq', 0): self.wq = self.wq + fs; fs = [self.nonq(f) for f in fs]
        return fs
    def w2x(self): return [self.dmaW2(0, k) for k in range(5)]
    def w2y(self): return [self.dmaW2(1, k) for k in range(6)]
    def dmaWO(self, half):
        a = self.a
        def mk(i):
            def f():
                a(f"s_add_u32 {sA0}, {sMM}, {i}"); a(f"s_and_b32 {sA0}, {sA0}, 3")
                a(f"s_lshl_b32 {sA1}, {sMM}, 1"); a(f"s_and_b32 {sA1}, {sA1}, 4"); a(f"s_xor_b32 {sA1}, {sA1}, {4*half}"); a(f"s_add_u32 {sA0}, {sA0}, {sA1}")
                a(f"s_lshl_b32 {sA1}, {sA0}, 13"); a(f"s_add_u32 {sA1}, {sA1}, {sW1k}"); a(f"s_lshl_b32 {sA0}, {sA0}, 16")
                self.dma(vW2, SWO, sA0, f"s_add_u32 m0, {sA1}, {R}", "wo")
            return f
        return [mk(i) for i in range(4)]
    def touch(self):
        a = self.a
        if 't' in self.o.get('skip', ''): return
        a(f"v_bfe_u32 {V6}, {vL}, 2, 1"); a(f"v_lshl_add_u32 {V6}, {V6}, 11, {vHS}")
        a(f"s_lshl_b32 {T2}, {sHP}, 13"); a(f"s_add_u32 {T2}, {T2}, {O_OFF}"); a(f"s_cmp_eq_u32 {sTB}, 1"); a(f"s_cselect_b32 {T2}, {T2}, 0x40000000")
        a.vmem(f"buffer_load_dword {V6}, {V6}, {SWS}, {T2} offen", "touch")
    def c3_touch(self):
        a = self.a; m = self.o.get('c3t', 0)
        if not m: return
        a(f"s_lshr_b32 {T0}, s2, 3"); a(f"s_lshl_b32 {T0}, {T0}, 3"); a(f"s_add_u32 {T0}, {T0}, {sW}"); a(f"s_lshl_b32 {T0}, {T0}, 10"); a(f"s_add_u32 {T0}, {T0}, 384")
        if m & 1:
            a(f"v_min_u32 {V6}, 2, {vL}"); a(f"v_lshlrev_b32 {V6}, 18, {V6}"); a(f"s_add_u32 {T2}, {T0}, {sW2O}")
            a.vmem(f"buffer_load_dword {V6}, {V6}, {SW2}, {T2} offen", "touch")
        if m & 2:
            a(f"v_and_b32 {V5}, 1, {vL}"); a(f"v_lshlrev_b32 {V5}, 18, {V5}")
            a.vmem(f"buffer_load_dword {V5}, {V5}, {SWO}, {T0} offen", "touch")
    def mall_touch(self):
        a = self.a
        a(f"s_lshl_b32 {T0}, s2, 3"); a(f"s_add_u32 {T0}, {T0}, {sW}"); a(f"s_sub_u32 {T1}, {T0}, 1376"); a(f"s_cmp_lt_u32 {T0}, 1376")
        a(f"s_cselect_b32 {T0}, {T0}, {T1}"); a("s_cselect_b32 s60, s40, s44"); a("s_cselect_b32 s61, s41, s45"); a("s_cselect_b32 s62, s42, s46"); a(f"s_lshl_b32 {T0}, {T0}, 10")
        a.vmem(f"buffer_load_dword {V6}, {vL16}, {STMP}, {T0} offen", "touch")
    def wo_touch(self, junk):
        a = self.a
        if not self.o.get('wot', 1): return
        a(f"v_lshrrev_b32 {junk}, 1, {vL}"); a(f"v_lshlrev_b32 {junk}, 10, {junk}")
        a(f"s_lshr_b32 {T2}, {sMM}, 1"); a(f"s_lshl_b32 {T2}, {T2}, 3"); a(f"s_add_u32 {T2}, {T2}, {sW}"); a(f"s_lshl_b32 {T2}, {T2}, 15"); a(f"s_lshl_b32 {T3}, {sN}, 7"); a(f"s_add_u32 {T2}, {T2}, {T3}")
        a.vmem(f"buffer_load_dword {junk}, {junk}, {SWO}, {T2} offen", "touch")
    def poll_flags(self, mask, pre_issued=None):
        a = self.a; L = a.label("pf"); Ld = a.label("pfd")
        xm = self.o.get('xm', 0) and not mask >> 48
        if pre_issued is None:
            self.pf_issue(); pre_issued = "pf"
        a.wait(vm=pre_issued)
        a(f"s_mov_b32 {sSPIN}, {SPIN}")
        a(f"{L}:")
        a(f"v_cmp_ne_u32 vcc, {sTAG}, {V0}"); a("s_nop 1")
        if mask >> 32 and mask & 0xffffffff:
            a(f"s_and_b32 {T0}, vcc_lo, {mask & 0xffffffff:#x}"); a(f"s_and_b32 {T1}, vcc_hi, {mask >> 32:#x}"); a(f"s_or_b32 {T0}, {T0}, {T1}")
        elif mask >> 32: a(f"s_and_b32 {T0}, vcc_hi, {mask >> 32:#x}")
        else: a(f"s_and_b32 {T0}, vcc_lo, {mask:#x}")
        a(f"s_cbranch_scc0 {Ld}")
        a(f"s_sub_u32 {sSPIN}, {sSPIN}, 1"); a(f"s_cbranch_scc1 {Ld}")
        if self.o.get('bo', 0): a(f"s_sleep {self.o['bo']}")
        if xm: a("s_mov_b32 exec_hi, 0xffff")
        a(f"buffer_load_dword {V0}, {vFL}, {SWS}, 0 offen sc1")
        if xm: a("s_mov_b32 exec_hi, -1")
        a("s_waitcnt vmcnt(0)")
        a(f"s_branch {L}")
        a(f"{Ld}:")
    def pf_issue(self, kind=None, r1=True):
        if kind is None or not self.o.get('sp', 0):
            xm = self.o.get('xm', 0) and kind != 'x'
            if xm: self.a("s_mov_b32 exec_hi, 0xffff")
            self.a.vmem(f"buffer_load_dword {V0}, {vFL}, {SWS}, 0 offen sc1", "pf")
            if xm: self.a("s_mov_b32 exec_hi, -1")
            return
        self.sp_loads(kind, r1)
    def sp_loads(self, kind, r1):
        a = self.a
        if kind == 0:
            a(f"s_load_dwordx8 s[52:59], s[24:25], {sFO} glc")
            if r1: a(f"s_load_dwordx4 s[60:63], s[24:25], {sFP} glc")
            return [52, 53, 54, 55, 56] + ([60, 61, 62] if r1 else [])
        if kind == 1:
            a(f"s_add_u32 s53, {sFO}, 48"); a("s_load_dword s52, s[24:25], s53 glc")
            if r1: a(f"s_add_u32 s53, {sFP}, 32"); a("s_load_dwordx4 s[60:63], s[24:25], s53 glc")
            return [52] + ([60, 61, 62] if r1 else [])
        a(f"s_add_u32 s53, {sFP}, 48"); a("s_load_dwordx2 s[60:61], s[24:25], s53 glc")
        return [60, 61]
    def poll_h(self, kind, r1, mask, pre):
        a = self.a
        if not self.o.get('sp', 0): self.poll_flags(mask, pre); return
        L = a.label("sp"); Ld = a.label("spd")
        if pre is None: self.sp_loads(kind, r1)
        regs = {0: [52, 53, 54, 55, 56] + ([60, 61, 62] if r1 else []), 1: [52] + ([60, 61, 62] if r1 else []), 2: [60, 61]}[kind]
        a(f"s_mov_b32 {sSPIN}, {SPIN}")
        a(f"{L}:")
        a("s_waitcnt lgkmcnt(0)"); a.lg.q = []
        a(f"s_xor_b32 {T0}, s{regs[0]}, {sTAG}")
        for r in regs[1:]: a(f"s_xor_b32 {T1}, s{r}, {sTAG}"); a(f"s_or_b32 {T0}, {T0}, {T1}")
        a(f"s_cbranch_scc0 {Ld}")
        a(f"s_sub_u32 {sSPIN}, {sSPIN}, 1"); a(f"s_cbranch_scc1 {Ld}")
        self.sp_loads(kind, r1); a(f"s_branch {L}")
        a(f"{Ld}:")
    def flag_word(self, addr):
        a = self.a
        a(f"v_mov_b32 {V1}, {sTAG}")
        a(f"s_mov_b64 exec, 1")
        self.store_mode(lambda f: a(f"buffer_store_dword {V1}, off, {SWS}, {addr}{f}"), "flag", 1)
        a(f"s_mov_b64 exec, -1")
    def flag_h(self, late):
        a = self.a
        a(f"s_add_u32 {T0}, {sPI}, {32 if late else 0}"); self.flag_word(T0)
        if self.o.get('hpf', 0):
            if late: a(f"v_bfe_u32 {V6}, {vL}, 2, 1"); a(f"v_lshl_add_u32 {V6}, {V6}, 11, {vHS}"); so = sLB
            else:
                a(f"v_bfe_u32 {V6}, {vL}, 1, 1"); a(f"v_lshl_add_u32 {V6}, {V6}, 11, {vHS}"); a(f"v_bfe_u32 {V5}, {vL}, 2, 1"); a(f"v_lshl_add_u32 {V6}, {V5}, 13, {V6}")
                a(f"s_lshl_b32 {T2}, {sUA}, 13"); so = T2
            a.vmem(f"buffer_load_dword {V6}, {V6}, {SWS}, {so} offen sc1", "touch")
        self.stamp("fL" if late else "fE")
    def flag_o(self):
        a = self.a
        a(f"s_and_b32 {T1}, {sRB}, 1"); a(f"s_lshl_b32 {T0}, {sC}, 1"); a(f"s_add_u32 {T0}, {T0}, {T1}"); a(f"s_lshl_b32 {T0}, {T0}, 2"); a(f"s_add_u32 {T0}, {T0}, {sTG}")
        a(f"s_lshl_b32 {T0}, {T0}, 1"); a(f"s_add_u32 {T0}, {T0}, {sBB}"); a(f"s_lshl_b32 {T0}, {T0}, 4"); a(f"s_add_u32 {T0}, {T0}, {sHP}")
        a(f"s_lshl_b32 {T0}, {T0}, 2"); a(f"s_add_u32 {T0}, {T0}, {FO_OFF}")
        self.flag_word(T0)
        if self.o.get('opf', 0):
            a(f"v_bfe_u32 {V6}, {vL}, 2, 1"); a(f"v_lshl_add_u32 {V6}, {V6}, 11, {vHS}"); a(f"s_lshl_b32 {T2}, {sHP}, 13"); a(f"s_add_u32 {T2}, {T2}, {O_OFF}")
            a.vmem(f"buffer_load_dword {V6}, {V6}, {SWS}, {T2} offen sc1", "touch")
        self.stamp("fO")
    def prologue(self):
        a = self.a; o = self.o
        a("s_cmp_ge_u32 s2, 256"); a("s_cbranch_scc1 L_end")
        a("s_load_dwordx16 s[4:19], s[0:1], 0")
        if not o.get('ka2', 1): a("s_load_dwordx4 s[20:23], s[0:1], 64"); a("s_load_dwordx2 s[24:25], s[0:1], 80")
        if o.get('stamps'): a("s_memtime s[26:27]"); a("s_memrealtime s[66:67]")
        if o.get('span'): a("s_memrealtime s[26:27]")
        if o.get('probe'): a("s_memrealtime s[26:27]"); a("s_memtime s[52:53]"); a("s_memtime s[54:55]")
        a(f"v_lshrrev_b32 {V7}, 6, v0"); a(f"s_and_b32 {sC}, s2, 7"); a(f"s_lshr_b32 {sJ}, s2, 4"); a(f"v_readfirstlane_b32 {sW}, {V7}")
        a(f"s_bfe_u32 {T1}, s2, 0x10003"); a(f"s_cmp_lt_u32 {sJ}, 9"); a(f"s_cselect_b32 {sOWN}, 1, 0"); a(f"s_cselect_b32 {T2}, 0, 1")
        a(f"v_bfe_u32 {V0}, v0, 3, 3"); a(f"v_bfe_u32 {V1}, v0, 4, 2"); a(f"v_and_b32 {V2}, 7, v0")
        a(f"s_xor_b32 {T2}, {T2}, {sC}"); a(f"s_lshl_b32 {sRB}, {T2}, 1"); a(f"s_or_b32 {sRB}, {sRB}, {T1}")
        a(f"v_lshl_add_u32 {V4}, {V7}, 4, {V0}"); a(f"v_xor_b32 {V3}, {V2}, {V1}"); a(f"v_lshlrev_b32 {V3}, 4, {V3}"); a(f"v_lshl_add_u32 {vX0}, {V4}, 10, {V3}")
        a(f"s_mul_i32 {sC0}, {sC}, {o.get('rotc', 1)}")
        if o.get('rotr', 0): a(f"s_mul_i32 {T2}, {sRB}, {o['rotr']}"); a(f"s_add_u32 {sC0}, {sC0}, {T2}")
        a(f"s_lshl_b32 {T0}, {sJ}, 2")
        if o.get('rotj', 1): self.table(T2, T_C0); a(f"s_mul_i32 {T2}, {T2}, {o.get('rotj', 1)}"); a(f"s_add_u32 {sC0}, {sC0}, {T2}")
        a(f"s_and_b32 {sC0}, {sC0}, 7"); a(f"s_lshl_b32 {sW2k}, {sW}, 11"); a(f"s_lshl_b32 {sA2}, {sRB}, 17")
        a(f"v_xor_b32 {vX1}, 64, {vX0}"); a(f"v_add_u32 {vX1}, 0x2000, {vX1}")
        self.table(T1, T_COL)
        a(f"s_and_b32 {sMODE}, {sC}, 1")
        a(f"s_bitcmp0_b32 {MASK_A:#x}, {sJ}")
        self.csel(T3, 3072, 2752); self.csel(T5, 1024, 128); a(f"s_cselect_b32 {T2}, 4, 11"); self.csel("s34", 512*3072, 512*2752); a(f"s_cselect_b32 {sType}, 0, 1")
        a(f"s_mul_i32 {T2}, {T2}, {sMODE}"); a(f"s_add_u32 {sUA}, {T1}, {T2}"); a(f"s_lshl_b32 {T4}, {sUA}, 7"); a(f"s_sub_u32 s34, s34, {T4}")
        a(f"v_lshl_add_u32 {V3}, {V7}, 3, {V1}"); a(f"v_mul_lo_u32 {vWA}, {V3}, {T3}")
        a(f"v_and_b32 {V3}, 15, v0"); a(f"v_lshlrev_b32 {V4}, 2, {V1}"); a(f"v_xor_b32 {V3}, {V3}, {V4}")
        a(f"v_lshrrev_b32 {V4}, 3, {V3}"); a(f"v_mul_lo_u32 {V4}, {V4}, {T5}"); a(f"v_and_b32 {V3}, 7, {V3}")
        a(f"v_lshl_add_u32 {V4}, {V3}, 4, {V4}"); a(f"v_add_u32 {vWA}, {vWA}, {V4}")
        a(f"s_lshl_b32 {sStrA64}, {T3}, 6"); a(f"s_lshl_b32 {sStrA4}, {T3}, 2")
        a("s_mov_b32 s30, 0x20000"); a("s_mov_b32 s31, 0x20000"); a("s_mov_b32 s35, 0x20000")
        a(f"s_cmp_eq_u32 {sType}, 0")
        a("s_waitcnt lgkmcnt(0)")
        if o.get('stamps'): a("v_mov_b32 v23, 0"); a(f"s_mov_b32 {sST}, 0"); a("v_writelane_b32 v23, s66, 62")
        a("s_cselect_b32 s32, s6, s14"); a("s_cselect_b32 s33, s7, s15")
        a(f"s_add_u32 s28, s4, {sA2}"); a("s_addc_u32 s29, s5, 0"); a(f"s_add_u32 s32, s32, {T4}"); a("s_addc_u32 s33, s33, 0")
        self.stamp("ka")
        if o.get('ka2', 1): a("s_load_dwordx4 s[20:23], s[0:1], 64"); a("s_load_dwordx2 s[24:25], s[0:1], 80")
        for f in self.dmaA(0): f()
        self.stamp("d0")
        if o.get('pads'):
            a(f"s_bitcmp1_b32 {sW}, 2"); a("s_cbranch_scc1 L_h4")
            a(f"s_bitcmp1_b32 {sW}, 1"); a("s_cbranch_scc1 L_h2")
            a(f"s_bitcmp1_b32 {sW}, 0"); a("s_cbranch_scc1 L_pad1"); a("s_branch L_pad0")
            a("L_h2:"); a(f"s_bitcmp1_b32 {sW}, 0"); a("s_cbranch_scc1 L_pad3"); a("s_branch L_pad2")
            a("L_h4:"); a(f"s_bitcmp1_b32 {sW}, 1"); a("s_cbranch_scc1 L_h6")
            a(f"s_bitcmp1_b32 {sW}, 0"); a("s_cbranch_scc1 L_pad5"); a("s_branch L_pad4")
            a("L_h6:"); a(f"s_bitcmp1_b32 {sW}, 0"); a("s_cbranch_scc1 L_pad7"); a("s_branch L_pad6")
            a("L_ret:")
        a("s_getpc_b64 s[90:91]"); a("L_pc:")
        a(f"s_lshr_b32 {T0}, s2, 3"); a(f"s_lshl_b32 {T0}, {T0}, 3"); a(f"s_add_u32 {T0}, {T0}, {sW}"); a(f"s_mul_i32 {T0}, {T0}, 184"); a(f"s_min_u32 {T0}, {T0}, L_end-L_pc-68")
        a(f"v_and_b32 {V3}, 1, v0"); a(f"v_lshlrev_b32 {V3}, 6, {V3}"); a(f"v_add_u32 {V3}, {T0}, {V3}")
        a.vmem(f"global_load_dword {MJ}, {V3}, s[90:91]", "misc")
        a(f"v_and_b32 {vL}, 63, v0")
        a(f"s_and_b32 {sTG}, {sW}, 3"); a(f"s_lshr_b32 {sBB}, {sW}, 2"); a(f"s_lshl_b32 {sW1k}, {sW}, 10")
        a(f"s_lshl_b32 {T0}, {sJ}, 2"); self.table(T1, T_K); a(f"s_lshl_b32 {T2}, {sMODE}, 2"); a(f"s_xor_b32 {sHP}, {T1}, {T2}")
        c1 = self.dmaA(1)
        a(f"s_lshl_b32 {T0}, {sJ}, 2")
        self.srd(STMP, 8, 16384)
        a("s_waitcnt lgkmcnt(0)")
        if o.get('tlb', 0):
            a(f"s_and_b32 {T1}, {sC}, 6"); a(f"s_lshl_b32 {T1}, {T1}, 21"); a(f"s_add_u32 {T2}, {T1}, 0x200000")
            for dst, base, off in ((52, 24, T1), (53, 24, T2), (54, 16, "0x0"), (55, 10, "0x0"), (56, 20, "0x0"), (57, 6, "0x0"), (58, 14, "0x0"), (59, 18, "0x0")):
                a(f"s_load_dword s{dst}, s[{base}:{base+1}], {off}")
            for k, off in enumerate((P_OFF, X_OFF, X_OFF + 0x200000)):
                a(f"s_mov_b32 {T1}, {off}"); a(f"s_load_dword s{52+k}, s[24:25], {T1}")
        a(f"s_mov_b32 s9, {sType}")
        self.table(sTB, T_B); self.table(sUB, T_UB); self.table(sN, nib(o['nmap']) if 'nmap' in o else T_N)
        a(f"s_mul_i32 {T2}, {sMODE}, 11"); a(f"s_add_u32 {sUB}, {sUB}, {T2}"); a(f"s_lshl_b32 {sW2O}, {T2}, 16")
        a(f"s_cmp_eq_u32 {sTB}, 1")
        a("s_cselect_b32 s36, s6, s14"); a("s_cselect_b32 s37, s7, s15"); self.csel("s38", 512*3072, 512*2752); a("s_mov_b32 s39, 0x20000")
        self.csel(T3, 3072, 2752); a(f"s_cselect_b32 {T4}, {sHP}, {sUB}")
        a(f"s_lshl_b32 {sStrB64}, {T3}, 6"); a(f"s_lshl_b32 {T4}, {T4}, 7")
        self.srd(SW2, 16, 1376*1024); self.srd(SWO, 10, 512*1024); self.srd(SWS, 24, WS_SIZE);
        self.srd(SDBG, 22, 256)
        a(f"s_mov_b32 {sSIDE}, {sMODE}")
        a(f"s_and_b32 {T5}, {sRB}, 1"); a(f"s_lshl_b32 {T5}, {T5}, 1"); a(f"s_add_u32 {sMM}, {T5}, s9"); a(f"s_lshl_b32 {sC32}, {sC}, 5")
        a(f"v_and_b32 {V3}, 1, {V1}"); a(f"v_lshlrev_b32 {V3}, 2, {V3}"); a(f"v_xor_b32 {V3}, {V3}, {V2}"); a(f"v_lshlrev_b32 {V3}, 4, {V3}")
        a(f"s_lshl_b32 {T1}, {sW}, 3"); a(f"v_add_u32 {V4}, {T1}, {V0}")
        a(f"v_mul_lo_u32 {vWB}, {V4}, {T3}"); a(f"v_add3_u32 {vWB}, {vWB}, {V3}, {T4}")
        a(f"s_lshl_b32 {T1}, {sN}, 7"); a(f"v_lshl_add_u32 {vW2}, {V4}, 10, {V3}"); a(f"v_add_u32 {vW2}, {T1}, {vW2}")
        a(f"v_lshlrev_b32 {vL16}, 4, {vL}")
        c1[0]()
        a(f"v_lshrrev_b32 {V0}, 5, {vL}"); a(f"v_bfe_u32 {V2}, {vL}, 2, 2")
        a(f"v_and_b32 {V3}, 1, {vL}"); a(f"v_bfe_u32 {V4}, {vL}, 1, 1"); a(f"v_lshl_add_u32 {V3}, {V3}, 1, {V4}"); a(f"v_lshlrev_b32 {V3}, 3, {V3}")
        a(f"v_and_b32 {V6}, 1, {V1}"); a(f"v_lshl_add_u32 {V3}, {V6}, 5, {V3}")
        a(f"v_lshl_add_u32 {V4}, {V0}, 3, {V2}")
        a(f"v_xor_b32 {V5}, {sBB}, {V2}"); a(f"v_lshlrev_b32 {V5}, 6, {V5}"); a(f"v_lshl_add_u32 {V5}, {V4}, 8, {V5}"); a(f"v_add_u32 {V5}, {V5}, {V3}")
        a(f"v_add_u32 {vAR0}, {WSL(0)}, {V5}"); a(f"v_xor_b32 {vAR1}, 128, {vAR0}")
        a(f"v_and_b32 {V7}, 31, {vL}"); a(f"v_bfe_u32 {V5}, {vL}, 1, 3"); a(f"v_xor_b32 {V5}, {V5}, {V0}"); a(f"v_lshlrev_b32 {V5}, 4, {V5}")
        a(f"s_lshl_b32 {T0}, {sTG}, 12"); a(f"v_lshl_add_u32 {vXR0}, {V7}, 7, {V5}"); a(f"v_add_u32 {vXR0}, {T0}, {vXR0}")
        a(f"v_xor_b32 {vXR1}, 32, {vXR0}"); a(f"v_xor_b32 {vXR2}, 64, {vXR0}"); a(f"v_xor_b32 {vXR3}, 0x60, {vXR0}")
        c1[1]()
        df = o.get('defer', 0)
        if df: c1[2](); c1[3](); keep = a.L; a.L = []
        a(f"v_lshrrev_b32 {V5}, 1, {V2}"); a(f"v_lshlrev_b32 {V5}, 6, {V5}"); a(f"v_lshl_add_u32 {V5}, {V4}, 7, {V5}"); a(f"v_add_u32 {V5}, {V5}, {V3}")
        a(f"s_lshl_b32 {T0}, {sBB}, 6"); a(f"v_xor_b32 {vBR}, {T0}, {V5}"); a(f"v_add_u32 {vBR}, {R}, {vBR}")
        a(f"s_lshr_b32 {T0}, {sW}, 1"); a(f"s_lshl_b32 {T0}, {T0}, 11"); a(f"v_add_u32 {vPR0}, {T0}, {V5}"); a(f"v_xor_b32 {vPR1}, 64, {vPR0}")
        a(f"v_add_u32 {vPO0}, {R}, {vPR0}"); a(f"v_add_u32 {vPO1}, {R}, {vPR1}")
        a(f"v_mul_u32_u24 {V5}, {512-32}, {V6}"); a(f"v_add_u32 {V5}, {V5}, {V3}"); a(f"v_lshl_add_u32 {V5}, {V4}, 5, {V5}")
        a(f"s_lshl_b32 {T0}, {sBB}, 12"); a(f"s_add_u32 {T0}, {T0}, {R + 57344}"); a(f"v_add_u32 {MWP}, {T0}, {V5}")
        a(f"s_cmp_ge_u32 {sN}, 5"); a(f"s_cselect_b32 {T0}, 5, 0"); a(f"s_sub_u32 {sR2}, {sN}, {T0}")
        if not o.get('hrot', 1): a(f"s_mov_b32 {sR2}, 0")
        a(f"s_lshr_b32 {T0}, {sW2O}, 3"); a(f"s_lshl_b32 {T1}, {sSIDE}, 21"); a(f"s_add_u32 {sH2}, {T0}, {T1}"); a(f"s_xor_b32 {T1}, {T1}, 0x200000"); a(f"s_add_u32 {sH1}, {T0}, {T1}")
        a(f"s_mov_b32 {sL2E}, 0x3fb8aa3b"); a("s_mov_b32 s0, 0x3fb8aa3b"); a("s_mov_b32 s1, 0x3fb8aa3b")
        if not df: c1[2]()
        a(f"s_lshl_b32 {T0}, {sJ}, 2"); self.table(T1, T_PI)
        a(f"s_lshl_b32 {T2}, {sC}, 1"); a(f"s_xor_b32 {T5}, {sOWN}, 1"); a(f"s_add_u32 {T2}, {T2}, {T5}"); a(f"s_lshl_b32 {T2}, {T2}, 1"); a(f"s_and_b32 {T5}, {sRB}, 1")
        a(f"s_add_u32 {T2}, {T2}, {T5}"); a(f"s_lshl_b32 {T2}, {T2}, 2"); a(f"s_add_u32 {T2}, {T2}, {sTG}"); a(f"s_lshl_b32 {T2}, {T2}, 1"); a(f"s_add_u32 {T2}, {T2}, {sBB}")
        a(f"s_lshl_b32 {T2}, {T2}, 4"); a(f"s_add_u32 {T2}, {T2}, {T1}"); a(f"s_lshl_b32 {T2}, {T2}, 2"); a(f"s_add_u32 {sPI}, {T2}, {FH_OFF}")
        a(f"s_lshl_b32 {T0}, {sMM}, 1"); a(f"s_and_b32 {T1}, {sW}, 1"); a(f"s_add_u32 {T0}, {T0}, {T1}")
        a(f"s_lshr_b32 {T1}, {sW}, 1")
        a(f"v_lshrrev_b32 {V3}, 3, {vL}"); a(f"v_cmp_eq_u32 vcc, 3, {V3}")
        a(f"s_and_b32 {T2}, {T0}, 3"); a(f"s_add_u32 {T2}, {T2}, 9"); a(f"s_lshl_b32 {T2}, {T2}, 7"); a(f"v_add_u32 {V3}, {T2}, {vL16}"); a(f"v_cndmask_b32 {V3}, {vL16}, {V3}, vcc")
        a(f"s_and_b32 {T3}, {sC}, 6"); a(f"s_lshl_b32 {T3}, {T3}, 3"); a(f"s_add_u32 {T3}, {T3}, {T0}")
        a(f"s_lshl_b32 {T2}, {T3}, 18"); a(f"s_lshl_b32 {T3}, {T1}, 11"); a(f"s_add_u32 {T2}, {T2}, {T3}"); a(f"v_add_u32 {vHL}, {T2}, {V3}")
        a(f"s_add_u32 {T2}, {sTG}, 9"); a(f"s_lshl_b32 {T2}, {T2}, 7"); a(f"v_add_u32 {V3}, {T2}, {vL16}"); a(f"v_cndmask_b32 {vHS}, {vL16}, {V3}, vcc")
        a(f"s_lshl_b32 {T0}, {T0}, 1"); a(f"s_lshr_b32 {T1}, {T1}, 1"); a(f"s_add_u32 {T0}, {T0}, {T1}"); a(f"s_lshl_b32 {T0}, {T0}, 6")
        a(f"s_lshl_b32 {T1}, {sC}, 11"); a(f"s_add_u32 {T1}, {T1}, {T0}"); a(f"s_add_u32 {T1}, {T1}, {FH_OFF}")
        a(f"s_lshl_b32 {T2}, {sC}, 10"); a(f"s_add_u32 {T2}, {T2}, {T0}"); a(f"s_add_u32 {T2}, {T2}, {FO_OFF}")
        a(f"s_and_b32 {T3}, {sMM}, 2"); a(f"s_add_u32 {T3}, {T3}, {sBB}"); a(f"s_lshl_b32 {T3}, {T3}, 2"); a(f"s_and_b32 {T4}, {sW}, 1"); a(f"s_lshl_b32 {T4}, {T4}, 1"); a(f"s_add_u32 {T3}, {T3}, {T4}")
        a(f"s_bfe_u32 {T4}, {sW}, 0x10001"); a(f"s_add_u32 {T3}, {T3}, {T4}"); a(f"s_lshl_b32 {T3}, {T3}, 6"); a(f"s_lshl_b32 {T4}, {sC}, 11"); a(f"s_add_u32 {T3}, {T3}, {T4}"); a(f"s_add_u32 {T3}, {T3}, {FH_OFF + 1024}")
        a(f"s_mov_b32 {sFO}, {T1}"); a(f"s_mov_b32 {sFP}, {T3}")
        a(f"v_and_b32 {V3}, 15, {vL}"); a(f"v_lshlrev_b32 {V3}, 2, {V3}"); a(f"v_add_u32 {V4}, {T2}, {V3}"); a(f"v_add_u32 {V5}, {T3}, {V3}"); a(f"v_add_u32 {V3}, {T1}, {V3}")
        a(f"v_cmp_gt_u32 vcc, 32, {vL}"); a(f"v_cndmask_b32 {vFL}, {V4}, {V5}, vcc")
        a(f"v_cmp_gt_u32 vcc, 16, {vL}"); a(f"v_cndmask_b32 {vFL}, {vFL}, {V3}, vcc")
        a(f"s_xor_b32 {T0}, {sC}, 1"); a(f"s_lshl_b32 {T0}, {T0}, 2"); a(f"s_add_u32 {T0}, {T0}, {sMM}"); a(f"s_lshl_b32 {T0}, {T0}, 3"); a(f"s_add_u32 {T0}, {T0}, {sN}")
        a(f"s_lshl_b32 {T0}, {T0}, 1"); a(f"s_and_b32 {T4}, {sW}, 1"); a(f"s_add_u32 {T0}, {T0}, {T4}"); a(f"s_lshl_b32 {T0}, {T0}, 6"); a(f"s_add_u32 {T0}, {T0}, {XF_OFF}"); a(f"s_sub_u32 {T0}, {T0}, {T2}")
        a(f"v_add_u32 {V4}, {T0}, {V4}"); a(f"v_cmp_gt_u32 vcc, 48, {vL}"); a(f"v_cndmask_b32 {vFL}, {V4}, {vFL}, vcc")
        a(f"s_lshl_b32 {T0}, {sRB}, 2"); a(f"s_add_u32 {T0}, {T0}, {sTG}"); a(f"s_lshl_b32 {T0}, {T0}, 18"); a(f"s_lshl_b32 {T1}, {sBB}, 12"); a(f"s_add_u32 {T0}, {T0}, {T1}")
        a(f"v_add_u32 {vHS}, {T0}, {vHS}")
        self.fill = []
        if df:
            for l in a.L:
                if self.fill and (l.startswith(('s_cselect', 's_cmov', 's_mov')) and self.fill[-1][0].startswith('s_cmp')): self.fill[-1].append(l)
                else: self.fill.append([l])
            a.L = keep
        else: c1[3]()
        def census():
            a(f"s_getreg_b32 {sXCC}, hwreg(HW_REG_XCC_ID, 0, 4)")
            a(f"s_mul_i32 {T2}, {sXCC}, {sXCC}"); a(f"s_lshl_b32 {T2}, {T2}, 16"); a(f"s_lshl_b32 {T3}, {sXCC}, 8"); a(f"s_add_u32 {T2}, {T2}, {T3}"); a(f"s_add_u32 {T2}, {T2}, 1")
            a(f"s_cmp_eq_u32 {sW}, 0"); a(f"s_cselect_b32 {T0}, {sC32}, 0x1000")
            a(f"v_mov_b32 {MAT}, {T2}")
            a("s_mov_b64 exec, 1")
            a.vmem(f"buffer_atomic_add {MAT}, off, {SDBG}, {T0}", "misc")
            a("s_mov_b64 exec, -1")
        def m_wphi():
            L1 = a.label("wp"); L2 = a.label("wpd")
            a(f"s_lshl_b32 {T0}, {sHP}, 11"); a(f"s_lshl_b32 {T1}, {sBB}, 10"); a(f"s_add_u32 {T0}, {T0}, {T1}")
            a(f"s_add_u32 m0, {sW1k}, {R + 57344}")
            a(f"s_cmp_eq_u32 {sTG}, 0"); a(f"s_cbranch_scc0 {L1}")
            a.vmem(f"buffer_load_dwordx4 {vL16}, {STMP}, {T0} offen lds", "misc")
            a(f"s_branch {L2}"); a(f"{L1}:")
            a(f"buffer_load_dword {MJ}, off, {STMP}, {T0}")
            a(f"{L2}:")
        def m_e():
            a(f"s_mov_b32 {T0}, {E_OFF}")
            a.vmem(f"buffer_load_dword {ME}, off, {SWS}, {T0} sc1", "misc")
        def m_fl():
            if o.get('xm', 0): a("s_mov_b32 exec_hi, 0xffff")
            a.vmem(f"buffer_load_dword {MJ}, {vFL}, {SWS}, 0 offen sc1", "misc")
            if o.get('xm', 0): a("s_mov_b32 exec_hi, -1")
        census()
        if o.get('prio', 0):
            Lp = a.label("pr"); a(f"s_cmp_eq_u32 {sBB}, {o['prio'] & 1}"); a(f"s_cbranch_scc0 {Lp}"); a("s_setprio 1"); a(f"{Lp}:")
        def m_xt():
            k0 = o['xt']
            a(f"s_lshl_b32 {T0}, {sJ}, 3"); a(f"s_add_u32 {T0}, {T0}, {sW}"); a(f"s_lshl_b32 {T0}, {T0}, 10"); a(f"s_add_u32 {T1}, {sC0}, {k0}")
            a(f"v_min_u32 {MAT}, {7 - k0}, {vL}"); a(f"v_add_u32 {MAT}, {T1}, {MAT}"); a(f"v_and_b32 {MAT}, 7, {MAT}"); a(f"v_lshlrev_b32 {MAT}, 7, {MAT}")
            a.vmem(f"buffer_load_dword {MJ}, {MAT}, {SX}, {T0} offen", "misc")
        self.misc = [m_e, m_wphi] + ([] if df else [m_fl]); self.m_fl = m_fl
        if o.get('xt'):
            if o.get('xtp', 0): m_xt()
            else: self.misc.insert(0, m_xt)
        self.stamp(1)
    def passA(self):
        a = self.a; o = self.o
        xr = [vXR0, vXR1, vXR2, vXR3]; buf = [FR, FR + 8, FR + 16, PHI]
        def reads(c, st):
            s = c % 3; b = buf[st]
            a.ds(f"ds_read_b128 {ar(16*c+4*st,4)}, {xr[st]} offset:{XS(s)}", f"r{st}")
            for u, v in ((0, vAR0), (1, vAR1)):
                for e in range(2):
                    a.ds(f"ds_read_b64_tr_b16 {vr(b+4*u+2*e,2)}, {v} offset:{s*16384 + st*4096 + e*1024}", f"r{st}")
        def landed(tag, n):
            assert a.vm.q.count(tag) == n, (tag, a.vm.q)
            a.wait(vm=tag)
        def m1(c, st, u):
            acc = (ACC0, ACC1)[u]
            cc = "0" if (c == 0 and st == 0) else vr(acc, 16)
            a(f"v_mfma_f32_32x32x16_bf16 {vr(acc,16)}, {vr(buf[st]+4*u,4)}, {ar(16*c+4*st,4)}, {cc}")
        def half(c, st, rd, nslot):
            pat = o.get('apat', 'MRMRVMVMV')
            mf = [(st, 0), (st, 1), (st+1, 0), (st+1, 1)]; rd = list(rd); left = nslot; nv = pat.count('V')
            for ch in pat:
                if ch == 'M':
                    m1(c, *mf.pop(0))
                    if c >= 1 and self.fill:
                        for _ in range(o.get('fper', 8)):
                            if self.fill:
                                for l in self.fill.pop(0): a(l)
                        if not self.fill: self.push(self.m_fl)
                elif ch == 'R':
                    if rd: reads(*rd.pop(0))
                else:
                    n = -(-left // nv); self.slot(n); left -= n; nv -= 1
        bsched = o.get('bsched', [0, 0, 0, 1, 1, 3, 3, 0])
        assert sum(bsched) == 8 and sum(bsched[:5]) <= 7
        bl = o.get('blate', 0); assert not (bl and o.get('kil', 1))
        nb = 0
        self.push(*self.dmaA(2)); self.slot(2)
        self.push(*self.misc)
        landed("c0", 4)
        if o.get('tlb', 0): a("s_waitcnt lgkmcnt(0)")
        a("s_barrier")
        self.stamp(2)
        reads(0, 0); reads(0, 1)
        self.slot(2)
        for c in range(8):
            a.wait(lg="r1")
            half(c, 0, [(c, 2), (c, 3)], len(self.pend))
            if c == 4:
                assert not self.fill
                a.ds(f"ds_read_b64_tr_b16 {vr(WP0,2)}, {MWP}", "r3"); a.ds(f"ds_read_b64_tr_b16 {vr(WP0+2,2)}, {MWP} offset:128", "r3")
                a(f"v_readfirstlane_b32 {sE}, {ME}")
                a(f"v_and_b32 {V0}, 16, {vL}"); a(f"v_cmp_eq_u32 vcc, 0, {V0}")
                a(f"s_add_u32 {sE}, {sE}, 1"); a(f"s_mul_i32 {sTAG}, {sE}, 0x9E3779B1"); a(f"s_add_u32 {sTAG}, {sTAG}, 0x7F4A7C15")
            a.wait(lg="r3")
            if c < 7: landed(f"c{c+1}", 4)
            elif not bl:
                assert nb == 8 and not self.pend
                a.wait(vm="B0")
            a("s_barrier")
            self.stamp(f"c{c+1}")
            if c + 3 <= 7: self.push(*self.dmaA(c + 3))
            for _ in range(bsched[c]): self.push(*self.dmaB(nb)); nb += 1
            if c == o.get('mt', -1): self.push(self.mall_touch)
            if c == 7: self.wx = self.w2x(); self.wq = []; self.push(*self.take(o.get('a7', 2)))
            half(c, 2, [(c + 1, 0), (c + 1, 1)] if c < 7 else [], (len(self.pend) + 1)//2 if c < 7 else len(self.pend))
            if c == 4:
                for i in range(4):
                    a(f"v_cndmask_b32_e64 v{WP1+i}, v{WP0+i}, 0, vcc")
                    a(f"v_cndmask_b32 v{WP0+i}, 0, v{WP0+i}, vcc")
        self.stamp(3)
    def first_kv(self):
        a = self.a; o = self.o
        L1 = a.label("gi"); L2 = a.label("gid")
        self.srd(STMP, 18, 1024)
        a(f"s_lshl_b32 {T0}, {sJ}, 2"); a(f"s_lshr_b32 {T1}, {sW}, 1"); a(f"s_add_u32 {T0}, {T0}, {T1}"); a(f"s_cmp_eq_u32 {T0}, 46"); a(f"s_cbranch_scc0 {L1}")
        a(f"v_lshrrev_b32 {V0}, 3, {vL}"); a(f"v_add_u32 {V0}, {sC0}, {V0}"); a(f"v_and_b32 {V0}, 7, {V0}"); a(f"v_and_b32 {V1}, 0x70, {vL16}"); a(f"v_lshl_add_u32 {V0}, {V0}, 7, {V1}")
        a(f"s_and_b32 {T1}, {sW}, 1"); a(f"s_lshl_b32 {T0}, {T1}, 10"); a(f"s_mov_b32 m0, {T0}"); a(f"s_lshl_b32 {T1}, {T1}, 16")
        a.vmem(f"buffer_load_dwordx4 {V0}, {STMP}, {T1} offen lds", "B1")
        a(f"s_branch {L2}"); a(f"{L1}:")
        a(f"buffer_load_dword {V6}, off, {STMP}, 0")
        a(f"{L2}:")
        a(f"v_and_b32 {V4}, 31, {vL}"); a(f"v_lshrrev_b32 {V5}, 5, {vL}"); a(f"v_lshlrev_b32 {V5}, 4, {V5}"); a(f"v_lshl_add_u32 {V4}, {V4}, 5, {V5}")
        a(f"s_lshl_b32 {T0}, {sTG}, 10"); a(f"s_add_u32 {T0}, {T0}, {SCR}"); a(f"s_lshl_b32 {T1}, {sBB}, 13"); a(f"s_add_u32 {T2}, {T0}, {T1}"); a(f"s_add_u32 {T3}, {T2}, {T1}")
        a(f"v_add_u32 {V5}, {T2}, {V4}"); a(f"v_add_u32 {V4}, {T3}, {V4}")
        def sink(hd, sg, b):
            d = ACC0 + 8*hd + 4*sg
            return [f"v_cvt_pk_bf16_f32 v{d+i}, v{b+2*i}, v{b+2*i+1}" for i in range(4)] + \
                   [lambda: a.ds(f"ds_write_b128 {V4}, {vr(d,4)} offset:{(2*hd+sg)*4096}", "kw")]
        il = o.get('kil', 1)
        L = self.softmax(ACC0, ACC0, (ACC1, PHI), FR + 16, sink, 0 if il else 1)
        vf = PHI
        Vv = [f"v_cvt_pk_bf16_f32 v{vf+i}, v{ACC1+2*i}, v{ACC1+2*i+1}" for i in range(8)]
        Vv += [(lambda hd=hd: a.ds(f"ds_write_b128 {V5}, {vr(vf+4*hd,4)} offset:{32768 + hd*4096}", "kw")) for hd in range(2)]
        L = L[:10] + Vv + L[10:]
        self.push(*self.take(o.get('kd1', 2)))
        if il: self.passB(0, L, o.get('kper', 12), 100)
        else: self.run(L)
        self.flush()
        A, Bv, ONE, DK, DZ = ACC0, ACC1, FR, FR+4, FR+8
        a(f"s_lshl_b32 {T0}, {sW}, 12"); a(f"s_add_u32 {T0}, {T0}, {SCR}"); a(f"s_lshr_b32 {T1}, {sW}, 1"); a(f"s_lshl_b32 {T1}, {T1}, 12"); a(f"s_add_u32 {T1}, {T1}, {SCR + 32768}")
        a(f"v_lshlrev_b32 {V0}, 3, {vL}"); a(f"v_add_u32 {V1}, {T1}, {V0}"); a(f"v_add_u32 {V0}, {T0}, {V0}")
        for i in range(4): a(f"v_mov_b32 v{ONE+i}, 0x3f803f80")
        a(f"s_lshl_b32 {T0}, {sHP}, 4"); a(f"s_add_u32 {T0}, {T0}, {sRB}"); a(f"s_lshl_b32 {T0}, {T0}, 3"); a(f"s_add_u32 {T0}, {T0}, {sW}")
        a(f"s_lshl_b32 {T1}, {T0}, 10"); a(f"s_add_u32 {T1}, {T1}, {P_OFF}"); a(f"s_lshl_b32 {T2}, {T0}, 6"); a(f"s_add_u32 {T2}, {T2}, {PZ_OFF}")
        a(f"v_and_b32 {V3}, 15, {vL}"); a(f"v_cmp_eq_u32 vcc, 0, {V3}"); a(f"v_mov_b32 {V3}, {OOB}")
        a(f"v_cndmask_b32 {V3}, {V3}, {vL}, vcc")
        a(f"s_mov_b32 {T3}, 0x07060501"); a(f"s_mov_b32 {T4}, 0x07060502"); a(f"s_mov_b32 {T5}, 0x07060503")
        a.vmem(f"buffer_load_dword {V7}, off, {SDBG}, {sC32} sc1", "mode")
        a.wait(lg="kw"); a.wait(vm="B1")
        a("s_barrier")
        self.stamp(4)
        for st in range(4):
            for e in range(2): a.ds(f"ds_read_b64_tr_b16 {vr(A+4*st+2*e,2)}, {V0} offset:{st*1024+e*512}", f"k{st}")
            if st == 3: a.wait(lg="k0")
            for e in range(2): a.ds(f"ds_read_b64_tr_b16 {vr(Bv+4*st+2*e,2)}, {V1} offset:{st*1024+e*512}", f"k{st}")
        for st in range(4):
            a.wait(lg=f"k{st}")
            a(f"v_mfma_f32_16x16x32_bf16 {vr(DK,4)}, {vr(A+4*st,4)}, {vr(Bv+4*st,4)}, {'0' if st == 0 else vr(DK,4)}")
            a(f"v_mfma_f32_16x16x32_bf16 {vr(DZ,4)}, {vr(A+4*st,4)}, {vr(ONE,4)}, {'0' if st == 0 else vr(DZ,4)}")
        for D in (DK, DZ):
            a(f"v_perm_b32 v{D}, v{D}, v{D+3}, {T3}"); a(f"v_perm_b32 v{D+1}, v{D+1}, v{D+3}, {T4}"); a(f"v_perm_b32 v{D+2}, v{D+2}, v{D+3}, {T5}")
            a(f"v_mov_b32 v{D+3}, {sTAG}")
        a.vmem(f"buffer_store_dwordx4 {vr(DK,4)}, {vL16}, {SWS}, {T1} offen sc1", "part")
        a.vmem(f"buffer_store_dwordx4 {vr(DZ,4)}, {V3}, {SWS}, {T2} offen sc1", "part")
        self.ack_store(); self.touch(); self.c3_touch()
        if o.get('wom', 0) == 4:
            a(f"s_lshl_b32 {T0}, {sHP}, 4"); a(f"s_add_u32 {T0}, {T0}, {sRB}"); a(f"s_lshl_b32 {T0}, {T0}, 3"); a(f"s_add_u32 {T0}, {T0}, {sW}"); a(f"s_lshl_b32 {T0}, {T0}, 9")
            a(f"v_lshlrev_b32 {V6}, 3, {vL}")
            a.vmem(f"buffer_load_dword {V6}, {V6}, {SWO}, {T0} offen", "touch")
        self.stamp(5)
    def first_hh(self):
        a = self.a; o = self.o
        a(f"s_lshl_b32 {T0}, {sUA}, 13")
        L = []
        for u, acc in enumerate((ACC0, ACC1)):
            pk = PHI + 8*u
            hp = self.h_pack(acc, pk)
            for kk in range(2):
                L += hp[12*kk:12*kk+12]
                L += [f"s_add_u32 {T1}, {T0}, {u*UNIT + kk*STEP}",
                      lambda pk=pk, kk=kk: a.vmem(f"buffer_store_dwordx4 {vr(pk+4*kk,4)}, {vHS}, {SWS}, {T1} offen sc1", "hst")]
        n = o.get('hd1', 0)
        self.wx = self.wx + self.w2y()
        L += [self.ack_store, self.get_mode_issue, self.touch, self.c3_touch, lambda: self.stamp(4), lambda: self.push(*self.take(n))]
        if o.get('blate', 0):
            self.run(L); L = []
            a.wait(vm="B0"); a("s_barrier")
        self.passB(0, L, o.get('qper', 8), 2)
        self.flush()
        a.wait(vm="B1"); a("s_barrier")
        self.stamp("B1")
    def softmax_q(self, acc, pq, E, kf, mid):
        L = []; a = L.append
        for i in range(8): a(f"v_cvt_pk_bf16_f32 v{kf+i}, v{acc+2*i}, v{acc+2*i+1}")
        a(f"v_mfma_f32_32x32x16_bf16 {vr(pq,16)}, {vr(WP0,4)}, {vr(kf,4)}, 0")
        a(f"v_mfma_f32_32x32x16_bf16 {vr(pq,16)}, {vr(WP1,4)}, {vr(kf+4,4)}, {vr(pq,16)}")
        hook = lambda k: a(lambda: (self.stamp(f"sm{k}"), mid(k)))
        hook(0); a(self.slot); a(self.slot)
        S = ((kf, kf+2), (kf+4, kf+6))
        for k in range(4):
            for hd in range(2):
                p = pq + 8*hd; mp, mn = S[hd]
                if k == 0: a(f"v_max3_f32 v{mp}, v{p}, v{p+1}, v{p+2}"); a(f"v_max3_f32 v{mn}, -v{p}, -v{p+1}, -v{p+2}")
                elif k < 3: a(f"v_max3_f32 v{mp}, v{mp}, v{p+1+2*k}, v{p+2+2*k}"); a(f"v_max3_f32 v{mn}, v{mn}, -v{p+1+2*k}, -v{p+2+2*k}")
                else: a(f"v_max_f32 v{mp}, v{mp}, v{p+7}"); a(f"v_max_f32_e64 v{mn}, v{mn}, -v{p+7}")
        a(self.slot)
        def both(f):
            for hd in range(2): f(*S[hd])
        both(lambda x, y: a(f"v_permlane32_swap_b32 v{x}, v{y}"))
        both(lambda x, y: a(f"v_max_f32 v{x}, v{x}, v{y}"))
        both(lambda x, y: a(f"v_mul_f32 v{x}, {sL2E}, v{x}"))
        both(lambda x, y: a(f"v_mov_b32 v{y}, v{x}"))
        both(lambda x, y: a(f"v_permlane32_swap_b32 v{x}, v{y}"))
        a(self.slot)
        for hd in range(2):
            p = pq + 8*hd; e = E[hd]
            for sg in range(2):
                m = S[hd][sg]; b = e + 8*sg
                for i in range(8): a(f"v_fma_f32 v{b+i}, {'-' if sg else ''}v{p+i}, {sL2E}, -v{m}")
                a(self.slot)
                for i in range(8): a(f"v_exp_f32 v{b+i}, v{b+i}")
                a(self.slot)
                for i in range(4): a(f"v_cvt_pk_bf16_f32 v{PHI+8*hd+4*sg+i}, v{b+2*i}, v{b+2*i+1}")
            if hd == 0: hook(1)
        return L
    def second(self, kindA, kindB):
        a = self.a; o = self.o; P = kindA + kindB
        rest = (self.wq if kindB == 'q' else []) + self.wx
        yb = kindA == 'k' and o.get('ybar', 1)
        if yb: a("s_barrier"); rest = rest + self.w2y()
        n = o.get('d2' + P, o.get('d2' + kindA, 4)); now = rest[:n]; rest = rest[n:]
        aft = kindA == 'h' and o.get('ef', 99) < 16 and o.get('efp', 0)
        if not aft: self.push(*now)
        if kindA == 'k' and not o.get('kil', 1): self.passB(0, [], 0, o.get('kev', 3))
        early = (lambda: (self.get_mode_wait(), self.flag_h(False))) if kindA == 'h' else self.get_mode_wait
        if P == 'hh' and o.get('wom', 0) == 3:
            a(f"s_cmp_eq_u32 {sJ}, 8"); a(f"s_cselect_b32 {T0}, 12, {sJ}"); a(f"s_sub_u32 {T0}, {T0}, 12"); a(f"s_lshl_b32 {T0}, {T0}, 4"); a(f"s_lshl_b32 {T1}, {sC}, 1"); a(f"s_add_u32 {T0}, {T0}, {T1}")
            a(f"s_lshr_b32 {T1}, {sMM}, 1"); a(f"s_add_u32 {T0}, {T0}, {T1}"); a(f"s_lshl_b32 {T0}, {T0}, 3"); a(f"s_add_u32 {T0}, {T0}, {sW}"); a(f"s_lshl_b32 {T0}, {T0}, 10")
            a.vmem(f"buffer_load_dword {V6}, {vL16}, {SWO}, {T0} offen", "touch")
        if P == 'hh' and o.get('ytouch', 1):
            a(f"s_lshl_b32 {T0}, {sN}, 2"); a(f"s_lshr_b32 {T0}, 0x30765, {T0}"); a(f"s_and_b32 {T0}, {T0}, 7"); a(f"s_lshl_b32 {T0}, {T0}, 7"); a(f"s_add_u32 {T0}, {T0}, {sW2O}")
            a(f"s_lshr_b32 {T1}, {sMM}, 1"); a(f"s_mul_i32 {T1}, {T1}, 192"); a(f"s_mul_i32 {T2}, {sW}, 24"); a(f"s_add_u32 {T1}, {T1}, {T2}"); a(f"s_add_u32 {T1}, {T1}, 320"); a(f"s_lshl_b32 {T1}, {T1}, 10"); a(f"s_add_u32 {T0}, {T0}, {T1}")
            a(f"v_min_u32 {V6}, 23, {vL}"); a(f"v_lshlrev_b32 {V6}, 10, {V6}")
            a.vmem(f"buffer_load_dword {V6}, {V6}, {SW2}, {T0} offen", "touch")
        ef = o.get('ef', 99) if kindA == 'h' else 99
        self.passB(1, [(lambda: None)]*ef + [lambda: (early(), self.push(*now) if aft else None)] if ef < 16 else [], 1, 1 if aft else 3)
        if ef < 16: early = lambda: None
        self.flush()
        self.stamp(6)
        a("s_barrier")
        if kindA == 'k' and not yb: rest = rest + self.w2y()
        ph = Phase2(self, P)
        if kindB == 'q':
            fl = o.get('qflag', 0); qp = o.get('qp' + kindA, 0 if kindA == 'k' else 2)
            later = []
            if kindA == 'h' and o.get('w2late', 0): later = rest; rest = []
            if qp == 0:
                self.pf_issue(0, False) if o.get('sp', 0) else None
                for f in rest: f()
                self.pf_issue() if not o.get('sp', 0) else None
            else: self.push(*rest)
            def mid(k):
                if k == fl: early()
                if k + 1 == qp: self.flush(); self.pf_issue(0, False)
                if k == qp: ph.begin("pf", True)
                if kindA == 'h' and k == o.get('h1i', 2): self.red1_issue()
            self.run(self.softmax_q(ACCB, ACC0, (ACC1, ACCB), FR, mid))
            self.flush()
            self.stamp(7)
            fin = None
            if kindA == 'h':
                if o.get('h1i', 2) == 2: self.red1_issue()
                fin0 = self.red1_finish()
                fin = lambda: (fin0(), [f() for f in later])
                if qp == 3: self.pf_issue(0, False)
            if qp >= 2: ph.begin("pf", False, fin)
            elif fin: fin()
        else:
            def stores():
                a(f"s_lshl_b32 {sLB}, {sUB}, 13"); a(f"s_add_u32 {T3}, {sLB}, {STEP}")
                a.vmem(f"buffer_store_dwordx4 {vr(FR,4)}, {vHS}, {SWS}, {sLB} offen sc1", "hst")
                a.vmem(f"buffer_store_dwordx4 {vr(FR+4,4)}, {vHS}, {SWS}, {T3} offen sc1", "hst")
            sf = o.get('sfirst' + P, 1)
            if sf == 2:
                self.run(self.h_pack(ACCB, FR)); early(); stores()
                for f in rest: f()
                self.stamp(7)
                a.wait(vm="hst"); self.flag_h(True); ph.late = False
                ph.begin(None, False)
            elif sf == 1:
                for f in rest: f()
                self.run(self.h_pack(ACCB, FR)); early(); stores()
                self.stamp(7)
                a.wait(vm="hst"); self.flag_h(True); ph.late = False
                ph.begin(None, False)
            else:
                for f in rest: f()
                early()
                if ph.opt('wo1_at', 12) == -3:
                    for f in self.dmaWO(1): f()
                self.pf_issue(0, True)
                self.run(self.h_pack(ACCB, FR))
                ph.begin("pf", False); stores()
                self.stamp(7)
        ph.main()
    def gate_wave(self):
        a = self.a
        a(f"v_lshrrev_b32 {V0}, 5, {vL}"); a(f"v_lshlrev_b32 {V0}, 4, {V0}"); a(f"v_lshrrev_b32 {V1}, 2, {vL}"); a(f"v_lshrrev_b32 {V2}, 4, {vL}"); a(f"v_xor_b32 {V1}, {V1}, {V2}")
        a(f"v_and_b32 {V1}, 1, {V1}"); a(f"v_lshl_add_u32 {V0}, {V1}, 10, {V0}")
        D = 5
        def rd(st): a.ds(f"ds_read_b128 {vr(FR+4*(st%6),4)}, {V0} offset:{st*32}", f"g{st}")
        for st in range(D): rd(st)
        for st in range(32):
            if st + D < 32: rd(st + D)
            a.wait(lg=f"g{st}")
            a(f"v_mfma_f32_16x16x32_bf16 {vr(ACC0,4)}, {vr(FR+4*(st%6),4)}, {ar(4*st,4)}, {'0' if st == 0 else vr(ACC0,4)}")
        a(f"s_lshl_b32 {T2}, {sRB}, 2"); a(f"s_add_u32 {T2}, {T2}, {sTG}"); a(f"s_lshl_b32 {T2}, {T2}, 8"); a(f"s_add_u32 {T2}, {T2}, {G_OFF}")
        a(f"v_and_b32 {V1}, 31, {vL}"); a(f"v_lshlrev_b32 {V1}, 3, {V1}"); a(f"v_mov_b32 {V3}, {sTAG}")
        a(f"v_mul_f32 {V2}, {sL2E}, v{ACC0}"); a(f"v_exp_f32_e64 {V2}, -{V2}"); a(f"v_add_f32 {V2}, 1.0, {V2}"); a(f"v_rcp_f32 {V2}, {V2}")
        a(f"buffer_store_dwordx2 v[26:27], {V1}, {SWS}, {T2} offen sc1")
    def path_kx(self):
        a = self.a; o = self.o
        a("s_barrier")
        rest = self.wx + self.w2y()
        Lb = a.label("bb1"); Ld = a.label("bbd"); Lg = a.label("ng")
        a(f"s_and_b32 {T0}, {sJ}, 1"); a(f"s_xor_b32 {T0}, {T0}, 1"); a(f"s_lshl_b32 {T1}, {T0}, 6")
        a(f"v_xor_b32 {vBR}, {T1}, {vBR}"); a(f"s_add_u32 {sPI}, {sPI}, {T1}")
        a(f"s_lshl_b32 {sUB}, {sUB}, 13"); a(f"s_lshl_b32 {T0}, {T0}, 12"); a(f"s_add_u32 {sUB}, {sUB}, {T0}")
        a(f"s_cmp_eq_u32 {sBB}, 0"); a(f"s_cselect_b32 {sUB}, {sUB}, 0x40000000"); a(f"s_cselect_b32 {sPI}, {sPI}, 0x40000000"); a(f"s_cbranch_scc0 {Lb}")
        sv = a.vm.copy()
        nx = o.get('xd', 99); aft = rest[nx:]; rest = rest[:nx]
        self.push(*rest); self.passB(0, [], 0, o.get('xev', 2)); self.passB(1, [], 0, o.get('xev', 2)); self.flush()
        self.run(self.h_pack(ACCB, FR))
        a(f"s_branch {Ld}")
        a(f"{Lb}:"); a.vm = sv
        for f in rest: f()
        a(f"s_cmp_eq_u32 {sJ}, 11"); a(f"s_cbranch_scc0 {Ld}")
        self.gate_wave()
        a(f"{Ld}:")
        self.stamp(6)
        ph = Phase2(self, 'kx')
        def stores():
            a(f"s_mov_b32 {sLB}, {sUB}"); a(f"s_add_u32 {T3}, {sUB}, {STEP}")
            a.vmem(f"buffer_store_dwordx4 {vr(FR,4)}, {vHS}, {SWS}, {sUB} offen sc1", "hst")
            a.vmem(f"buffer_store_dwordx4 {vr(FR+4,4)}, {vHS}, {SWS}, {T3} offen sc1", "hst")
        self.get_mode_wait()
        if o.get('sfirstkx', 0):
            stores()
            for f in aft: f()
            a("s_barrier"); a.wait(vm="hst"); self.flag_h(True); ph.late = False; ph.begin(None, False)
        else:
            self.pf_issue(0, True)
            for f in aft: f()
            a("s_barrier"); ph.begin("pf", False); stores()
        self.stamp(7)
        ph.main()
    def red1_issue(self):
        a = self.a
        a(f"s_and_b32 {T0}, {sRB}, 1"); a(f"s_lshl_b32 {T0}, {T0}, 2"); a(f"s_add_u32 {T0}, {T0}, {sJ}"); a(f"s_sub_u32 {T0}, {T0}, 4")
        a(f"s_lshl_b32 {T2}, {sC}, 7"); a(f"s_add_u32 {T2}, {T2}, {T0}")
        a(f"s_lshl_b32 {T3}, {T2}, 10"); a(f"s_lshl_b32 {T4}, {sW}, 7"); a(f"s_add_u32 {T3}, {T3}, {T4}"); a(f"s_add_u32 {T3}, {T3}, {P_OFF}")
        a(f"v_lshrrev_b32 {V2}, 3, {vL}"); a(f"v_and_b32 {V1}, 7, {vL}"); a(f"v_lshlrev_b32 {V1}, 4, {V1}"); a(f"v_lshl_add_u32 {V2}, {V2}, 13, {V1}"); a(f"v_add_u32 {V2}, {T3}, {V2}")
        a(f"s_lshl_b32 {T3}, {T2}, 6"); a(f"s_add_u32 {T3}, {T3}, {PZ_OFF}")
        a(f"v_lshrrev_b32 {V4}, 2, {vL}"); a(f"v_and_b32 {V3}, 3, {vL}"); a(f"v_lshlrev_b32 {V3}, 4, {V3}"); a(f"v_lshl_add_u32 {V3}, {V4}, 9, {V3}"); a(f"v_add_u32 {V3}, {T3}, {V3}")
        a(f"s_lshl_b32 {T2}, {sC}, 3"); a(f"s_add_u32 {T2}, {T2}, {T0}")
        a(f"s_lshl_b32 {T3}, {T2}, 10"); a(f"s_add_u32 {T3}, {T3}, {T4}"); a(f"s_add_u32 {T3}, {T3}, {F_OFF}")
        a(f"v_mov_b32 {V6}, {OOB}"); a(f"v_cmp_gt_u32 vcc, 8, {vL}"); a(f"v_add_u32 {V4}, {T3}, {V1}"); a(f"v_cndmask_b32 {V4}, {V6}, {V4}, vcc")
        a(f"s_lshl_b32 {T3}, {T2}, 6"); a(f"s_add_u32 {T3}, {T3}, {FZ_OFF}"); a(f"s_cmp_eq_u32 {sW}, 0"); a(f"s_cselect_b32 {T3}, {T3}, {OOB - 0x100}")
        a(f"v_cmp_gt_u32 vcc, 4, {vL}"); a(f"v_add_u32 {V5}, {T3}, {V1}"); a(f"v_cndmask_b32 {V5}, {V6}, {V5}, vcc")
        self.red1_loads(True)
    def red1_loads(self, track):
        a = self.a; Bq = FR + 8
        a(f"s_mov_b32 {T5}, 0x10000")
        for s in (f"buffer_load_dwordx4 {vr(Bq,4)}, {V2}, {SWS}, 0 offen sc1", f"buffer_load_dwordx4 {vr(Bq+4,4)}, {V2}, {SWS}, {T5} offen sc1",
                  f"buffer_load_dwordx4 {vr(Bq+8,4)}, {V3}, {SWS}, 0 offen sc1"):
            a.vmem(s, "h1") if track else a(s)
    def red1_finish(self):
        a = self.a; Bq = FR + 8; Z = Bq + 8; Tm = ACC0
        L = a.label("h1"); Ld = a.label("h1d")
        a.wait(vm="h1")
        a(f"s_mov_b32 {sSPIN}, {SPIN}")
        a(f"{L}:")
        a(f"v_cmp_ne_u32 vcc, {sTAG}, v{Bq+3}")
        for i in range(1, 3):
            a(f"v_cmp_ne_u32 {sM}, {sTAG}, v{Bq+4*i+3}"); a("s_nop 1"); a(f"s_or_b64 vcc, vcc, {sM}")
        a(f"s_cbranch_vccz {Ld}")
        a(f"s_sub_u32 {sSPIN}, {sSPIN}, 1"); a(f"s_cbranch_scc1 {Ld}")
        if self.o.get('bo', 0): a(f"s_sleep {self.o['bo']}")
        self.red1_loads(False); a("s_waitcnt vmcnt(0)"); a(f"s_branch {L}")
        a(f"{Ld}:")
        self.stamp("h1")
        a(f"s_mov_b32 {T1}, 0x04000c0c"); a(f"s_mov_b32 {T2}, 0x0706000c")
        for i in range(3):
            b = Bq + 4*i
            a(f"v_perm_b32 v{b+3}, v{b+2}, v{b+1}, {T1}"); a(f"v_perm_b32 v{b+3}, v{b+3}, v{b}, {T2}")
        for i in range(4): a(f"v_add_f32 v{Bq+i}, v{Bq+i}, v{Bq+4+i}")
        for i in range(4): a(f"v_add_f32_dpp v{Z+i}, v{Z+i}, v{Z+i} row_ror:4 row_mask:0xf bank_mask:0xf")
        vals = list(range(Bq, Bq+4)) + list(range(Z, Z+4))
        for v in vals: a(f"v_add_f32_dpp v{v}, v{v}, v{v} row_ror:8 row_mask:0xf bank_mask:0xf")
        for op in ("v_permlane16_swap_b32", "v_permlane32_swap_b32"):
            for k, v in enumerate(vals): a(f"v_mov_b32 v{Tm+k}, v{v}")
            for k, v in enumerate(vals): a(f"{op} v{v}, v{Tm+k}")
            for k, v in enumerate(vals): a(f"v_add_f32 v{v}, v{v}, v{Tm+k}")
        for k, b in enumerate((Bq, Z)):
            d = Tm + 4*k
            a(f"v_cvt_pk_bf16_f32 v{d}, v{b}, v{b+1}"); a(f"v_cvt_pk_bf16_f32 v{d+1}, v{b+2}, v{b+3}")
            a(f"v_mov_b32 v{d+2}, {sTAG}"); a(f"v_mov_b32 v{d+3}, {sTAG}")
        return lambda: (a.vmem(f"buffer_store_dwordx4 {vr(Tm,4)}, {V4}, {SWS}, 0 offen sc1", "fin"),
                        a.vmem(f"buffer_store_dwordx4 {vr(Tm+4,4)}, {V5}, {SWS}, 0 offen sc1", "fin"))
    def f_issue(self):
        a = self.a
        a(f"s_lshl_b32 {T0}, {sHP}, 3"); a(f"s_add_u32 {T0}, {T0}, {sW}")
        a(f"s_lshl_b32 {sR1}, {T0}, 10"); a(f"s_add_u32 {sR1}, {sR1}, {F_OFF}"); a(f"s_lshl_b32 {sH1}, {T0}, 6"); a(f"s_add_u32 {sH1}, {sH1}, {FZ_OFF}")
        self.f_loads(True)
    def f_loads(self, track):
        a = self.a
        a(f"v_and_b32 v28, 0x30, {vL16}")
        for s in (f"buffer_load_dwordx4 v[8:11], {vL16}, {SWS}, {sR1} offen sc1", f"buffer_load_dwordx4 v[28:31], v28, {SWS}, {sH1} offen sc1"):
            a.vmem(s, "h2") if track else a(s)
    def f_check(self):
        a = self.a
        L = a.label("h2"); Ld = a.label("h2d")
        a.wait(vm="h2")
        a(f"s_mov_b32 {sSPIN}, {SPIN}")
        a(f"{L}:")
        a(f"v_cmp_ne_u32 vcc, {sTAG}, v10"); a(f"v_cmp_ne_u32 {sM}, {sTAG}, v30"); a("s_nop 1"); a(f"s_or_b64 vcc, vcc, {sM}")
        a(f"s_cbranch_vccz {Ld}")
        a(f"s_sub_u32 {sSPIN}, {sSPIN}, 1"); a(f"s_cbranch_scc1 {Ld}")
        if self.o.get('bo', 0): a(f"s_sleep {self.o['bo']}")
        self.f_loads(False); a("s_waitcnt vmcnt(0)"); a(f"s_branch {L}")
        a(f"{Ld}:")
        self.stamp(9)
        a(f"s_add_u32 {T0}, {sW1k}, {KVT}")
        a(f"v_and_b32 {V2}, 15, {vL}"); a(f"v_lshrrev_b32 {V3}, 4, {vL}"); a(f"v_lshlrev_b32 {V3}, 3, {V3}"); a(f"v_lshl_add_u32 {V2}, {V2}, 5, {V3}"); a(f"v_add_u32 {V2}, {T0}, {V2}")
        a(f"v_lshlrev_b32 {V3}, 3, {vL}"); a(f"v_add_u32 {V3}, {T0}, {V3}")
        a.ds(f"ds_write_b64 {V2}, v[8:9]", "kt")
        a(f"v_cmp_gt_u32 vcc, 4, {vL}"); a(f"v_mov_b32 {V1}, 0x3f803f80"); a(f"v_cndmask_b32 v28, {V1}, v28, vcc"); a(f"v_cndmask_b32 v29, {V1}, v29, vcc")
        a("s_mov_b64 exec, 0xff")
        a.ds(f"ds_write_b64 {V3}, v[28:29] offset:512", "kt")
        a("s_mov_b64 exec, -1")
        self.o_addr()
        a.wait(lg="kt")
        a("s_barrier")
    def o_addr(self):
        a = self.a
        a(f"v_and_b32 {V3}, 3, {vL}"); a(f"v_bfe_u32 {V1}, {vL}, 2, 1"); a(f"v_bfe_u32 {V2}, {vL}, 3, 1")
        a(f"v_lshl_add_u32 {V3}, {V1}, 3, {V3}"); a(f"v_lshl_add_u32 {V3}, {V2}, 2, {V3}"); a(f"v_add_u32 {V2}, 16, {V2}")
        a(f"v_and_b32 {V1}, 16, {vL}"); a(f"v_cmp_eq_u32 vcc, 0, {V1}"); a(f"v_lshrrev_b32 {V1}, 5, {vL}"); a(f"v_lshlrev_b32 {V1}, 4, {V1}")
        a(f"v_cndmask_b32 {V3}, {V2}, {V3}, vcc"); a(f"v_lshl_add_u32 {V3}, {V3}, 5, {V1}")
        a(f"s_lshl_b32 {T0}, {sBB}, 12"); a(f"s_add_u32 {T0}, {T0}, {KVT}"); a(f"v_add_u32 {WP0V}, {T0}, {V3}")
    def o_compute(self):
        a = self.a
        D = (ACCA, ACCA + 16)
        A = ("v[8:11]", "v[28:31]", "a[112:115]", "a[116:119]")
        for t in range(4): a.ds(f"ds_read_b128 {A[t]}, {WP0V} offset:{t*1024}", f"o{t>>1}")
        a(f"s_lshl_b32 {T0}, {sHP}, 13"); a(f"s_add_u32 {T0}, {T0}, {O_OFF}"); a(f"s_add_u32 {T1}, {T0}, {STEP}"); a(f"s_mov_b32 {T2}, 0x358637bd")
        a.wait(lg="o0")
        a(f"v_mfma_f32_32x32x16_bf16 {vr(D[1],16)}, {A[1]}, {vr(PHI+4,4)}, 0")
        a(f"v_mfma_f32_32x32x16_bf16 {vr(D[0],16)}, {A[0]}, {vr(PHI,4)}, 0")
        for hd in range(2):
            DP, DM = D
            a(f"v_rcp_f32 {V1}, v{DM+12}")
            a(f"v_fma_f32 {V2}, v{DP+12}, {T2}, v{DP+8}"); a(f"v_mul_f32 {V1}, v{DP+12}, {V1}")
            a(f"v_fmac_f32 {V2}, {V1}, v{DM+8}"); a(f"v_rcp_f32 {V2}, {V2}")
            for i in range(8): a(f"v_fmac_f32 v{DP+i}, {V1}, v{DM+i}")
            if hd == 0:
                a.wait(lg="o1")
                a(f"v_mfma_f32_32x32x16_bf16 {vr(DM,16)}, {A[3]}, {vr(PHI+12,4)}, 0")
            for i in range(8): a(f"v_mul_f32 v{DP+i}, {V2}, v{DP+i}")
            for i in range(4): a(f"v_cvt_pk_bf16_f32 v{PHI+8*hd+i}, v{DP+2*i}, v{DP+2*i+1}")
            if hd == 0: a(f"v_mfma_f32_32x32x16_bf16 {vr(DP,16)}, {A[2]}, {vr(PHI+8,4)}, 0")
        ofl = self.o.get('osfl', '')
        self.store_mode(lambda f: (a(f"buffer_store_dwordx4 {vr(PHI,4)}, {vHS}, {SWS}, {T0} offen{f or ' ' + ofl}"),
                                   a(f"buffer_store_dwordx4 {vr(PHI+8,4)}, {vHS}, {SWS}, {T1} offen{f or ' ' + ofl}")), "ost", 2)
    def red_addr(self, base):
        a = self.a; R = base
        W0, W1, W2_, W3, R0, R1, OA = vX0, vX1, vWA, vWB, vXR0, vXR1, vXR2
        a(f"v_and_b32 {W0}, 31, {vL}"); a(f"v_lshrrev_b32 {V1}, 5, {vL}"); a(f"v_lshlrev_b32 {V1}, 1, {V1}"); a(f"v_and_b32 {V2}, 7, {vL}")
        a(f"v_xor_b32 {V1}, {V1}, {V2}"); a(f"v_lshlrev_b32 {V1}, 4, {V1}"); a(f"v_lshl_add_u32 {W0}, {W0}, 8, {V1}")
        a(f"s_and_b32 {T4}, {sW}, 1"); a(f"s_lshl_b32 {T4}, {T4}, 15"); a(f"s_lshr_b32 {T1}, {sW}, 1"); a(f"s_lshl_b32 {T2}, {T1}, 13"); a(f"s_add_u32 {T2}, {T2}, {T4}")
        a(f"s_add_u32 {T2}, {T2}, {R}")
        a(f"v_add_u32 {W0}, {T2}, {W0}"); a(f"v_xor_b32 {W1}, 16, {W0}"); a(f"v_xor_b32 {W2_}, 64, {W0}"); a(f"v_xor_b32 {W3}, 0x50, {W0}")
        a(f"v_lshrrev_b32 {V3}, 3, {vL}"); a(f"v_lshlrev_b32 {R0}, 1, {V2}"); a(f"v_xor_b32 {R0}, {R0}, {V3}"); a(f"v_lshlrev_b32 {R0}, 4, {R0}")
        a(f"v_lshl_add_u32 {R0}, {V3}, 8, {R0}"); a(f"s_lshl_b32 {T2}, {T1}, 11"); a(f"s_add_u32 {T2}, {T2}, {T4}"); a(f"s_add_u32 {T2}, {T2}, {R}")
        a(f"v_add_u32 {R0}, {T2}, {R0}"); a(f"v_xor_b32 {R1}, 16, {R0}")
        a(f"s_lshl_b32 {T2}, {sC}, 8"); a(f"s_lshl_b32 {T3}, {sMM}, 6"); a(f"s_add_u32 {T2}, {T2}, {T3}"); a(f"s_lshr_b32 {T3}, {T4}, 10"); a(f"s_add_u32 {T2}, {T2}, {T3}")
        a(f"s_lshl_b32 {sUA}, {T2}, 3"); a(f"s_add_u32 {sUA}, {sUA}, {G_OFF}")
        a(f"s_lshl_b32 {T3}, {T1}, 3"); a(f"s_add_u32 {T2}, {T2}, {T3}"); a(f"s_lshl_b32 {T2}, {T2}, 10"); a(f"s_lshl_b32 {T3}, {sN}, 7"); a(f"s_add_u32 {T2}, {T2}, {T3}")
        a(f"v_lshlrev_b32 {V2}, 4, {V2}"); a(f"v_lshl_add_u32 {OA}, {V3}, 10, {V2}"); a(f"v_add_u32 {OA}, {T2}, {OA}")
        a(f"s_lshl_b32 {T2}, {sC}, 2"); a(f"s_add_u32 {T2}, {T2}, {sMM}"); a(f"s_lshl_b32 {T2}, {T2}, 3"); a(f"s_add_u32 {T2}, {T2}, {sN}")
        a(f"s_lshl_b32 {T2}, {T2}, 14"); a(f"s_lshr_b32 {T3}, {T4}, 3"); a(f"s_add_u32 {T2}, {T2}, {T3}"); a(f"s_add_u32 {sUB}, {T2}, {X_OFF}")
    def red_write(self, src, pre=None, rf=vr, post=None):
        a = self.a
        wa = {(0, 0): vX0, (0, 1): vX1, (1, 0): vWA, (1, 1): vWB}
        for cb in range(2):
            for gp in range(2):
                for e in range(2):
                    b = 16*cb + 8*gp + 4*e
                    if pre: pre(b)
                    a.ds(f"ds_write_b128 {wa[(gp,e)]}, {rf(src+b,4)} offset:{cb*128}", "rw")
        if post: post()
        a.wait(lg="rw")
        a("s_barrier")
    def red_read(self, Bq):
        a = self.a
        for k in range(4):
            a.ds(f"ds_read_b128 {vr(Bq+8*k,4)}, {vXR0} offset:{k*8192}", f"s{k}"); a.ds(f"ds_read_b128 {vr(Bq+8*k+4,4)}, {vXR1} offset:{k*8192}", f"s{k}")
        a.wait(lg="s1")
        for i in range(0, 8, 2): a(f"v_pk_add_f32 {vr(Bq+i,2)}, {vr(Bq+i,2)}, {vr(Bq+8+i,2)}")
        a.wait(lg="s3")
        for i in range(0, 8, 2): a(f"v_pk_add_f32 {vr(Bq+16+i,2)}, {vr(Bq+16+i,2)}, {vr(Bq+24+i,2)}")
        for i in range(0, 8, 2): a(f"v_pk_add_f32 {vr(Bq+i,2)}, {vr(Bq+i,2)}, {vr(Bq+16+i,2)}")
    def g_loads(self, track):
        a = self.a
        a(f"v_and_b32 {V2}, 31, {vL}"); a(f"v_lshlrev_b32 {V2}, 3, {V2}")
        a(f"v_and_b32 {V4}, 0x38, {vL}"); a(f"s_lshr_b32 {T1}, {sW}, 1"); a(f"s_lshl_b32 {T1}, {T1}, 6"); a(f"s_add_u32 {T1}, {T1}, {sUA}")
        for s in (f"buffer_load_dwordx2 v[26:27], {V2}, {SWS}, {sUA} offen sc1", f"buffer_load_dwordx2 v[28:29], {V4}, {SWS}, {T1} offen sc1"):
            a.vmem(s, "g") if track else a(s)
    def x_load(self):
        a = self.a
        self.poll_flags(3 << 48, "pf")
        a(f"s_xor_b32 {T2}, {sUB}, {32*16384}"); a(f"s_lshr_b32 {T3}, {sW}, 1"); a(f"s_lshl_b32 {T3}, {T3}, 7"); a(f"s_add_u32 {T2}, {T2}, {T3}")
        a(f"v_bfe_u32 v8, {vL}, 1, 2"); a(f"v_and_b32 v9, 1, {vL}"); a(f"v_lshlrev_b32 v8, 10, v8"); a(f"v_lshl_add_u32 v8, v9, 9, v8")
        a(f"v_lshrrev_b32 v9, 3, {vL}"); a(f"v_lshl_add_u32 v8, v9, 4, v8")
        a.vmem(f"buffer_load_dwordx4 {vr(PHI+8,4)}, v8, {SWS}, {T2} offen sc1", "x")
    def spin(self, regs, tag, reload):
        a = self.a; L = a.label("sp"); Ld = a.label("spd")
        a.wait(vm=tag)
        a(f"s_mov_b32 {sSPIN}, {SPIN}")
        a(f"{L}:")
        a(f"v_cmp_ne_u32 vcc, {sTAG}, {regs[0]}"); a(f"v_cmp_ne_u32 {sM}, {sTAG}, {regs[1]}"); a("s_nop 1"); a(f"s_or_b64 vcc, vcc, {sM}")
        a(f"s_cbranch_vccz {Ld}")
        a(f"s_sub_u32 {sSPIN}, {sSPIN}, 1"); a(f"s_cbranch_scc1 {Ld}")
        reload(False); a("s_waitcnt vmcnt(0)"); a(f"s_branch {L}")
        a(f"{Ld}:")
    def tail2(self, xflag, synced):
        a = self.a
        if xflag: xflag()
        self.srd(SOUT, 20, 0x200000)
        if not synced: self.g_loads(True); self.pf_issue()
        a.wait(vm="wo"); a("s_barrier")
        self.stamp(10)
        rot = self.o.get('arot', 0)
        def rd(i):
            b = FR2 + 8*(i % 2)
            if rot:
                a(f"s_add_u32 {sA0}, {sN}, {i}"); a(f"s_and_b32 {sA0}, {sA0}, 7"); a(f"s_lshl_b32 {sA0}, {sA0}, 13")
                a(f"v_add_u32 {vPM0}, {sA0}, {vPO0}"); a(f"v_add_u32 {vPM1}, {sA0}, {vPO1}")
            for cb, v in ((0, vPM0 if rot else vPO0), (1, vPM1 if rot else vPO1)):
                for e in range(2): a.ds(f"ds_read_b64_tr_b16 {vr(b+4*cb+2*e,2)}, {v} offset:{(0 if rot else i*8192) + e*512}", f"a{i}")
        rd(0)
        self.spin(("v27", "v29"), "g", self.g_loads)
        self.poll_flags(0xff << 32, "pf")
        self.stamp(11)
        def ld(i):
            if rot: a(f"s_add_u32 {T0}, {sN}, {i}"); a(f"s_and_b32 {T0}, {T0}, 7"); a(f"s_lshl_b32 {T0}, {T0}, 13"); a(f"s_add_u32 {T0}, {T0}, {T5}")
            else: a(f"s_add_u32 {T0}, {T5}, {i*UNIT}")
            a.vmem(f"buffer_load_dwordx4 {ar(4*i,4)}, {vHL}, {SWS}, {T0} offen sc1", f"o{i}")
        a(f"s_lshl_b32 {T5}, {sSIDE}, 21"); a(f"s_add_u32 {T5}, {T5}, {O_OFF}")
        LA = self.o.get('ola', 4)
        for i in range(LA):
            ld(i)
            if i == 0: a(f"v_sub_f32 {V3}, 1.0, {V2}"); a(f"v_sub_f32 {V4}, 1.0, {V4}")
            for k in range(32*i//LA, 32*(i+1)//LA): a(f"v_mul_f32 v{ACCF+k}, {V3}, v{ACCF+k}")
        for i in range(8):
            if i + 1 < 8: rd(i + 1)
            if i + LA < 8: ld(i + LA)
            if i == self.o.get('xp', 0): self.pf_issue('x')
            if i == self.o.get('xi', 4): self.x_load()
            a.wait(vm=f"o{i}", lg=f"a{i}")
            for cb in range(2):
                acc = ACCA + 16*cb
                a(f"v_mfma_f32_32x32x16_bf16 {vr(acc,16)}, {vr(FR2+8*(i%2)+4*cb,4)}, {ar(4*i,4)}, {'0' if i == 0 else vr(acc,16)}")
        self.stamp(12)
        def pre(b):
            for i in range(0, 4, 2): a(f"v_pk_fma_f32 {vr(ACCF+b+i,2)}, {vr(ACCA+b+i,2)}, v[26:27], {vr(ACCF+b+i,2)} op_sel_hi:[1,0,1]")
        def unpack():
            a.wait(vm="x")
            for i in range(4): a(f"v_lshlrev_b32 v{PHI+2*i}, 16, v{PHI+8+i}"); a(f"v_and_b32 v{PHI+2*i+1}, 0xffff0000, v{PHI+8+i}")
        self.red_write(ACCF, pre, post=unpack)
        self.stamp("rw")
        Bq = ACCA
        self.red_read(Bq)
        for i in range(0, 8, 2): a(f"v_pk_fma_f32 {vr(Bq+i,2)}, {vr(PHI+i,2)}, v[28:29], {vr(Bq+i,2)} op_sel_hi:[1,0,1]")
        for i in range(4): a(f"v_cvt_pk_bf16_f32 v{Bq+8+i}, v{Bq+2*i}, v{Bq+2*i+1}")
        a.vmem(f"buffer_store_dwordx4 {vr(Bq+8,4)}, {vXR2}, {SOUT}, 0 offen {self.o.get('ofl', '') if xflag else self.o.get('oflq', self.o.get('ofl', ''))}", "out")
        if self.o.get('probe'): self.probe()
        if self.o.get('span'):
            a("s_waitcnt vmcnt(0)"); a("v_mov_b32 v24, s26"); a("s_memrealtime s[26:27]"); a("s_waitcnt lgkmcnt(0)"); a("v_mov_b32 v25, s26")
            a(f"s_lshl_b32 {T0}, s2, 3"); a(f"s_add_u32 {T0}, {T0}, {sW}"); a(f"s_lshl_b32 {T0}, {T0}, 8"); a(f"s_add_u32 {T0}, {T0}, {ST_OFF + 248}")
            a("s_mov_b64 exec, 1"); a(f"buffer_store_dwordx2 v[24:25], off, {SWS}, {T0}")
        if self.o.get('stamps'):
            self.stamp(13)
            a("s_waitcnt vmcnt(0)"); self.stamp(14); a("s_waitcnt lgkmcnt(0)"); self.stamp(15)
            a("s_waitcnt lgkmcnt(0)"); a("s_memrealtime s[26:27]"); a("s_waitcnt lgkmcnt(0)"); a("v_writelane_b32 v23, s26, 63")
            a(f"s_lshl_b32 {T0}, s2, 3"); a(f"s_add_u32 {T0}, {T0}, {sW}"); a(f"s_lshl_b32 {T0}, {T0}, 8"); a(f"s_add_u32 {T0}, {T0}, {ST_OFF}")
            a(f"v_lshlrev_b32 {V0}, 2, {vL}")
            a(f"buffer_store_dword v23, {V0}, {SWS}, {T0} offen")
        a("s_endpgm")
    def bump(self):
        a = self.a
        Lx = a.label("nb"); L = a.label("bp"); Ld = a.label("bpd")
        a("s_cmp_eq_u32 s2, 192"); a(f"s_cbranch_scc0 {Lx}"); a(f"s_cmp_eq_u32 {sW}, 0"); a(f"s_cbranch_scc0 {Lx}")
        a(f"s_mov_b32 {T0}, {ACK_OFF}"); a(f"s_mov_b32 {sSPIN}, {SPIN}")
        a(f"{L}:")
        a(f"buffer_load_dwordx4 v[8:11], {vL16}, {SWS}, {T0} offen sc1"); a("s_waitcnt vmcnt(0)")
        a(f"v_cmp_ne_u32 vcc, {sTAG}, v8")
        for i in range(1, 4):
            a(f"v_cmp_ne_u32 {sM}, {sTAG}, v{8+i}"); a("s_nop 1"); a(f"s_or_b64 vcc, vcc, {sM}")
        a(f"s_cbranch_vccz {Ld}")
        a(f"s_sub_u32 {sSPIN}, {sSPIN}, 1"); a(f"s_cbranch_scc0 {L}")
        a(f"{Ld}:")
        a(f"v_mov_b32 {V1}, {sE}"); a(f"s_mov_b32 {T0}, {E_OFF}"); a("s_mov_b64 exec, 1")
        a(f"buffer_store_dword {V1}, off, {SWS}, {T0}"); a("s_mov_b64 exec, -1"); a("s_waitcnt vmcnt(0)")
        a(f"{Lx}:")
    def save(self): return (self.a.vm.copy(), self.a.lg.copy(), list(self.pend), list(self.wx), list(self.wq))
    def restore(self, s): self.a.vm, self.a.lg, self.pend, self.wx, self.wq = s[0].copy(), s[1].copy(), list(s[2]), list(s[3]), list(s[4])
    def place_pads(self):
        a = self.a; step = self.o['pads']
        i0 = a.L.index("L_pc:"); k = 0; out = a.L[:i0]; n = step - self.o.get('pad0', 0); depth = 0
        for idx in range(i0, len(a.L)):
            l = a.L[idx]
            prev = a.L[idx - 1]
            safe = not prev.startswith(('s_cmp', 's_bitcmp', 's_getpc', 's_add_u32 m0', 's_mov_b32 m0', 'v_cmp', 's_mov_b64 exec, 1', 'v_mfma')) and not l.endswith(':') and l.startswith(('v_', 'ds_'))
            if k < 8 and n >= step and safe:
                out += [f"s_branch L_skip{k}", f"L_pad{k}:", "s_branch L_ret", f"L_skip{k}:"]; k += 1; n = 0
            out.append(l); n += 1
        assert k == 8
        a.L = out
    def body(self):
        a = self.a
        self.prologue(); self.passA()
        if self.o.get('pads'): self.place_pads()
        s0 = self.save()
        a("s_cmp_eq_u32 s9, 0"); a("s_cbranch_scc1 L_kv")
        self.first_hh(); s1 = self.save()
        a(f"s_cmp_eq_u32 {sTB}, 1"); a("s_cbranch_scc1 L_hq")
        self.second('h', 'h')
        a("L_hq:"); self.restore(s1); self.second('h', 'q')
        a("L_kv:"); self.restore(s0)
        self.first_kv(); s1 = self.save()
        a(f"s_cmp_eq_u32 {sTB}, 1"); a("s_cbranch_scc1 L_kq")
        self.path_kx()
        a("L_kq:"); self.restore(s1); self.second('k', 'q')

class Phase2:
    NS = 30
    def __init__(self, g, P):
        self.g = g; self.P = P; o = g.o
        self.hasq = P[-1] == 'q'; self.r1 = not self.hasq; self.late = P in ('hh', 'kx')
        self.opt = lambda k, d: o.get(k + P, o.get(k, d))
        k1 = self.opt('k1', 2)
        assert k1 <= 5 or k1 == 11
        E1 = [(1, 'r', k, s) for k in range(5) for s in range(2)]; E2 = [(2, 'r', k, 0) for k in range(5)] + [(2, 'R', k, 0) for k in range(5)]
        R1 = lambda lo, hi: [(1, 's', u, s) for u in range(lo, hi) for s in range(2)]
        if self.r1 and k1 == 11:
            self.seq = E1 + E2[:5] + R1(5, 6) + E2[5:] + R1(6, 9) + [(2, 's', 10, 0)] + R1(9, 11)
            self.i_send = 33; self.i_b = 15
        elif self.r1:
            self.seq = E1 + E2[:k1] + [(1, 's', u, s) for u in range(5, 11) for s in range(2)] + E2[k1:] + [(2, 's', 10, 0)]
            self.i_send = 22 + k1; self.i_b = 10 + k1
        else: self.seq = E2 + [(2, 's', 10, 0)]; self.i_send = None; self.i_b = 5
        m = lambda x: x if self.r1 else x & 0xffff
        self.masks = (m(M_EARLY), m(M_MID), m(M_LATE))
        self.ns = self.r1 and o.get('nsplit', 0)
        if self.ns: self.masks = (self.masks[0] & ~0xffff, self.masks[1] | (self.masks[0] & 0xffff), self.masks[2])
        self.split = o.get('esplit', 0)
        if self.split: self.masks = (self.masks[0] & ~0x18, self.masks[1] | 0x18, self.masks[2])
        self.issued = {}; self.done = -1; self.nslot = 0; self.owner = {}
        self.ok = {'mid': False, 'late': False}
        self.bufs = [vr(FR2, 8), vr(FR2 + 8, 8), ar(120, 8)]
    def sub(self, b, lo, n):
        kind = b[0]; base = int(b[2:b.index(':')]); return f"{kind}[{base+lo}:{base+lo+n-1}]"
    def idx(self, e, dst):
        a = self.g.a; rnd, kind, k, s = e
        if kind == 's': a(f"s_mov_b32 {dst}, {k}"); return
        lo = 5 if kind == 'R' else 0
        a(f"s_add_u32 {dst}, {sR2}, {k + lo}"); a(f"s_cmp_ge_u32 {dst}, {5 + lo}"); a(f"s_cselect_b32 {sA2}, 5, 0"); a(f"s_sub_u32 {dst}, {dst}, {sA2}")
    def can(self, i):
        e = self.seq[i]
        if self.owner.get(self.nslot % self.NS, -1) > self.done: return False
        if self.ns and e[0] == 2: return self.ok['mid']
        if e[1] == 'r' or (e[1] == 'R' and not self.split) or (e[0] == 1 and e[2] == 5): return True
        return self.ok['late'] if (e[0] == 1 and e[2] >= 9) else self.ok['mid']
    def ld(self, i):
        a = self.g.a; e = self.seq[i]
        sl = self.nslot % self.NS; self.nslot += 1; self.owner[sl] = i; self.issued[i] = sl
        def f():
            self.idx(e, sStrB64); a(f"s_lshl_b32 {sStrB64}, {sStrB64}, 13"); a(f"s_add_u32 {sStrB64}, {sStrB64}, {sH1 if e[0] == 1 else sH2}")
            if e[1] == 's' and e[2] == 10:
                if e[0] == 1: a(f"s_lshr_b32 {sA2}, {sW}, 1"); a(f"s_and_b32 {sA2}, {sA2}, {sSIDE}")
                else: a(f"s_and_b32 {sA2}, {sSIDE}, {sBB}")
                a(f"s_cselect_b32 {sStrB64}, 0x40000000, {sStrB64}")
            a.vmem(f"buffer_load_dwordx4 {ar(4*sl,4)}, {'v9' if e[0] == 1 else vHL}, {SWS}, {sStrB64} offen offset:{e[3]*2048} sc1", f"h{i}")
        return f
    def issue(self, upto, n, defer=False):
        for i in range(len(self.seq)):
            if n <= 0: break
            if i not in self.issued and i <= upto and self.can(i):
                f = self.ld(i); n -= 1
                self.g.push(f) if defer else f()
    def rd(self, i):
        a = self.g.a; b = self.bufs[i % 3]; e = self.seq[i]
        if e[3] == 0:
            self.idx(e, sA0); a(f"s_lshl_b32 {sA0}, {sA0}, 13")
            a(f"v_add_u32 {vPM0}, {sA0}, {'v10' if e[0] == 1 else vPR0}"); a(f"v_add_u32 {vPM1}, {sA0}, {'v11' if e[0] == 1 else vPR1}")
        for cb, v in ((0, vPM0), (1, vPM1)):
            for k in range(2): a.ds(f"ds_read_b64_tr_b16 {self.sub(b, 4*cb+2*k, 2)}, {v} offset:{W2B + e[3]*2048 + k*512}", f"u{i}")
    def begin(self, pre, defer, fin=None):
        g = self.g; a = g.a
        if self.r1:
            a(f"s_bfe_u32 {T1}, {sW}, 0x10001"); a(f"s_lshl_b32 {T2}, {sBB}, 1"); a(f"s_sub_u32 {T2}, {T1}, {T2}"); a(f"s_lshl_b32 {T2}, {T2}, 11")
            a(f"s_lshl_b32 {T1}, {T1}, 6"); a(f"v_add_u32 v10, {T2}, {vPR0}"); a(f"v_xor_b32 v10, {T1}, v10"); a("v_xor_b32 v11, 64, v10")
            a(f"s_xor_b32 {T1}, {sMM}, {sBB}"); a(f"s_and_b32 {T1}, {T1}, 1"); a(f"s_lshl_b32 {T3}, {T1}, 19"); a(f"s_lshl_b32 {T1}, {T1}, 8")
            a(f"v_add_u32 v9, {T2}, {vHL}"); a(f"v_xor_b32 v9, {T3}, v9")
            a(f"v_lshrrev_b32 {V1}, 3, {vL}"); a(f"v_cmp_eq_u32 vcc, 3, {V1}"); a(f"v_xor_b32 {V1}, {T1}, v9"); a(f"v_cndmask_b32 v9, v9, {V1}, vcc")
        nb = self.opt('rfin', 0)
        if fin and nb == 0: fin()
        g.poll_h(0, self.r1, self.masks[0], pre)
        g.stamp(8)
        if fin and nb: self.issue(99, nb); fin()
        self.issue(99, self.opt('la0', 12 if defer else 6), defer)
        if self.r1 and self.opt('wo1_at', 12) == -1:
            for f in g.dmaWO(1): f()
        if self.hasq and self.opt('wo_at', 0) < 0:
            g.push(*(g.dmaWO(1) + g.dmaWO(0)))
            if not defer: g.flush()
    def send(self):
        g = self.g; a = g.a
        inw2 = self.opt('k1', 2) >= 5
        a(f"s_lshl_b32 {T0}, {sW}, 12")
        if inw2: a("s_barrier"); base = W2B
        else: a(f"s_and_b32 {T1}, {sMM}, 2"); a(f"s_lshl_b32 {T1}, {T1}, 14"); a(f"s_add_u32 {T0}, {T0}, {T1}"); base = R
        a(f"s_add_u32 {T1}, {T0}, {base}"); a(f"s_xor_b32 {T0}, {T0}, 0x2000"); a(f"s_add_u32 {T0}, {T0}, {base}")
        a(f"v_add_u32 {V1}, {T1}, {vL16}"); a(f"v_add_u32 {V2}, {T0}, {vL16}")
        for k in range(4): a.ds(f"ds_write_b128 {V1}, {vr(ACCP+16+4*k,4)} offset:{k*1024}", "rw")
        a(f"s_xor_b32 {T1}, {sMM}, {sBB}"); a(f"s_and_b32 {T1}, {T1}, 1"); a(f"s_lshl_b32 {T1}, {T1}, 17"); a(f"s_xor_b32 {T2}, {sUB}, {T1}")
        a(f"s_bfe_u32 {T1}, {sW}, 0x10001"); a(f"s_lshl_b32 {T1}, {T1}, 11"); a(f"s_add_u32 {T2}, {T2}, {T1}")
        a.wait(lg="rw"); a("s_barrier")
        for k in range(4): a.ds(f"ds_read_b128 {vr(ACCP+16+4*k,4)}, {V2} offset:{k*1024}", f"x{k>>1}")
        for gp in range(2):
            D = ACCP + 8*gp
            a.wait(lg=f"x{gp}")
            for i in range(8): a(f"v_add_f32 v{D+i}, v{D+i}, v{D+16+i}")
            for i in range(4): a(f"v_cvt_pk_bf16_f32 v{D+i}, v{D+2*i}, v{D+2*i+1}")
            a.vmem(f"buffer_store_dwordx4 {vr(D,4)}, {vL16}, {SWS}, {T2} offen offset:{gp*1024} sc1", "xst")
        if not inw2: a("s_barrier")
    def xflag(self):
        g = self.g; a = g.a
        a(f"s_and_b32 {T0}, {sMM}, 2"); a(f"s_add_u32 {T0}, {T0}, {sBB}"); a(f"s_lshl_b32 {T1}, {sC}, 2"); a(f"s_add_u32 {T0}, {T0}, {T1}"); a(f"s_lshl_b32 {T0}, {T0}, 3"); a(f"s_add_u32 {T0}, {T0}, {sN}")
        a(f"s_lshl_b32 {T0}, {T0}, 1"); a(f"s_and_b32 {T1}, {sW}, 1"); a(f"s_add_u32 {T0}, {T0}, {T1}"); a(f"s_lshl_b32 {T0}, {T0}, 6"); a(f"s_and_b32 {T1}, {sW}, 2"); a(f"s_lshl_b32 {T1}, {T1}, 1")
        a(f"s_add_u32 {T0}, {T0}, {T1}"); a(f"s_add_u32 {T0}, {T0}, {XF_OFF}"); a(f"v_mov_b32 {V1}, {sTAG}")
        a.wait(vm="xst")
        a("s_mov_b64 exec, 1"); a.vmem(f"buffer_store_dword {V1}, off, {SWS}, {T0} sc1", "flag"); a("s_mov_b64 exec, -1")
        g.stamp("fX")
    def main(self):
        g = self.g; a = g.a; seq = self.seq; N = len(seq); i_send = self.i_send
        g.red_addr(W2B)
        ofirst = self.hasq and self.opt('so', 99) < 0
        if ofirst:
            g.f_issue(); g.f_check(); g.o_compute()
            self.issue(99, self.opt('la1', 10))
            a.wait(vm="ost"); g.flag_o()
            self.issue(99, self.opt('la2', 0))
        a.wait(vm="w2a"); a("s_barrier")
        g.stamp("f0")
        LA = self.opt('la', 6)
        if self.r1:
            i_mid, i_late = (22, 29) if i_send == 33 else (i_send - 10, i_send - 4)
            cm = i_mid - self.opt('cmb', 4); pm = cm - self.opt('pmb', 3); cl = i_late - self.opt('clb', 4); pl = max(cm, cl - self.opt('plb', 3))
        else:
            pm, cm = self.opt('pm0', 3), self.opt('cm0', 6); pl = cl = -1
        wo_at = self.opt('wo_at', 0); fi = self.opt('fi', 4)
        i_o = min(N - 1, self.opt('so', 99)); i_f = min(N - 1, i_o + self.opt('sf', 2))
        first = {1: True, 2: True}
        tp = N - 1 - self.opt('tp', -1)
        assert tp >= N or (tp >= max(cm, cl) and (tp >= i_send - 1 if self.r1 else tp >= i_o))
        self.rd(0); self.rd(1)
        for i in range(N):
            if i == cm: g.poll_h(1, self.r1, self.masks[1], "pf"); self.ok['mid'] = True
            if i == cl: g.poll_h(2, self.r1, self.masks[2], "pf"); self.ok['late'] = True
            if i == pm or i == pl: g.pf_issue(1 if i == pm else 2, self.r1)
            if self.hasq and i == wo_at: g.push(*(g.dmaWO(1) + g.dmaWO(0)))
            if self.r1 and i == self.opt('wo1_at', 12): g.push(*g.dmaWO(1))
            if self.r1 and self.opt('k1', 2) >= 5 and i == self.opt('wo0_at', 18): g.push(*g.dmaWO(0))
            self.issue(i + LA, 2)
            assert i in self.issued, (self.P, i, self.issued)
            if i + 1 == self.i_b:
                a.wait(vm="w2b"); a("s_barrier"); g.stamp("fb")
                self.rd(i + 1)
            if i + 2 < N and i + 2 != self.i_b: self.rd(i + 2)
            rnd = seq[i][0]
            a.wait(vm=f"h{i}", lg=f"u{i}")
            for cb in range(2):
                acc = vr((ACCP if rnd == 1 else ACCF) + 16*cb, 16)
                a(f"v_mfma_f32_32x32x16_bf16 {acc}, {self.sub(self.bufs[i % 3], 4*cb, 4)}, {ar(4*self.issued[i],4)}, {'0' if first[rnd] else acc}")
            first[rnd] = False; self.done = i
            g.slot(self.opt('wo_per', 1))
            if self.late and i == self.opt('hf', 3): a.wait(vm="hst"); g.flag_h(True)
            if g.o.get('stamps', 0) >= 3 and i % 2 == 0 or i in (0, N - 1) or i + 1 == i_send: g.stamp(f"u{i}")
            if i + 1 == i_send:
                self.issue(N - 1 - self.opt('post', 0), 99)
                a.wait(lg=f"u{min(N-1, i+2)}")
                self.send()
                g.stamp("xs")
                self.issue(99, 99)
                if self.opt('k1', 2) < 5: g.push(*g.dmaWO(0))
            if self.hasq and not ofirst:
                if i == fi: g.f_issue()
                if i == i_o:
                    a.wait(lg=f"u{min(N-1, i+2)}"); g.f_check(); g.o_compute()
                    if wo_at == 99:
                        w = g.dmaWO(1) + g.dmaWO(0); nw = self.opt('wpre', 8)
                        for f in w[:nw]: f()
                        wrest = w[nw:]
                if i == i_f:
                    a.wait(vm="ost"); g.flag_o()
                    if wo_at == 99: g.push(*wrest)
            if self.P == 'kx' and i == min(N - 1, i_send + 1): g.bump()
            if i == tp: g.flush(); g.g_loads(True); g.pf_issue()
        g.flush()
        g.tail2(self.xflag if self.r1 else None, tp < N)
    def hop1(self, i):
        g = self.g
        assert all(e[0] == 1 for e in self.seq[:i+1])
        fin = g.reducer(lambda: None, PHI)
        self.issue(99, self.opt('rla', 99))
        fin()

if __name__ == '__main__':
    out = sys.argv[1]
    opt = json.loads(sys.argv[2]) if len(sys.argv) > 2 else {}
    open(out, 'w').write(Gen2(opt).build())
```
